```python
import torch

def _softmax(x, axis=-1):
    return torch.softmax(x, dim=axis)
def _gelu(x):
    return torch.nn.functional.gelu(x, approximate="tanh")
def _silu(x):
    return torch.nn.functional.silu(x)
def _sigmoid(x):
    return torch.sigmoid(x)
def _layernorm(x, axis=-1, eps=1e-5):
    m = x.mean(dim=axis, keepdim=True)
    v = x.var(dim=axis, keepdim=True, unbiased=False)
    return (x - m) / torch.sqrt(v + eps)
def _scatter_add(tgt, idx, src, axis=0):
    return tgt.clone().index_add_(axis, idx, src)
def _segment_sum(src, seg, n):
    out = torch.zeros((n,) + src.shape[1:], dtype=src.dtype)
    return out.index_add_(0, seg, src)
def _pad(x, pw):
    flat = tuple(v for pair in reversed(pw) for v in pair)
    return torch.nn.functional.pad(x, flat)

kernel_name = 'parallel_sum__sliding_local_dilated__dense_activation_squared_relu__prompt'

def setup_inputs():

    _w = (lambda a: (lambda t: t.to(torch.bfloat16) if t.is_floating_point() else t)(torch.as_tensor(a)))
    def _A_setup():
        B, S, D = 1, 2048, 1024
        return {
            "x": _w((lambda *s: torch.randn(*s, dtype=torch.bfloat16) * 0.05)(B, S, D)),
            "wqkv": _w((lambda *s: torch.randn(*s, dtype=torch.bfloat16) * 0.1)(D, 3 * D)),
            "wo": _w((lambda *s: torch.randn(*s, dtype=torch.bfloat16) * 0.05)(D, D)),
        }
    _A_in = _A_setup()

    def _B_setup():
        B, S, D, F = 1, 2048, 1024, 3584
        return {
            "x": _w((lambda *s: torch.randn(*s, dtype=torch.bfloat16) * 0.05)(B, S, D)),
            "w1": _w((lambda *s: torch.randn(*s, dtype=torch.bfloat16) * 0.05)(D, F)),
            "b1": _w((lambda *s: torch.randn(*s, dtype=torch.bfloat16) * 0.4)(F)),
            "w2": _w((lambda *s: torch.randn(*s, dtype=torch.bfloat16) * 0.05)(F, D)),
            "b2": _w((lambda *s: torch.randn(*s, dtype=torch.bfloat16) * 3.2)(D)),
        }
    _B_in = _B_setup()

    return {
        "A_x": _A_in["x"],
        "A_wqkv": _A_in["wqkv"],
        "A_wo": _A_in["wo"],
        "B_x": _B_in["x"],
        "B_w1": _B_in["w1"],
        "B_b1": _B_in["b1"],
        "B_w2": _B_in["w2"],
        "B_b2": _B_in["b2"],
    }

def reference(A_x, A_wqkv, A_wo, B_x, B_w1, B_b1, B_w2, B_b2):
    def _A_ref(x, wqkv, wo):
        B, S, D = x.shape
        H = 32; Dh = D // H
        W, dil = 8, 2
        qkv = (lambda x, *d: x.permute(*d))((x @ wqkv).reshape(B, S, 3, H, Dh), 2, 0, 3, 1, 4)
        q, k, v = qkv[0], qkv[1], qkv[2]
        scale = Dh ** -0.5
        pos = torch.arange(S)
        off = torch.arange(W) * dil
        idx = pos[:, None] - off[None, :]
        mask = idx >= 0
        idx_c = torch.where(mask, idx, 0).reshape(-1)
        kg = k[:, :, idx_c, :].reshape(B, H, S, W, Dh)
        vg = v[:, :, idx_c, :].reshape(B, H, S, W, Dh)
        logits = torch.einsum("bhsd,bhswd->bhsw", q, kg) * scale
        logits = torch.where(mask[None, None, :, :], logits, -1e9)
        attn = _softmax(logits, axis=-1)
        o = torch.einsum("bhsw,bhswd->bhsd", attn, vg)
        return (lambda x, *d: x.permute(*d))(o, 0, 2, 1, 3).reshape(B, S, D) @ wo

    def _B_ref(x, w1, b1, w2, b2):
        h = torch.einsum("bsd,df->bsf", x, w1) + b1
        zero = torch.zeros_like(h)
        r = torch.where(h > zero, h, zero)
        h = r * r
        out = torch.einsum("bsf,fd->bsd", h, w2) + b2
        return out

    x = A_x
    xn = _layernorm(x, axis=-1)
    return x + _A_ref(xn, A_wqkv, A_wo) + _B_ref(xn, B_w1, B_b1, B_w2, B_b2)
```

```python
import sys, argparse

NAME = "parallel_sum__sliding_local_dilated__dense_activation_squared_relu__prompt"

WS_A2 = 4 << 20
A2_BYTES = 2048 * 4608 * 2
WS_PART = 32 << 20
WS_SIDE = 48 << 20
SD_FLAG, SD_Q, SD_RS, SD_P = 0, 0x10000, 0x20000, 0x40000
SD_BYTES = SD_P + 416 * 1024
WS_STAMP = 64 << 20

OPT = set()
PAR = {}
def par(k, d): return int(PAR.get(k, d))

class Asm:
    def __init__(self): self.L = []
    def __call__(self, s):
        for line in s.split("\n"):
            t = line.strip()
            self.L.append(t if t.endswith(":") else "  " + t)
    def label(self, s): self.L.append(s + ":")
    def raw(self, s): self.L.append(s)
    def text(self): return "\n".join(self.L) + "\n"

def vr(b, n=1, f="v"): return f"{f}{b}" if n == 1 else f"{f}[{b}:{b+n-1}]"
def ar(b, n=1): return vr(b, n, "a")
def sq(b): return f"s[{b}:{b+3}]"

def kernel_head(A, name):
    A.raw(f".globl {name}\n.p2align 8\n.type {name},@function\n{name}:")

def kernel_desc(A, name, nvgpr, accum, nsgpr=102):
    A.raw(f".p2align 6\n.amdhsa_kernel {name}\n  .amdhsa_next_free_vgpr {nvgpr}\n  .amdhsa_next_free_sgpr {nsgpr}\n"
          f"  .amdhsa_accum_offset {accum}\n  .amdhsa_group_segment_fixed_size 0\n  .amdhsa_kernarg_size 88\n"
          f"  .amdhsa_user_sgpr_count 2\n  .amdhsa_user_sgpr_kernarg_segment_ptr 1\n  .amdhsa_system_sgpr_workgroup_id_x 1\n"
          f"  .amdhsa_float_denorm_mode_32 3\n.end_amdhsa_kernel")

def srd(A, d, lo, hi, nbytes, add=0):
    if add:
        A(f"s_add_u32 s{d}, s{lo}, {add:#x}")
        A(f"s_addc_u32 s{d+1}, s{hi}, 0")
    else:
        A(f"s_mov_b32 s{d}, s{lo}")
        A(f"s_mov_b32 s{d+1}, s{hi}")
    if nbytes is not None: A(f"s_mov_b32 s{d+2}, {nbytes:#x}")
    A(f"s_mov_b32 s{d+3}, 0x20000")

class Stamp:
    def __init__(self, on, kidx): self.on, self.kidx, self.n = on, kidx, 0
    def text(self):
        if not self.on: return None
        t = f"s_memrealtime s[{68+2*self.n}:{69+2*self.n}]\ns_memtime s[{84+2*self.n}:{85+2*self.n}]"
        self.n += 1
        assert self.n <= 8
        return t
    def mark(self, A):
        t = self.text()
        if t: A(t)
    def flush(self, A, ws_lo, ws_hi, vtmp, s_wave):
        if not self.on: return
        self.mark(A)
        A("s_waitcnt lgkmcnt(0)")
        A(f"s_lshl_b32 s100, s2, 3")
        A(f"s_add_u32 s100, s100, {s_wave}")
        A(f"s_lshl_b32 s100, s100, 6")
        srd(A, 8, ws_lo, ws_hi, 0x100000, WS_STAMP + self.kidx * 0x40000)
        for i in range(16):
            A(f"v_mov_b32 v{vtmp+i}, s{68+2*i}" if i % 8 < self.n else f"v_mov_b32 v{vtmp+i}, 0")
        A(f"v_mov_b32 v{vtmp+16}, s100")
        A("s_mov_b64 exec, 1")
        for q in range(4):
            A(f"buffer_store_dwordx4 v[{vtmp+4*q}:{vtmp+4*q+3}], v{vtmp+16}, s[8:11], 0 offen offset:{16*q}")

class Score:
    def __init__(self, maxn):
        self.n = 0; self.idx = {}; self.done = 0; self.maxn = maxn
    def issue(self, tag=None):
        self.n += 1
        if tag is not None: self.idx[tag] = self.n
        assert self.n - self.done <= 63 or self.maxn == 15, "too many outstanding"
    def need(self, tags, slack=None):
        y = max(self.idx[t] for t in tags)
        if y <= self.done: return None
        N = self.n - y
        if slack is not None: N = min(N, slack)
        N = min(N, self.maxn)
        self.done = self.n - N
        return N
    def drain(self): self.done = self.n
    def skip(self, tag=None):
        if tag is not None: self.idx[tag] = 0

LG_SLACK = 8
class Stream:
    def __init__(self, vm, lg):
        self.mf = []; self.gaps = []; self.used = []; self.vm, self.lg = vm, lg
    def add_mfma(self, text, needs=()):
        self.mf.append((text, list(needs))); self.gaps.append([]); self.used.append(0)
        return len(self.mf) - 1
    def place(self, i0, kind, text, gives=None, needs=(), cap=1, spill=False):
        i = i0
        while i < len(self.mf) and self.used[i] >= cap: i += 1
        if i >= len(self.mf):
            assert spill, "no free gap"
            i = len(self.mf) - 1
        self.used[i] += 1
        self.gaps[i].append((kind, text, gives, list(needs)))
        return i
    def waits(self, needs, out, lgz=False):
        w = []
        lt = [t for c, t in needs if c == "lg"]; vt = [t for c, t in needs if c == "vm"]
        if lgz:
            if self.lg.done < self.lg.n: w.append("lgkmcnt(0)")
            self.lg.drain()
        elif lt:
            n = self.lg.need(lt, slack=LG_SLACK)
            if n is not None: w.append(f"lgkmcnt({n})")
        if vt:
            n = self.vm.need(vt)
            if n is not None: w.append(f"vmcnt({n})")
        if w: out.append("s_waitcnt " + " ".join(w))
    def emit(self, pfx):
        out = []
        for (text, needs), gap in zip(self.mf, self.gaps):
            self.waits(needs, out)
            if pfx + "nomfma" not in OPT: out.append(text)
            for kind, t, gives, nd in gap:
                if kind == "ds" and pfx + "nords" in OPT: self.lg.skip(gives); continue
                if kind == "vmA" and pfx + "noA" in OPT: self.vm.skip(gives); continue
                if kind == "vmD" and pfx + "noD" in OPT: self.vm.skip(gives); continue
                if kind in ("bar", "barv"):
                    self.waits(nd, out, lgz=(kind == "bar"))
                    out.append("s_barrier")
                    continue
                self.waits(nd, out)
                if kind == "ds": self.lg.issue(gives)
                if kind.startswith("vm"): self.vm.issue(gives)
                out.append(t)
        return out

def check_hazards(lines):
    import re
    def regs(tok):
        tok = tok.strip().strip("|").lstrip("-")
        m = re.fullmatch(r"([va])(\d+)", tok)
        if m: return {(m.group(1), int(m.group(2)))}
        m = re.fullmatch(r"([va])\[(\d+):(\d+)\]", tok)
        if m: return {(m.group(1), i) for i in range(int(m.group(2)), int(m.group(3)) + 1)}
        return set()
    hist = []
    pos = 0
    for ln in lines:
        t = ln.strip()
        if not t or t.endswith(":") or t.startswith(";") or t.startswith("."): continue
        mn = t.split()[0]
        ops = [o.split()[0] if o.split() else o for o in t[len(mn):].split(",")]
        R = [regs(o) for o in ops]
        if mn == "s_nop":
            pos += int(ops[0]) + 1; continue
        is_mfma = mn.startswith("v_mfma"); is_valu = mn.startswith("v_") and not is_mfma
        is_mem = mn.startswith("buffer_") or mn.startswith("ds_")
        if is_mfma or is_valu or is_mem:
            allr = set().union(*R) if R else set()
            for kind, wr, sc, p in hist[-24:]:
                d = pos - p - 1
                if kind == "mfma":
                    if is_mfma:
                        if (R[1] | R[2]) & wr and d < 8: raise Exception(f"hazard MFMA->MFMA AB: {t}")
                        if R[3] & wr and R[3] != wr and d < 6: raise Exception(f"hazard MFMA->MFMA C overlap: {t}")
                    else:
                        if allr & wr and d < 8: raise Exception(f"hazard MFMA->{mn} d={d}: {t}")
                        if is_valu and R[0] & sc and d < 3: raise Exception(f"hazard MFMA srcC WAR: {t}")
                elif kind == "valu":
                    if is_mfma and (R[1] | R[2] | R[3]) & wr and d < 2: raise Exception(f"hazard VALU->MFMA: {t}")
                    if is_valu and ("dpp" in mn or "permlane" in mn) and allr & wr and d < 2: raise Exception(f"hazard VALU->DPP: {t}")
                    if mn.startswith("v_readfirstlane") and R[1] & wr and d < 1: raise Exception(f"hazard VALU->readlane: {t}")
                elif kind == "trans":
                    if is_mfma and (R[1] | R[2] | R[3]) & wr and d < 2: raise Exception(f"hazard VALU->MFMA: {t}")
                    if is_valu and set().union(*R[1:]) & wr and d < 1: raise Exception(f"hazard trans->VALU: {t}")
                elif kind == "store":
                    if is_valu and R[0] & wr and d < 2: raise Exception(f"hazard store data WAR: {t}")
            if is_mfma: hist.append(("mfma", R[0], R[3], pos))
            elif is_valu:
                wr = set(R[0])
                if "swap" in mn: wr |= R[1]
                tr = any(mn.startswith(x) for x in ("v_exp", "v_rcp", "v_rsq", "v_sqrt", "v_log"))
                hist.append(("trans" if tr else "valu", wr, set(), pos))
            elif mn.startswith("buffer_store_dwordx4"): hist.append(("store", R[0], set(), pos))
        pos += 1

RING0 = 2048
S_SRDA, S_SRDW, S_SRDO, S_SRDS, S_SRDB, S_SRDC, S_SRDP, S_SRDT = 4, 8, 12, 16, 28, 32, 36, 40
S_C, S_SOFW, S_SOFW2, S_M0B, S_M0A, S_W, S_MB, S_NT = 20, 21, 22, 23, 24, 25, 26, 27
S_CF, S_CHF = 44, 45
S_X0 = 46
S_AROW = 62
V_AD, V_AR, V_L16, V_D, V_R, V_RH, V_T = 224, 226, 228, 229, 232, 240, 244
A_CS, A_P, A_Q, A_SEL, A_DUM = 136, 136, 200, 220, 224

class K1Var:
    def __init__(self, kind):
        self.kind = kind
        if kind == "w1": self.NJ, self.NT, self.CH, self.pitch = 14, 4, 7168, 7168
        else: self.NJ, self.NT, self.CH, self.pitch = 12, 5, 6144, 6144
        self.SL = 4 * self.CH
        self.ASL = self.NT * 2048
        self.ABASE = RING0 + 3 * self.SL
        self.AA = 56
    def wfrag(self, j, ks): return (j % (self.NJ // 2)) * 8 + ks * 4
    def afrag(self, st, ks, t): return self.AA + ((st * 2 + ks) * self.NT + t) * 4
    def acc(self, t, j):
        if t < 4: return (j * 4 + t) * 4
        return 192 + (0 if j == 4 else 4)
    def groups(self):
        return [(j, [0, 1, 2, 3] + ([4] if self.kind == "qkv" and j in (4, 8) else [])) for j in range(self.NJ)]
    def mm(self, t, j, w, x, zero=False):
        c = vr(self.acc(t, j), 4)
        cin = "0" if zero else c
        if self.kind == "qkv" and j >= 8: w, x = x, w
        return f"v_mfma_f32_16x16x32_bf16 {c}, {w}, {x}, {cin}"
    def mfma(self, s, ks, t, j, zero=False):
        return self.mm(t, j, ar(self.wfrag(j, ks), 4), ar(self.afrag(s % 2, ks, t), 4), zero)
    def corr(self, t, j): return self.mm(t, j, ar(A_P + 4 * j, 4), ar(A_Q + 4 * t, 4))
    def read(self, s, ks, j, p):
        st, so = divmod(s % 3, 2)
        base = RING0 + so * self.SL + ks * 2 * self.CH
        d = ar(self.wfrag(j, ks) + 2 * p, 2)
        if j < 12:
            b, jj = divmod(j, 4)
            return f"ds_read_b64_tr_b16 {d}, v{V_R + st*4 + jj} offset:{base + b*1024 + p*512}"
        return f"ds_read_b64_tr_b16 {d}, v{V_RH + st*2 + (j-12)} offset:{base + p*256}"
    def aread(self, s, ks, t):
        return f"ds_read_b128 {ar(self.afrag(s % 2, ks, t), 4)}, v{V_AR+ks} offset:{(s % 2)*self.ASL + t*2048}"
    def admas(self, s, t):
        out = []
        for u in range(2):
            tgt = (s % 2) * self.ASL + t * 2048 + u * 1024
            out.append((f"s_add_u32 m0, s{S_M0A}, {tgt + 2048 - s*128:#x}",
                        f"buffer_load_dwordx4 v{V_AD+u}, {sq(S_SRDA)}, s{S_AROW+t} offen offset:{s*128} lds"))
        return out
    def dmas(self, s):
        out = []
        base = RING0 + (s % 3) * self.SL
        W = sq(S_SRDW)
        for rg in range(2):
            for b in range(3):
                tgt = base + rg * 3072 + b * 1024
                if self.kind == "w1": imm, so = b * 128, S_SOFW
                else: imm, so = (b * 2048, S_SOFW) if b < 2 else (0, S_SOFW2)
                out.append((f"s_add_u32 m0, s{S_M0B}, {tgt - imm:#x}",
                            f"buffer_load_dwordx4 v{V_D+rg}, {W}, s{so} offen offset:{imm} lds"))
        if self.kind == "w1":
            out.append((f"s_add_u32 m0, s{S_M0B}, {base + 6144:#x}",
                        f"buffer_load_dwordx4 v{V_D+2}, {W}, s{S_SOFW} offen lds"))
        return out
    def sof_adv(self):
        r = [f"s_add_u32 s{S_SOFW}, s{S_SOFW}, {64*self.pitch:#x}"]
        if self.kind == "qkv": r.append(f"s_add_u32 s{S_SOFW2}, s{S_SOFW2}, {64*self.pitch:#x}")
        return r

def xlane_sum2(A, a, b):
    for r in (8, 4, 2, 1):
        A("s_nop 0")
        for v in (a, b): A(f"v_add_f32_dpp v{v}, v{v}, v{v} row_ror:{r} row_mask:0xf bank_mask:0xf")
    for sw in ("v_permlane16_swap_b32", "v_permlane32_swap_b32"):
        for v in (a, b): A(f"v_mov_b32 v{v+1}, v{v}")
        A("s_nop 0")
        for v in (a, b): A(f"{sw} v{v}, v{v+1}")
        for v in (a, b): A(f"v_add_f32 v{v}, v{v}, v{v+1}")

def k1_variant(A, V, stamp):
    kind = V.kind
    st = Stamp(stamp, 1); st.n = 1
    NS, H, CH = 16, V.NJ // 2, V.CH
    lane, l16, g = 100, 101, 102
    T = 104
    X = S_X0
    if kind == "w1":
        A(f"s_mul_i32 s{X}, s{S_NT}, 448")
        A(f"s_and_b32 s{X+1}, s{S_NT}, 1")
        A(f"s_lshl_b32 s{X+2}, s{X+1}, 6")
        A(f"s_add_u32 s{S_CF}, s{X}, s{X+2}")
        A(f"s_xor_b32 s{X+2}, s{X+1}, 1")
        A(f"s_mul_i32 s{X+2}, s{X+2}, 384")
        A(f"s_add_u32 s{S_CHF}, s{X}, s{X+2}")
    else:
        A(f"s_lshl_b32 s{S_CF}, s{S_NT}, 7")
    r, pc, x, y = T, T + 1, T + 2, T + 3
    A(f"v_lshrrev_b32 v{r}, 3, v{lane}")
    A(f"v_bfe_u32 v{x}, v{lane}, 1, 2")
    A(f"v_bfe_u32 v{y}, v{lane}, 4, 1")
    A(f"v_xor_b32 v{x}, v{x}, v{y}")
    A(f"v_and_b32 v{pc}, 1, v{lane}")
    A(f"v_mul_u32_u24 v{r}, {V.pitch}, v{r}")
    A(f"v_lshl_add_u32 v{y}, v{pc}, 4, v{r}")
    A(f"s_mul_i32 s{X+3}, s{S_W}, {16*V.pitch}")
    A(f"s_add_u32 s{X+4}, s{X+3}, s{S_CF}")
    A(f"v_lshl_add_u32 v{V_D}, v{x}, 5, v{y}")
    A(f"v_add_u32 v{V_D}, s{X+4}, v{V_D}")
    A(f"v_xor_b32 v{x}, 2, v{x}")
    A(f"v_lshl_add_u32 v{V_D+1}, v{x}, 5, v{y}")
    A(f"s_add_u32 s{X+4}, s{X+4}, {8*V.pitch}")
    A(f"v_add_u32 v{V_D+1}, s{X+4}, v{V_D+1}")
    if kind == "w1":
        A(f"v_lshrrev_b32 v{T+4}, 2, v{lane}")
        A(f"v_mul_u32_u24 v{T+4}, {V.pitch}, v{T+4}")
        A(f"v_bfe_u32 v{T+5}, v{lane}, 1, 1")
        A(f"v_bfe_u32 v{T+6}, v{lane}, 5, 1")
        A(f"v_xor_b32 v{T+5}, v{T+5}, v{T+6}")
        A(f"v_lshl_add_u32 v{T+4}, v{T+5}, 5, v{T+4}")
        A(f"v_lshl_add_u32 v{T+4}, v{pc}, 4, v{T+4}")
        A(f"s_add_u32 s{X+4}, s{X+3}, s{S_CHF}")
        A(f"v_add_u32 v{V_D+2}, s{X+4}, v{T+4}")
    A(f"s_mul_i32 s{S_M0B}, s{S_W}, {CH}")
    A(f"s_mul_i32 s{S_M0A}, s{S_W}, {2*V.ASL}")
    A(f"s_add_u32 s{S_M0A}, s{S_M0A}, {V.ABASE - 2048}")
    A("s_waitcnt lgkmcnt(0)")
    srd(A, S_SRDA, 4, 5, 4 << 20) if False else None
    A(f"s_mov_b32 s{S_SRDA+2}, {4 << 20:#x}"); A(f"s_mov_b32 s{S_SRDA+3}, 0x20000")
    if kind == "w1": srd(A, S_SRDW, 56, 57, 1024 * 7168)
    else: srd(A, S_SRDW, 60, 61, 1024 * 6144)
    vm, lg = Score(63), Score(15)
    for q in range(4):
        A(f"buffer_load_dwordx4 v[{4+4*q}:{7+4*q}], v{V_L16}, {sq(S_SRDA)}, s67 offen offset:{q*1024}"); vm.issue("ROWS" if q == 3 else None)
    def pro_A(s):
        for t in range(V.NT):
            for u, (m0, d) in enumerate(V.admas(s, t)):
                A(m0); A("s_nop 0"); A(d); vm.issue(("A", s, t) if u == 1 else None)
    def pro_W(s):
        dm = V.dmas(s)
        for n, (m0, d) in enumerate(dm):
            A(m0); A("s_nop 0"); A(d); vm.issue(("D", s) if n == len(dm) - 1 else None)
        for x_ in V.sof_adv(): A(x_)
    pro_W(0); pro_A(0)
    if "nocpf" not in OPT:
        A(f"s_getpc_b64 s[{S_SRDS}:{S_SRDS+1}]")
        A.label(f"L_k1_pc_{kind}")
        A(f"s_mov_b32 s{S_SRDS+2}, L_k1_spin_{kind}-L_k1_pc_{kind}")
        A(f"s_mov_b32 s{S_SRDS+3}, 0x20000")
        A(f"s_bfe_u32 s{X+5}, s2, 0x10003")
        A(f"s_lshl_b32 s{X+5}, s{X+5}, 2")
        A(f"s_add_u32 s{X+5}, s{X+5}, s{S_W}")
        A(f"s_lshl_b32 s{X+5}, s{X+5}, 13")
        A(f"v_lshlrev_b32 v{T+4}, 3, v{V_L16}")
        A(f"buffer_load_dword a{A_DUM}, v{T+4}, {sq(S_SRDS)}, s{X+5} offen"); vm.issue()
    pro_W(1); pro_A(1)
    WSL, WSH = 14, 15
    A(f"s_mov_b32 s100, s{WSL}"); A(f"s_mov_b32 s101, s{WSH}")
    srd(A, S_SRDC, 12, 13, 4)
    srd(A, S_SRDT, 12, 13, None)
    A(f"s_cmp_eq_u32 s{S_W}, 0")
    A(f"s_cselect_b32 s{S_SRDT+2}, 4, 0")
    srd(A, S_SRDS, 100, 101, SD_BYTES, WS_SIDE)
    srd(A, S_SRDO, 100, 101, A2_BYTES, WS_A2)
    if kind == "w1":
        srd(A, S_SRDB, 58, 59, None)
        A(f"s_cmp_eq_u32 s{S_MB}, 0")
        A(f"s_cselect_b32 s{S_SRDB+2}, 7168, 0")
        A(f"s_mov_b32 s{S_SRDP+2}, {3584*2048:#x}")
    else:
        A(f"s_mov_b32 s{S_SRDP}, s38"); A(f"s_mov_b32 s{S_SRDP+1}, s39")
        A(f"s_mov_b32 s{S_SRDP+2}, {1024*2048:#x}")
    A(f"s_mov_b32 s{S_SRDP+3}, 0x20000")
    A("s_mov_b32 s58, s100"); A("s_mov_b32 s59, s101")
    A(f"s_lshl_b32 s{X+5}, s2, 7")
    A(f"v_mov_b32 v{T+4}, 0")
    A(f"buffer_store_dword v{T+4}, off, {sq(S_SRDS)}, s{X+5}"); vm.issue()
    VCA, VCS, VB1, VDC, VW = V_T, V_T + 1, V_T + 2, V_T + 4, V_T + 8
    A(f"v_and_b32 v{T+4}, 7, v{lane}")
    A(f"v_lshl_add_u32 v{VCA}, v{T+4}, 4, v{r}")
    if kind == "w1":
        A(f"s_lshl_b32 s{X+5}, s{S_W}, 7")
        A(f"s_add_u32 s{X+5}, s{X+5}, s{X}")
        A(f"v_lshlrev_b32 v{T+5}, 4, v{T+4}")
        A(f"v_lshl_add_u32 v{T+5}, v{g}, 3, v{T+5}")
        A(f"buffer_load_dwordx2 v[{VB1}:{VB1+1}], v{T+5}, {sq(S_SRDB)}, s{X+5} offen"); vm.issue("B1")
        A(f"s_lshr_b32 s{X+6}, s{X+5}, 5")
        A(f"s_add_u32 s{X+6}, s{X+6}, 192")
    else:
        A(f"s_min_u32 s{X+5}, s{S_W}, 2")
        A(f"s_lshl_b32 s{X+5}, s{X+5}, 11")
        A(f"s_add_u32 s{X+5}, s{X+5}, s{S_CF}")
        A(f"v_mov_b32 v{VB1}, 0"); A(f"v_mov_b32 v{VB1+1}, 0"); vm.skip("B1")
        A(f"s_lshr_b32 s{X+6}, s{X+5}, 5")
    A(f"s_mul_i32 s{X+7}, s{S_MB}, {128*V.pitch:#x}")
    A(f"s_add_u32 s{X+7}, s{X+7}, s{X+5}")
    S_CSL, S_CSS = X + 7, X + 6
    A(f"s_lshl_b32 s{S_CSS}, s{S_CSS}, 10")
    A(f"s_lshr_b32 s{X+5}, s{S_MB}, 1")
    A(f"s_lshl_b32 s{X+5}, s{X+5}, 8")
    A(f"s_add_u32 s{S_CSS}, s{S_CSS}, s{X+5}")
    A(f"s_and_b32 s{X+5}, s{S_MB}, 1")
    A(f"s_lshl_b32 s{X+5}, s{X+5}, 3")
    A(f"s_add_u32 s{S_CSS}, s{S_CSS}, s{X+5}")
    A(f"s_add_u32 s{S_CSS}, s{S_CSS}, {SD_P:#x}")
    A(f"v_lshrrev_b32 v{T+5}, 1, v{T+4}")
    A(f"v_lshlrev_b32 v{VCS}, 10, v{T+5}")
    A(f"v_lshl_add_u32 v{VCS}, v{pc}, 7, v{VCS}")
    A(f"v_lshl_add_u32 v{VCS}, v{g}, 6, v{VCS}")
    if kind == "w1":
        A(f"s_cmp_eq_u32 s{S_W}, 3")
        A(f"s_cselect_b32 s{X+5}, 0x2c, 0x28")
    else:
        A(f"s_mov_b32 s{X+5}, 0x28")
    A(f"v_and_b32 v{T+5}, s{X+5}, v{lane}")
    A(f"v_lshl_add_u32 v{VCS}, v{T+5}, 24, v{VCS}")
    A(f"v_lshlrev_b32 v{T+5}, 4, v{pc}")
    A(f"v_mov_b32 v{T+6}, 0x3f80")
    A(f"v_lshlrev_b32 v{T+6}, v{T+5}, v{T+6}")
    A(f"v_lshrrev_b32 v{T+5}, 1, v{l16}")
    for q in range(4):
        A(f"v_cmp_eq_u32 vcc, {q}, v{T+5}")
        A("s_nop 1")
        A(f"v_cndmask_b32 v{T+7}, 0, v{T+6}, vcc")
        A(f"v_accvgpr_write_b32 a{A_SEL+q}, v{T+7}")
    A(f"v_xor_b32 v{T+4}, v{T+5}, v{g}")
    A(f"v_lshlrev_b32 v{T+5}, 7, v{l16}")
    A(f"v_add_u32 v{T+5}, s{S_M0A}, v{T+5}")
    A(f"v_add_u32 v{T+5}, 2048, v{T+5}")
    A(f"v_lshl_add_u32 v{V_AR}, v{T+4}, 4, v{T+5}")
    A(f"v_xor_b32 v{T+4}, 4, v{T+4}")
    A(f"v_lshl_add_u32 v{V_AR+1}, v{T+4}, 4, v{T+5}")
    rp, c, sw, b = T + 4, T + 5, T + 6, T + 7
    A(f"v_bfe_u32 v{rp}, v{lane}, 2, 2")
    A(f"v_and_b32 v{c}, 3, v{lane}")
    A(f"v_bfe_u32 v{sw}, v{lane}, 3, 2")
    if kind == "qkv": A(f"v_xor_b32 v{sw}, s{S_W}, v{sw}")
    A(f"v_lshrrev_b32 v{b}, 5, v{lane}")
    A(f"v_mul_u32_u24 v{b}, {CH}, v{b}")
    A(f"v_lshl_add_u32 v{b}, v{c}, 3, v{b}")
    A(f"v_bfe_u32 v{T+8}, v{lane}, 4, 1")
    A(f"v_mul_u32_u24 v{T+9}, 3072, v{T+8}")
    A(f"v_lshl_add_u32 v{T+9}, v{rp}, 7, v{T+9}")
    A(f"v_add_u32 v{T+9}, v{T+9}, v{b}")
    for jj in range(4):
        A(f"v_xor_b32 v{T+10}, {jj}, v{sw}")
        A(f"v_lshl_add_u32 v{V_R+jj}, v{T+10}, 5, v{T+9}")
        A(f"v_add_u32 v{V_R+4+jj}, {2*V.SL}, v{V_R+jj}")
    if kind == "w1":
        A(f"v_lshl_add_u32 v{T+9}, v{T+8}, 3, v{rp}")
        A(f"v_lshl_add_u32 v{T+9}, v{T+9}, 6, v{b}")
        A(f"v_add_u32 v{T+9}, 6144, v{T+9}")
        for jj in range(2):
            A(f"v_xor_b32 v{T+10}, {jj}, v{T+8}")
            A(f"v_lshl_add_u32 v{V_RH+jj}, v{T+10}, 5, v{T+9}")
            A(f"v_add_u32 v{V_RH+2+jj}, {2*V.SL}, v{V_RH+jj}")
    S_HI = X + 8
    A(f"s_mov_b32 s{S_HI}, 0xffff0000")
    n = vm.need(["ROWS"]); A(f"s_waitcnt vmcnt({n})")
    U = 24
    for i in range(16):
        A(f"v_lshlrev_b32 v{U+2*i}, 16, v{4+i}")
        A(f"v_and_b32 v{U+2*i+1}, s{S_HI}, v{4+i}")
    sA, sB = 60, 62
    for q in range(1, 8):
        for rr, sv in ((0, sA), (1, sB)):
            b0 = U + 16 * rr
            src = f"v[{b0}:{b0+1}]" if q == 1 else f"v[{sv}:{sv+1}]"
            A(f"v_pk_add_f32 v[{sv}:{sv+1}], {src}, v[{b0+2*q}:{b0+2*q+1}]")
    for sv in (sA, sB): A(f"v_add_f32 v{sv}, v{sv}, v{sv+1}")
    A("s_nop 0")
    xlane_sum2(A, sA, sB)
    for sv in (sA, sB): A(f"v_mul_f32 v{sv}, 0x3a800000, v{sv}")
    qA, qB = 64, 66
    for q in range(8):
        for rr, sv in ((0, sA), (1, sB)):
            b0 = U + 16 * rr + 2 * q
            A(f"v_pk_add_f32 v[{b0}:{b0+1}], v[{b0}:{b0+1}], v[{sv}:{sv+1}] op_sel_hi:[1,0] neg_lo:[0,1] neg_hi:[0,1]")
    for q in range(8):
        for rr, qv in ((0, qA), (1, qB)):
            b0 = U + 16 * rr + 2 * q
            if q == 0: A(f"v_pk_mul_f32 v[{qv}:{qv+1}], v[{b0}:{b0+1}], v[{b0}:{b0+1}]")
            else: A(f"v_pk_fma_f32 v[{qv}:{qv+1}], v[{b0}:{b0+1}], v[{b0}:{b0+1}], v[{qv}:{qv+1}]")
    for qv in (qA, qB): A(f"v_add_f32 v{qv}, v{qv}, v{qv+1}")
    A(f"v_cmp_eq_u32 vcc, 1, v{pc}")
    xlane_sum2(A, qA, qB)
    A(f"v_cndmask_b32 v{sA}, v{sA}, v{sB}, vcc")
    A(f"v_cndmask_b32 v{qA}, v{qA}, v{qB}, vcc")
    A(f"v_mul_f32 v{qA}, 0x3a800000, v{qA}")
    A(f"v_cvt_pk_bf16_f32 v68, -v{sA}, -v{sA}")
    A(f"v_cvt_pk_bf16_f32 v{qA}, v{qA}, v{qA}")
    A(f"v_and_b32 v{qA}, s{S_HI}, v{qA}")
    A(f"v_add_f32 v{qA}, 0x3727c5ac, v{qA}")
    A(f"v_cvt_pk_bf16_f32 v{qA}, v{qA}, v{qA}")
    A(f"v_and_b32 v{qA}, s{S_HI}, v{qA}")
    A(f"v_sqrt_f32 v{qA}, v{qA}")
    A("v_mov_b32 v70, v68")
    A(f"v_cvt_pk_bf16_f32 v69, -v{sA}, v{qA}")
    A(f"v_and_b32 v{qA}, s{S_HI}, v69")
    A(f"v_rcp_f32 v{qA}, v{qA}")
    A("v_mov_b32 v71, v69")
    A(f"s_lshr_b32 s{X+5}, s67, 7")
    A(f"s_add_u32 s{X+5}, s{X+5}, {SD_Q:#x}")
    A(f"s_lshr_b32 s{X+9}, s67, 9")
    A(f"s_add_u32 s{X+9}, s{X+9}, {SD_RS:#x}")
    A(f"v_lshlrev_b32 v{T+4}, 2, v{lane}")
    A("s_mov_b64 exec, 3")
    A(f"buffer_store_dwordx4 v[68:71], v{V_L16}, {sq(S_SRDS)}, s{X+5} offen sc1"); vm.issue()
    A(f"buffer_store_dword v{qA}, v{T+4}, {sq(S_SRDS)}, s{X+9} offen sc1"); vm.issue()
    A("s_mov_b64 exec, -1")
    n = vm.need([("D", 0)])
    if n is not None: A(f"s_waitcnt vmcnt({n})")
    A("s_barrier")
    st.mark(A)
    for j in range(H):
        for q in range(4): A(V.read(0, q >> 1, j, q & 1))
        lg.skip(("W", 0, j))
    n = vm.need([("A", 0, V.NT - 1)])
    if n is not None: A(f"s_waitcnt vmcnt({n})")
    for t in range(V.NT):
        for ks in range(2): A(V.aread(0, ks, t))
        lg.skip(("AF", 0, t))
    A("s_waitcnt lgkmcnt(0)")
    S = Stream(vm, lg)
    groups = V.groups()
    first, last, fin = {}, {}, {}
    for s in range(NS):
        n = 0
        for j, ts in groups:
            ts = list(ts) if j % 2 == 0 else list(reversed(ts))
            if 4 in ts: ts = [4, 0, 1, 2, 3]
            for t in ts:
                kk = (0, 1) if n % 2 == 0 else (1, 0)
                for ks in kk:
                    needs = [("lg", ("W", s, j)), ("lg", ("AF", s, t))]
                    idx = S.add_mfma(V.mfma(s, ks, t, j, zero=(s == 0 and ks == kk[0])), needs)
                    first.setdefault((s, j), idx); last[(s, j)] = idx
                    if s == NS - 1 and ks == kk[0]:
                        S.add_mfma(V.corr(t, j), [("vm", ("P", j)), ("vm", ("Q", t))])
                fin[(t, j)] = idx
                n += 1
    bar = {}
    SIG, POLL, CHK = par("k1sig", 8), par("k1poll", 11), par("k1chk", 12)
    for s in range(NS):
        if s + 1 < NS:
            bar[s] = last[(s, H)]
            S.gaps[bar[s]].append(("bar", None, None, [("vm", ("D", s + 1))] + ([("vm", "CS")] if s == SIG else [])))
        for j, _ in groups:
            s2, j2 = (s, j + H) if j < H else (s + 1, j - H)
            if s2 >= NS: continue
            i = last[(s, j)]
            step = 1 if j == H - 1 else 2
            for q in range(4):
                i = S.place(i, "ds", V.read(s2, q >> 1, j2, q & 1), gives=("W", s2, j2) if q == 3 else None) + step
    cur = 0
    def dma_seq(i0, i1, lst):
        nonlocal cur
        i0 = max(i0, cur)
        n = len(lst)
        for k, (pre, d, kd, gives, needs) in enumerate(lst):
            tgt = max(cur, i0 + (k * (i1 - i0)) // n)
            i = S.place(tgt, "s", pre, cap=2)
            cur = S.place(i + 1, kd, d, gives=gives, needs=needs)
    def merge(a, b):
        if not b: return a
        out, k = [], 0
        for i, x in enumerate(a):
            out.append(x)
            while k < len(b) and (k + 1) * len(a) <= (i + 1) * len(b): out.append(b[k]); k += 1
        return out + b[k:]
    def wlist(s):
        dm = V.dmas(s)
        return [(m0, d, "vmD", ("D", s) if n == len(dm) - 1 else None, []) for n, (m0, d) in enumerate(dm)]
    def alist(s, dep=True):
        return [(m0, d, "vmA", ("A", s, t) if u == 1 else None, [("lg", ("AF", s - 2, t))] if dep else [])
                for t in range(V.NT) for u, (m0, d) in enumerate(V.admas(s, t))]
    def areads(s, i0, i1):
        for t in range(V.NT):
            i = i0 + (t * (i1 - i0)) // V.NT
            i = S.place(i, "ds", V.aread(s, 0, t), needs=[("vm", ("A", s, t))])
            S.place(i + 1, "ds", V.aread(s, 1, t), gives=("AF", s, t))
    extra = {}
    cs = [(f"s_add_u32 s60, s{S_CSL}, {i*8*V.pitch:#x}",
           f"buffer_load_dwordx4 {ar(A_CS+4*i, 4)}, v{VCA}, {sq(S_SRDW)}, s60 offen", "vmX", ("CL", i), []) for i in range(16)]
    extra[(2, 0)], extra[(2, 1)], extra[(3, 0)], extra[(3, 1)] = cs[0:4], cs[4:8], cs[8:12], cs[12:16]
    npf = 4 if kind == "w1" else 1
    per_wave = 14336 if kind == "w1" else 4096
    pf = []
    for i in range(npf):
        pre = f"s_add_u32 s60, s61, {min(i*4096, per_wave-4096):#x}"
        if i == 0:
            pre = (f"s_and_b32 s61, s2, 127\ns_lshl_b32 s61, s61, 2\ns_add_u32 s61, s61, s{S_W}\ns_mul_i32 s61, s61, {per_wave}\n"
                   f"v_lshlrev_b32 v{VCA}, 2, v{V_L16}\n" + pre)
        pf.append((pre, f"buffer_load_dword a{A_DUM}, v{VCA}, {sq(S_SRDP)}, s60 offen", "vmX", None, []))
    if "nopf" not in OPT: extra[(par("k1pf", 14), 0)] = pf
    st4 = [("s_nop 0", f"buffer_store_dwordx2 v[{VW+0}:{VW+1}], v{VCS}, {sq(S_SRDS)}, s{S_CSS} offen sc1", "vmS", None, [])]
    extra[(SIG, 1)] = [(f"v_mov_b32 v{VW}, 1", f"buffer_atomic_add v{VW}, v{V_L16}, {sq(S_SRDT)}, 0 offen", "vmS", None, [])]
    extra[(POLL, 1)] = [("s_nop 0", f"buffer_load_dword v{VW}, off, {sq(S_SRDC)}, 0 sc1", "vmX", "POLL", [])]
    pl = []
    for t in range(V.NT):
        pre = f"s_lshr_b32 s60, s{S_AROW+t}, 7\ns_add_u32 s60, s60, {SD_Q:#x}"
        if t == 0: pre = f"v_and_b32 v{VCA}, 0xff, v{V_L16}\n" + pre
        pl.append((pre, f"buffer_load_dwordx4 {ar(A_Q+4*t, 4)}, v{VCA}, {sq(S_SRDS)}, s60 offen sc1", "vmX", ("Q", t), []))
    for j in range(V.NJ):
        if kind == "w1":
            pre = f"s_lshl_b32 s60, s{S_CF if j < 12 else S_CHF}, 5\ns_add_u32 s60, s60, {SD_P + (192 + (j if j < 12 else j - 12))*1024:#x}"
        else:
            pre = (f"s_xor_b32 s60, s{S_W}, {j & 3}\ns_lshl_b32 s60, s60, 5\ns_add_u32 s60, s60, s{S_CF}\ns_lshl_b32 s60, s60, 5\n"
                   f"s_add_u32 s60, s60, {SD_P + (j >> 2)*65536:#x}")
        pl.append((pre, f"buffer_load_dwordx4 {ar(A_P+4*j, 4)}, v{V_L16}, {sq(S_SRDS)}, s60 offen sc1", "vmX", ("P", j), []))
    RSQ, RSV = V_T + 4, 200
    if kind == "qkv":
        for t in range(5):
            pre = f"s_lshr_b32 s60, s{S_AROW+t}, 9\ns_add_u32 s60, s60, {SD_RS:#x}"
            if t == 0: pre = f"v_lshrrev_b32 v{VCS}, 2, v{VCA}\nv_lshrrev_b32 v{VB1}, 4, v{V_L16}\nv_and_b32 v{VB1}, 0x30, v{VB1}\n" + pre
            pl.append((pre, f"buffer_load_dword v{RSQ+t}, v{VCS}, {sq(S_SRDS)}, s60 offen sc1", "vmX", ("RQ", t), []))
            pl.append(("s_nop 0", f"buffer_load_dwordx4 v[{RSV+4*t}:{RSV+4*t+3}], v{VB1}, {sq(S_SRDS)}, s60 offen sc1", "vmX", ("RV", t), []))
    h = len(pl) // 2
    extra[(CHK + 1, 0)], extra[(CHK + 1, 1)] = pl[:h], pl[h:]
    for s in range(NS):
        b0 = first[(s, 0)]
        b1 = first[(s + 1, 0)] if s + 1 < NS else len(S.mf)
        if s == 0:
            dma_seq(b0, bar[0], wlist(2) + alist(2, dep=False))
            for x_ in V.sof_adv(): S.place(cur, "s", x_, cap=3)
            areads(1, bar[0] - 8, bar[0] + 16)
            dma_seq(bar[0] + 1, b1, alist(3) + wlist(3))
            for x_ in V.sof_adv(): S.place(cur, "s", x_, cap=3)
            continue
        if s + 1 < NS:
            lo = b0 + (24 if s == 1 else 0)
            areads(s + 1, lo, bar[s] - 8)
            l0 = merge(alist(s + 3) if s + 3 < NS else [], extra.get((s, 0), []))
            if l0: dma_seq(lo + 8, bar[s], l0)
            l1 = merge(wlist(s + 3) if s + 3 < NS else [], extra.get((s, 1), []))
            if l1: dma_seq(bar[s] + 1, b1 + 4, l1)
            if s + 3 < NS:
                for x_ in V.sof_adv(): S.place(cur, "s", x_, cap=3)
        if s == CHK:
            cur = S.place(max(cur, b1 - 4), "s", f"v_readfirstlane_b32 s60, v{VW}\ns_nop 3\ns_cmp_eq_u32 s60, 256\n"
                          f"s_cbranch_scc0 L_k1_spin_{kind}\nL_k1_back_{kind}:", needs=[("vm", "POLL")], cap=3)
    i = first[(5, 0)]
    for q in range(16):
        cin = "0" if q == 0 else vr(VDC, 4)
        i = S.place(i, "s", f"v_mfma_f32_16x16x32_bf16 {vr(VDC,4)}, {ar(A_SEL,4)}, {ar(A_CS+4*q,4)}, {cin}", needs=[("vm", ("CL", q))], cap=2) + 5
    i = max(i + 8, first[(6, 0)])
    for r_ in range(4):
        i = S.place(i, "s", f"v_add_f32_dpp v{VDC+r_}, v{VDC+r_}, v{VDC+r_} row_ror:8 row_mask:0xf bank_mask:0xf", cap=2) + 1
    for r_ in range(4):
        d = VDC + r_
        sel = "0x05040302" if r_ % 2 == 0 else "0x07060302"
        ops = [f"v_and_b32 v{VW+2}, s{S_HI}, v{d}", f"v_sub_f32 v{VW+2}, v{d}, v{VW+2}",
               f"v_and_b32 v{VW+3}, s{S_HI}, v{VW+2}", f"v_sub_f32 v{VW+3}, v{VW+2}, v{VW+3}",
               f"s_mov_b32 s61, 0x07060302\nv_perm_b32 v{VW}, v{VW+2}, v{d}, s61",
               f"s_mov_b32 s61, {sel}\nv_perm_b32 v{VW+1}, v{VB1 + (r_ >> 1)}, v{VW+3}, s61"]
        for k, o in enumerate(ops):
            i = S.place(i, "s", o, cap=2, needs=[("vm", "B1")] if k == 5 else []) + 1
        i = S.place(i, "vmS", f"buffer_store_dwordx2 v[{VW}:{VW+1}], v{VCS}, {sq(S_SRDS)}, s{S_CSS} offen offset:{16*r_} sc1",
                    gives="CS" if r_ == 3 else None, cap=2) + 2
    assert i < bar[SIG - 1]
    tail = []
    if kind == "w1":
        pre = [f"s_lshl_b32 s{X}, s{S_MB}, 3", f"s_lshl_b32 s{X+1}, s{S_W}, 1", f"s_add_u32 s{X}, s{X}, s{X+1}",
               f"s_mul_i32 s{X}, s{X}, 144", f"s_add_u32 s{X}, s{X}, 32", f"s_lshr_b32 s{X+1}, s{S_CF}, 6", f"s_lshr_b32 s{X+2}, s{S_CHF}, 6",
               f"s_add_u32 s{X+1}, s{X+1}, s{X}", f"s_add_u32 s{X+2}, s{X+2}, s{X}", f"s_lshl_b32 s{X+1}, s{X+1}, 11", f"s_lshl_b32 s{X+2}, s{X+2}, 11"]
        i = first[(14, 0)]
        for o in pre: i = S.place(i, "s", o, cap=2) + 1
        for j in range(14):
            for t in (range(4) if j % 2 == 0 else range(3, -1, -1)):
                a = V.acc(t, j); e = fin[(t, j)] + 8
                dst = a if j % 2 == 0 else V.acc(t, j - 1) + 2
                for r_ in range(4): tail.append((e, "s", f"v_max_f32 v{a+r_}, 0, v{a+r_}", []))
                for q in (a, a + 2): tail.append((e, "s", f"v_pk_mul_f32 v[{q}:{q+1}], v[{q}:{q+1}], v[{q}:{q+1}]", []))
                tail.append((e, "s", f"v_cvt_pk_bf16_f32 v{dst}, v{a}, v{a+1}", []))
                tail.append((e, "s", f"v_cvt_pk_bf16_f32 v{dst+1}, v{a+2}, v{a+3}", []))
                if j % 2 == 1:
                    p = j // 2; a0 = V.acc(t, j - 1)
                    off = (t >> 1) * 144 * 2048 + (p * 2048 if p < 6 else 0)
                    tail.append((e, "vmS", f"s_add_u32 s60, s{X+1 if p < 6 else X+2}, {off:#x}\n"
                                 f"buffer_store_dwordx4 v[{a0}:{a0+3}], v{V_L16}, {sq(S_SRDO)}, s60 offen offset:{(t&1)*1024}{STMOD}", []))
    else:
        for j, ts in groups:
            ts = list(ts) if j % 2 == 0 else list(reversed(ts))
            if 4 in ts: ts = [4, 0, 1, 2, 3]
            if j >= 8: ts = [t for t in ts if t == 4] + [0, 1, 2, 3]
            for t in ts:
                a = V.acc(t, j); e = (fin[(t, j)] if j < 8 else last[(NS - 1, j)]) + 8
                for q in range(2):
                    if j < 8:
                        rs = RSQ + t
                        o = "op_sel_hi:[1,0]" if rs % 2 == 0 else "op_sel:[0,1]"
                        tail.append((e, "s", f"v_pk_mul_f32 v[{a+2*q}:{a+2*q+1}], v[{a+2*q}:{a+2*q+1}], v[{rs & ~1}:{(rs & ~1)+1}] {o}", [("vm", ("RQ", t))]))
                    else:
                        rs = RSV + 4 * t + 2 * q
                        tail.append((e, "s", f"v_pk_mul_f32 v[{a+2*q}:{a+2*q+1}], v[{a+2*q}:{a+2*q+1}], v[{rs}:{rs+1}]", [("vm", ("RV", t))]))
                if t == 4: d0 = a
                elif j < 8: d0 = a if j % 2 == 0 else V.acc(t, j - 1) + 2
                else: d0 = V.acc(0, j) + 2 + 2 * t
                cv = [f"v_cvt_pk_bf16_f32 v{d0}, v{a}, v{a+1}", f"v_cvt_pk_bf16_f32 v{d0+1}, v{a+2}, v{a+3}"]
                if j >= 8 and t == 0: cv.reverse()
                for o in cv: tail.append((e, "s", o, []))
    i = 0
    rest = []
    for e, kd, text, nd in tail:
        if rest or max(i, e) >= len(S.mf) - 1:
            rest.append((kd, text, nd)); continue
        k = max(i, e)
        while k < len(S.mf) - 1 and S.used[k] >= par("tailcap", 2): k += 1
        if k >= len(S.mf) - 1:
            rest.append((kd, text, nd)); continue
        i = S.place(k, kd, text, needs=nd, cap=par("tailcap", 2))
    if stamp:
        for m in PAR.get("k1marks", "15").split(":"):
            S.gaps[first[(int(m), 0)]].append(("s", st.text(), None, []))
    for x_ in S.emit("k1"): A(x_)
    if st.n < 7: st.mark(A)
    A("s_nop 7")
    for kd, text, nd in rest:
        o = []
        S.waits(nd, o)
        for x_ in o: A(x_)
        A(text)
    if kind == "qkv": qkv_attention(A, V)
    st.flush(A, 58, 59, 0, f"s{S_W}")
    A("s_endpgm")
    A.label(f"L_k1_spin_{kind}")
    A("s_mov_b32 s61, 0")
    A.label(f"L_k1_spin1_{kind}")
    A("s_sleep 8")
    A(f"buffer_load_dword v{VW}, off, {sq(S_SRDC)}, 0 sc1")
    A("s_waitcnt vmcnt(0)")
    A(f"v_readfirstlane_b32 s60, v{VW}")
    A("s_add_u32 s61, s61, 1")
    A("s_cmp_gt_u32 s61, 0x100000")
    A(f"s_cbranch_scc1 L_k1_back_{kind}")
    A("s_cmp_eq_u32 s60, 256")
    A(f"s_cbranch_scc0 L_k1_spin1_{kind}")
    A(f"s_branch L_k1_back_{kind}")

STMOD = ""
def gen_k1(A, name, stamp):
    kernel_head(A, name)
    st0 = Stamp(stamp, 1)
    st0.mark(A)
    A("s_cmp_ge_u32 s2, 256")
    A("s_cbranch_scc1 L_k1_end")
    A("s_load_dwordx2 s[4:5], s[0:1], 0")
    A("s_load_dwordx2 s[60:61], s[0:1], 8")
    A("s_load_dwordx4 s[56:59], s[0:1], 32")
    A("s_load_dwordx4 s[12:15], s[0:1], 72")
    A("s_load_dwordx2 s[36:37], s[0:1], 48")
    A("s_load_dwordx2 s[38:39], s[0:1], 16")
    lane, l16, g, T, X = 100, 101, 102, 104, S_X0
    A(f"v_lshrrev_b32 v{T}, 6, v0")
    A(f"v_and_b32 v{lane}, 63, v0")
    A(f"v_readfirstlane_b32 s{S_W}, v{T}")
    A(f"s_and_b32 s{X}, s2, 1")
    A(f"s_lshl_b32 s{X}, s{X}, 2")
    A(f"s_bfe_u32 s{X+1}, s2, 0x20003")
    A(f"s_add_u32 s{S_MB}, s{X}, s{X+1}")
    A(f"s_bfe_u32 s{X}, s2, 0x20001")
    A(f"s_lshl_b32 s{X}, s{X}, 2")
    A(f"s_bfe_u32 s{X+1}, s2, 0x20005")
    A(f"s_add_u32 s{S_NT}, s{X}, s{X+1}")
    A(f"v_and_b32 v{l16}, 15, v{lane}")
    A(f"v_lshrrev_b32 v{g}, 4, v{lane}")
    A(f"v_lshlrev_b32 v{V_L16}, 4, v{lane}")
    A(f"s_lshl_b32 s{X}, s{S_MB}, 8")
    A(f"s_lshl_b32 s{X+1}, s{S_W}, 6")
    A(f"s_add_u32 s{X+1}, s{X}, s{X+1}")
    A(f"s_lshl_b32 s{X+1}, s{X+1}, 11")
    for t in range(4): A(f"s_add_u32 s{S_AROW+t}, s{X+1}, {t*16*2048:#x}")
    A(f"s_max_u32 s{X+1}, s{X}, 16")
    A(f"s_sub_u32 s{X+1}, s{X+1}, 16")
    A(f"s_lshl_b32 s{S_AROW+4}, s{X+1}, 11")
    A(f"s_lshr_b32 s{X+1}, s2, 7")
    A(f"s_lshl_b32 s{X+1}, s{X+1}, 4")
    A(f"s_add_u32 s{X+1}, s{X+1}, s{S_NT}")
    A(f"s_lshl_b32 s{X+1}, s{X+1}, 2")
    A(f"s_add_u32 s{X+1}, s{X+1}, s{S_W}")
    A(f"s_lshl_b32 s{X+1}, s{X+1}, 1")
    A(f"s_add_u32 s{X+1}, s{X+1}, s{X}")
    A(f"s_lshl_b32 s67, s{X+1}, 11")
    A(f"v_lshrrev_b32 v{T+4}, 3, v{lane}")
    A(f"v_and_b32 v{T+5}, 7, v{lane}")
    A(f"v_xor_b32 v{T+5}, v{T+5}, v{g}")
    A(f"v_lshlrev_b32 v{T+4}, 11, v{T+4}")
    A(f"v_lshl_add_u32 v{V_AD}, v{T+5}, 4, v{T+4}")
    A(f"v_xor_b32 v{T+5}, 4, v{T+5}")
    A(f"v_lshl_add_u32 v{V_AD+1}, v{T+5}, 4, v{T+4}")
    A(f"v_add_u32 v{V_AD+1}, 0x4000, v{V_AD+1}")
    A(f"s_mov_b32 s{S_SOFW}, 0")
    A(f"s_mov_b32 s{S_SOFW2}, 4096")
    A("s_cmp_ge_u32 s2, 128")
    A("s_cbranch_scc1 L_k1_qkv")
    k1_variant(A, K1Var("w1"), stamp)
    A.label("L_k1_qkv")
    k1_variant(A, K1Var("qkv"), stamp)
    A.label("L_k1_end")
    A("s_endpgm")

def qkv_attention(A, V):
    T = V_T
    XCH = RING0 + V.SL
    lane8, l16, g = T + 8, T + 1, T + 2
    def Q(t, sp): return V.acc(t, 2 * sp)
    KP = 200
    def K(t, sp): return V.acc(t, 4 + 2 * sp) if t >= 0 else KP + 4 * sp
    def VT(jj): return 128 + 16 * jj
    X = T + 4
    A(f"v_lshrrev_b32 v{lane8}, 1, v{V_L16}")
    A(f"v_bfe_u32 v{l16}, v{V_L16}, 4, 4")
    A(f"v_lshrrev_b32 v{g}, 8, v{V_L16}")
    for jj in range(4):
        A(f"s_xor_b32 s46, s{S_W}, {jj}")
        A("s_lshl_b32 s46, s46, 9")
        A(f"s_lshl_b32 s47, s{S_W}, 12")
        A("s_add_u32 s46, s46, s47")
        A(f"v_add_u32 v{X+jj}, s46, v{lane8}")
    A(f"s_lshl_b32 s46, s{S_W}, 9")
    A(f"v_add_u32 v{lane8}, s46, v{lane8}")
    for jj in range(4):
        k = K(3, jj >> 1) + 2 * (jj & 1)
        A(f"ds_write_b64 v{X+jj}, v[{k}:{k+1}] offset:{XCH + 4096}")
        v = VT(jj) + 8
        A(f"ds_write_b64 v{X+jj}, v[{v}:{v+1}] offset:{XCH + 4096 + 2048}")
    A(f"ds_write_b64 v{lane8}, v[192:193] offset:{XCH}")
    A(f"ds_write_b64 v{lane8}, v[196:197] offset:{XCH + 2048}")
    par_, ia = T + 9, T + 10
    MP, MA, MB_, VA_, VB_ = "s[46:47]", "s[48:49]", "s[50:51]", "s[52:53]", "s[54:55]"
    A(f"v_and_b32 v{par_}, 1, v{l16}")
    A(f"v_lshl_add_u32 v{ia}, v{g}, 2, v{par_}")
    A(f"v_cmp_eq_u32 {MP}, 1, v{par_}")
    A(f"v_cmp_le_u32 {MA}, v{ia}, v{l16}")
    A(f"v_add_u32 v{ia}, 2, v{ia}")
    A(f"v_cmp_le_u32 {MB_}, v{ia}, v{l16}")
    A(f"s_or_b32 s60, s{S_MB}, s{S_W}")
    A("s_nop 1")
    A("s_cmp_eq_u32 s60, 0")
    A(f"s_cselect_b64 {VA_}, {MA}, -1")
    A(f"s_cselect_b64 {VB_}, {MB_}, -1")
    SEL = 208
    A(f"v_mov_b32 v{T+10}, 0x0c0c0100")
    A(f"v_mov_b32 v{T+11}, 0x01000c0c")
    A(f"v_cndmask_b32 v{SEL+2}, v{T+10}, v{T+11}, {MP}")
    A(f"v_mov_b32 v{T+10}, 0x0c0c0302")
    A(f"v_mov_b32 v{T+11}, 0x03020c0c")
    A(f"v_cndmask_b32 v{SEL+3}, v{T+10}, v{T+11}, {MP}")
    A(f"v_mov_b32 v{T+10}, 0x0c0c0c0c")
    A(f"v_cndmask_b32 v{SEL}, v{SEL+2}, v{T+10}, {MA}")
    A(f"v_cndmask_b32 v{SEL+1}, v{SEL+3}, v{T+10}, {MB_}")
    A(f"v_cndmask_b32 v{SEL+2}, v{T+10}, v{SEL+2}, {MA}")
    A(f"v_cndmask_b32 v{SEL+3}, v{T+10}, v{SEL+3}, {MB_}")
    A("s_waitcnt lgkmcnt(0)")
    A("s_barrier")
    for jj in range(4):
        k = KP + 4 * (jj >> 1) + 2 * (jj & 1)
        A(f"ds_read_b64 v[{k}:{k+1}], v{X+jj} offset:{XCH}")
        v = VT(jj)
        A(f"ds_read_b64 v[{v}:{v+1}], v{X+jj} offset:{XCH + 2048}")
    A("s_mov_b32 s60, 0xffff0000")
    A("s_mov_b32 s61, 0x3e3504f3")
    A("s_mov_b32 s62, 0x3fb8aa3b")
    A(f"v_mov_b32 v{T+11}, 0xce6e6b28")
    units = [(t, sp) for t in (1, 2, 3, 0) for sp in range(2)]
    def Sc(t, sp): return V.acc(t, 2 * sp + 1)
    def Sp(t, sp): return V.acc(t, 4 + 2 * sp + 1)
    for n, (t, sp) in enumerate(units):
        if t == 0 and sp == 0: A("s_waitcnt lgkmcnt(0)")
        A(f"v_mfma_f32_16x16x32_bf16 {vr(Sc(t,sp),4)}, {vr(K(t,sp),4)}, {vr(Q(t,sp),4)}, 0")
        A(f"v_mfma_f32_16x16x32_bf16 {vr(Sp(t,sp),4)}, {vr(K(t-1,sp),4)}, {vr(Q(t,sp),4)}, 0")
    A("s_nop 1")
    def stage(fn):
        for (t, sp) in units: fn(t, sp, Sc(t, sp), Sp(t, sp))
    stage(lambda t, sp, c, p: A(f"v_cndmask_b32 v{c}, v{c}, v{c+1}, {MP}"))
    stage(lambda t, sp, c, p: A(f"v_cndmask_b32 v{c+1}, v{c+2}, v{c+3}, {MP}"))
    stage(lambda t, sp, c, p: A(f"v_cndmask_b32 v{p}, v{p}, v{p+1}, {MP}"))
    stage(lambda t, sp, c, p: A(f"v_cndmask_b32 v{p+1}, v{p+2}, v{p+3}, {MP}"))
    stage(lambda t, sp, c, p: A(f"v_cndmask_b32 v{c}, v{p}, v{c}, {MA}"))
    stage(lambda t, sp, c, p: A(f"v_cndmask_b32 v{c+1}, v{p+1}, v{c+1}, {MB_}"))
    stage(lambda t, sp, c, p: A(f"v_cvt_pk_bf16_f32 v{p}, v{c}, v{c+1}"))
    stage(lambda t, sp, c, p: A(f"v_lshlrev_b32 v{c}, 16, v{p}"))
    stage(lambda t, sp, c, p: A(f"v_and_b32 v{c+1}, s60, v{p}"))
    stage(lambda t, sp, c, p: A(f"v_mul_f32 v{c}, s61, v{c}"))
    stage(lambda t, sp, c, p: A(f"v_mul_f32 v{c+1}, s61, v{c+1}"))
    stage(lambda t, sp, c, p: A(f"v_cvt_pk_bf16_f32 v{p}, v{c}, v{c+1}"))
    stage(lambda t, sp, c, p: A(f"v_lshlrev_b32 v{c}, 16, v{p}"))
    stage(lambda t, sp, c, p: A(f"v_and_b32 v{c+1}, s60, v{p}"))
    for sp in range(2):
        c = Sc(0, sp)
        A(f"v_cndmask_b32 v{c}, v{T+11}, v{c}, {VA_}")
        A(f"v_cndmask_b32 v{c+1}, v{T+11}, v{c+1}, {VB_}")
    def xreduce(op):
        stage(lambda t, sp, c, p: A(f"v_mov_b32 v{p+1}, v{p}"))
        stage(lambda t, sp, c, p: A(f"v_permlane16_swap_b32 v{p}, v{p+1}"))
        stage(lambda t, sp, c, p: A(f"{op} v{p}, v{p}, v{p+1}"))
        stage(lambda t, sp, c, p: A(f"v_mov_b32 v{p+1}, v{p}"))
        stage(lambda t, sp, c, p: A(f"v_permlane32_swap_b32 v{p}, v{p+1}"))
        stage(lambda t, sp, c, p: A(f"{op} v{p}, v{p}, v{p+1}"))
    stage(lambda t, sp, c, p: A(f"v_max_f32 v{p}, v{c}, v{c+1}"))
    xreduce("v_max_f32")
    stage(lambda t, sp, c, p: A(f"v_sub_f32 v{c}, v{c}, v{p}"))
    stage(lambda t, sp, c, p: A(f"v_sub_f32 v{c+1}, v{c+1}, v{p}"))
    stage(lambda t, sp, c, p: A(f"v_mul_f32 v{c}, s62, v{c}"))
    stage(lambda t, sp, c, p: A(f"v_mul_f32 v{c+1}, s62, v{c+1}"))
    stage(lambda t, sp, c, p: A(f"v_exp_f32 v{c}, v{c}"))
    stage(lambda t, sp, c, p: A(f"v_exp_f32 v{c+1}, v{c+1}"))
    stage(lambda t, sp, c, p: A(f"v_add_f32 v{p}, v{c}, v{c+1}"))
    xreduce("v_add_f32")
    stage(lambda t, sp, c, p: A(f"v_rcp_f32 v{p}, v{p}"))
    stage(lambda t, sp, c, p: A(f"v_mul_f32 v{c}, v{c}, v{p}"))
    stage(lambda t, sp, c, p: A(f"v_mul_f32 v{c+1}, v{c+1}, v{p}"))
    stage(lambda t, sp, c, p: A(f"v_cvt_pk_bf16_f32 v{c}, v{c}, v{c+1}"))
    for i in range(4):
        stage(lambda t, sp, c, p: A(f"v_perm_b32 v{p+i}, v{c}, v{c}, v{SEL+i}"))
    for (t, sp) in units:
        for e in range(2):
            d = Q(t, sp) if e == 0 else Sc(t, sp)
            v = VT(2 * sp + e) + 2 * t
            A(f"v_mfma_f32_16x16x32_bf16 {vr(d,4)}, {vr(v,4)}, {vr(Sp(t,sp),4)}, 0")
    A(f"s_lshl_b32 s60, s{S_MB}, 3")
    A(f"s_lshl_b32 s61, s{S_W}, 1")
    A("s_add_u32 s60, s60, s61")
    A("s_mul_i32 s60, s60, 144")
    A(f"s_lshl_b32 s61, s{S_NT}, 1")
    A("s_add_u32 s60, s60, s61")
    A(f"s_lshr_b32 s61, s{S_W}, 1")
    A("s_add_u32 s62, s60, s61")
    A("s_xor_b32 s61, s61, 1")
    A("s_add_u32 s63, s60, s61")
    A("s_lshl_b32 s62, s62, 11")
    A("s_lshl_b32 s63, s63, 11")
    for (t, sp) in units:
        a, b = Q(t, sp), Sc(t, sp)
        A(f"v_cvt_pk_bf16_f32 v{a}, v{a}, v{a+1}")
        A(f"v_cvt_pk_bf16_f32 v{a+1}, v{a+2}, v{a+3}")
        A(f"v_cvt_pk_bf16_f32 v{a+2}, v{b}, v{b+1}")
        A(f"v_cvt_pk_bf16_f32 v{a+3}, v{b+2}, v{b+3}")
    A(f"s_bitcmp1_b32 s{S_W}, 0")
    A("s_cbranch_scc0 L_k1_noswap")
    for (t, sp) in units:
        a = Q(t, sp)
        A(f"v_swap_b32 v{a}, v{a+2}")
        A(f"v_swap_b32 v{a+1}, v{a+3}")
    A.label("L_k1_noswap")
    for (t, sp) in units:
        a = Q(t, sp)
        A(f"s_add_u32 s64, s{62+sp}, {(t>>1)*144*2048:#x}")
        A(f"buffer_store_dwordx4 v[{a}:{a+3}], v{V_L16}, {sq(S_SRDO)}, s64 offen offset:{(t&1)*1024}{STMOD}")

def gen_k2(A, name, stamp):
    st = Stamp(stamp, 2)
    kernel_head(A, name)
    st.mark(A)
    SA, SW2, SWO, SX, SB, SO, SP, SF = 4, 8, 12, 16, 20, 24, 28, 32
    S_M0, S_WV, S_SA, S_SW, S_PS, S_PR, S_FS, S_FR = 36, 37, 38, 39, 40, 41, 42, 43
    A("s_cmp_ge_u32 s2, 256")
    A("s_cbranch_scc1 L_k2_end")
    A("s_load_dwordx2 s[44:45], s[0:1], 0")
    A("s_load_dwordx2 s[46:47], s[0:1], 16")
    A("s_load_dwordx4 s[48:51], s[0:1], 48")
    A("s_load_dwordx2 s[52:53], s[0:1], 64")
    A("s_load_dwordx2 s[54:55], s[0:1], 80")
    lane, l16, g = 65, 66, 67
    VA, VD, VR, VX, VB, VL, VF, T = 68, 70, 76, 84, 85, 86, 88, 92
    XT = 100
    A("v_lshrrev_b32 v64, 6, v0")
    A(f"v_and_b32 v{lane}, 63, v0")
    A(f"v_readfirstlane_b32 s{S_WV}, v64")
    A("s_and_b32 s56, s2, 1")
    A("s_bfe_u32 s57, s2, 0x20001")
    A("s_lshl_b32 s57, s57, 2")
    A("s_bfe_u32 s58, s2, 0x20003")
    A("s_add_u32 s57, s57, s58")
    A("s_lshr_b32 s58, s2, 5")
    A(f"v_and_b32 v{l16}, 15, v{lane}")
    A(f"v_lshrrev_b32 v{g}, 4, v{lane}")
    A("s_lshl_b32 s59, s57, 2")
    A(f"s_add_u32 s59, s59, s{S_WV}")
    A(f"s_mul_i32 s60, s59, {144*2048}")
    A(f"v_lshlrev_b32 v{VL}, 4, v{lane}")
    A(f"v_add_u32 v{VA}, s60, v{VL}")
    A(f"s_mul_i32 s{S_SA}, s56, {56*2048}")
    A(f"s_add_u32 s{S_SA}, s{S_SA}, {32*2048}")
    A(f"s_mul_i32 s{S_SW}, s56, {1792*2048}")
    A(f"v_lshrrev_b32 v{T}, 3, v{lane}")
    A(f"v_bfe_u32 v{T+1}, v{lane}, 1, 2")
    A(f"v_xor_b32 v{T+1}, v{T+1}, v{g}")
    A(f"v_lshlrev_b32 v{T}, 11, v{T}")
    A(f"v_lshl_add_u32 v{T+2}, v{T+1}, 5, v{T}")
    A(f"v_and_b32 v{T+1}, 1, v{lane}")
    A(f"v_lshl_add_u32 v{T+2}, v{T+1}, 4, v{T+2}")
    A(f"s_lshl_b32 s60, s{S_WV}, 15")
    A("s_lshl_b32 s61, s58, 8")
    A("s_lshl_b32 s62, s56, 7")
    A("s_add_u32 s61, s61, s62")
    A("s_add_u32 s60, s60, s61")
    A(f"v_add_u32 v{VD}, s60, v{T+2}")
    A(f"v_add_u32 v{VD+1}, 0x4000, v{VD}")
    A(f"v_xor_b32 v{VD+2}, 0x80, v{VD}")
    A(f"v_xor_b32 v{VD+3}, 0x80, v{VD+1}")
    A(f"s_lshl_b32 s{S_M0}, s{S_WV}, 11")
    A("s_lshl_b32 s60, s59, 16")
    A("s_add_u32 s60, s60, s61")
    A(f"v_and_b32 v{T+1}, 7, v{lane}")
    A(f"v_lshl_add_u32 v{VX}, v{T+1}, 4, v{T}")
    A(f"v_add_u32 v{VX}, s60, v{VX}")
    A(f"v_lshlrev_b32 v{VB}, 4, v{T+1}")
    A(f"v_add_u32 v{VB}, s61, v{VB}")
    A(f"v_bfe_u32 v{T}, v{lane}, 2, 4")
    A(f"v_lshlrev_b32 v{T}, 7, v{T}")
    A(f"v_and_b32 v{T+1}, 3, v{lane}")
    A(f"v_lshl_add_u32 v{T}, v{T+1}, 3, v{T}")
    A(f"v_bfe_u32 v{T+1}, v{lane}, 3, 2")
    for jj in range(4):
        A(f"v_xor_b32 v{T+2}, {jj}, v{T+1}")
        A(f"v_lshl_add_u32 v{VR+jj}, v{T+2}, 5, v{T}")
        A(f"v_add_u32 v{VR+4+jj}, 0x10000, v{VR+jj}")
    A("s_xor_b32 s63, s2, 1")
    A(f"s_lshl_b32 s60, s{S_WV}, 13")
    A(f"s_lshl_b32 s{S_PS}, s2, 15")
    A(f"s_add_u32 s{S_PS}, s{S_PS}, s60")
    A(f"s_lshl_b32 s{S_PR}, s63, 15")
    A(f"s_add_u32 s{S_PR}, s{S_PR}, s60")
    A(f"s_lshl_b32 s{S_FS}, s2, 7")
    A(f"s_lshl_b32 s{S_FR}, s63, 7")
    A(f"v_mov_b32 v{VF}, 0")
    A(f"v_mov_b32 v{VF+1}, 1")
    A("s_waitcnt lgkmcnt(0)")
    srd(A, SA, 54, 55, A2_BYTES, WS_A2)
    srd(A, SW2, 48, 49, 3584 * 2048)
    srd(A, SWO, 46, 47, 1024 * 2048)
    srd(A, SX, 44, 45, 4 << 20)
    srd(A, SB, 50, 51, 2048)
    srd(A, SO, 52, 53, 4 << 20)
    srd(A, SP, 54, 55, 8 << 20, WS_PART)
    srd(A, SF, 54, 55, SD_BYTES, WS_SIDE)
    vm, lg = Score(63), Score(15)
    N1, N2 = 28, 16
    FLAG_AT, POLL, CHK, XLD = N1 + par('k2flag', 6), N1 + par('k2poll', 10), N1 + par('k2chk', 13), N1 + par('k2xld', 11)
    NS = N1 + N2
    RW, RA = 8, 7
    def acc(t, j): return (j * 2 + t) * 4
    def acc2(t, j): return 128 + (j * 2 + t) * 4
    def wf(j, ks): return (j * 2 + ks) * 4
    def af(s, ks, t): return 64 + ((s % RA) * 4 + ks * 2 + t) * 4
    def nj(s): return 8 if s < N1 else 4
    def aloads(s):
        o = []
        if s == N1: o.append(("s", f"s_mov_b32 s{S_SA}, 0", None))
        for ks in range(2):
            for t in range(2):
                o.append(("vmA", f"buffer_load_dwordx4 {ar(af(s, ks, t), 4)}, v{VA}, s[{SA}:{SA+3}], s{S_SA} offen offset:{ks*2048 + t*1024}", ("A", s) if (ks, t) == (1, 1) else None))
        o.append(("s", f"s_add_u32 s{S_SA}, s{S_SA}, 4096", None))
        return o
    def dmas(s):
        o = []
        if s == N1: o.append(("s", f"s_mov_b32 s{S_SW}, 0", None))
        W = SW2 if s < N1 else SWO
        n = 4 if s < N1 else 2
        for q in range(n):
            c, u = divmod(q, 2)
            o.append(("m0", f"s_add_u32 m0, s{S_M0}, {(s % RW)*16384 + c*8192 + u*1024:#x}", None))
            o.append(("vmD", f"buffer_load_dwordx4 v{VD+q}, s[{W}:{W+3}], s{S_SW} offen lds", ("D", s) if q == n - 1 else None))
        o.append(("s", f"s_add_u32 s{S_SW}, s{S_SW}, 0x20000", None))
        return o
    def read(s, j, ks, p):
        hi, so = divmod(s % RW, 4)
        c, jj = divmod(j, 4)
        return f"ds_read_b64_tr_b16 {ar(wf(j, ks) + 2*p, 2)}, v{VR + hi*4 + jj} offset:{so*16384 + c*8192 + ks*4096 + p*2048}"
    for s in range(RW - 1):
        if s == 1 and "nocpf" not in OPT:
            A("s_getpc_b64 s[64:65]")
            A.label("L_k2_pc")
            A("s_mov_b32 s66, L_k2_spin-L_k2_pc")
            A("s_mov_b32 s67, 0x20000")
            A(f"s_lshl_b32 s60, s{S_WV}, 13")
            A(f"v_lshlrev_b32 v{T}, 3, v{VL}")
            A(f"buffer_load_dword v{T+1}, v{T}, s[64:67], s60 offen"); vm.issue()
        for kind, x, tg in dmas(s):
            A(x)
            if kind == "m0": A("s_nop 0")
            if kind.startswith("vm"): vm.issue(tg)
        if s < RA - 1:
            for kind, x, tg in aloads(s):
                A(x)
                if kind.startswith("vm"): vm.issue(tg)
    n = vm.need([("D", 0)]); A(f"s_waitcnt vmcnt({n})")
    A("s_barrier")
    st.mark(A)
    for j in range(8):
        for ks in range(2):
            for p in range(2): A(read(0, j, ks, p))
        lg.skip(("W", 0, j))
    A("s_waitcnt lgkmcnt(0)")
    S = Stream(vm, lg)
    first, last = {}, {}
    for s in range(NS):
        n = 0
        for j in range(nj(s)):
            for t in ((0, 1) if j % 2 == 0 else (1, 0)):
                for ks in ((0, 1) if n % 2 == 0 else (1, 0)):
                    c = vr(acc(t, j) if s < N1 else acc2(t, j), 4)
                    cin = "0" if (s in (0, N1) and ks == (0 if n % 2 == 0 else 1)) else c
                    idx = S.add_mfma(f"v_mfma_f32_16x16x32_bf16 {c}, {ar(wf(j, ks), 4)}, {ar(af(s, ks, t), 4)}, {cin}",
                                     [("lg", ("W", s, j)), ("vm", ("A", s))])
                    first.setdefault((s, j), idx); last[(s, j)] = idx
                n += 1
    for s in range(NS - 1):
        b = first[(s, 0)] + 1
        S.gaps[b].append(("barv", None, None, [("vm", ("D", s + 1))]))
        for j in range(nj(s + 1)):
            i = last[(s, j)]
            for q in (2, 3, 0, 1):
                i = S.place(i, "ds", read(s + 1, j, q >> 1, q & 1), gives=("W", s + 1, j) if q == 1 else None) + 1
    cur = 0
    def spread(i0, i1, items):
        nonlocal cur
        i0 = max(i0, cur)
        nv = sum(1 for it in items if it[0].startswith("vm"))
        k = 0
        for kind, x, tg, *nd in items:
            nd = nd[0] if nd else []
            tgt = max(cur, i0 + (k * max(i1 - i0, 0)) // nv)
            if kind == "m0":
                cur = S.place(max(cur, tgt - 1), "s", x, cap=9) + 1
            elif kind == "s":
                cur = S.place(cur, "s", x, cap=9, needs=nd)
            else:
                cur = S.place(tgt, kind, x, gives=tg, needs=nd, cap=9); k += 1
    for s in range(NS):
        b = first[(s, 0)] + 2
        e = first[(s + 1, 0)] + 1 if s + 1 < NS else len(S.mf)
        items = []
        if s == FLAG_AT:
            [g for g in S.gaps[first[(s, 0)] + 1] if g[0] == "barv"][0][3].append(("vm", "PS"))
            items += [("s", f"s_cmp_eq_u32 s{S_WV}, 0\ns_cselect_b32 s61, s{S_FS}, 0x7000000", None),
                      ("vmS", f"buffer_store_dword v{VF+1}, v{VF}, s[{SF}:{SF+3}], s61 offen sc1", None)]
        if s + RW - 1 < NS: items += dmas(s + RW - 1)
        if s + RA - 1 < NS: items += aloads(s + RA - 1)
        if stamp and s in (14, N1, FLAG_AT, CHK):
            S.gaps[first[(s, 0)] + 1].append(("s", st.text(), None, []))
        if s == N1:
            for q in range(8):
                items.append(("vmS", f"buffer_store_dwordx4 v[{32+4*q}:{35+4*q}], v{VL}, s[{SP}:{SP+3}], s{S_PS} offen offset:{(q&3)*1024} sc1", "PS" if q == 7 else None))
                if q == 3: items.append(("s", f"s_add_u32 s{S_PS}, s{S_PS}, 4096", None))
        if s == XLD:
            items.append(("vmX", f"buffer_load_dwordx4 v[{XT+16}:{XT+19}], v{VB}, s[{SB}:{SB+3}], 0 offen", None))
            items.append(("s", f"s_lshl_b32 s60, s59, 7\ns_add_u32 s60, s60, {SD_RS:#x}\nv_lshlrev_b32 v{VF+3}, 2, v{l16}", None))
            for t in range(2):
                items.append(("vmX", f"buffer_load_dword v{98+t}, v{VF+3}, s[{SF}:{SF+3}], s60 offen offset:{64*t}", None))
            for q in range(4):
                items.append(("s", f"s_mov_b32 s60, {q*8*2048:#x}", None))
                items.append(("vmX", f"buffer_load_dwordx4 v[{XT+4*q}:{XT+4*q+3}], v{VX}, s[{SX}:{SX+3}], s60 offen", "X" if q == 3 else None))
        if s == POLL:
            items.append(("vmX", f"buffer_load_dword v{VF+2}, v{VF}, s[{SF}:{SF+3}], s{S_FR} offen sc1", "POLL"))
        if s == CHK:
            items.append(("s", f"v_readfirstlane_b32 s61, v{VF+2}\ns_nop 3\ns_cmp_eq_u32 s61, 1\ns_cbranch_scc0 L_k2_spin\nL_k2_back:", None, [("vm", "POLL")]))
            for q in range(8):
                items.append(("vmX", f"buffer_load_dwordx4 v[{32+4*q}:{35+4*q}], v{VL}, s[{SP}:{SP+3}], s{S_PR} offen offset:{(q&3)*1024} sc1", "PR" if q == 7 else None))
                if q == 3: items.append(("s", f"s_add_u32 s{S_PR}, s{S_PR}, 4096", None))
        if items:
            cur = max(cur, b)
            spread(b, e, items)
    for x in S.emit("k2"): A(x)
    st.mark(A)
    A(f"s_lshl_b32 s60, s{S_WV}, 14")
    A("s_add_u32 s60, s60, 8192")
    A(f"v_and_b32 v{T}, 7, v{l16}")
    A(f"v_xor_b32 v{T}, v{T}, v{g}")
    A(f"v_lshlrev_b32 v{T+1}, 8, v{l16}")
    A(f"v_add_u32 v{T+1}, s60, v{T+1}")
    A(f"v_lshl_add_u32 v{T+2}, v{T}, 4, v{T+1}")
    A(f"v_xor_b32 v{T}, 4, v{T}")
    A(f"v_lshl_add_u32 v{T+3}, v{T}, 4, v{T+1}")
    A(f"v_lshrrev_b32 v{T}, 3, v{lane}")
    A(f"v_and_b32 v{T+1}, 7, v{lane}")
    A(f"v_lshlrev_b32 v{T+1}, 1, v{T+1}")
    A(f"v_xor_b32 v{T+1}, v{T+1}, v{T}")
    A(f"v_lshlrev_b32 v{T}, 8, v{T}")
    A(f"v_add_u32 v{T}, s60, v{T}")
    A(f"v_lshl_add_u32 v{T+4}, v{T+1}, 4, v{T}")
    A(f"v_xor_b32 v{T+5}, 16, v{T+4}")
    A("s_mov_b32 s62, 0xffff0000")
    A("s_waitcnt vmcnt(0)")
    A("v_pk_mul_f32 v[98:99], v[98:99], v[98:99]")
    for i in range(4):
        A(f"v_lshlrev_b32 v{XT+20+2*i}, 16, v{XT+16+i}")
        A(f"v_and_b32 v{XT+21+2*i}, s62, v{XT+16+i}")
    for j in range(4):
        for t in range(2):
            c = acc(t, j)
            A(f"v_pk_add_f32 v[{c}:{c+1}], v[{c}:{c+1}], v[{c+32}:{c+33}]")
            A(f"v_pk_add_f32 v[{c+2}:{c+3}], v[{c+2}:{c+3}], v[{c+34}:{c+35}]")
            o = "op_sel_hi:[1,0,1]" if t == 0 else "op_sel:[0,1,0]"
            A(f"v_pk_fma_f32 v[{c}:{c+1}], v[{c}:{c+1}], v[98:99], v[{c+128}:{c+129}] {o}")
            A(f"v_pk_fma_f32 v[{c+2}:{c+3}], v[{c+2}:{c+3}], v[98:99], v[{c+130}:{c+131}] {o}")
            A(f"ds_write_b128 v{T+2+(j&1)}, v[{c}:{c+3}] offset:{t*4096 + (j>>1)*128}")
    A("s_waitcnt lgkmcnt(0)")
    for q in range(4):
        A(f"ds_read_b128 v[{32+8*q}:{35+8*q}], v{T+4} offset:{q*2048}")
        A(f"ds_read_b128 v[{36+8*q}:{39+8*q}], v{T+5} offset:{q*2048}")
    for q in range(4):
        for i in range(4):
            A(f"v_lshlrev_b32 v{2*i}, 16, v{XT+4*q+i}")
            A(f"v_and_b32 v{2*i+1}, s62, v{XT+4*q+i}")
        for i in range(4): A(f"v_pk_add_f32 v[{2*i}:{2*i+1}], v[{2*i}:{2*i+1}], v[{XT+20+2*i}:{XT+21+2*i}]")
        A(f"s_waitcnt lgkmcnt({6-2*q})")
        for i in range(4): A(f"v_pk_add_f32 v[{2*i}:{2*i+1}], v[{2*i}:{2*i+1}], v[{32+8*q+2*i}:{33+8*q+2*i}]")
        for i in range(4): A(f"v_cvt_pk_bf16_f32 v{8+4*q+i}, v{2*i}, v{2*i+1}")
        A(f"s_mov_b32 s60, {q*8*2048:#x}")
        A(f"buffer_store_dwordx4 v[{8+4*q}:{11+4*q}], v{VX}, s[{SO}:{SO+3}], s60 offen")
    st.flush(A, 54, 55, 100, f"s{S_WV}")
    A.label("L_k2_end")
    A("s_endpgm")
    A.label("L_k2_spin")
    A("s_mov_b32 s62, 0")
    A.label("L_k2_spin1")
    A("s_sleep 4")
    A(f"buffer_load_dword v{VF+2}, v{VF}, s[{SF}:{SF+3}], s{S_FR} offen sc1")
    A("s_waitcnt vmcnt(0)")
    A(f"v_readfirstlane_b32 s61, v{VF+2}")
    A("s_add_u32 s62, s62, 1")
    A("s_cmp_gt_u32 s62, 0x100000")
    A("s_cbranch_scc1 L_k2_back")
    A("s_cmp_eq_u32 s61, 1")
    A("s_cbranch_scc0 L_k2_spin1")
    A("s_branch L_k2_back")

def main():
    global STMOD
    ap = argparse.ArgumentParser()
    ap.add_argument("--stamp", action="store_true")
    ap.add_argument("-o", default=None)
    ap.add_argument("--opt", default="")
    ap.add_argument("--par", default="")
    ap.add_argument("--stmod", default="sc1")
    a = ap.parse_args()
    OPT.update(x for x in a.opt.split(",") if x)
    PAR.update(dict(x.split("=") for x in a.par.split(",") if x))
    STMOD = (" " + a.stmod.replace("+", " ")) if a.stmod else ""
    A = Asm()
    hdr = open("cdna_kernels/%s.s.ref" % NAME).read().split("\n")
    for line in hdr:
        if line.startswith(";") and "@launch" not in line and "Override" not in line and "grid=ceil" not in line:
            A.raw(line)
    A.raw("; @launch kernel=gemm1_kernel grid=(256,1,1) block=(256,1,1) lds=163840")
    A.raw("; @launch kernel=gemm2_kernel grid=(256,1,1) block=(256,1,1) lds=131072")
    A.raw('.amdgcn_target "amdgcn-amd-amdhsa--gfx950"\n.text')
    gen_k1(A, "gemm1_kernel", a.stamp)
    gen_k2(A, "gemm2_kernel", a.stamp)
    if not OPT: check_hazards(A.L)
    A.raw('.section .rodata,"a"')
    kernel_desc(A, "gemm1_kernel", 512, 256)
    kernel_desc(A, "gemm2_kernel", 160 + 176, 160)
    out = a.o or "cdna_kernels/%s.s" % NAME
    open(out, "w").write(A.text())

if __name__ == "__main__":
    main()
```

```python
import sys, argparse

NAME = "parallel_sum__sliding_local_dilated__dense_activation_squared_relu__prompt"

WS_A2 = 4 << 20
A2_BYTES = 2048 * 4608 * 2
WS_PART = 32 << 20
WS_SIDE = 48 << 20
SD_FLAG, SD_Q, SD_RS, SD_P = 0, 0x10000, 0x20000, 0x40000
SD_BYTES = SD_P + 416 * 1024
WS_STAMP = 64 << 20

OPT = set()
PAR = {}
def par(k, d): return int(PAR.get(k, d))

class Asm:
    def __init__(self): self.L = []
    def __call__(self, s):
        for line in s.split("\n"):
            t = line.strip()
            self.L.append(t if t.endswith(":") else "  " + t)
    def label(self, s): self.L.append(s + ":")
    def raw(self, s): self.L.append(s)
    def text(self): return "\n".join(self.L) + "\n"

def vr(b, n=1, f="v"): return f"{f}{b}" if n == 1 else f"{f}[{b}:{b+n-1}]"
def ar(b, n=1): return vr(b, n, "a")
def sq(b): return f"s[{b}:{b+3}]"

def kernel_head(A, name):
    A.raw(f".globl {name}\n.p2align 8\n.type {name},@function\n{name}:")

def kernel_desc(A, name, nvgpr, accum, nsgpr=102):
    A.raw(f".p2align 6\n.amdhsa_kernel {name}\n  .amdhsa_next_free_vgpr {nvgpr}\n  .amdhsa_next_free_sgpr {nsgpr}\n"
          f"  .amdhsa_accum_offset {accum}\n  .amdhsa_group_segment_fixed_size 0\n  .amdhsa_kernarg_size 88\n"
          f"  .amdhsa_user_sgpr_count 2\n  .amdhsa_user_sgpr_kernarg_segment_ptr 1\n  .amdhsa_system_sgpr_workgroup_id_x 1\n"
          f"  .amdhsa_float_denorm_mode_32 3\n.end_amdhsa_kernel")

def srd(A, d, lo, hi, nbytes, add=0):
    if add:
        A(f"s_add_u32 s{d}, s{lo}, {add:#x}")
        A(f"s_addc_u32 s{d+1}, s{hi}, 0")
    else:
        A(f"s_mov_b32 s{d}, s{lo}")
        A(f"s_mov_b32 s{d+1}, s{hi}")
    if nbytes is not None: A(f"s_mov_b32 s{d+2}, {nbytes:#x}")
    A(f"s_mov_b32 s{d+3}, 0x20000")

class Stamp:
    def __init__(self, on, kidx): self.on, self.kidx, self.n = on, kidx, 0
    def text(self):
        if not self.on: return None
        t = f"s_memrealtime s[{68+2*self.n}:{69+2*self.n}]\ns_memtime s[{84+2*self.n}:{85+2*self.n}]"
        self.n += 1
        assert self.n <= 8
        return t
    def mark(self, A):
        t = self.text()
        if t: A(t)
    def flush(self, A, ws_lo, ws_hi, vtmp, s_wave):
        if not self.on: return
        self.mark(A)
        A("s_waitcnt lgkmcnt(0)")
        A(f"s_lshl_b32 s100, s2, 3")
        A(f"s_add_u32 s100, s100, {s_wave}")
        A(f"s_lshl_b32 s100, s100, 6")
        srd(A, 8, ws_lo, ws_hi, 0x100000, WS_STAMP + self.kidx * 0x40000)
        for i in range(16):
            A(f"v_mov_b32 v{vtmp+i}, s{68+2*i}" if i % 8 < self.n else f"v_mov_b32 v{vtmp+i}, 0")
        A(f"v_mov_b32 v{vtmp+16}, s100")
        A("s_mov_b64 exec, 1")
        for q in range(4):
            A(f"buffer_store_dwordx4 v[{vtmp+4*q}:{vtmp+4*q+3}], v{vtmp+16}, s[8:11], 0 offen offset:{16*q}")

class Score:
    def __init__(self, maxn):
        self.n = 0; self.idx = {}; self.done = 0; self.maxn = maxn
    def issue(self, tag=None):
        self.n += 1
        if tag is not None: self.idx[tag] = self.n
        assert self.n - self.done <= 63 or self.maxn == 15, "too many outstanding"
    def need(self, tags, slack=None):
        y = max(self.idx[t] for t in tags)
        if y <= self.done: return None
        N = self.n - y
        if slack is not None: N = min(N, slack)
        N = min(N, self.maxn)
        self.done = self.n - N
        return N
    def drain(self): self.done = self.n
    def skip(self, tag=None):
        if tag is not None: self.idx[tag] = 0

LG_SLACK = 8
class Stream:
    def __init__(self, vm, lg):
        self.mf = []; self.gaps = []; self.used = []; self.vm, self.lg = vm, lg
    def add_mfma(self, text, needs=()):
        self.mf.append((text, list(needs))); self.gaps.append([]); self.used.append(0)
        return len(self.mf) - 1
    def place(self, i0, kind, text, gives=None, needs=(), cap=1, spill=False):
        i = i0
        while i < len(self.mf) and self.used[i] >= cap: i += 1
        if i >= len(self.mf):
            assert spill, "no free gap"
            i = len(self.mf) - 1
        self.used[i] += 1
        self.gaps[i].append((kind, text, gives, list(needs)))
        return i
    def waits(self, needs, out, lgz=False):
        w = []
        lt = [t for c, t in needs if c == "lg"]; vt = [t for c, t in needs if c == "vm"]
        if lgz:
            if self.lg.done < self.lg.n: w.append("lgkmcnt(0)")
            self.lg.drain()
        elif lt:
            n = self.lg.need(lt, slack=LG_SLACK)
            if n is not None: w.append(f"lgkmcnt({n})")
        if vt:
            n = self.vm.need(vt)
            if n is not None: w.append(f"vmcnt({n})")
        if w: out.append("s_waitcnt " + " ".join(w))
    def emit(self, pfx):
        out = []
        for (text, needs), gap in zip(self.mf, self.gaps):
            self.waits(needs, out)
            if pfx + "nomfma" not in OPT: out.append(text)
            for kind, t, gives, nd in gap:
                if kind == "ds" and pfx + "nords" in OPT: self.lg.skip(gives); continue
                if kind == "vmA" and pfx + "noA" in OPT: self.vm.skip(gives); continue
                if kind == "vmD" and pfx + "noD" in OPT: self.vm.skip(gives); continue
                if kind in ("bar", "barv"):
                    self.waits(nd, out, lgz=(kind == "bar"))
                    out.append("s_barrier")
                    continue
                self.waits(nd, out)
                if kind == "ds": self.lg.issue(gives)
                if kind.startswith("vm"): self.vm.issue(gives)
                out.append(t)
        return out

def check_hazards(lines):
    import re
    def regs(tok):
        tok = tok.strip().strip("|").lstrip("-")
        m = re.fullmatch(r"([va])(\d+)", tok)
        if m: return {(m.group(1), int(m.group(2)))}
        m = re.fullmatch(r"([va])\[(\d+):(\d+)\]", tok)
        if m: return {(m.group(1), i) for i in range(int(m.group(2)), int(m.group(3)) + 1)}
        return set()
    hist = []
    pos = 0
    for ln in lines:
        t = ln.strip()
        if not t or t.endswith(":") or t.startswith(";") or t.startswith("."): continue
        mn = t.split()[0]
        ops = [o.split()[0] if o.split() else o for o in t[len(mn):].split(",")]
        R = [regs(o) for o in ops]
        if mn == "s_nop":
            pos += int(ops[0]) + 1; continue
        is_mfma = mn.startswith("v_mfma"); is_valu = mn.startswith("v_") and not is_mfma
        is_mem = mn.startswith("buffer_") or mn.startswith("ds_")
        if is_mfma or is_valu or is_mem:
            allr = set().union(*R) if R else set()
            for kind, wr, sc, p in hist[-24:]:
                d = pos - p - 1
                if kind == "mfma":
                    if is_mfma:
                        if (R[1] | R[2]) & wr and d < 8: raise Exception(f"hazard MFMA->MFMA AB: {t}")
                        if R[3] & wr and R[3] != wr and d < 6: raise Exception(f"hazard MFMA->MFMA C overlap: {t}")
                    else:
                        if allr & wr and d < 8: raise Exception(f"hazard MFMA->{mn} d={d}: {t}")
                        if is_valu and R[0] & sc and d < 3: raise Exception(f"hazard MFMA srcC WAR: {t}")
                elif kind == "valu":
                    if is_mfma and (R[1] | R[2] | R[3]) & wr and d < 2: raise Exception(f"hazard VALU->MFMA: {t}")
                    if is_valu and ("dpp" in mn or "permlane" in mn) and allr & wr and d < 2: raise Exception(f"hazard VALU->DPP: {t}")
                    if mn.startswith("v_readfirstlane") and R[1] & wr and d < 1: raise Exception(f"hazard VALU->readlane: {t}")
                elif kind == "trans":
                    if is_mfma and (R[1] | R[2] | R[3]) & wr and d < 2: raise Exception(f"hazard VALU->MFMA: {t}")
                    if is_valu and set().union(*R[1:]) & wr and d < 1: raise Exception(f"hazard trans->VALU: {t}")
                elif kind == "store":
                    if is_valu and R[0] & wr and d < 2: raise Exception(f"hazard store data WAR: {t}")
            if is_mfma: hist.append(("mfma", R[0], R[3], pos))
            elif is_valu:
                wr = set(R[0])
                if "swap" in mn: wr |= R[1]
                tr = any(mn.startswith(x) for x in ("v_exp", "v_rcp", "v_rsq", "v_sqrt", "v_log"))
                hist.append(("trans" if tr else "valu", wr, set(), pos))
            elif mn.startswith("buffer_store_dwordx4"): hist.append(("store", R[0], set(), pos))
        pos += 1

RING0 = 2048
S_SRDA, S_SRDW, S_SRDO, S_SRDS, S_SRDB, S_SRDC, S_SRDP, S_SRDT = 4, 8, 12, 16, 28, 32, 36, 40
S_C, S_SOFW, S_SOFW2, S_M0B, S_M0A, S_W, S_MB, S_NT = 20, 21, 22, 23, 24, 25, 26, 27
S_CF, S_CHF = 44, 45
S_X0 = 46
S_CODE = 48
S_AROW = 62
V_AD, V_AR, V_L16, V_D, V_R, V_RH, V_T = 224, 226, 228, 229, 232, 240, 244
A_CS, A_P, A_Q, A_SEL, A_DUM, A_RAW, A_ONE = 136, 136, 200, 220, 224, 228, 244

RSQ, RSK = 212, 216

class K1Var:
    def __init__(self, kind):
        self.kind = kind
        if kind == "w1": self.NJ, self.NT, self.CH, self.pitch = 14, 4, 7168, 7168
        else: self.NJ, self.NT, self.CH, self.pitch = 12, 5, 6144, 6144
        self.SL = 4 * self.CH
        self.ASL = self.NT * 2048
        self.ABASE = RING0 + 3 * self.SL
        self.AA = 56
    def wfrag(self, j, ks): return (j % (self.NJ // 2)) * 8 + ks * 4
    def afrag(self, st, ks, t): return self.AA + ((st * 2 + ks) * self.NT + t) * 4
    def acc(self, t, j):
        if t < 4: return (j * 4 + t) * 4
        return 192 + (0 if j == 4 else 4)
    def groups(self):
        return [(j, [0, 1, 2, 3] + ([4] if self.kind == "qkv" and j in (4, 8) else [])) for j in range(self.NJ)]
    def mm(self, t, j, w, x, zero=False):
        c = vr(self.acc(t, j), 4)
        cin = "0" if zero else c
        if self.kind == "qkv" and j >= 8: w, x = x, w
        return f"v_mfma_f32_16x16x32_bf16 {c}, {w}, {x}, {cin}"
    def mfma(self, s, ks, t, j, zero=False):
        return self.mm(t, j, ar(self.wfrag(j, ks), 4), ar(self.afrag(s % 2, ks, t), 4), zero)
    def corr(self, t, j): return self.mm(t, j, ar(A_P + 4 * j, 4), ar(A_Q + 4 * t, 4))
    def read(self, s, ks, j, p):
        st, so = divmod(s % 3, 2)
        base = RING0 + so * self.SL + ks * 2 * self.CH
        d = ar(self.wfrag(j, ks) + 2 * p, 2)
        if j < 12:
            b, jj = divmod(j, 4)
            return f"ds_read_b64_tr_b16 {d}, v{V_R + st*4 + jj} offset:{base + b*1024 + p*512}"
        return f"ds_read_b64_tr_b16 {d}, v{V_RH + st*2 + (j-12)} offset:{base + p*256}"
    def aread(self, s, ks, t):
        return f"ds_read_b128 {ar(self.afrag(s % 2, ks, t), 4)}, v{V_AR+ks} offset:{(s % 2)*self.ASL + t*2048}"
    def admas(self, s, t):
        out = []
        for u in range(2):
            tgt = (s % 2) * self.ASL + t * 2048 + u * 1024
            out.append((f"s_add_u32 m0, s{S_M0A}, {tgt + 2048 - s*128:#x}",
                        f"buffer_load_dwordx4 v{V_AD+u}, {sq(S_SRDA)}, s{S_AROW+t} offen offset:{s*128} lds"))
        return out
    def dmas(self, s):
        out = []
        base = RING0 + (s % 3) * self.SL
        W = sq(S_SRDW)
        for rg in range(2):
            for b in range(3):
                tgt = base + rg * 3072 + b * 1024
                if self.kind == "w1": imm, so = b * 128, S_SOFW
                else: imm, so = (b * 2048, S_SOFW) if b < 2 else (0, S_SOFW2)
                out.append((f"s_add_u32 m0, s{S_M0B}, {tgt - imm:#x}",
                            f"buffer_load_dwordx4 v{V_D+rg}, {W}, s{so} offen offset:{imm} lds"))
        if self.kind == "w1":
            out.append((f"s_add_u32 m0, s{S_M0B}, {base + 6144:#x}",
                        f"buffer_load_dwordx4 v{V_D+2}, {W}, s{S_SOFW} offen lds"))
        return out
    def sof_adv(self):
        r = [f"s_add_u32 s{S_SOFW}, s{S_SOFW}, {64*self.pitch:#x}"]
        if self.kind == "qkv": r.append(f"s_add_u32 s{S_SOFW2}, s{S_SOFW2}, {64*self.pitch:#x}")
        return r

def xlane_sum2(A, a, b):
    for r in (8, 4, 2, 1):
        A("s_nop 0")
        for v in (a, b): A(f"v_add_f32_dpp v{v}, v{v}, v{v} row_ror:{r} row_mask:0xf bank_mask:0xf")
    for sw in ("v_permlane16_swap_b32", "v_permlane32_swap_b32"):
        for v in (a, b): A(f"v_mov_b32 v{v+1}, v{v}")
        A("s_nop 0")
        for v in (a, b): A(f"{sw} v{v}, v{v+1}")
        for v in (a, b): A(f"v_add_f32 v{v}, v{v}, v{v+1}")

def k1_variant(A1, A2_, V, stamp):
    A = A1
    kind = V.kind
    st = Stamp(stamp, 1); st.n = 1
    NS, H, CH = 16, V.NJ // 2, V.CH
    lane, l16, g = 100, 101, 102
    T = 104
    X = S_X0
    if kind == "w1":
        A(f"s_mul_i32 s{X}, s{S_NT}, 448")
        A(f"s_and_b32 s{X+1}, s{S_NT}, 1")
        A(f"s_lshl_b32 s{X+2}, s{X+1}, 6")
        A(f"s_add_u32 s{S_CF}, s{X}, s{X+2}")
        A(f"s_xor_b32 s{X+2}, s{X+1}, 1")
        A(f"s_mul_i32 s{X+2}, s{X+2}, 384")
        A(f"s_add_u32 s{S_CHF}, s{X}, s{X+2}")
    else:
        A(f"s_lshl_b32 s{S_CF}, s{S_NT}, 7")
    r, pc, x, y = T, T + 1, T + 2, T + 3
    A(f"v_lshrrev_b32 v{r}, 3, v{lane}")
    A(f"v_bfe_u32 v{x}, v{lane}, 1, 2")
    A(f"v_bfe_u32 v{y}, v{lane}, 4, 1")
    A(f"v_xor_b32 v{x}, v{x}, v{y}")
    A(f"v_and_b32 v{pc}, 1, v{lane}")
    A(f"v_mul_u32_u24 v{r}, {V.pitch}, v{r}")
    A(f"v_lshl_add_u32 v{y}, v{pc}, 4, v{r}")
    A(f"s_mul_i32 s{X+3}, s{S_W}, {16*V.pitch}")
    A(f"s_add_u32 s{X+4}, s{X+3}, s{S_CF}")
    A(f"v_lshl_add_u32 v{V_D}, v{x}, 5, v{y}")
    A(f"v_add_u32 v{V_D}, s{X+4}, v{V_D}")
    A(f"v_xor_b32 v{x}, 2, v{x}")
    A(f"v_lshl_add_u32 v{V_D+1}, v{x}, 5, v{y}")
    A(f"s_add_u32 s{X+4}, s{X+4}, {8*V.pitch}")
    A(f"v_add_u32 v{V_D+1}, s{X+4}, v{V_D+1}")
    if kind == "w1":
        A(f"v_lshrrev_b32 v{T+4}, 2, v{lane}")
        A(f"v_mul_u32_u24 v{T+4}, {V.pitch}, v{T+4}")
        A(f"v_bfe_u32 v{T+5}, v{lane}, 1, 1")
        A(f"v_bfe_u32 v{T+6}, v{lane}, 5, 1")
        A(f"v_xor_b32 v{T+5}, v{T+5}, v{T+6}")
        A(f"v_lshl_add_u32 v{T+4}, v{T+5}, 5, v{T+4}")
        A(f"v_lshl_add_u32 v{T+4}, v{pc}, 4, v{T+4}")
        A(f"s_add_u32 s{X+4}, s{X+3}, s{S_CHF}")
        A(f"v_add_u32 v{V_D+2}, s{X+4}, v{T+4}")
    A(f"s_mul_i32 s{S_M0B}, s{S_W}, {CH}")
    A(f"s_mul_i32 s{S_M0A}, s{S_W}, {2*V.ASL}")
    A(f"s_add_u32 s{S_M0A}, s{S_M0A}, {V.ABASE - 2048}")
    A("s_waitcnt lgkmcnt(0)")
    if "promarks" in OPT: st.mark(A)
    A(f"s_mov_b32 s{S_SRDA+2}, {4 << 20:#x}"); A(f"s_mov_b32 s{S_SRDA+3}, 0x20000")
    if kind == "w1": srd(A, S_SRDW, 56, 57, 1024 * 7168)
    else: srd(A, S_SRDW, 60, 61, 1024 * 6144)
    vm, lg = Score(63), Score(15)
    def pro_A(s):
        for t in range(V.NT):
            for u, (m0, d) in enumerate(V.admas(s, t)):
                A1(m0); A1("s_nop 0"); A1(d); vm.issue(("A", s, t) if u == 1 else None)
    def pro_W(s):
        dm = V.dmas(s)
        for n, (m0, d) in enumerate(dm):
            A1(m0); A1("s_nop 0"); A1(d); vm.issue(("D", s) if n == len(dm) - 1 else None)
        for x_ in V.sof_adv(): A1(x_)
    pro_W(0); pro_A(0)
    if "promarks" in OPT: st.mark(A)
    if "late1" not in OPT: pro_W(1); pro_A(1)
    else: pro_W(1)
    if "promarks" in OPT: st.mark(A)
    A(f"s_branch L_k1_main_{kind}")
    A = A2_
    A.label(f"L_k1_main_{kind}")
    WSL, WSH = 14, 15
    A(f"s_mov_b32 s100, s{WSL}"); A(f"s_mov_b32 s101, s{WSH}")
    srd(A, S_SRDC, 12, 13, 4)
    srd(A, S_SRDT, 12, 13, None)
    A(f"s_cmp_eq_u32 s{S_W}, 0")
    A(f"s_cselect_b32 s{S_SRDT+2}, 4, 0")
    srd(A, S_SRDS, 100, 101, SD_BYTES, WS_SIDE)
    srd(A, S_SRDO, 100, 101, A2_BYTES, WS_A2)
    if kind == "w1":
        srd(A, S_SRDB, 58, 59, None)
        A(f"s_cmp_eq_u32 s{S_MB}, 0")
        A(f"s_cselect_b32 s{S_SRDB+2}, 7168, 0")
        A(f"s_mov_b32 s{S_SRDP+2}, {3584*2048:#x}")
    else:
        A(f"s_mov_b32 s{S_SRDP}, s38"); A(f"s_mov_b32 s{S_SRDP+1}, s39")
        A(f"s_mov_b32 s{S_SRDP+2}, {1024*2048:#x}")
    A(f"s_mov_b32 s{S_SRDP+3}, 0x20000")
    A("s_mov_b32 s58, s100"); A("s_mov_b32 s59, s101")
    VCA, VCS, VB1, VDC, VW = V_T, V_T + 1, V_T + 2, V_T + 4, V_T + 8
    A(f"v_and_b32 v{T+4}, 7, v{lane}")
    A(f"v_lshl_add_u32 v{VCA}, v{T+4}, 4, v{r}")
    if kind == "w1":
        A(f"s_lshl_b32 s{X+5}, s{S_W}, 7")
        A(f"s_add_u32 s{X+5}, s{X+5}, s{X}")
        A(f"v_lshlrev_b32 v{VB1}, 4, v{T+4}")
        A(f"v_lshl_add_u32 v{VB1}, v{g}, 3, v{VB1}")
        A(f"v_add_u32 v{VB1}, s{X+5}, v{VB1}")
        A(f"s_lshr_b32 s{X+6}, s{X+5}, 5")
        A(f"s_add_u32 s{X+6}, s{X+6}, 192")
    else:
        A(f"s_min_u32 s{X+5}, s{S_W}, 2")
        A(f"s_lshl_b32 s{X+5}, s{X+5}, 11")
        A(f"s_add_u32 s{X+5}, s{X+5}, s{S_CF}")
        A(f"v_mov_b32 v{VB1}, 0"); A(f"v_mov_b32 v{VB1+1}, 0"); vm.skip("B1")
        A(f"s_lshr_b32 s{X+6}, s{X+5}, 5")
    A(f"s_and_b32 s{X+7}, s{S_MB}, 3")
    A(f"s_lshl_b32 s{X+7}, s{X+7}, 1")
    A(f"s_lshr_b32 s{X+9}, s{S_MB}, 2")
    A(f"s_add_u32 s{X+7}, s{X+7}, s{X+9}")
    A(f"s_mul_i32 s{X+7}, s{X+7}, {128*V.pitch:#x}")
    A(f"s_add_u32 s{X+7}, s{X+7}, s{X+5}")
    S_CSL, S_CSS = X + 7, X + 6
    A(f"s_lshl_b32 s{S_CSS}, s{S_CSS}, 10")
    A(f"s_lshr_b32 s{X+5}, s{S_MB}, 1")
    A(f"s_lshl_b32 s{X+5}, s{X+5}, 8")
    A(f"s_add_u32 s{S_CSS}, s{S_CSS}, s{X+5}")
    A(f"s_and_b32 s{X+5}, s{S_MB}, 1")
    A(f"s_lshl_b32 s{X+5}, s{X+5}, 3")
    A(f"s_add_u32 s{S_CSS}, s{S_CSS}, s{X+5}")
    A(f"s_add_u32 s{S_CSS}, s{S_CSS}, {SD_P:#x}")
    A(f"v_lshrrev_b32 v{T+5}, 1, v{T+4}")
    A(f"v_lshlrev_b32 v{VCS}, 10, v{T+5}")
    A(f"v_lshl_add_u32 v{VCS}, v{pc}, 7, v{VCS}")
    A(f"v_lshl_add_u32 v{VCS}, v{g}, 6, v{VCS}")
    if kind == "w1":
        A(f"s_cmp_eq_u32 s{S_W}, 3")
        A(f"s_cselect_b32 s{X+5}, 0x2c, 0x28")
    else:
        A(f"s_mov_b32 s{X+5}, 0x28")
    A(f"v_and_b32 v{T+5}, s{X+5}, v{lane}")
    A(f"v_lshl_add_u32 v{VCS}, v{T+5}, 24, v{VCS}")
    A(f"v_lshlrev_b32 v{T+5}, 4, v{pc}")
    A(f"v_mov_b32 v{T+6}, 0x3f80")
    A(f"v_lshlrev_b32 v{T+6}, v{T+5}, v{T+6}")
    A(f"v_lshrrev_b32 v{T+5}, 1, v{l16}")
    for q in range(4):
        A(f"v_cmp_eq_u32 vcc, {q}, v{T+5}")
        A("s_nop 1")
        A(f"v_cndmask_b32 v{T+7}, 0, v{T+6}, vcc")
        A(f"v_accvgpr_write_b32 a{A_SEL+q}, v{T+7}")
    A(f"v_xor_b32 v{T+4}, v{T+5}, v{g}")
    A(f"v_lshlrev_b32 v{T+5}, 7, v{l16}")
    A(f"v_add_u32 v{T+5}, s{S_M0A}, v{T+5}")
    A(f"v_add_u32 v{T+5}, 2048, v{T+5}")
    A(f"v_lshl_add_u32 v{V_AR}, v{T+4}, 4, v{T+5}")
    A(f"v_xor_b32 v{T+4}, 4, v{T+4}")
    A(f"v_lshl_add_u32 v{V_AR+1}, v{T+4}, 4, v{T+5}")
    rp, c, sw, b = T + 4, T + 5, T + 6, T + 7
    A(f"v_bfe_u32 v{rp}, v{lane}, 2, 2")
    A(f"v_and_b32 v{c}, 3, v{lane}")
    A(f"v_bfe_u32 v{sw}, v{lane}, 3, 2")
    if kind == "qkv": A(f"v_xor_b32 v{sw}, s{S_W}, v{sw}")
    A(f"v_lshrrev_b32 v{b}, 5, v{lane}")
    A(f"v_mul_u32_u24 v{b}, {CH}, v{b}")
    A(f"v_lshl_add_u32 v{b}, v{c}, 3, v{b}")
    A(f"v_bfe_u32 v{T+8}, v{lane}, 4, 1")
    A(f"v_mul_u32_u24 v{T+9}, 3072, v{T+8}")
    A(f"v_lshl_add_u32 v{T+9}, v{rp}, 7, v{T+9}")
    A(f"v_add_u32 v{T+9}, v{T+9}, v{b}")
    for jj in range(4):
        A(f"v_xor_b32 v{T+10}, {jj}, v{sw}")
        A(f"v_lshl_add_u32 v{V_R+jj}, v{T+10}, 5, v{T+9}")
        A(f"v_add_u32 v{V_R+4+jj}, {2*V.SL}, v{V_R+jj}")
    if kind == "w1":
        A(f"v_lshl_add_u32 v{T+9}, v{T+8}, 3, v{rp}")
        A(f"v_lshl_add_u32 v{T+9}, v{T+9}, 6, v{b}")
        A(f"v_add_u32 v{T+9}, 6144, v{T+9}")
        for jj in range(2):
            A(f"v_xor_b32 v{T+10}, {jj}, v{T+8}")
            A(f"v_lshl_add_u32 v{V_RH+jj}, v{T+10}, 5, v{T+9}")
            A(f"v_add_u32 v{V_RH+2+jj}, {2*V.SL}, v{V_RH+jj}")
    S_HI = X + 8
    A(f"s_mov_b32 s{S_HI}, 0xffff0000")
    A(f"v_mov_b32 v{T+4}, 0x3f803f80")
    for q in range(4): A(f"v_accvgpr_write_b32 a{A_ONE+q}, v{T+4}")
    A(f"v_cmp_eq_u32 vcc, 1, v{pc}")
    if "promarks" in OPT: st.mark(A)
    n = vm.need([("D", 0), ("A", 0, V.NT - 1)])
    A(f"s_waitcnt vmcnt({n})")
    if "promarks" in OPT: st.mark(A)
    A("s_barrier")
    st.mark(A)
    for ks in range(2): A(V.aread(0, ks, 0)); lg.issue(("AF", 0, 0))
    for q in range(4): A(V.read(0, q >> 1, 0, q & 1)); lg.issue(("W", 0, 0))
    for t in range(1, V.NT):
        for ks in range(2): A(V.aread(0, ks, t)); lg.issue(("AF", 0, t))
    S = Stream(vm, lg)
    groups = V.groups()
    first, last, fin = {}, {}, {}
    for s in range(NS):
        n = 0
        for j, ts in groups:
            ts = list(ts) if j % 2 == 0 else list(reversed(ts))
            if 4 in ts: ts = [4, 0, 1, 2, 3]
            for t in ts:
                kk = (0, 1) if n % 2 == 0 else (1, 0)
                for ks in kk:
                    needs = [("lg", ("W", s, j)), ("lg", ("AF", s, t))]
                    idx = S.add_mfma(V.mfma(s, ks, t, j, zero=(s == 0 and ks == kk[0])), needs)
                    first.setdefault((s, j), idx); last[(s, j)] = idx
                    if s == NS - 1 and ks == kk[0]:
                        S.add_mfma(V.corr(t, j), [("vm", ("P", j)), ("vm", ("Q", t))])
                fin[(t, j)] = idx
                n += 1
    i = 0
    for j in range(1, H):
        for q in range(4):
            i = S.place(i, "ds", V.read(0, q >> 1, j, q & 1), gives=("W", 0, j) if q == 3 else None) + 1
    bar = {}
    SIG, POLL, CHK = par("k1sig", 8), par("k1poll", 12), par("k1chk", 13)
    for s in range(NS):
        if s + 1 < NS:
            bar[s] = last[(s, H)]
            S.gaps[bar[s]].append(("bar", None, None, [("vm", ("D", s + 1))] + ([("vm", "CS")] if s == SIG else [])))
        for j, _ in groups:
            s2, j2 = (s, j + H) if j < H else (s + 1, j - H)
            if s2 >= NS: continue
            i = last[(s, j)]
            step = 1 if (j == H - 1 or (s == 0 and j < H)) else 2
            for q in range(4):
                i = S.place(i, "ds", V.read(s2, q >> 1, j2, q & 1), gives=("W", s2, j2) if q == 3 else None) + step
    cur = 0
    def dma_seq(i0, i1, lst, vcap=1):
        nonlocal cur
        i0 = max(i0, cur)
        n = len(lst)
        for k, (pre, d, kd, gives, needs) in enumerate(lst):
            tgt = max(cur, i0 + (k * (i1 - i0)) // n)
            i = S.place(tgt, "s", pre, cap=vcap + 1)
            cur = S.place(i + 1, kd, d, gives=gives, needs=needs, cap=vcap)
    def merge(a, b):
        if not b: return a
        out, k = [], 0
        for i, x in enumerate(a):
            out.append(x)
            while k < len(b) and (k + 1) * len(a) <= (i + 1) * len(b): out.append(b[k]); k += 1
        return out + b[k:]
    def wlist(s):
        dm = V.dmas(s)
        return [(m0, d, "vmD", ("D", s) if n == len(dm) - 1 else None, []) for n, (m0, d) in enumerate(dm)]
    def alist(s, dep=True):
        return [(m0, d, "vmA", ("A", s, t) if u == 1 else None, [("lg", ("AF", s - 2, t))] if dep else [])
                for t in range(V.NT) for u, (m0, d) in enumerate(V.admas(s, t))]
    def areads(s, i0, i1):
        for t in range(V.NT):
            i = i0 + (t * (i1 - i0)) // V.NT
            i = S.place(i, "ds", V.aread(s, 0, t), needs=[("vm", ("A", s, t))])
            S.place(i + 1, "ds", V.aread(s, 1, t), gives=("AF", s, t))
    extra = {}
    cs = [(f"s_add_u32 s60, s{S_CSL}, {i*8*V.pitch:#x}",
           f"buffer_load_dwordx4 {ar(A_CS+4*i, 4)}, v{VCA}, {sq(S_SRDW)}, s60 offen", "vmX", ("CL", i), []) for i in range(16)]
    cs0, csn = par("cs0", 1), par("csn", 4)
    slots = [(s_, h_) for s_ in range(cs0, cs0 + csn) for h_ in range(2)]
    for i_, it in enumerate(cs): extra.setdefault(slots[i_ * len(slots) // 16], []).append(it)
    if kind == "w1":
        extra.setdefault((cs0 + 1, 0), []).append(("s_nop 0", f"buffer_load_dwordx2 v[{VB1}:{VB1+1}], v{VB1}, {sq(S_SRDB)}, 0 offen", "vmX", "B1", []))
    rows = [("s_nop 0", f"buffer_load_dwordx4 {ar(A_RAW+4*q, 4)}, v{V_L16}, {sq(S_SRDA)}, s67 offen offset:{q*1024}", "vmX", "ROWS" if q == 3 else None, []) for q in range(4)]
    cpf = []
    if "nocpf" not in OPT:
        cpf = [(f"s_getpc_b64 s[{S_CODE}:{S_CODE+1}]\nL_k1_pc_{kind}:\ns_mov_b32 s{S_CODE+2}, L_k1_spin_{kind}-L_k1_pc_{kind}\ns_mov_b32 s{S_CODE+3}, 0x20000\n"
                f"s_bfe_u32 s60, s2, 0x20003\ns_lshl_b32 s60, s60, 2\ns_add_u32 s60, s60, s{S_W}\ns_mul_i32 s60, s60, {par('cpfb', 2560)}\n"
                f"v_lshlrev_b32 v{VW}, 3, v{V_L16}\ns_mov_b64 exec, {hex((1 << (par('cpfb', 2560) // 128)) - 1)}\n"
                f"buffer_load_dword a{A_DUM}, v{VW}, {sq(S_CODE)}, s60 offen\ns_mov_b64 exec, -1")]
    npf = 4 if kind == "w1" else 1
    per_wave = 14336 if kind == "w1" else 4096
    pf = []
    for i in range(npf):
        pre = f"s_add_u32 s60, s55, {min(i*4096, per_wave-4096):#x}"
        if i == 0:
            pre = (f"s_and_b32 s55, s2, 127\ns_lshl_b32 s55, s55, 2\ns_add_u32 s55, s55, s{S_W}\ns_mul_i32 s55, s55, {per_wave}\n"
                   f"v_lshlrev_b32 v{VCA}, 2, v{V_L16}\n" + pre)
        pf.append((pre, f"buffer_load_dword a{A_DUM}, v{VCA}, {sq(S_SRDP)}, s60 offen", "vmX", None, []))
    def addx(key, lst): extra.setdefault(key, []).extend(lst)
    mode = PAR.get("pfmode", "spread")
    if "nopf" not in OPT:
        if mode == "late": addx((14, 0), pf)
        elif mode == "spread":
            for i_, it in enumerate(pf): addx((cs0 + csn + i_, 0), [it])
        else: addx((7, 0), pf)
    cl = []
    for q in range(4):
        pre = "s_nop 0"
        if q == 0:
            pre = (f"s_add_u32 s{S_SRDP}, s58, {WS_PART:#x}\ns_addc_u32 s{S_SRDP+1}, s59, 0\ns_mov_b32 s{S_SRDP+2}, {4 << 20:#x}\n"
                   f"s_lshl_b32 s55, s2, 2\ns_add_u32 s55, s55, s{S_W}\ns_lshl_b32 s55, s55, 12\n" +
                   "\n".join(f"v_mov_b32 v{VDC+k}, -1" for k in range(4)))
        cl.append((pre, f"buffer_store_dwordx4 {vr(VDC,4)}, v{V_L16}, {sq(S_SRDP)}, s55 offen offset:{q*1024}{PAR.get('clrmod', ' sc1')}", "vmS", None, []))
    if "noclr" not in OPT:
        if mode == "late": addx((14, 1), cl)
        elif mode == "spread":
            for i_, it in enumerate(cl): addx((9 + i_, 0), [it])
            assert cs0 + csn + 4 <= 9
        else: addx((8, 0), cl)
    extra[(SIG, 1)] = extra.get((SIG, 1), []) + [(f"v_mov_b32 v{VW}, 1", f"buffer_atomic_add v{VW}, v{V_L16}, {sq(S_SRDT)}, 0 offen", "vmS", None, [])]
    extra[(POLL, 1)] = [("s_nop 0", f"buffer_load_dword v{VW}, off, {sq(S_SRDC)}, 0 sc1", "vmX", "POLL", [])]
    pl = []
    for t in range(V.NT):
        pre = f"s_lshr_b32 s60, s{S_AROW+t}, 7\ns_add_u32 s60, s60, {SD_Q:#x}"
        if t == 0: pre = f"v_and_b32 v{VCA}, 0xff, v{V_L16}\n" + pre
        pl.append((pre, f"buffer_load_dwordx4 {ar(A_Q+4*t, 4)}, v{VCA}, {sq(S_SRDS)}, s60 offen sc1", "vmX", ("Q", t), []))
    for j in range(V.NJ):
        if kind == "w1":
            pre = f"s_lshl_b32 s60, s{S_CF if j < 12 else S_CHF}, 5\ns_add_u32 s60, s60, {SD_P + (192 + (j if j < 12 else j - 12))*1024:#x}"
        else:
            pre = (f"s_xor_b32 s60, s{S_W}, {j & 3}\ns_lshl_b32 s60, s60, 5\ns_add_u32 s60, s60, s{S_CF}\ns_lshl_b32 s60, s60, 5\n"
                   f"s_add_u32 s60, s60, {SD_P + (j >> 2)*65536:#x}")
        pl.append((pre, f"buffer_load_dwordx4 {ar(A_P+4*j, 4)}, v{V_L16}, {sq(S_SRDS)}, s60 offen sc1", "vmX", ("P", j), []))
    if kind == "qkv":
        for t in range(4):
            pre = f"s_lshr_b32 s60, s{S_AROW+t}, 9\ns_add_u32 s60, s60, {SD_RS - 64:#x}"
            if t == 0:
                pre = (f"v_lshrrev_b32 v{VCS}, 2, v{VCA}\n"
                       f"v_lshrrev_b32 v{VB1}, 4, v{V_L16}\nv_and_b32 v{VB1}, 0x30, v{VB1}\n"
                       f"v_and_b32 v{VB1+1}, 4, v{VCS}\nv_add_u32 v{VB1}, v{VB1}, v{VB1+1}\n"
                       f"v_add_u32 v{VB1+1}, 8, v{VB1}\n"
                       f"v_cmp_le_u32 s[48:49], v{VB1}, v{VCS}\nv_cmp_le_u32 s[50:51], v{VB1+1}, v{VCS}\n"
                       f"v_add_u32 v{VDC}, 64, v{VB1}\nv_add_u32 v{VDC+1}, 64, v{VB1+1}\n"
                       f"v_cndmask_b32 v{VB1}, v{VB1}, v{VDC}, s[48:49]\nv_cndmask_b32 v{VB1+1}, v{VB1+1}, v{VDC+1}, s[50:51]\n" + pre)
            pl.append((pre, f"buffer_load_dword v{RSQ+t}, v{VCS}, {sq(S_SRDS)}, s60 offen offset:64 sc1", "vmX", None, []))
            pl.append(("s_nop 0", f"buffer_load_dword v{RSK+2*t}, v{VB1}, {sq(S_SRDS)}, s60 offen sc1", "vmX", None, []))
            pl.append(("s_nop 0", f"buffer_load_dword v{RSK+2*t+1}, v{VB1+1}, {sq(S_SRDS)}, s60 offen sc1", "vmX", "RS" if t == 3 else None, []))
    h = len(pl) // 2
    extra[(CHK, 1)], extra[(CHK + 1, 0)] = pl[:h], pl[h:]
    for s in range(NS):
        b0 = first[(s, 0)]
        b1 = first[(s + 1, 0)] if s + 1 < NS else len(S.mf)
        if s == 0:
            for c_ in cpf: cur = S.place(0, "vmX", c_, cap=3)
            dma_seq(b0, bar[0], ([] if "late1" not in OPT else alist(1, dep=False)) + wlist(2) + alist(2), vcap=2)
            for x_ in V.sof_adv(): cur = S.place(cur, "s", x_, cap=4)
            areads(1, b1 - 28, b1 - 8)
            dma_seq(bar[0] + 1, b1, rows + wlist(3))
            for x_ in V.sof_adv(): cur = S.place(cur, "s", x_, cap=3)
            continue
        if s == 1:
            areads(2, bar[1] - 8, bar[1] + 20)
            dma_seq(b0, bar[1], merge(alist(3), extra.get((1, 0), [])))
            dma_seq(bar[1] + 1, b1 + 4, merge(wlist(4) + alist(4), extra.get((1, 1), [])))
            for x_ in V.sof_adv(): cur = S.place(cur, "s", x_, cap=3)
            continue
        if s + 1 < NS:
            lo = b0 + (24 if s == 2 else 0)
            areads(s + 1, lo, bar[s] - 8)
            l0 = merge(alist(s + 3) if s + 3 < NS else [], extra.get((s, 0), []))
            if l0: dma_seq(lo + 8, bar[s], l0)
            if s == CHK:
                cur = S.place(max(cur, bar[s] + 1), "s", f"v_readfirstlane_b32 s60, v{VW}\ns_nop 3\ns_cmp_eq_u32 s60, 256\n"
                              f"s_cbranch_scc0 L_k1_spin_{kind}\nL_k1_back_{kind}:", needs=[("vm", "POLL")], cap=3)
            l1 = merge(wlist(s + 3) if s + 3 < NS else [], extra.get((s, 1), []))
            if l1: dma_seq(bar[s] + 1, b1 + 4, l1)
            if s + 3 < NS:
                for x_ in V.sof_adv(): cur = S.place(cur, "s", x_, cap=3)
    i = first[(2, 0)]
    def fill(o, gapstep=1, needs=(), kd="s", gives=None):
        nonlocal i
        i = S.place(i, kd, o, needs=needs, cap=2, gives=gives) + gapstep
    mA, mB = VDC, VW
    for rr, d in ((0, mA), (1, mB)):
        for q in range(2):
            fill(f"v_mfma_f32_16x16x32_bf16 {vr(d,4)}, {ar(A_ONE,4)}, {ar(A_RAW+8*rr+4*q,4)}, {'0' if q == 0 else vr(d,4)}", needs=[("vm", "ROWS")])
    i += 8
    for r_ in (8, 4, 2, 1):
        for d in (mA, mB): fill(f"v_add_f32_dpp v{d}, v{d}, v{d} row_ror:{r_} row_mask:0xf bank_mask:0xf")
    for d in (mA, mB): fill(f"v_mul_f32 v{d}, 0x3a800000, v{d}", 0)
    for d in (mA, mB): fill(f"v_mov_b32 v{d+1}, 0", 0)
    for q in range(8):
        for rr, d in ((0, mA), (1, mB)):
            for o in (f"v_accvgpr_read_b32 v{d+2}, a{A_RAW+8*rr+q}", f"v_and_b32 v{d+3}, s{S_HI}, v{d+2}", f"v_lshlrev_b32 v{d+2}, 16, v{d+2}",
                      f"v_sub_f32 v{d+3}, v{d+3}, v{d}", f"v_sub_f32 v{d+2}, v{d+2}, v{d}",
                      f"v_fmac_f32 v{d+1}, v{d+3}, v{d+3}", f"v_fmac_f32 v{d+1}, v{d+2}, v{d+2}"):
                fill(o, 0)
    i += 2
    qA, qB = mA + 1, mB + 1
    for r_ in (8, 4, 2, 1):
        for d in (qA, qB): fill(f"v_add_f32_dpp v{d}, v{d}, v{d} row_ror:{r_} row_mask:0xf bank_mask:0xf")
    for sw_ in ("v_permlane16_swap_b32", "v_permlane32_swap_b32"):
        for d in (qA, qB): fill(f"v_mov_b32 v{d+1}, v{d}")
        i += 1
        for d in (qA, qB): fill(f"{sw_} v{d}, v{d+1}")
        for d in (qA, qB): fill(f"v_add_f32 v{d}, v{d}, v{d+1}")
    for o in (f"v_cndmask_b32 v{mA}, v{mA}, v{mB}, vcc", f"v_cndmask_b32 v{qA}, v{qA}, v{qB}, vcc",
              f"v_mul_f32 v{qA}, 0x3a800000, v{qA}", f"v_cvt_pk_bf16_f32 v{VW}, -v{mA}, -v{mA}",
              f"v_cvt_pk_bf16_f32 v{qA}, v{qA}, v{qA}", f"v_and_b32 v{qA}, s{S_HI}, v{qA}", f"v_add_f32 v{qA}, 0x3727c5ac, v{qA}",
              f"v_cvt_pk_bf16_f32 v{qA}, v{qA}, v{qA}", f"v_and_b32 v{qA}, s{S_HI}, v{qA}", f"v_sqrt_f32 v{qA}, v{qA}",
              f"v_mov_b32 v{VW+2}, v{VW}", f"v_cvt_pk_bf16_f32 v{VW+1}, -v{mA}, v{qA}", f"v_and_b32 v{qA}, s{S_HI}, v{VW+1}",
              f"v_rcp_f32 v{qA}, v{qA}", f"v_mov_b32 v{VW+3}, v{VW+1}", f"v_lshrrev_b32 v{mA+2}, 2, v{V_L16}"):
        fill(o)
    fill(f"s_lshr_b32 s61, s67, 7\ns_add_u32 s61, s61, {SD_Q:#x}\ns_mov_b64 exec, 3\n"
         f"buffer_store_dwordx4 {vr(VW,4)}, v{V_L16}, {sq(S_SRDS)}, s61 offen sc1\ns_mov_b64 exec, -1", kd="vmS")
    fill(f"s_lshr_b32 s61, s67, 9\ns_add_u32 s61, s61, {SD_RS:#x}\ns_mov_b64 exec, 3\n"
         f"buffer_store_dword v{qA}, v{mA+2}, {sq(S_SRDS)}, s61 offen sc1\ns_mov_b64 exec, -1", kd="vmS")
    i = i + 2
    for q in range(16):
        cin = "0" if q == 0 else vr(VDC, 4)
        sl_ = slots[q * len(slots) // 16]
        i = max(i, first[(sl_[0] + 2, 0 if sl_[1] == 0 else H)])
        i = S.place(i, "s", f"v_mfma_f32_16x16x32_bf16 {vr(VDC,4)}, {ar(A_SEL,4)}, {ar(A_CS+4*q,4)}, {cin}", needs=[("vm", ("CL", q))], cap=2) + 4
    i += 8
    for r_ in range(4):
        i = S.place(i, "s", f"v_add_f32_dpp v{VDC+r_}, v{VDC+r_}, v{VDC+r_} row_ror:8 row_mask:0xf bank_mask:0xf", cap=2) + 1
    for r_ in range(4):
        d = VDC + r_
        sel = "0x05040302" if r_ % 2 == 0 else "0x07060302"
        ops = [f"v_and_b32 v{VW+2}, s{S_HI}, v{d}", f"v_sub_f32 v{VW+2}, v{d}, v{VW+2}",
               f"v_and_b32 v{VW+3}, s{S_HI}, v{VW+2}", f"v_sub_f32 v{VW+3}, v{VW+2}, v{VW+3}",
               f"s_mov_b32 s61, 0x07060302\nv_perm_b32 v{VW}, v{VW+2}, v{d}, s61",
               f"s_mov_b32 s61, {sel}\nv_perm_b32 v{VW+1}, v{VB1 + (r_ >> 1)}, v{VW+3}, s61"]
        for k, o in enumerate(ops):
            i = S.place(i, "s", o, cap=2, needs=[("vm", "B1")] if k == 5 else []) + 1
        i = S.place(i, "vmS", f"buffer_store_dwordx2 v[{VW}:{VW+1}], v{VCS}, {sq(S_SRDS)}, s{S_CSS} offen offset:{16*r_} sc1",
                    gives="CS" if r_ == 3 else None, cap=2) + 2
    assert i < bar[SIG - 1]
    tail = []
    if kind == "w1":
        pre = [f"s_lshl_b32 s{X}, s{S_MB}, 3", f"s_lshl_b32 s{X+1}, s{S_W}, 1", f"s_add_u32 s{X}, s{X}, s{X+1}",
               f"s_mul_i32 s{X}, s{X}, 144", f"s_add_u32 s{X}, s{X}, 32", f"s_lshr_b32 s{X+1}, s{S_CF}, 6", f"s_lshr_b32 s{X+2}, s{S_CHF}, 6",
               f"s_add_u32 s{X+1}, s{X+1}, s{X}", f"s_add_u32 s{X+2}, s{X+2}, s{X}", f"s_lshl_b32 s{X+1}, s{X+1}, 11", f"s_lshl_b32 s{X+2}, s{X+2}, 11"]
        i = first[(14, 0)]
        for o in pre: i = S.place(i, "s", o, cap=2) + 1
        for j in range(14):
            for t in (range(4) if j % 2 == 0 else range(3, -1, -1)):
                a = V.acc(t, j); e = fin[(t, j)] + 8
                dst = a if j % 2 == 0 else V.acc(t, j - 1) + 2
                for r_ in range(4): tail.append((e, "s", f"v_mul_f32 v{a+r_}, v{a+r_}, |v{a+r_}|", []))
                tail.append((e, "s", f"v_cvt_pk_bf16_f32 v{dst}, v{a}, v{a+1}", []))
                tail.append((e, "s", f"v_cvt_pk_bf16_f32 v{dst+1}, v{a+2}, v{a+3}", []))
                for r_ in range(2): tail.append((e, "s", f"v_pk_max_i16 v{dst+r_}, v{dst+r_}, 0", []))
                if j % 2 == 1:
                    p = j // 2; a0 = V.acc(t, j - 1)
                    off = (t >> 1) * 144 * 2048 + (p * 2048 if p < 6 else 0)
                    tail.append((e, "vmS", f"s_add_u32 s60, s{X+1 if p < 6 else X+2}, {off:#x}\n"
                                 f"buffer_store_dwordx4 v[{a0}:{a0+3}], v{V_L16}, {sq(S_SRDO)}, s60 offen offset:{(t&1)*1024}{STMOD}", []))
    else:
        for j, ts in groups:
            ts = list(ts) if j % 2 == 0 else list(reversed(ts))
            if 4 in ts: ts = [4, 0, 1, 2, 3]
            if j >= 8: ts = [t for t in ts if t == 4] + [0, 1, 2, 3]
            for t in ts:
                a = V.acc(t, j); e = (fin[(t, j)] if j < 8 else last[(NS - 1, j)]) + 8
                if t == 4: d0 = a
                elif j < 8: d0 = a if j % 2 == 0 else V.acc(t, j - 1) + 2
                else: d0 = V.acc(0, j) + 2 + 2 * t
                cv = [f"v_cvt_pk_bf16_f32 v{d0}, v{a}, v{a+1}", f"v_cvt_pk_bf16_f32 v{d0+1}, v{a+2}, v{a+3}"]
                if j >= 8 and t == 0: cv.reverse()
                for o in cv: tail.append((e, "s", o, []))
    i = 0
    rest = []
    for e, kd, text, nd in tail:
        if rest or max(i, e) >= len(S.mf) - 1:
            rest.append((kd, text, nd)); continue
        k = max(i, e)
        while k < len(S.mf) - 1 and S.used[k] >= par("tailcap", 3): k += 1
        if k >= len(S.mf) - 1:
            rest.append((kd, text, nd)); continue
        i = S.place(k, kd, text, needs=nd, cap=par("tailcap", 3))
    if stamp:
        for m in PAR.get("k1marks", "15").split(":"):
            if "promarks" in OPT: break
            S.gaps[first[(int(m), 0)]].append(("s", st.text(), None, []))
    for x_ in S.emit("k1"): A(x_)
    if st.n < 7: st.mark(A)
    A("s_nop 7")
    for kd, text, nd in rest:
        o = []
        S.waits(nd, o)
        for x_ in o: A(x_)
        A(text)
    if kind == "qkv":
        o = []; S.waits([("vm", "RS")], o)
        for x_ in o: A(x_)
        qkv_attention(A, V)
    st.flush(A, 58, 59, 0, f"s{S_W}")
    A("s_endpgm")
    A.label(f"L_k1_spin_{kind}")
    A("s_mov_b32 s61, 0")
    A.label(f"L_k1_spin1_{kind}")
    A("s_sleep 8")
    A(f"buffer_load_dword v{VW}, off, {sq(S_SRDC)}, 0 sc1")
    A("s_waitcnt vmcnt(0)")
    A(f"v_readfirstlane_b32 s60, v{VW}")
    A("s_add_u32 s61, s61, 1")
    A("s_cmp_gt_u32 s61, 0x100000")
    A(f"s_cbranch_scc1 L_k1_back_{kind}")
    A("s_cmp_eq_u32 s60, 256")
    A(f"s_cbranch_scc0 L_k1_spin1_{kind}")
    A(f"s_branch L_k1_back_{kind}")

STMOD = ""
def gen_k1(A, name, stamp):
    kernel_head(A, name)
    st0 = Stamp(stamp, 1)
    st0.mark(A)
    A("s_cmp_ge_u32 s2, 256")
    A("s_cbranch_scc1 L_k1_end")
    A("s_load_dwordx2 s[4:5], s[0:1], 0")
    A("s_load_dwordx2 s[60:61], s[0:1], 8")
    A("s_load_dwordx4 s[56:59], s[0:1], 32")
    A("s_load_dwordx4 s[12:15], s[0:1], 72")
    A("s_load_dwordx2 s[36:37], s[0:1], 48")
    A("s_load_dwordx2 s[38:39], s[0:1], 16")
    lane, l16, g, T, X = 100, 101, 102, 104, S_X0
    A(f"v_lshrrev_b32 v{T}, 6, v0")
    A(f"v_and_b32 v{lane}, 63, v0")
    A(f"v_readfirstlane_b32 s{S_W}, v{T}")
    A(f"s_and_b32 s{X}, s2, 1")
    A(f"s_lshl_b32 s{X}, s{X}, 2")
    A(f"s_bfe_u32 s{X+1}, s2, 0x20003")
    A(f"s_add_u32 s{S_MB}, s{X}, s{X+1}")
    A(f"s_bfe_u32 s{X}, s2, 0x20001")
    A(f"s_lshl_b32 s{X}, s{X}, 2")
    A(f"s_bfe_u32 s{X+1}, s2, 0x20005")
    A(f"s_add_u32 s{S_NT}, s{X}, s{X+1}")
    A(f"v_and_b32 v{l16}, 15, v{lane}")
    A(f"v_lshrrev_b32 v{g}, 4, v{lane}")
    A(f"v_lshlrev_b32 v{V_L16}, 4, v{lane}")
    A(f"s_lshl_b32 s{X}, s{S_MB}, 8")
    A(f"s_lshl_b32 s{X+1}, s{S_W}, 6")
    A(f"s_add_u32 s{X+1}, s{X}, s{X+1}")
    A(f"s_lshl_b32 s{X+1}, s{X+1}, 11")
    for t in range(4): A(f"s_add_u32 s{S_AROW+t}, s{X+1}, {t*16*2048:#x}")
    A(f"s_max_u32 s{X+1}, s{X}, 16")
    A(f"s_sub_u32 s{X+1}, s{X+1}, 16")
    A(f"s_lshl_b32 s{S_AROW+4}, s{X+1}, 11")
    A(f"s_lshr_b32 s{X+1}, s2, 7")
    A(f"s_lshl_b32 s{X+1}, s{X+1}, 4")
    A(f"s_add_u32 s{X+1}, s{X+1}, s{S_NT}")
    A(f"s_lshl_b32 s{X+1}, s{X+1}, 2")
    A(f"s_add_u32 s{X+1}, s{X+1}, s{S_W}")
    A(f"s_lshl_b32 s{X+1}, s{X+1}, 1")
    A(f"s_add_u32 s{X+1}, s{X+1}, s{X}")
    A(f"s_lshl_b32 s67, s{X+1}, 11")
    A(f"v_lshrrev_b32 v{T+4}, 3, v{lane}")
    A(f"v_and_b32 v{T+5}, 7, v{lane}")
    A(f"v_xor_b32 v{T+5}, v{T+5}, v{g}")
    A(f"v_lshlrev_b32 v{T+4}, 11, v{T+4}")
    A(f"v_lshl_add_u32 v{V_AD}, v{T+5}, 4, v{T+4}")
    A(f"v_xor_b32 v{T+5}, 4, v{T+5}")
    A(f"v_lshl_add_u32 v{V_AD+1}, v{T+5}, 4, v{T+4}")
    A(f"v_add_u32 v{V_AD+1}, 0x4000, v{V_AD+1}")
    A(f"s_mov_b32 s{S_SOFW}, 0")
    A(f"s_mov_b32 s{S_SOFW2}, 4096")
    A("s_cmp_ge_u32 s2, 128")
    A("s_cbranch_scc1 L_k1_qkv")
    P1, M1, P2, M2 = Asm(), Asm(), Asm(), Asm()
    k1_variant(P1, M1, K1Var("w1"), stamp)
    k1_variant(P2, M2, K1Var("qkv"), stamp)
    A.L += P1.L
    A.label("L_k1_qkv")
    A.L += P2.L + M1.L + M2.L
    A.label("L_k1_end")
    A("s_endpgm")

def qkv_attention(A, V):
    T = V_T
    XCH = RING0 + V.SL
    lane8, l16, g = T + 8, T + 1, T + 2
    def Q(t, sp): return V.acc(t, 2 * sp)
    KP = 200
    def K(t, sp): return V.acc(t, 4 + 2 * sp) if t >= 0 else KP + 4 * sp
    def VT(jj): return 128 + 16 * jj
    X = T + 4
    A(f"v_lshrrev_b32 v{lane8}, 1, v{V_L16}")
    A(f"v_bfe_u32 v{l16}, v{V_L16}, 4, 4")
    A(f"v_lshrrev_b32 v{g}, 8, v{V_L16}")
    for jj in range(4):
        A(f"s_xor_b32 s46, s{S_W}, {jj}")
        A("s_lshl_b32 s46, s46, 9")
        A(f"s_lshl_b32 s47, s{S_W}, 12")
        A("s_add_u32 s46, s46, s47")
        A(f"v_add_u32 v{X+jj}, s46, v{lane8}")
    A(f"s_lshl_b32 s46, s{S_W}, 9")
    A(f"v_add_u32 v{lane8}, s46, v{lane8}")
    for jj in range(4):
        k = K(3, jj >> 1) + 2 * (jj & 1)
        A(f"ds_write_b64 v{X+jj}, v[{k}:{k+1}] offset:{XCH + 4096}")
        v = VT(jj) + 8
        A(f"ds_write_b64 v{X+jj}, v[{v}:{v+1}] offset:{XCH + 4096 + 2048}")
    A(f"ds_write_b64 v{lane8}, v[192:193] offset:{XCH}")
    A(f"ds_write_b64 v{lane8}, v[196:197] offset:{XCH + 2048}")
    par_ = T + 9
    MP, MA, MB_, VA_, VB_ = "s[46:47]", "s[48:49]", "s[50:51]", "s[52:53]", "s[54:55]"
    A(f"v_and_b32 v{par_}, 1, v{l16}")
    A(f"v_cmp_eq_u32 {MP}, 1, v{par_}")
    A(f"s_or_b32 s60, s{S_MB}, s{S_W}")
    A("s_cmp_eq_u32 s60, 0")
    A(f"s_cselect_b64 {VA_}, {MA}, -1")
    A(f"s_cselect_b64 {VB_}, {MB_}, -1")
    FQ = 232
    A("s_mov_b32 s61, 0x3e8293ee")
    for t in range(4): A(f"v_mul_f32 v{RSQ+t}, s61, v{RSQ+t}")
    A(f"v_cndmask_b32 v{RSK}, 0, v{RSK}, {VA_}")
    A(f"v_cndmask_b32 v{RSK+1}, 0, v{RSK+1}, {VB_}")
    for t in range(4):
        for e in range(2): A(f"v_mul_f32 v{FQ+2*t+e}, v{RSQ+t}, v{RSK+2*t+e}")
    SEL = 208
    A(f"v_mov_b32 v{T+10}, 0x0c0c0100")
    A(f"v_mov_b32 v{T+11}, 0x01000c0c")
    A(f"v_cndmask_b32 v{SEL+2}, v{T+10}, v{T+11}, {MP}")
    A(f"v_mov_b32 v{T+10}, 0x0c0c0302")
    A(f"v_mov_b32 v{T+11}, 0x03020c0c")
    A(f"v_cndmask_b32 v{SEL+3}, v{T+10}, v{T+11}, {MP}")
    A(f"v_mov_b32 v{T+10}, 0x0c0c0c0c")
    A(f"v_cndmask_b32 v{SEL}, v{SEL+2}, v{T+10}, {MA}")
    A(f"v_cndmask_b32 v{SEL+1}, v{SEL+3}, v{T+10}, {MB_}")
    A(f"v_cndmask_b32 v{SEL+2}, v{T+10}, v{SEL+2}, {MA}")
    A(f"v_cndmask_b32 v{SEL+3}, v{T+10}, v{SEL+3}, {MB_}")
    A("s_waitcnt lgkmcnt(0)")
    A("s_barrier")
    for jj in range(4):
        k = KP + 4 * (jj >> 1) + 2 * (jj & 1)
        A(f"ds_read_b64 v[{k}:{k+1}], v{X+jj} offset:{XCH}")
        v = VT(jj)
        A(f"ds_read_b64 v[{v}:{v+1}], v{X+jj} offset:{XCH + 2048}")
    A(f"v_mov_b32 v{T+11}, 0xce6e6b28")
    units = [(t, sp) for t in (1, 2, 3, 0) for sp in range(2)]
    def Sc(t, sp): return V.acc(t, 2 * sp + 1)
    def Sp(t, sp): return V.acc(t, 4 + 2 * sp + 1)
    for n, (t, sp) in enumerate(units):
        if t == 0 and sp == 0: A("s_waitcnt lgkmcnt(0)")
        A(f"v_mfma_f32_16x16x32_bf16 {vr(Sc(t,sp),4)}, {vr(K(t,sp),4)}, {vr(Q(t,sp),4)}, 0")
        A(f"v_mfma_f32_16x16x32_bf16 {vr(Sp(t,sp),4)}, {vr(K(t-1,sp),4)}, {vr(Q(t,sp),4)}, 0")
    A("s_nop 1")
    def stage(fn):
        for (t, sp) in units: fn(t, sp, Sc(t, sp), Sp(t, sp))
    stage(lambda t, sp, c, p: A(f"v_cndmask_b32 v{c}, v{c}, v{c+1}, {MP}"))
    stage(lambda t, sp, c, p: A(f"v_cndmask_b32 v{c+1}, v{c+2}, v{c+3}, {MP}"))
    stage(lambda t, sp, c, p: A(f"v_cndmask_b32 v{p}, v{p}, v{p+1}, {MP}"))
    stage(lambda t, sp, c, p: A(f"v_cndmask_b32 v{p+1}, v{p+2}, v{p+3}, {MP}"))
    stage(lambda t, sp, c, p: A(f"v_cndmask_b32 v{c}, v{p}, v{c}, {MA}"))
    stage(lambda t, sp, c, p: A(f"v_cndmask_b32 v{c+1}, v{p+1}, v{c+1}, {MB_}"))
    stage(lambda t, sp, c, p: A(f"v_mul_f32 v{c}, v{c}, v{FQ+2*t}"))
    stage(lambda t, sp, c, p: A(f"v_mul_f32 v{c+1}, v{c+1}, v{FQ+2*t+1}"))
    for sp in range(2):
        c = Sc(0, sp)
        A(f"v_cndmask_b32 v{c}, v{T+11}, v{c}, {VA_}")
        A(f"v_cndmask_b32 v{c+1}, v{T+11}, v{c+1}, {VB_}")
    P = [Sp(t, sp) for (t, sp) in units]
    quads = [P[0:4], P[4:8]]
    def xreduce(op, mid=None, filler=()):
        fl = list(filler)
        def pad(n):
            for _ in range(n): A(fl.pop(0) if fl else "s_nop 0")
        for q in quads:
            A(f"v_permlane16_swap_b32 v{q[0]}, v{q[1]}"); A(f"v_permlane16_swap_b32 v{q[2]}, v{q[3]}")
        for q in quads:
            A(f"{op} v{q[0]}, v{q[0]}, v{q[1]}"); A(f"{op} v{q[2]}, v{q[2]}, v{q[3]}")
        pad(1)
        for q in quads: A(f"v_permlane32_swap_b32 v{q[0]}, v{q[2]}")
        for q in quads: A(f"{op} v{q[0]}, v{q[0]}, v{q[2]}")
        if mid:
            for q in quads: A(f"{mid} v{q[0]}, v{q[0]}")
            pad(1)
        for q in quads: A(f"v_mov_b32 v{q[2]}, v{q[0]}")
        pad(1)
        for q in quads: A(f"v_permlane32_swap_b32 v{q[0]}, v{q[2]}")
        for q in quads:
            A(f"v_mov_b32 v{q[1]}, v{q[0]}"); A(f"v_mov_b32 v{q[3]}, v{q[2]}")
        pad(0)
        for q in quads:
            A(f"v_permlane16_swap_b32 v{q[0]}, v{q[1]}"); A(f"v_permlane16_swap_b32 v{q[2]}, v{q[3]}")
        for x in fl: A(x)
    stage(lambda t, sp, c, p: A(f"v_max_f32 v{p}, v{c}, v{c+1}"))
    xreduce("v_max_f32")
    stage(lambda t, sp, c, p: A(f"v_sub_f32 v{c}, v{c}, v{p}"))
    stage(lambda t, sp, c, p: A(f"v_sub_f32 v{c+1}, v{c+1}, v{p}"))
    stage(lambda t, sp, c, p: A(f"v_exp_f32 v{c}, v{c}"))
    stage(lambda t, sp, c, p: A(f"v_exp_f32 v{c+1}, v{c+1}"))
    stage(lambda t, sp, c, p: A(f"v_add_f32 v{p}, v{c}, v{c+1}"))
    fl = []
    for (t, sp) in units:
        c = Sc(t, sp)
        fl += [f"v_mul_f32 v{c}, v{c}, v{RSK+2*t}", f"v_mul_f32 v{c+1}, v{c+1}, v{RSK+2*t+1}"]
    xreduce("v_add_f32", mid="v_rcp_f32", filler=fl)
    stage(lambda t, sp, c, p: A(f"v_mul_f32 v{c}, v{c}, v{p}"))
    stage(lambda t, sp, c, p: A(f"v_mul_f32 v{c+1}, v{c+1}, v{p}"))
    stage(lambda t, sp, c, p: A(f"v_cvt_pk_bf16_f32 v{c}, v{c}, v{c+1}"))
    for i in range(4):
        stage(lambda t, sp, c, p: A(f"v_perm_b32 v{p+i}, v{c}, v{c}, v{SEL+i}"))
    for (t, sp) in units:
        for e in range(2):
            d = Q(t, sp) if e == 0 else Sc(t, sp)
            v = VT(2 * sp + e) + 2 * t
            A(f"v_mfma_f32_16x16x32_bf16 {vr(d,4)}, {vr(v,4)}, {vr(Sp(t,sp),4)}, 0")
    A(f"s_lshl_b32 s60, s{S_MB}, 3")
    A(f"s_lshl_b32 s61, s{S_W}, 1")
    A("s_add_u32 s60, s60, s61")
    A("s_mul_i32 s60, s60, 144")
    A(f"s_lshl_b32 s61, s{S_NT}, 1")
    A("s_add_u32 s60, s60, s61")
    A(f"s_lshr_b32 s61, s{S_W}, 1")
    A("s_add_u32 s62, s60, s61")
    A("s_xor_b32 s61, s61, 1")
    A("s_add_u32 s63, s60, s61")
    A("s_lshl_b32 s62, s62, 11")
    A("s_lshl_b32 s63, s63, 11")
    for (t, sp) in units:
        a, b = Q(t, sp), Sc(t, sp)
        A(f"v_cvt_pk_bf16_f32 v{a}, v{a}, v{a+1}")
        A(f"v_cvt_pk_bf16_f32 v{a+1}, v{a+2}, v{a+3}")
        A(f"v_cvt_pk_bf16_f32 v{a+2}, v{b}, v{b+1}")
        A(f"v_cvt_pk_bf16_f32 v{a+3}, v{b+2}, v{b+3}")
    A(f"s_bitcmp1_b32 s{S_W}, 0")
    A("s_cbranch_scc0 L_k1_noswap")
    for (t, sp) in units:
        a = Q(t, sp)
        A(f"v_swap_b32 v{a}, v{a+2}")
        A(f"v_swap_b32 v{a+1}, v{a+3}")
    A.label("L_k1_noswap")
    for (t, sp) in units:
        a = Q(t, sp)
        A(f"s_add_u32 s64, s{62+sp}, {(t>>1)*144*2048:#x}")
        A(f"buffer_store_dwordx4 v[{a}:{a+3}], v{V_L16}, {sq(S_SRDO)}, s64 offen offset:{(t&1)*1024}{STMOD}")

def gen_k2(A, name, stamp):
    st = Stamp(stamp, 2)
    kernel_head(A, name)
    st.mark(A)
    SA, SW2, SWO, SX, SB, SO, SP, SF = 4, 8, 12, 16, 20, 24, 28, 32
    S_M0, S_WV, S_SA, S_SW, S_PS, S_PR, S_FS, S_FR = 36, 37, 38, 39, 40, 41, 42, 43
    A("s_cmp_ge_u32 s2, 256")
    A("s_cbranch_scc1 L_k2_end")
    A("s_load_dwordx2 s[44:45], s[0:1], 0")
    A("s_load_dwordx2 s[46:47], s[0:1], 16")
    A("s_load_dwordx4 s[48:51], s[0:1], 48")
    A("s_load_dwordx2 s[52:53], s[0:1], 64")
    A("s_load_dwordx2 s[54:55], s[0:1], 80")
    lane, l16, g = 65, 66, 67
    VA, VD, VR, VX, VB, VL, VF, T = 68, 70, 76, 84, 85, 86, 88, 92
    XT = 100
    A("v_lshrrev_b32 v64, 6, v0")
    A(f"v_and_b32 v{lane}, 63, v0")
    A(f"v_readfirstlane_b32 s{S_WV}, v64")
    A("s_and_b32 s56, s2, 1")
    A("s_bfe_u32 s57, s2, 0x20001")
    A("s_lshl_b32 s57, s57, 2")
    A("s_bfe_u32 s58, s2, 0x20003")
    A("s_add_u32 s57, s57, s58")
    A("s_lshr_b32 s58, s2, 5")
    A(f"v_and_b32 v{l16}, 15, v{lane}")
    A(f"v_lshrrev_b32 v{g}, 4, v{lane}")
    A("s_lshl_b32 s59, s57, 2")
    A(f"s_add_u32 s59, s59, s{S_WV}")
    A(f"s_mul_i32 s60, s59, {144*2048}")
    A(f"v_lshlrev_b32 v{VL}, 4, v{lane}")
    A(f"v_add_u32 v{VA}, s60, v{VL}")
    A(f"s_mul_i32 s{S_SA}, s56, {56*2048}")
    A(f"s_add_u32 s{S_SA}, s{S_SA}, {32*2048}")
    A(f"s_mul_i32 s{S_SW}, s56, {1792*2048}")
    A(f"v_lshrrev_b32 v{T}, 3, v{lane}")
    A(f"v_bfe_u32 v{T+1}, v{lane}, 1, 2")
    A(f"v_xor_b32 v{T+1}, v{T+1}, v{g}")
    A(f"v_lshlrev_b32 v{T}, 11, v{T}")
    A(f"v_lshl_add_u32 v{T+2}, v{T+1}, 5, v{T}")
    A(f"v_and_b32 v{T+1}, 1, v{lane}")
    A(f"v_lshl_add_u32 v{T+2}, v{T+1}, 4, v{T+2}")
    A(f"s_lshl_b32 s60, s{S_WV}, 15")
    A("s_lshl_b32 s61, s58, 8")
    A("s_lshl_b32 s62, s56, 7")
    A("s_add_u32 s61, s61, s62")
    A("s_add_u32 s60, s60, s61")
    A(f"v_add_u32 v{VD}, s60, v{T+2}")
    A(f"v_add_u32 v{VD+1}, 0x4000, v{VD}")
    A(f"v_xor_b32 v{VD+2}, 0x80, v{VD}")
    A(f"v_xor_b32 v{VD+3}, 0x80, v{VD+1}")
    A(f"s_lshl_b32 s{S_M0}, s{S_WV}, 11")
    A("s_lshl_b32 s60, s59, 16")
    A("s_add_u32 s60, s60, s61")
    A(f"v_and_b32 v{T+1}, 7, v{lane}")
    A(f"v_lshl_add_u32 v{VX}, v{T+1}, 4, v{T}")
    A(f"v_add_u32 v{VX}, s60, v{VX}")
    A(f"v_lshlrev_b32 v{VB}, 4, v{T+1}")
    A(f"v_add_u32 v{VB}, s61, v{VB}")
    A(f"v_bfe_u32 v{T}, v{lane}, 2, 4")
    A(f"v_lshlrev_b32 v{T}, 7, v{T}")
    A(f"v_and_b32 v{T+1}, 3, v{lane}")
    A(f"v_lshl_add_u32 v{T}, v{T+1}, 3, v{T}")
    A(f"v_bfe_u32 v{T+1}, v{lane}, 3, 2")
    for jj in range(4):
        A(f"v_xor_b32 v{T+2}, {jj}, v{T+1}")
        A(f"v_lshl_add_u32 v{VR+jj}, v{T+2}, 5, v{T}")
        A(f"v_add_u32 v{VR+4+jj}, 0x10000, v{VR+jj}")
    A("s_xor_b32 s63, s2, 1")
    A(f"s_lshl_b32 s60, s{S_WV}, 12")
    A(f"s_lshl_b32 s{S_PS}, s2, 14")
    A(f"s_add_u32 s{S_PS}, s{S_PS}, s60")
    A(f"s_lshl_b32 s{S_PR}, s63, 14")
    A(f"s_add_u32 s{S_PR}, s{S_PR}, s60")
    A("s_waitcnt lgkmcnt(0)")
    srd(A, SA, 54, 55, A2_BYTES, WS_A2)
    srd(A, SW2, 48, 49, 3584 * 2048)
    srd(A, SWO, 46, 47, 1024 * 2048)
    srd(A, SX, 44, 45, 4 << 20)
    srd(A, SB, 50, 51, 2048)
    srd(A, SO, 52, 53, 4 << 20)
    srd(A, SP, 54, 55, 4 << 20, WS_PART)
    srd(A, SF, 54, 55, SD_BYTES, WS_SIDE)
    vm, lg = Score(63), Score(15)
    N1, N2 = 28, 16
    RCV, XLD, PRO = N1 + par('k2rcv', 10), N1 + par('k2xld', 11), par('k2pro', 3)
    NS = N1 + N2
    RW, RA = 8, 7
    def acc(t, j): return (j * 2 + t) * 4
    def acc2(t, j): return 128 + (j * 2 + t) * 4
    def wf(j, ks): return (j * 2 + ks) * 4
    def af(s, ks, t): return 64 + ((s % RA) * 4 + ks * 2 + t) * 4
    def nj(s): return 8 if s < N1 else 4
    def aloads(s):
        o = []
        if s == N1: o.append(("s", f"s_mov_b32 s{S_SA}, 0", None))
        for ks in range(2):
            for t in range(2):
                o.append(("vmA", f"buffer_load_dwordx4 {ar(af(s, ks, t), 4)}, v{VA}, s[{SA}:{SA+3}], s{S_SA} offen offset:{ks*2048 + t*1024}", ("A", s) if (ks, t) == (1, 1) else None))
        o.append(("s", f"s_add_u32 s{S_SA}, s{S_SA}, 4096", None))
        return o
    def dmas(s):
        o = []
        if s == N1: o.append(("s", f"s_mov_b32 s{S_SW}, 0", None))
        W = SW2 if s < N1 else SWO
        n = 4 if s < N1 else 2
        for q in range(n):
            c, u = divmod(q, 2)
            o.append(("m0", f"s_add_u32 m0, s{S_M0}, {(s % RW)*16384 + c*8192 + u*1024:#x}", None))
            o.append(("vmD", f"buffer_load_dwordx4 v{VD+q}, s[{W}:{W+3}], s{S_SW} offen lds", ("D", s) if q == n - 1 else None))
        o.append(("s", f"s_add_u32 s{S_SW}, s{S_SW}, 0x20000", None))
        return o
    def read(s, j, ks, p):
        hi, so = divmod(s % RW, 4)
        c, jj = divmod(j, 4)
        return f"ds_read_b64_tr_b16 {ar(wf(j, ks) + 2*p, 2)}, v{VR + hi*4 + jj} offset:{so*16384 + c*8192 + ks*4096 + p*2048}"
    for s in range(PRO):
        if s == 1 and "nocpf" not in OPT:
            A("s_getpc_b64 s[64:65]")
            A.label("L_k2_pc")
            A("s_mov_b32 s66, L_k2_spin-L_k2_pc")
            A("s_mov_b32 s67, 0x20000")
            A(f"s_lshl_b32 s60, s{S_WV}, 13")
            A(f"v_lshlrev_b32 v{T}, 3, v{VL}")
            A(f"buffer_load_dword v{T+1}, v{T}, s[64:67], s60 offen"); vm.issue()
        for kind, x, tg in dmas(s) + aloads(s):
            A(x)
            if kind == "m0": A("s_nop 0")
            if kind.startswith("vm"): vm.issue(tg)
    n = vm.need([("D", 0)]); A(f"s_waitcnt vmcnt({n})")
    A("s_barrier")
    st.mark(A)
    for j in range(3):
        for q in range(4): A(read(0, j, q >> 1, q & 1)); lg.issue(("W", 0, j))
    S = Stream(vm, lg)
    first, last = {}, {}
    for s in range(NS):
        n = 0
        for j in range(nj(s)):
            for t in ((0, 1) if j % 2 == 0 else (1, 0)):
                for ks in ((0, 1) if n % 2 == 0 else (1, 0)):
                    c = vr(acc(t, j) if s < N1 else acc2(t, j), 4)
                    cin = "0" if (s in (0, N1) and ks == (0 if n % 2 == 0 else 1)) else c
                    idx = S.add_mfma(f"v_mfma_f32_16x16x32_bf16 {c}, {ar(wf(j, ks), 4)}, {ar(af(s, ks, t), 4)}, {cin}",
                                     [("lg", ("W", s, j)), ("vm", ("A", s))])
                    first.setdefault((s, j), idx); last[(s, j)] = idx
                n += 1
    i = 0
    for j in range(3, 8):
        for q in range(4): i = S.place(i, "ds", read(0, j, q >> 1, q & 1), gives=("W", 0, j) if q == 3 else None) + 1
    for s in range(NS - 1):
        b = first[(s, 0)] + 1
        S.gaps[b].append(("barv", None, None, [("vm", ("D", s + 1))]))
        for j in range(nj(s + 1)):
            i = last[(s, j)]
            for q in (2, 3, 0, 1):
                i = S.place(i, "ds", read(s + 1, j, q >> 1, q & 1), gives=("W", s + 1, j) if q == 1 else None, cap=(2 if s == 0 else 1)) + 1
    cur = 0
    def spread(i0, i1, items):
        nonlocal cur
        i0 = max(i0, cur)
        nv = sum(1 for it in items if it[0].startswith("vm"))
        k = 0
        for kind, x, tg, *nd in items:
            nd = nd[0] if nd else []
            tgt = max(cur, i0 + (k * max(i1 - i0, 0)) // nv)
            if kind == "m0":
                cur = S.place(max(cur, tgt - 1), "s", x, cap=9) + 1
            elif kind == "s":
                cur = S.place(cur, "s", x, cap=9, needs=nd)
            else:
                cur = S.place(tgt, kind, x, gives=tg, needs=nd, cap=9); k += 1
    nd_, na_ = PRO, PRO
    for s in range(NS):
        b = first[(s, 0)] + 2
        e = first[(s + 1, 0)] + 1 if s + 1 < NS else len(S.mf)
        items = []
        if s == N1:
            for q in range(4):
                r0 = 32 + 8 * q
                cv = "\n".join(f"v_cvt_pk_bf16_f32 v{32+4*q+k}, v{r0+2*k}, v{r0+2*k+1}" for k in range(4))
                items.append(("s", ("s_nop 4\n" if q == 0 else "") + cv, None))
                items.append(("vmS", f"buffer_store_dwordx4 v[{32+4*q}:{35+4*q}], v{VL}, s[{SP}:{SP+3}], s{S_PS} offen offset:{q*1024} sc1", None))
        ramp = 2 if (s % par("k2ramp", 2) == 0) else 1
        for _ in range(ramp):
            if nd_ < NS and nd_ <= s + RW - 1: items += dmas(nd_); nd_ += 1
            if na_ < NS and na_ <= s + RA - 1: items += aloads(na_); na_ += 1
        if stamp and s in (14, N1, N1 + 6, N1 + 13):
            S.gaps[first[(s, 0)] + 1].append(("s", st.text(), None, []))
        if s == XLD:
            items.append(("vmX", f"buffer_load_dwordx4 v[{XT+16}:{XT+19}], v{VB}, s[{SB}:{SB+3}], 0 offen", None))
            items.append(("s", f"s_lshl_b32 s60, s59, 7\ns_add_u32 s60, s60, {SD_RS:#x}\nv_lshlrev_b32 v{VF+3}, 2, v{l16}", None))
            for t in range(2):
                items.append(("vmX", f"buffer_load_dword v{98+t}, v{VF+3}, s[{SF}:{SF+3}], s60 offen offset:{64*t}", None))
            for q in range(4):
                items.append(("s", f"s_mov_b32 s60, {q*8*2048:#x}", None))
                items.append(("vmX", f"buffer_load_dwordx4 v[{XT+4*q}:{XT+4*q+3}], v{VX}, s[{SX}:{SX+3}], s60 offen", None))
        if s == RCV:
            for q in range(4):
                items.append(("vmX", f"buffer_load_dwordx4 v[{48+4*q}:{51+4*q}], v{VL}, s[{SP}:{SP+3}], s{S_PR} offen offset:{q*1024} sc1", None))
        if items:
            cur = max(cur, b)
            spread(b, e, items)
    for x in S.emit("k2"): A(x)
    st.mark(A)
    A(f"s_lshl_b32 s60, s{S_WV}, 14")
    A("s_add_u32 s60, s60, 8192")
    A(f"v_and_b32 v{T}, 7, v{l16}")
    A(f"v_xor_b32 v{T}, v{T}, v{g}")
    A(f"v_lshlrev_b32 v{T+1}, 8, v{l16}")
    A(f"v_add_u32 v{T+1}, s60, v{T+1}")
    A(f"v_lshl_add_u32 v{T+2}, v{T}, 4, v{T+1}")
    A(f"v_xor_b32 v{T}, 4, v{T}")
    A(f"v_lshl_add_u32 v{T+3}, v{T}, 4, v{T+1}")
    A(f"v_lshrrev_b32 v{T}, 3, v{lane}")
    A(f"v_and_b32 v{T+1}, 7, v{lane}")
    A(f"v_lshlrev_b32 v{T+1}, 1, v{T+1}")
    A(f"v_xor_b32 v{T+1}, v{T+1}, v{T}")
    A(f"v_lshlrev_b32 v{T}, 8, v{T}")
    A(f"v_add_u32 v{T}, s60, v{T}")
    A(f"v_lshl_add_u32 v{T+4}, v{T+1}, 4, v{T}")
    A(f"v_xor_b32 v{T+5}, 16, v{T+4}")
    A("s_mov_b32 s62, 0xffff0000")
    A("s_mov_b32 s61, 0")
    A.label("L_k2_back")
    A("s_waitcnt vmcnt(0)")
    A("v_max3_u32 v32, v48, v49, v50")
    A("v_max3_u32 v33, v51, v52, v53")
    for k in range(54, 64, 4):
        A(f"v_max3_u32 v32, v32, v{k}, v{k+1}")
        if k + 3 < 64: A(f"v_max3_u32 v33, v33, v{k+2}, v{k+3}")
    A("v_max_u32 v32, v32, v33")
    A("v_cmp_eq_u32 vcc, -1, v32")
    A("s_cbranch_vccnz L_k2_spin")
    A.label("L_k2_go")
    A("v_pk_mul_f32 v[98:99], v[98:99], v[98:99]")
    for i in range(4):
        A(f"v_lshlrev_b32 v{XT+20+2*i}, 16, v{XT+16+i}")
        A(f"v_and_b32 v{XT+21+2*i}, s62, v{XT+16+i}")
    for j in range(4):
        for t in range(2):
            c = acc(t, j)
            for k in range(2):
                A(f"v_lshlrev_b32 v{32+2*k}, 16, v{48 + c//2 + k}")
                A(f"v_and_b32 v{33+2*k}, s62, v{48 + c//2 + k}")
            A(f"v_pk_add_f32 v[{c}:{c+1}], v[{c}:{c+1}], v[32:33]")
            A(f"v_pk_add_f32 v[{c+2}:{c+3}], v[{c+2}:{c+3}], v[34:35]")
            o = "op_sel_hi:[1,0,1]" if t == 0 else "op_sel:[0,1,0]"
            A(f"v_pk_fma_f32 v[{c}:{c+1}], v[{c}:{c+1}], v[98:99], v[{c+128}:{c+129}] {o}")
            A(f"v_pk_fma_f32 v[{c+2}:{c+3}], v[{c+2}:{c+3}], v[98:99], v[{c+130}:{c+131}] {o}")
            A(f"ds_write_b128 v{T+2+(j&1)}, v[{c}:{c+3}] offset:{t*4096 + (j>>1)*128}")
    A("s_waitcnt lgkmcnt(0)")
    for q in range(4):
        A(f"ds_read_b128 v[{32+8*q}:{35+8*q}], v{T+4} offset:{q*2048}")
        A(f"ds_read_b128 v[{36+8*q}:{39+8*q}], v{T+5} offset:{q*2048}")
    for q in range(4):
        for i in range(4):
            A(f"v_lshlrev_b32 v{2*i}, 16, v{XT+4*q+i}")
            A(f"v_and_b32 v{2*i+1}, s62, v{XT+4*q+i}")
        for i in range(4): A(f"v_pk_add_f32 v[{2*i}:{2*i+1}], v[{2*i}:{2*i+1}], v[{XT+20+2*i}:{XT+21+2*i}]")
        A(f"s_waitcnt lgkmcnt({6-2*q})")
        for i in range(4): A(f"v_pk_add_f32 v[{2*i}:{2*i+1}], v[{2*i}:{2*i+1}], v[{32+8*q+2*i}:{33+8*q+2*i}]")
        for i in range(4): A(f"v_cvt_pk_bf16_f32 v{8+4*q+i}, v{2*i}, v{2*i+1}")
        A(f"s_mov_b32 s60, {q*8*2048:#x}")
        A(f"buffer_store_dwordx4 v[{8+4*q}:{11+4*q}], v{VX}, s[{SO}:{SO+3}], s60 offen")
    st.flush(A, 54, 55, 100, f"s{S_WV}")
    A.label("L_k2_end")
    A("s_endpgm")
    A.label("L_k2_spin")
    A("s_add_u32 s61, s61, 1")
    A("s_cmp_gt_u32 s61, 0x100000")
    A("s_cbranch_scc1 L_k2_go")
    A("s_sleep 2")
    for q in range(4):
        A(f"buffer_load_dwordx4 v[{48+4*q}:{51+4*q}], v{VL}, s[{SP}:{SP+3}], s{S_PR} offen offset:{q*1024} sc1")
    A("s_branch L_k2_back")

def main():
    global STMOD
    ap = argparse.ArgumentParser()
    ap.add_argument("--stamp", action="store_true")
    ap.add_argument("-o", default=None)
    ap.add_argument("--opt", default="")
    ap.add_argument("--par", default="")
    ap.add_argument("--stmod", default="sc1")
    a = ap.parse_args()
    OPT.update(x for x in a.opt.split(",") if x)
    PAR.update(dict(x.split("=") for x in a.par.split(",") if x))
    STMOD = (" " + a.stmod.replace("+", " ")) if a.stmod else ""
    A = Asm()
    hdr = open("cdna_kernels/%s.s.ref" % NAME).read().split("\n")
    for line in hdr:
        if line.startswith(";") and "@launch" not in line and "Override" not in line and "grid=ceil" not in line:
            A.raw(line)
    A.raw("; @launch kernel=gemm1_kernel grid=(256,1,1) block=(256,1,1) lds=163840")
    A.raw("; @launch kernel=gemm2_kernel grid=(256,1,1) block=(256,1,1) lds=131072")
    A.raw('.amdgcn_target "amdgcn-amd-amdhsa--gfx950"\n.text')
    gen_k1(A, "gemm1_kernel", a.stamp)
    gen_k2(A, "gemm2_kernel", a.stamp)
    if not any(o.startswith(('k1no', 'k2no')) for o in OPT): check_hazards(A.L)
    A.raw('.section .rodata,"a"')
    kernel_desc(A, "gemm1_kernel", 512, 256)
    kernel_desc(A, "gemm2_kernel", 160 + 176, 160)
    out = a.o or "cdna_kernels/%s.s" % NAME
    open(out, "w").write(A.text())

if __name__ == "__main__":
    main()
```

```python
import sys, argparse

NAME = "parallel_sum__sliding_local_dilated__dense_activation_squared_relu__prompt"

WS_A2 = 4 << 20
A2_BYTES = 2048 * 4608 * 2
WS_PART = 32 << 20
WS_SIDE = 48 << 20
SD_FLAG, SD_Q, SD_RS, SD_P = 0, 0x10000, 0x20000, 0x40000
SD_BYTES = SD_P + 416 * 1024
WS_STAMP = 64 << 20

OPT = set()
PAR = {}
def par(k, d): return int(PAR.get(k, d))

class Asm:
    def __init__(self): self.L = []
    def __call__(self, s):
        for line in s.split("\n"):
            t = line.strip()
            self.L.append(t if t.endswith(":") else "  " + t)
    def label(self, s): self.L.append(s + ":")
    def raw(self, s): self.L.append(s)
    def text(self): return "\n".join(self.L) + "\n"

def vr(b, n=1, f="v"): return f"{f}{b}" if n == 1 else f"{f}[{b}:{b+n-1}]"
def ar(b, n=1): return vr(b, n, "a")
def sq(b): return f"s[{b}:{b+3}]"

def kernel_head(A, name):
    A.raw(f".globl {name}\n.p2align 8\n.type {name},@function\n{name}:")

def kernel_desc(A, name, nvgpr, accum, nsgpr=102):
    A.raw(f".p2align 6\n.amdhsa_kernel {name}\n  .amdhsa_next_free_vgpr {nvgpr}\n  .amdhsa_next_free_sgpr {nsgpr}\n"
          f"  .amdhsa_accum_offset {accum}\n  .amdhsa_group_segment_fixed_size 0\n  .amdhsa_kernarg_size 88\n"
          f"  .amdhsa_user_sgpr_count 2\n  .amdhsa_user_sgpr_kernarg_segment_ptr 1\n  .amdhsa_system_sgpr_workgroup_id_x 1\n"
          f"  .amdhsa_float_denorm_mode_32 3\n.end_amdhsa_kernel")

def srd(A, d, lo, hi, nbytes, add=0):
    if add:
        A(f"s_add_u32 s{d}, s{lo}, {add:#x}")
        A(f"s_addc_u32 s{d+1}, s{hi}, 0")
    else:
        A(f"s_mov_b32 s{d}, s{lo}")
        A(f"s_mov_b32 s{d+1}, s{hi}")
    if nbytes is not None: A(f"s_mov_b32 s{d+2}, {nbytes:#x}")
    A(f"s_mov_b32 s{d+3}, 0x20000")

class Stamp:
    def __init__(self, on, kidx): self.on, self.kidx, self.n = on, kidx, 0
    def text(self):
        if not self.on: return None
        t = f"s_memrealtime s[{68+2*self.n}:{69+2*self.n}]\ns_memtime s[{84+2*self.n}:{85+2*self.n}]"
        self.n += 1
        assert self.n <= 8
        return t
    def mark(self, A):
        t = self.text()
        if t: A(t)
    def flush(self, A, ws_lo, ws_hi, vtmp, s_wave):
        if not self.on: return
        self.mark(A)
        A("s_waitcnt lgkmcnt(0)")
        A(f"s_lshl_b32 s100, s2, 3")
        A(f"s_add_u32 s100, s100, {s_wave}")
        A(f"s_lshl_b32 s100, s100, 6")
        srd(A, 8, ws_lo, ws_hi, 0x100000, WS_STAMP + self.kidx * 0x40000)
        for i in range(16):
            A(f"v_mov_b32 v{vtmp+i}, s{68+2*i}" if i % 8 < self.n else f"v_mov_b32 v{vtmp+i}, 0")
        A(f"v_mov_b32 v{vtmp+16}, s100")
        A("s_mov_b64 exec, 1")
        for q in range(4):
            A(f"buffer_store_dwordx4 v[{vtmp+4*q}:{vtmp+4*q+3}], v{vtmp+16}, s[8:11], 0 offen offset:{16*q}")

class Score:
    def __init__(self, maxn):
        self.n = 0; self.idx = {}; self.done = 0; self.maxn = maxn
    def issue(self, tag=None):
        self.n += 1
        if tag is not None: self.idx[tag] = self.n
        assert self.n - self.done <= 63 or self.maxn == 15, "too many outstanding"
    def need(self, tags, slack=None):
        y = max(self.idx[t] for t in tags)
        if y <= self.done: return None
        N = self.n - y
        if slack is not None: N = min(N, slack)
        N = min(N, self.maxn)
        self.done = self.n - N
        return N
    def drain(self): self.done = self.n
    def skip(self, tag=None):
        if tag is not None: self.idx[tag] = 0

LG_SLACK = 8
class Stream:
    def __init__(self, vm, lg):
        self.mf = []; self.gaps = []; self.used = []; self.vm, self.lg = vm, lg
    def add_mfma(self, text, needs=()):
        self.mf.append((text, list(needs))); self.gaps.append([]); self.used.append(0)
        return len(self.mf) - 1
    def place(self, i0, kind, text, gives=None, needs=(), cap=1, spill=False):
        i = i0
        while i < len(self.mf) and self.used[i] >= cap: i += 1
        if i >= len(self.mf):
            assert spill, "no free gap"
            i = len(self.mf) - 1
        self.used[i] += 1
        self.gaps[i].append((kind, text, gives, list(needs)))
        return i
    def waits(self, needs, out, lgz=False):
        w = []
        lt = [t for c, t in needs if c == "lg"]; vt = [t for c, t in needs if c == "vm"]
        if lgz:
            if self.lg.done < self.lg.n: w.append("lgkmcnt(0)")
            self.lg.drain()
        elif lt:
            n = self.lg.need(lt, slack=LG_SLACK)
            if n is not None: w.append(f"lgkmcnt({n})")
        if vt:
            n = self.vm.need(vt)
            if n is not None: w.append(f"vmcnt({n})")
        if w: out.append("s_waitcnt " + " ".join(w))
    def emit(self, pfx):
        out = []
        for (text, needs), gap in zip(self.mf, self.gaps):
            self.waits(needs, out)
            if pfx + "nomfma" not in OPT: out.append(text)
            for kind, t, gives, nd in gap:
                if kind == "ds" and pfx + "nords" in OPT: self.lg.skip(gives); continue
                if kind == "vmA" and pfx + "noA" in OPT: self.vm.skip(gives); continue
                if kind == "vmD" and pfx + "noD" in OPT: self.vm.skip(gives); continue
                if kind in ("bar", "barv"):
                    self.waits(nd, out, lgz=(kind == "bar"))
                    out.append("s_barrier")
                    continue
                self.waits(nd, out)
                if kind == "ds": self.lg.issue(gives)
                if kind.startswith("vm"): self.vm.issue(gives)
                out.append(t)
        return out

def check_hazards(lines):
    import re
    def regs(tok):
        tok = tok.strip().strip("|").lstrip("-")
        m = re.fullmatch(r"([va])(\d+)", tok)
        if m: return {(m.group(1), int(m.group(2)))}
        m = re.fullmatch(r"([va])\[(\d+):(\d+)\]", tok)
        if m: return {(m.group(1), i) for i in range(int(m.group(2)), int(m.group(3)) + 1)}
        return set()
    hist = []
    pos = 0
    for ln in lines:
        t = ln.strip()
        if not t or t.endswith(":") or t.startswith(";") or t.startswith("."): continue
        mn = t.split()[0]
        ops = [o.split()[0] if o.split() else o for o in t[len(mn):].split(",")]
        R = [regs(o) for o in ops]
        if mn == "s_nop":
            pos += int(ops[0]) + 1; continue
        is_mfma = mn.startswith("v_mfma"); is_valu = mn.startswith("v_") and not is_mfma
        is_mem = mn.startswith("buffer_") or mn.startswith("ds_")
        if is_mfma or is_valu or is_mem:
            allr = set().union(*R) if R else set()
            for kind, wr, sc, p in hist[-24:]:
                d = pos - p - 1
                if kind == "mfma":
                    if is_mfma:
                        if (R[1] | R[2]) & wr and d < 8: raise Exception(f"hazard MFMA->MFMA AB: {t}")
                        if R[3] & wr and R[3] != wr and d < 6: raise Exception(f"hazard MFMA->MFMA C overlap: {t}")
                    else:
                        if allr & wr and d < 8: raise Exception(f"hazard MFMA->{mn} d={d}: {t}")
                        if is_valu and R[0] & sc and d < 3: raise Exception(f"hazard MFMA srcC WAR: {t}")
                elif kind == "valu":
                    if is_mfma and (R[1] | R[2] | R[3]) & wr and d < 2: raise Exception(f"hazard VALU->MFMA: {t}")
                    if is_valu and ("dpp" in mn or "permlane" in mn) and allr & wr and d < 2: raise Exception(f"hazard VALU->DPP: {t}")
                    if mn.startswith("v_readfirstlane") and R[1] & wr and d < 1: raise Exception(f"hazard VALU->readlane: {t}")
                elif kind == "trans":
                    if is_mfma and (R[1] | R[2] | R[3]) & wr and d < 2: raise Exception(f"hazard VALU->MFMA: {t}")
                    if is_valu and set().union(*R[1:]) & wr and d < 1: raise Exception(f"hazard trans->VALU: {t}")
                elif kind == "store":
                    if is_valu and R[0] & wr and d < 2: raise Exception(f"hazard store data WAR: {t}")
            if is_mfma: hist.append(("mfma", R[0], R[3], pos))
            elif is_valu:
                wr = set(R[0])
                if "swap" in mn: wr |= R[1]
                tr = any(mn.startswith(x) for x in ("v_exp", "v_rcp", "v_rsq", "v_sqrt", "v_log"))
                hist.append(("trans" if tr else "valu", wr, set(), pos))
            elif mn.startswith("buffer_store_dwordx4"): hist.append(("store", R[0], set(), pos))
        pos += 1

RING0 = 2048
S_SRDA, S_SRDW, S_SRDO, S_SRDS, S_SRDB, S_SRDC, S_SRDP, S_SRDT = 4, 8, 12, 16, 28, 32, 36, 40
S_C, S_SOFW, S_SOFW2, S_M0B, S_M0A, S_W, S_MB, S_NT = 20, 21, 22, 23, 24, 25, 26, 27
S_CF, S_CHF = 44, 45
S_X0 = 46
S_CODE = 48
S_AROW = 62
V_AD, V_AR, V_L16, V_D, V_R, V_RH, V_T = 224, 226, 228, 229, 232, 240, 244
A_CS, A_P, A_Q, A_SEL, A_DUM, A_RAW, A_ONE = 136, 136, 200, 220, 224, 228, 244
A_TAG, A_NEG = 226, 248

RSQ, RSK = 212, 216

class K1Var:
    def __init__(self, kind):
        self.kind = kind
        if kind == "w1": self.NJ, self.NT, self.CH, self.pitch = 14, 4, 7168, 7168
        else: self.NJ, self.NT, self.CH, self.pitch = 12, 5, 6144, 6144
        self.SL = 4 * self.CH
        self.ASL = self.NT * 2048
        self.ABASE = RING0 + 3 * self.SL
        self.AA = 56
    def wfrag(self, j, ks): return (j % (self.NJ // 2)) * 8 + ks * 4
    def afrag(self, st, ks, t): return self.AA + ((st * 2 + ks) * self.NT + t) * 4
    def acc(self, t, j):
        if t < 4: return (j * 4 + t) * 4
        return 192 + (0 if j == 4 else 4)
    def groups(self):
        return [(j, [0, 1, 2, 3] + ([4] if self.kind == "qkv" and j in (4, 8) else [])) for j in range(self.NJ)]
    def mm(self, t, j, w, x, zero=False):
        c = vr(self.acc(t, j), 4)
        cin = "0" if zero else c
        if self.kind == "qkv" and j >= 8: w, x = x, w
        return f"v_mfma_f32_16x16x32_bf16 {c}, {w}, {x}, {cin}"
    def mfma(self, s, ks, t, j, zero=False):
        return self.mm(t, j, ar(self.wfrag(j, ks), 4), ar(self.afrag(s % 2, ks, t), 4), zero)
    def corr(self, t, j): return self.mm(t, j, ar(A_P + 4 * j, 4), ar(A_Q + 4 * t, 4))
    def read(self, s, ks, j, p):
        st, so = divmod(s % 3, 2)
        base = RING0 + so * self.SL + ks * 2 * self.CH
        d = ar(self.wfrag(j, ks) + 2 * p, 2)
        if j < 12:
            b, jj = divmod(j, 4)
            return f"ds_read_b64_tr_b16 {d}, v{V_R + st*4 + jj} offset:{base + b*1024 + p*512}"
        return f"ds_read_b64_tr_b16 {d}, v{V_RH + st*2 + (j-12)} offset:{base + p*256}"
    def aread(self, s, ks, t):
        return f"ds_read_b128 {ar(self.afrag(s % 2, ks, t), 4)}, v{V_AR+ks} offset:{(s % 2)*self.ASL + t*2048}"
    def admas(self, s, t):
        out = []
        for u in range(2):
            tgt = (s % 2) * self.ASL + t * 2048 + u * 1024
            out.append((f"s_add_u32 m0, s{S_M0A}, {tgt + 2048 - s*128:#x}",
                        f"buffer_load_dwordx4 v{V_AD+u}, {sq(S_SRDA)}, s{S_AROW+t} offen offset:{s*128} lds"))
        return out
    def dmas(self, s):
        out = []
        base = RING0 + (s % 3) * self.SL
        W = sq(S_SRDW)
        for rg in range(2):
            for b in range(3):
                tgt = base + rg * 3072 + b * 1024
                if self.kind == "w1": imm, so = b * 128, S_SOFW
                else: imm, so = (b * 2048, S_SOFW) if b < 2 else (0, S_SOFW2)
                out.append((f"s_add_u32 m0, s{S_M0B}, {tgt - imm:#x}",
                            f"buffer_load_dwordx4 v{V_D+rg}, {W}, s{so} offen offset:{imm} lds"))
        if self.kind == "w1":
            out.append((f"s_add_u32 m0, s{S_M0B}, {base + 6144:#x}",
                        f"buffer_load_dwordx4 v{V_D+2}, {W}, s{S_SOFW} offen lds"))
        return out
    def sof_adv(self):
        r = [f"s_add_u32 s{S_SOFW}, s{S_SOFW}, {64*self.pitch:#x}"]
        if self.kind == "qkv": r.append(f"s_add_u32 s{S_SOFW2}, s{S_SOFW2}, {64*self.pitch:#x}")
        return r

def xlane_sum2(A, a, b):
    for r in (8, 4, 2, 1):
        A("s_nop 0")
        for v in (a, b): A(f"v_add_f32_dpp v{v}, v{v}, v{v} row_ror:{r} row_mask:0xf bank_mask:0xf")
    for sw in ("v_permlane16_swap_b32", "v_permlane32_swap_b32"):
        for v in (a, b): A(f"v_mov_b32 v{v+1}, v{v}")
        A("s_nop 0")
        for v in (a, b): A(f"{sw} v{v}, v{v+1}")
        for v in (a, b): A(f"v_add_f32 v{v}, v{v}, v{v+1}")

def k1_variant(A1, A2_, V, stamp):
    A = A1
    kind = V.kind
    st = Stamp(stamp, 1); st.n = 1
    NS, H, CH = 16, V.NJ // 2, V.CH
    lane, l16, g = 100, 101, 102
    T = 104
    X = S_X0
    if kind == "w1":
        A(f"s_mul_i32 s{X}, s{S_NT}, 448")
        A(f"s_and_b32 s{X+1}, s{S_NT}, 1")
        A(f"s_lshl_b32 s{X+2}, s{X+1}, 6")
        A(f"s_add_u32 s{S_CF}, s{X}, s{X+2}")
        A(f"s_xor_b32 s{X+2}, s{X+1}, 1")
        A(f"s_mul_i32 s{X+2}, s{X+2}, 384")
        A(f"s_add_u32 s{S_CHF}, s{X}, s{X+2}")
    else:
        A(f"s_lshl_b32 s{S_CF}, s{S_NT}, 7")
    r, pc, x, y = T, T + 1, T + 2, T + 3
    A(f"v_lshrrev_b32 v{r}, 3, v{lane}")
    A(f"v_bfe_u32 v{x}, v{lane}, 1, 2")
    A(f"v_bfe_u32 v{y}, v{lane}, 4, 1")
    A(f"v_xor_b32 v{x}, v{x}, v{y}")
    A(f"v_and_b32 v{pc}, 1, v{lane}")
    A(f"v_mul_u32_u24 v{r}, {V.pitch}, v{r}")
    A(f"v_lshl_add_u32 v{y}, v{pc}, 4, v{r}")
    A(f"s_mul_i32 s{X+3}, s{S_W}, {16*V.pitch}")
    A(f"s_add_u32 s{X+4}, s{X+3}, s{S_CF}")
    A(f"v_lshl_add_u32 v{V_D}, v{x}, 5, v{y}")
    A(f"v_add_u32 v{V_D}, s{X+4}, v{V_D}")
    A(f"v_xor_b32 v{x}, 2, v{x}")
    A(f"v_lshl_add_u32 v{V_D+1}, v{x}, 5, v{y}")
    A(f"s_add_u32 s{X+4}, s{X+4}, {8*V.pitch}")
    A(f"v_add_u32 v{V_D+1}, s{X+4}, v{V_D+1}")
    if kind == "w1":
        A(f"v_lshrrev_b32 v{T+4}, 2, v{lane}")
        A(f"v_mul_u32_u24 v{T+4}, {V.pitch}, v{T+4}")
        A(f"v_bfe_u32 v{T+5}, v{lane}, 1, 1")
        A(f"v_bfe_u32 v{T+6}, v{lane}, 5, 1")
        A(f"v_xor_b32 v{T+5}, v{T+5}, v{T+6}")
        A(f"v_lshl_add_u32 v{T+4}, v{T+5}, 5, v{T+4}")
        A(f"v_lshl_add_u32 v{T+4}, v{pc}, 4, v{T+4}")
        A(f"s_add_u32 s{X+4}, s{X+3}, s{S_CHF}")
        A(f"v_add_u32 v{V_D+2}, s{X+4}, v{T+4}")
    A(f"s_mul_i32 s{S_M0B}, s{S_W}, {CH}")
    A(f"s_mul_i32 s{S_M0A}, s{S_W}, {2*V.ASL}")
    A(f"s_add_u32 s{S_M0A}, s{S_M0A}, {V.ABASE - 2048}")
    VPW, VPX = V_T + 4, V_T + 5
    rounds = [x.split(":") for x in PAR.get("k1r", "p:0:4").split("+") if x]
    if rounds:
        A(f"v_lshlrev_b32 v{VPW}, 7, v{lane}")
        A(f"v_lshrrev_b32 v{VPX}, 1, v{lane}")
        A(f"v_lshlrev_b32 v{VPX}, 7, v{VPX}")
        A(f"v_lshl_add_u32 v{VPX}, v{pc}, 11, v{VPX}")
        A(f"s_and_b32 s{S_C}, s2, 127")
        A(f"s_lshl_b32 s{S_C}, s{S_C}, 2")
        A(f"s_add_u32 s{S_C}, s{S_C}, s{S_W}")
    def pfr(s0, n):
        nl = V.pitch // 128 * n // 8
        def ex(k):
            v = (1 << k) - 1
            return f"s_mov_b32 exec_lo, {v & 0xffffffff:#x}\ns_mov_b32 exec_hi, {v >> 32:#x}\n"
        w_ = (f"s_mul_i32 s3, s{S_C}, {nl*128}\ns_add_u32 s3, s3, {64*s0*V.pitch:#x}\n" + ex(nl) +
              f"buffer_load_dword a{A_DUM}, v{VPW}, {sq(S_SRDW)}, s3 offen\ns_mov_b64 exec, -1")
        x_ = ex(2 * n) + f"buffer_load_dword a{A_DUM}, v{VPX}, {sq(S_SRDA)}, s67 offen offset:{s0*128}\ns_mov_b64 exec, -1"
        return [w_, x_]
    VSL, VSX = 200, 201
    slow = [x.split(":") for x in PAR.get("k1slow" if kind == "qkv" else "k1sloww", "p:0:4+r:4:12+6:10:6" if kind == "qkv" else "").split("+") if x]
    slowx = PAR.get("k1slowx", "")
    S_SLOT = 55
    LPR = 4 if kind == "qkv" else 2
    if slow:
        A(f"v_lshrrev_b32 v{VSL}, {2 if kind == 'qkv' else 1}, v{lane}")
        A(f"v_mul_u32_u24 v{VSL}, {V.pitch}, v{VSL}")
        A(f"s_bfe_u32 s{X+5}, s2, 0x20001")
        if kind == "qkv":
            A(f"v_and_b32 v{T+4}, 3, v{lane}")
            A(f"v_min_u32 v{T+4}, 2, v{T+4}")
            A(f"v_lshl_add_u32 v{VSL}, v{T+4}, 11, v{VSL}")
            A(f"s_lshl_b32 s{X+5}, s{X+5}, 9")
            A(f"s_add_u32 s{X+5}, s{X+5}, 384")
            A(f"s_bitcmp1_b32 s2, 1")
            A(f"s_cselect_b32 s{X+5}, 0x7000000, s{X+5}")
        else:
            A(f"v_lshl_add_u32 v{VSL}, v{pc}, 10, v{VSL}")
            A(f"s_lshl_b32 s{X+5}, s{X+5}, 11")
            A(f"s_min_u32 s{X+5}, s{X+5}, 5120")
            A(f"s_add_u32 s{X+5}, s{X+5}, 384")
        A(f"v_add_u32 v{VSL}, s{X+5}, v{VSL}")
        A(f"s_bfe_u32 s{S_SLOT}, s2, 0x40003")
        A(f"s_lshl_b32 s{S_SLOT}, s{S_SLOT}, 2")
        A(f"s_add_u32 s{S_SLOT}, s{S_SLOT}, s{S_W}")
    if slowx:
        A(f"v_lshlrev_b32 v{VSX}, 10, v{lane}")
        A(f"s_lshr_b32 s{X+5}, s2, 3")
        A(f"s_lshl_b32 s{X+5}, s{X+5}, 2")
        A(f"s_add_u32 s{X+5}, s{X+5}, s{S_W}")
        A(f"s_lshl_b32 s{X+5}, s{X+5}, 14")
        A(f"s_and_b32 s{X+6}, s2, 1")
        A(f"s_lshl_b32 s{X+6}, s{X+6}, 21")
        A(f"s_add_u32 s{X+5}, s{X+5}, s{X+6}")
        A(f"v_add_u32 v{VSX}, s{X+5}, v{VSX}")
    def slowpf(s0, n):
        v = (1 << (LPR * n)) - 1
        return (f"s_mul_i32 s3, s{S_SLOT}, {n*V.pitch}\ns_add_u32 s3, s3, {64*s0*V.pitch:#x}\n"
                f"s_mov_b32 exec_lo, {v & 0xffffffff:#x}\ns_mov_b32 exec_hi, {v >> 32:#x}\n"
                f"buffer_load_dword a{A_DUM}, v{VSL}, {sq(S_SRDW)}, s3 offen\ns_mov_b64 exec, -1")
    def pro_R(where):
        for wh, s0, n in slow:
            if wh == where: A1(slowpf(int(s0), int(n))); vm.issue()
        if slowx == where:
            A1(f"s_mov_b64 exec, 0xffff\nbuffer_load_dword a{A_DUM}, v{VSX}, {sq(S_SRDA)}, 0 offen offset:384\ns_mov_b64 exec, -1"); vm.issue()
        for wh, s0, n in rounds:
            if wh == where:
                for b_ in pfr(int(s0), int(n)): A1(b_); vm.issue()
    A("s_waitcnt lgkmcnt(0)")
    if "promarks" in OPT: st.mark(A)
    A(f"s_mov_b32 s{S_SRDA+2}, {4 << 20:#x}"); A(f"s_mov_b32 s{S_SRDA+3}, 0x20000")
    if kind == "w1": srd(A, S_SRDW, 56, 57, 1024 * 7168)
    else: srd(A, S_SRDW, 60, 61, 1024 * 6144)
    vm, lg = Score(63), Score(15)
    def pro_A(s):
        for t in range(V.NT):
            for u, (m0, d) in enumerate(V.admas(s, t)):
                A1(m0); A1("s_nop 0"); A1(d); vm.issue(("A", s, t) if u == 1 else None)
    def pro_W(s):
        dm = V.dmas(s)
        for n, (m0, d) in enumerate(dm):
            A1(m0); A1("s_nop 0"); A1(d); vm.issue(("D", s) if n == len(dm) - 1 else None)
        for x_ in V.sof_adv(): A1(x_)
    if kind == "w1":
        A(f"s_or_b32 s3, s2, s{S_W}")
        A("s_cmp_lg_u32 s3, 0")
        A("s_cbranch_scc1 L_k1_notag")
        srd(A, S_SRDC, 12, 13, 8)
        A("s_or_b32 s18, s18, 1")
        A(f"v_mov_b32 v{T+4}, s18"); A(f"v_mov_b32 v{T+5}, s19")
        A(f"buffer_store_dwordx2 v[{T+4}:{T+5}], v{V_L16}, {sq(S_SRDC)}, 0 offen sc1")
        A.label("L_k1_notag")
    pro_R("p")
    pro_W(0); pro_A(0)
    pro_R("q")
    if "promarks" in OPT: st.mark(A)
    if "late1" not in OPT: pro_W(1); pro_A(1)
    else: pro_W(1)
    pro_R("r")
    if "promarks" in OPT: st.mark(A)
    A(f"s_branch L_k1_main_{kind}")
    A = A2_
    A.label(f"L_k1_main_{kind}")
    WSL, WSH = 14, 15
    A(f"s_mov_b32 s100, s{WSL}"); A(f"s_mov_b32 s101, s{WSH}")
    srd(A, S_SRDC, 12, 13, 8)
    srd(A, S_SRDT, 100, 101, None, WS_SIDE + SD_FLAG)
    A(f"s_cmp_eq_u32 s{S_W}, 0")
    A(f"s_cselect_b32 s{S_SRDT+2}, 0x8000, 0")
    srd(A, S_SRDS, 100, 101, SD_BYTES, WS_SIDE)
    srd(A, S_SRDO, 100, 101, A2_BYTES, WS_A2)
    if kind == "w1":
        srd(A, S_SRDB, 58, 59, None)
        A(f"s_cmp_eq_u32 s{S_MB}, 0")
        A(f"s_cselect_b32 s{S_SRDB+2}, 7168, 0")
    A("s_mov_b32 s0, s38"); A("s_mov_b32 s1, s39")
    A(f"s_mov_b32 s{S_SRDP+2}, {3584*2048:#x}")
    A(f"s_mov_b32 s{S_SRDP+3}, 0x20000")
    A("s_mov_b32 s58, s100"); A("s_mov_b32 s59, s101")
    A(f"s_lshl_b32 s100, s2, 2")
    A(f"s_add_u32 s100, s100, s{S_W}")
    VCA, VCS, VB1, VDC, VW = V_T, V_T + 1, V_T + 2, V_T + 4, V_T + 8
    A(f"v_and_b32 v{T+4}, 7, v{lane}")
    A(f"v_lshl_add_u32 v{VCA}, v{T+4}, 4, v{r}")
    if kind == "w1":
        A(f"s_lshl_b32 s{X+5}, s{S_W}, 7")
        A(f"s_add_u32 s{X+5}, s{X+5}, s{X}")
        A(f"v_lshlrev_b32 v{VB1}, 4, v{T+4}")
        A(f"v_lshl_add_u32 v{VB1}, v{g}, 3, v{VB1}")
        A(f"v_add_u32 v{VB1}, s{X+5}, v{VB1}")
        A(f"s_lshr_b32 s{X+6}, s{X+5}, 5")
        A(f"s_add_u32 s{X+6}, s{X+6}, 192")
    else:
        A(f"s_min_u32 s{X+5}, s{S_W}, 2")
        A(f"s_lshl_b32 s{X+5}, s{X+5}, 11")
        A(f"s_add_u32 s{X+5}, s{X+5}, s{S_CF}")
        A(f"v_mov_b32 v{VB1}, 0"); A(f"v_mov_b32 v{VB1+1}, 0"); vm.skip("B1")
        A(f"s_lshr_b32 s{X+6}, s{X+5}, 5")
    A(f"s_and_b32 s{X+7}, s{S_MB}, 3")
    A(f"s_lshl_b32 s{X+7}, s{X+7}, 1")
    A(f"s_lshr_b32 s3, s{S_MB}, 2")
    A(f"s_add_u32 s{X+7}, s{X+7}, s3")
    A(f"s_mul_i32 s{X+7}, s{X+7}, {128*V.pitch:#x}")
    A(f"s_add_u32 s{X+7}, s{X+7}, s{X+5}")
    S_CSL, S_CSS = X + 7, X + 6
    A(f"s_lshl_b32 s{S_CSS}, s{S_CSS}, 10")
    A(f"s_lshr_b32 s{X+5}, s{S_MB}, 1")
    A(f"s_lshl_b32 s{X+5}, s{X+5}, 8")
    A(f"s_add_u32 s{S_CSS}, s{S_CSS}, s{X+5}")
    A(f"s_and_b32 s{X+5}, s{S_MB}, 1")
    A(f"s_lshl_b32 s{X+5}, s{X+5}, 3")
    A(f"s_add_u32 s{S_CSS}, s{S_CSS}, s{X+5}")
    A(f"s_add_u32 s{S_CSS}, s{S_CSS}, {SD_P:#x}")
    A(f"v_lshrrev_b32 v{T+5}, 1, v{T+4}")
    A(f"v_lshlrev_b32 v{VCS}, 10, v{T+5}")
    A(f"v_lshl_add_u32 v{VCS}, v{pc}, 7, v{VCS}")
    A(f"v_lshl_add_u32 v{VCS}, v{g}, 6, v{VCS}")
    if kind == "w1":
        A(f"s_cmp_eq_u32 s{S_W}, 3")
        A(f"s_cselect_b32 s{X+5}, 0x2c, 0x28")
    else:
        A(f"s_mov_b32 s{X+5}, 0x28")
    A(f"v_and_b32 v{T+5}, s{X+5}, v{lane}")
    A(f"v_lshl_add_u32 v{VCS}, v{T+5}, 24, v{VCS}")
    A(f"v_lshlrev_b32 v{T+5}, 4, v{pc}")
    A(f"v_mov_b32 v{T+6}, 0x3f80")
    A(f"v_lshlrev_b32 v{T+6}, v{T+5}, v{T+6}")
    A(f"v_lshrrev_b32 v{T+5}, 1, v{l16}")
    for q in range(4):
        A(f"v_cmp_eq_u32 vcc, {q}, v{T+5}")
        A("s_nop 1")
        A(f"v_cndmask_b32 v{T+7}, 0, v{T+6}, vcc")
        A(f"v_accvgpr_write_b32 a{A_SEL+q}, v{T+7}")
    A(f"v_xor_b32 v{T+4}, v{T+5}, v{g}")
    A(f"v_lshlrev_b32 v{T+5}, 7, v{l16}")
    A(f"v_add_u32 v{T+5}, s{S_M0A}, v{T+5}")
    A(f"v_add_u32 v{T+5}, 2048, v{T+5}")
    A(f"v_lshl_add_u32 v{V_AR}, v{T+4}, 4, v{T+5}")
    A(f"v_xor_b32 v{T+4}, 4, v{T+4}")
    A(f"v_lshl_add_u32 v{V_AR+1}, v{T+4}, 4, v{T+5}")
    rp, c, sw, b = T + 4, T + 5, T + 6, T + 7
    A(f"v_bfe_u32 v{rp}, v{lane}, 2, 2")
    A(f"v_and_b32 v{c}, 3, v{lane}")
    A(f"v_bfe_u32 v{sw}, v{lane}, 3, 2")
    if kind == "qkv": A(f"v_xor_b32 v{sw}, s{S_W}, v{sw}")
    A(f"v_lshrrev_b32 v{b}, 5, v{lane}")
    A(f"v_mul_u32_u24 v{b}, {CH}, v{b}")
    A(f"v_lshl_add_u32 v{b}, v{c}, 3, v{b}")
    A(f"v_bfe_u32 v{T+8}, v{lane}, 4, 1")
    A(f"v_mul_u32_u24 v{T+9}, 3072, v{T+8}")
    A(f"v_lshl_add_u32 v{T+9}, v{rp}, 7, v{T+9}")
    A(f"v_add_u32 v{T+9}, v{T+9}, v{b}")
    for jj in range(4):
        A(f"v_xor_b32 v{T+10}, {jj}, v{sw}")
        A(f"v_lshl_add_u32 v{V_R+jj}, v{T+10}, 5, v{T+9}")
        A(f"v_add_u32 v{V_R+4+jj}, {2*V.SL}, v{V_R+jj}")
    if kind == "w1":
        A(f"v_lshl_add_u32 v{T+9}, v{T+8}, 3, v{rp}")
        A(f"v_lshl_add_u32 v{T+9}, v{T+9}, 6, v{b}")
        A(f"v_add_u32 v{T+9}, 6144, v{T+9}")
        for jj in range(2):
            A(f"v_xor_b32 v{T+10}, {jj}, v{T+8}")
            A(f"v_lshl_add_u32 v{V_RH+jj}, v{T+10}, 5, v{T+9}")
            A(f"v_add_u32 v{V_RH+2+jj}, {2*V.SL}, v{V_RH+jj}")
    S_HI = X + 8
    A(f"s_mov_b32 s{S_HI}, 0xffff0000")
    for q in range(4): A(f"v_accvgpr_write_b32 a{A_NEG+q}, -1")
    A(f"v_mov_b32 v{T+4}, 0x3f803f80")
    for q in range(4): A(f"v_accvgpr_write_b32 a{A_ONE+q}, v{T+4}")
    A(f"v_cmp_eq_u32 vcc, 1, v{pc}")
    if "promarks" in OPT: st.mark(A)
    n = vm.need([("D", 0), ("A", 0, V.NT - 1)])
    A(f"s_waitcnt vmcnt({n})")
    if "promarks" in OPT: st.mark(A)
    A("s_barrier")
    st.mark(A)
    for ks in range(2): A(V.aread(0, ks, 0)); lg.issue(("AF", 0, 0))
    for q in range(4): A(V.read(0, q >> 1, 0, q & 1)); lg.issue(("W", 0, 0))
    for t in range(1, V.NT):
        for ks in range(2): A(V.aread(0, ks, t)); lg.issue(("AF", 0, t))
    S = Stream(vm, lg)
    groups = V.groups()
    first, last, fin = {}, {}, {}
    for s in range(NS):
        n = 0
        for j, ts in groups:
            ts = list(ts) if j % 2 == 0 else list(reversed(ts))
            if 4 in ts: ts = [4, 0, 1, 2, 3]
            for t in ts:
                kk = (0, 1) if n % 2 == 0 else (1, 0)
                for ks in kk:
                    needs = [("lg", ("W", s, j)), ("lg", ("AF", s, t))]
                    idx = S.add_mfma(V.mfma(s, ks, t, j, zero=(s == 0 and ks == kk[0])), needs)
                    first.setdefault((s, j), idx); last[(s, j)] = idx
                    if s == NS - 1 and ks == kk[0]:
                        S.add_mfma(V.corr(t, j), [("vm", ("P", j)), ("vm", ("Q", t))])
                fin[(t, j)] = idx
                n += 1
    i = 0
    for j in range(1, H):
        for q in range(4):
            i = S.place(i, "ds", V.read(0, q >> 1, j, q & 1), gives=("W", 0, j) if q == 3 else None) + 1
    bar = {}
    SIG0, SIG, POLL, CHK = par("k1sig0", 5), par("k1sig", 8), par("k1poll", 12), par("k1chk", 13)
    for s in range(NS):
        if s + 1 < NS:
            bar[s] = last[(s, H)]
            S.gaps[bar[s]].append(("bar", None, None, [("vm", ("D", s + 1))] + ([("vm", "CS")] if s == SIG else []) + ([("vm", "ST")] if s == SIG0 else [])))
        for j, _ in groups:
            s2, j2 = (s, j + H) if j < H else (s + 1, j - H)
            if s2 >= NS: continue
            i = last[(s, j)]
            step = 1 if (j == H - 1 or (s == 0 and j < H)) else 2
            for q in range(4):
                i = S.place(i, "ds", V.read(s2, q >> 1, j2, q & 1), gives=("W", s2, j2) if q == 3 else None) + step
    cur = 0
    def dma_seq(i0, i1, lst, vcap=1):
        nonlocal cur
        i0 = max(i0, cur)
        n = len(lst)
        for k, (pre, d, kd, gives, needs) in enumerate(lst):
            tgt = max(cur, i0 + (k * (i1 - i0)) // n)
            i = S.place(tgt, "s", pre, cap=vcap + 1)
            cur = S.place(i + 1, kd, d, gives=gives, needs=needs, cap=vcap)
    def merge(a, b):
        if not b: return a
        out, k = [], 0
        for i, x in enumerate(a):
            out.append(x)
            while k < len(b) and (k + 1) * len(a) <= (i + 1) * len(b): out.append(b[k]); k += 1
        return out + b[k:]
    def wlist(s):
        dm = V.dmas(s)
        return [(m0, d, "vmD", ("D", s) if n == len(dm) - 1 else None, []) for n, (m0, d) in enumerate(dm)]
    def alist(s, dep=True):
        return [(m0, d, "vmA", ("A", s, t) if u == 1 else None, [("lg", ("AF", s - 2, t))] if dep else [])
                for t in range(V.NT) for u, (m0, d) in enumerate(V.admas(s, t))]
    def areads(s, i0, i1):
        for t in range(V.NT):
            i = i0 + (t * (i1 - i0)) // V.NT
            i = S.place(i, "ds", V.aread(s, 0, t), needs=[("vm", ("A", s, t))])
            S.place(i + 1, "ds", V.aread(s, 1, t), gives=("AF", s, t))
    extra = {}
    cs = [(f"s_add_u32 s60, s{S_CSL}, {i*8*V.pitch:#x}",
           f"buffer_load_dwordx4 {ar(A_CS+4*i, 4)}, v{VCA}, {sq(S_SRDW)}, s60 offen", "vmX", ("CL", i), []) for i in range(16)]
    cs0, csn = par("cs0", 1), par("csn", 4)
    slots = [(s_, h_) for s_ in range(cs0, cs0 + csn) for h_ in range(2)]
    for i_, it in enumerate(cs): extra.setdefault(slots[i_ * len(slots) // 16], []).append(it)
    if kind == "w1":
        extra.setdefault((cs0 + 1, 0), []).append(("s_nop 0", f"buffer_load_dwordx2 v[{VB1}:{VB1+1}], v{VB1}, {sq(S_SRDB)}, 0 offen", "vmX", "B1", []))
    rows = [("s_nop 0", f"buffer_load_dwordx4 {ar(A_RAW+4*q, 4)}, v{V_L16}, {sq(S_SRDA)}, s67 offen offset:{q*1024}", "vmX", "ROWS" if q == 3 else None, []) for q in range(4)]
    cpf = []
    if "nocpf" not in OPT:
        cpf = [(f"s_getpc_b64 s[{S_CODE}:{S_CODE+1}]\nL_k1_pc_{kind}:\ns_mov_b32 s{S_CODE+2}, L_k1_spin_{kind}-L_k1_pc_{kind}\ns_mov_b32 s{S_CODE+3}, 0x20000\n"
                f"s_bfe_u32 s60, s2, 0x20003\ns_lshl_b32 s60, s60, 2\ns_add_u32 s60, s60, s{S_W}\ns_mul_i32 s60, s60, {par('cpfb', 2560)}\n"
                f"v_lshlrev_b32 v{VW}, 3, v{V_L16}\ns_mov_b64 exec, {hex((1 << (par('cpfb', 2560) // 128)) - 1)}\n"
                f"buffer_load_dword a{A_DUM}, v{VW}, {sq(S_CODE)}, s60 offen\ns_mov_b64 exec, -1")]
    def addx(key, lst): extra.setdefault(key, []).extend(lst)
    pf = []
    for i in range(9):
        pre = f"s_lshl_b32 s60, s100, 10\ns_add_u32 s60, s60, {(i if i < 7 else i - 7) << 20:#x}"
        if i == 0: pre = f"v_lshlrev_b32 v{VCA}, 3, v{V_L16}\n" + pre
        if i == 7: pre = f"s_mov_b32 s{S_SRDP}, s0\ns_mov_b32 s{S_SRDP+1}, s1\ns_mov_b32 s{S_SRDP+2}, {1024*2048:#x}\n" + pre
        pf.append((pre, f"s_mov_b64 exec, 0xff\nbuffer_load_dword a{A_DUM}, v{VCA}, {sq(S_SRDP)}, s60 offen\ns_mov_b64 exec, -1", "vmX", None, []))
    if "nopf" not in OPT:
        p0 = 2 * (cs0 + csn); p1 = 2 * CHK + 1
        for i_, it in enumerate(pf):
            h_ = p0 + i_ * (p1 - p0) // len(pf)
            addx((h_ // 2, h_ % 2), [it])
    cl = []
    for q in range(4):
        pre = "s_lshl_b32 s60, s100, 12"
        if q == 0:
            pre = (f"s_add_u32 s{S_SRDB}, s58, {WS_PART:#x}\ns_addc_u32 s{S_SRDB+1}, s59, 0\ns_mov_b32 s{S_SRDB+2}, {4 << 20:#x}\n"
                   f"s_mov_b32 s{S_SRDB+3}, 0x20000\n" + pre)
        cl.append((pre, f"buffer_store_dwordx4 {ar(A_NEG,4)}, v{V_L16}, {sq(S_SRDB)}, s60 offen offset:{q*1024} sc1", "vmS", None, []))
    if "noclr" not in OPT:
        for i_, it in enumerate(cl): addx((par("k1clr", 9) + i_, 0), [it])
    for wh, s0, n in slow:
        if wh.isdigit(): addx((int(wh), 0), [("s_nop 0", slowpf(int(s0), int(n)), "vmX", None, [])])
    tagld = f"buffer_load_dwordx2 {ar(A_TAG,2)}, off, {sq(S_SRDC)}, 0 sc1"
    tagchk = (f"v_accvgpr_read_b32 v{VW}, a{A_TAG}\nv_accvgpr_read_b32 v{VW+1}, a{A_TAG+1}\ns_nop 0\n"
              f"v_readfirstlane_b32 s56, v{VW}\nv_readfirstlane_b32 s57, v{VW+1}\ns_nop 3\ns_cmp_lg_u32 s56, 0")
    addx((2, 1), [("s_nop 0", tagld, "vmX", "TAG", [])])
    def flagst(off): return f"s_mov_b64 exec, 1\nbuffer_store_dwordx2 {ar(A_TAG,2)}, off, {sq(S_SRDT)}, s60 offset:{off} sc1\ns_mov_b64 exec, -1"
    addx((SIG0, 1), [("s_lshl_b32 s60, s2, 7", flagst(0), "vmS", None, [])])
    addx((SIG, 1), [("s_lshl_b32 s60, s2, 7", flagst(64), "vmS", None, [])])
    VFA = VW + 2
    fa = [f"v_and_b32 v{VFA}, 0x30, v{V_L16}", f"v_lshlrev_b32 v{VFA}, 4, v{VFA}", f"v_and_b32 v{VFA+1}, 0x1c0, v{V_L16}",
          f"v_lshl_add_u32 v{VFA}, v{VFA+1}, 6, v{VFA}", "s_and_b32 s60, s2, 0x19", "s_lshl_b32 s60, s60, 7", f"v_add_u32 v{VFA}, s60, v{VFA}",
          "s_mov_b32 exec_lo, 0",
          f"v_and_b32 v{VFA}, 0x10, v{V_L16}", f"v_lshlrev_b32 v{VFA}, 3, v{VFA}", f"v_and_b32 v{VFA+1}, 0x60, v{V_L16}",
          f"v_lshl_add_u32 v{VFA}, v{VFA+1}, 5, v{VFA}", "s_and_b32 s60, s2, 0xe6", "s_lshl_b32 s60, s60, 7", "s_add_u32 s60, s60, 64",
          f"v_add_u32 v{VFA}, s60, v{VFA}"]
    if kind == "qkv":
        fa += ["s_mov_b32 exec_hi, 0xffffff00", f"s_max_u32 s60, s{S_MB}, 1", "s_sub_u32 s60, s60, 1", "s_lshr_b32 s3, s60, 2",
               "s_and_b32 s60, s60, 3", "s_lshl_b32 s60, s60, 3", "s_or_b32 s60, s60, s3", "s_or_b32 s60, s60, 0xc6", "s_lshl_b32 s60, s60, 7",
               f"v_and_b32 v{VFA}, 0x10, v{V_L16}", f"v_lshlrev_b32 v{VFA}, 8, v{VFA}", f"v_add_u32 v{VFA}, s60, v{VFA}"]
    fa += ["s_mov_b64 exec, -1"]
    pollld = f"buffer_load_dwordx2 v[{VW}:{VW+1}], v{VFA}, {sq(S_SRDS)}, 0 offen sc1"
    addx((POLL, 1), [("\n".join(fa), pollld, "vmX", "POLL", [])])
    chk = f"v_cmp_ne_u64 vcc, s[56:57], v[{VW}:{VW+1}]"
    pl = []
    for t in range(V.NT):
        pre = f"s_lshr_b32 s60, s{S_AROW+t}, 7\ns_add_u32 s60, s60, {SD_Q:#x}"
        if t == 0: pre = f"v_and_b32 v{VCA}, 0xff, v{V_L16}\n" + pre
        pl.append((pre, f"buffer_load_dwordx4 {ar(A_Q+4*t, 4)}, v{VCA}, {sq(S_SRDS)}, s60 offen sc1", "vmX", ("Q", t), []))
    for j in range(V.NJ):
        if kind == "w1":
            pre = f"s_lshl_b32 s60, s{S_CF if j < 12 else S_CHF}, 5\ns_add_u32 s60, s60, {SD_P + (192 + (j if j < 12 else j - 12))*1024:#x}"
        else:
            pre = (f"s_xor_b32 s60, s{S_W}, {j & 3}\ns_lshl_b32 s60, s60, 5\ns_add_u32 s60, s60, s{S_CF}\ns_lshl_b32 s60, s60, 5\n"
                   f"s_add_u32 s60, s60, {SD_P + (j >> 2)*65536:#x}")
        pl.append((pre, f"buffer_load_dwordx4 {ar(A_P+4*j, 4)}, v{V_L16}, {sq(S_SRDS)}, s60 offen sc1", "vmX", ("P", j), []))
    if kind == "qkv":
        for t in range(4):
            pre = f"s_lshr_b32 s60, s{S_AROW+t}, 9\ns_add_u32 s60, s60, {SD_RS - 64:#x}"
            if t == 0:
                pre = (f"v_lshrrev_b32 v{VCS}, 2, v{VCA}\n"
                       f"v_lshrrev_b32 v{VB1}, 4, v{V_L16}\nv_and_b32 v{VB1}, 0x30, v{VB1}\n"
                       f"v_and_b32 v{VB1+1}, 4, v{VCS}\nv_add_u32 v{VB1}, v{VB1}, v{VB1+1}\n"
                       f"v_add_u32 v{VB1+1}, 8, v{VB1}\n"
                       f"v_cmp_le_u32 s[48:49], v{VB1}, v{VCS}\nv_cmp_le_u32 s[50:51], v{VB1+1}, v{VCS}\n"
                       f"v_add_u32 v{VDC}, 64, v{VB1}\nv_add_u32 v{VDC+1}, 64, v{VB1+1}\n"
                       f"v_cndmask_b32 v{VB1}, v{VB1}, v{VDC}, s[48:49]\nv_cndmask_b32 v{VB1+1}, v{VB1+1}, v{VDC+1}, s[50:51]\n" + pre)
            pl.append((pre, f"buffer_load_dword v{RSQ+t}, v{VCS}, {sq(S_SRDS)}, s60 offen offset:64 sc1", "vmX", None, []))
            pl.append(("s_nop 0", f"buffer_load_dword v{RSK+2*t}, v{VB1}, {sq(S_SRDS)}, s60 offen sc1", "vmX", None, []))
            pl.append(("s_nop 0", f"buffer_load_dword v{RSK+2*t+1}, v{VB1+1}, {sq(S_SRDS)}, s60 offen sc1", "vmX", "RS" if t == 3 else None, []))
    h = len(pl) // 2
    addx((CHK, 1), pl[:h]); addx((CHK + 1, 0), pl[h:])
    for s in range(NS):
        b0 = first[(s, 0)]
        b1 = first[(s + 1, 0)] if s + 1 < NS else len(S.mf)
        if s == 0:
            for wh, s0, n in rounds:
                if wh == "s":
                    for b_ in pfr(int(s0), int(n)): cur = S.place(cur + 1, "vmX", b_, cap=3)
            for c_ in cpf: cur = S.place(cur + 1, "vmX", c_, cap=3)
            dma_seq(b0, bar[0], ([] if "late1" not in OPT else alist(1, dep=False)) + wlist(2) + alist(2), vcap=2)
            for x_ in V.sof_adv(): cur = S.place(cur, "s", x_, cap=4)
            areads(1, b1 - 28, b1 - 8)
            dma_seq(bar[0] + 1, b1, rows + wlist(3))
            for x_ in V.sof_adv(): cur = S.place(cur, "s", x_, cap=3)
            continue
        if s == 1:
            for wh, s0, n in rounds:
                if wh == "t":
                    for b_ in pfr(int(s0), int(n)): cur = S.place(max(cur + 1, b0), "vmX", b_, cap=3)
            areads(2, bar[1] - 8, bar[1] + 20)
            dma_seq(b0, bar[1], merge(alist(3), extra.get((1, 0), [])))
            dma_seq(bar[1] + 1, b1 + 4, merge(wlist(4) + alist(4), extra.get((1, 1), [])))
            for x_ in V.sof_adv(): cur = S.place(cur, "s", x_, cap=3)
            continue
        if s + 1 < NS:
            lo = b0 + (24 if s == 2 else 0)
            areads(s + 1, lo, bar[s] - 8)
            l0 = merge(alist(s + 3) if s + 3 < NS else [], extra.get((s, 0), []))
            if l0: dma_seq(lo + 8, bar[s], l0)
            if s == CHK:
                cur = S.place(max(cur, bar[s] + 1), "s", chk + "\n"
                              f"s_cbranch_vccnz L_k1_spin_{kind}\nL_k1_back_{kind}:", needs=[("vm", "POLL")], cap=3)
            if s == SIG0:
                cur = S.place(max(cur, bar[s] + 1), "s", tagchk + f"\ns_cbranch_scc0 L_k1_tspin_{kind}\nL_k1_tback_{kind}:", needs=[("vm", "TAG")], cap=3)
            l1 = merge(wlist(s + 3) if s + 3 < NS else [], extra.get((s, 1), []))
            if l1: dma_seq(bar[s] + 1, b1 + 4, l1)
            if s + 3 < NS:
                for x_ in V.sof_adv(): cur = S.place(cur, "s", x_, cap=3)
    i = first[(2, 0)]
    def fill(o, gapstep=1, needs=(), kd="s", gives=None):
        nonlocal i
        i = S.place(i, kd, o, needs=needs, cap=2, gives=gives) + gapstep
    mA, mB = VDC, VW
    for rr, d in ((0, mA), (1, mB)):
        for q in range(2):
            fill(f"v_mfma_f32_16x16x32_bf16 {vr(d,4)}, {ar(A_ONE,4)}, {ar(A_RAW+8*rr+4*q,4)}, {'0' if q == 0 else vr(d,4)}", needs=[("vm", "ROWS")])
    i += 8
    for r_ in (8, 4, 2, 1):
        for d in (mA, mB): fill(f"v_add_f32_dpp v{d}, v{d}, v{d} row_ror:{r_} row_mask:0xf bank_mask:0xf")
    for d in (mA, mB): fill(f"v_mul_f32 v{d}, 0x3a800000, v{d}", 0)
    for d in (mA, mB): fill(f"v_mov_b32 v{d+1}, 0", 0)
    for q in range(8):
        for rr, d in ((0, mA), (1, mB)):
            for o in (f"v_accvgpr_read_b32 v{d+2}, a{A_RAW+8*rr+q}", f"v_and_b32 v{d+3}, s{S_HI}, v{d+2}", f"v_lshlrev_b32 v{d+2}, 16, v{d+2}",
                      f"v_sub_f32 v{d+3}, v{d+3}, v{d}", f"v_sub_f32 v{d+2}, v{d+2}, v{d}",
                      f"v_fmac_f32 v{d+1}, v{d+3}, v{d+3}", f"v_fmac_f32 v{d+1}, v{d+2}, v{d+2}"):
                fill(o, 0)
    i += 2
    qA, qB = mA + 1, mB + 1
    for r_ in (8, 4, 2, 1):
        for d in (qA, qB): fill(f"v_add_f32_dpp v{d}, v{d}, v{d} row_ror:{r_} row_mask:0xf bank_mask:0xf")
    for sw_ in ("v_permlane16_swap_b32", "v_permlane32_swap_b32"):
        for d in (qA, qB): fill(f"v_mov_b32 v{d+1}, v{d}")
        i += 1
        for d in (qA, qB): fill(f"{sw_} v{d}, v{d+1}")
        for d in (qA, qB): fill(f"v_add_f32 v{d}, v{d}, v{d+1}")
    for o in (f"v_cndmask_b32 v{mA}, v{mA}, v{mB}, vcc", f"v_cndmask_b32 v{qA}, v{qA}, v{qB}, vcc",
              f"v_mul_f32 v{qA}, 0x3a800000, v{qA}", f"v_cvt_pk_bf16_f32 v{VW}, -v{mA}, -v{mA}",
              f"v_cvt_pk_bf16_f32 v{qA}, v{qA}, v{qA}", f"v_and_b32 v{qA}, s{S_HI}, v{qA}", f"v_add_f32 v{qA}, 0x3727c5ac, v{qA}",
              f"v_cvt_pk_bf16_f32 v{qA}, v{qA}, v{qA}", f"v_and_b32 v{qA}, s{S_HI}, v{qA}", f"v_sqrt_f32 v{qA}, v{qA}",
              f"v_mov_b32 v{VW+2}, v{VW}", f"v_cvt_pk_bf16_f32 v{VW+1}, -v{mA}, v{qA}", f"v_and_b32 v{qA}, s{S_HI}, v{VW+1}",
              f"v_rcp_f32 v{qA}, v{qA}", f"v_mov_b32 v{VW+3}, v{VW+1}", f"v_lshrrev_b32 v{mA+2}, 2, v{V_L16}"):
        fill(o)
    fill(f"s_lshr_b32 s61, s67, 7\ns_add_u32 s61, s61, {SD_Q:#x}\ns_mov_b64 exec, 3\n"
         f"buffer_store_dwordx4 {vr(VW,4)}, v{V_L16}, {sq(S_SRDS)}, s61 offen sc1\ns_mov_b64 exec, -1", kd="vmS")
    fill(f"s_lshr_b32 s61, s67, 9\ns_add_u32 s61, s61, {SD_RS:#x}\ns_mov_b64 exec, 3\n"
         f"buffer_store_dword v{qA}, v{mA+2}, {sq(S_SRDS)}, s61 offen sc1\ns_mov_b64 exec, -1", kd="vmS", gives="ST")
    if "verbose" in OPT: print(kind, "stats done at step", [s_ for s_ in range(NS) if first[(s_, 0)] <= i][-1], i, bar, file=sys.stderr)
    assert i < bar[SIG0 - 1] + 40
    i = i + 2
    for q in range(16):
        cin = "0" if q == 0 else vr(VDC, 4)
        sl_ = slots[q * len(slots) // 16]
        i = max(i, first[(sl_[0] + 2, 0 if sl_[1] == 0 else H)])
        i = S.place(i, "s", f"v_mfma_f32_16x16x32_bf16 {vr(VDC,4)}, {ar(A_SEL,4)}, {ar(A_CS+4*q,4)}, {cin}", needs=[("vm", ("CL", q))], cap=2) + 4
    i += 8
    for r_ in range(4):
        i = S.place(i, "s", f"v_add_f32_dpp v{VDC+r_}, v{VDC+r_}, v{VDC+r_} row_ror:8 row_mask:0xf bank_mask:0xf", cap=2) + 1
    for r_ in range(4):
        d = VDC + r_
        sel = "0x05040302" if r_ % 2 == 0 else "0x07060302"
        ops = [f"v_and_b32 v{VW+2}, s{S_HI}, v{d}", f"v_sub_f32 v{VW+2}, v{d}, v{VW+2}",
               f"v_and_b32 v{VW+3}, s{S_HI}, v{VW+2}", f"v_sub_f32 v{VW+3}, v{VW+2}, v{VW+3}",
               f"s_mov_b32 s61, 0x07060302\nv_perm_b32 v{VW}, v{VW+2}, v{d}, s61",
               f"s_mov_b32 s61, {sel}\nv_perm_b32 v{VW+1}, v{VB1 + (r_ >> 1)}, v{VW+3}, s61"]
        for k, o in enumerate(ops):
            i = S.place(i, "s", o, cap=2, needs=[("vm", "B1")] if k == 5 else []) + 1
        i = S.place(i, "vmS", f"buffer_store_dwordx2 v[{VW}:{VW+1}], v{VCS}, {sq(S_SRDS)}, s{S_CSS} offen offset:{16*r_} sc1",
                    gives="CS" if r_ == 3 else None, cap=2) + 2
    assert i < bar[SIG - 1]
    tail = []
    if kind == "w1":
        pre = [f"s_lshl_b32 s{X}, s{S_MB}, 3", f"s_lshl_b32 s{X+1}, s{S_W}, 1", f"s_add_u32 s{X}, s{X}, s{X+1}",
               f"s_mul_i32 s{X}, s{X}, 144", f"s_add_u32 s{X}, s{X}, 32", f"s_lshr_b32 s{X+1}, s{S_CF}, 6", f"s_lshr_b32 s{X+2}, s{S_CHF}, 6",
               f"s_add_u32 s{X+1}, s{X+1}, s{X}", f"s_add_u32 s{X+2}, s{X+2}, s{X}", f"s_lshl_b32 s{X+1}, s{X+1}, 11", f"s_lshl_b32 s{X+2}, s{X+2}, 11"]
        i = first[(14, 0)]
        for o in pre: i = S.place(i, "s", o, cap=2) + 1
        for j in range(14):
            for t in (range(4) if j % 2 == 0 else range(3, -1, -1)):
                a = V.acc(t, j); e = fin[(t, j)] + 8
                dst = a if j % 2 == 0 else V.acc(t, j - 1) + 2
                for r_ in range(4): tail.append((e, "s", f"v_mul_f32 v{a+r_}, v{a+r_}, |v{a+r_}|", []))
                tail.append((e, "s", f"v_cvt_pk_bf16_f32 v{dst}, v{a}, v{a+1}", []))
                tail.append((e, "s", f"v_cvt_pk_bf16_f32 v{dst+1}, v{a+2}, v{a+3}", []))
                for r_ in range(2): tail.append((e, "s", f"v_pk_max_i16 v{dst+r_}, v{dst+r_}, 0", []))
                if j % 2 == 1:
                    p = j // 2; a0 = V.acc(t, j - 1)
                    off = (t >> 1) * 144 * 2048 + (p * 2048 if p < 6 else 0)
                    tail.append((e, "vmS", f"s_add_u32 s60, s{X+1 if p < 6 else X+2}, {off:#x}\n"
                                 f"buffer_store_dwordx4 v[{a0}:{a0+3}], v{V_L16}, {sq(S_SRDO)}, s60 offen offset:{(t&1)*1024}{STMOD}", []))
    else:
        for j, ts in groups:
            ts = list(ts) if j % 2 == 0 else list(reversed(ts))
            if 4 in ts: ts = [4, 0, 1, 2, 3]
            if j >= 8: ts = [t for t in ts if t == 4] + [0, 1, 2, 3]
            for t in ts:
                a = V.acc(t, j); e = (fin[(t, j)] if j < 8 else last[(NS - 1, j)]) + 8
                if t == 4: d0 = a
                elif j < 8: d0 = a if j % 2 == 0 else V.acc(t, j - 1) + 2
                else: d0 = V.acc(0, j) + 2 + 2 * t
                cv = [f"v_cvt_pk_bf16_f32 v{d0}, v{a}, v{a+1}", f"v_cvt_pk_bf16_f32 v{d0+1}, v{a+2}, v{a+3}"]
                if j >= 8 and t == 0: cv.reverse()
                for o in cv: tail.append((e, "s", o, []))
    i = 0
    rest = []
    for e, kd, text, nd in tail:
        if rest or max(i, e) >= len(S.mf) - 1:
            rest.append((kd, text, nd)); continue
        k = max(i, e)
        while k < len(S.mf) - 1 and S.used[k] >= par("tailcap", 3): k += 1
        if k >= len(S.mf) - 1:
            rest.append((kd, text, nd)); continue
        i = S.place(k, kd, text, needs=nd, cap=par("tailcap", 3))
    if stamp:
        for m in PAR.get("k1marks", "15").split(":"):
            if "promarks" in OPT: break
            S.gaps[first[(int(m), 0)]].append(("s", st.text(), None, []))
    for x_ in S.emit("k1"): A(x_)
    if st.n < 7: st.mark(A)
    A("s_nop 7")
    for kd, text, nd in rest:
        o = []
        S.waits(nd, o)
        for x_ in o: A(x_)
        A(text)
    if kind == "qkv":
        o = []; S.waits([("vm", "RS")], o)
        for x_ in o: A(x_)
        qkv_attention(A, V)
    st.flush(A, 58, 59, 0, f"s{S_W}")
    A("s_endpgm")
    for nm, ld, ck, br in (("", pollld, chk, "s_cbranch_vccnz"), ("t", tagld, tagchk, "s_cbranch_scc0")):
        A.label(f"L_k1_{nm}spin_{kind}")
        A("s_mov_b32 s61, 0")
        A.label(f"L_k1_{nm}spin1_{kind}")
        A("s_sleep 8")
        A(ld)
        A("s_waitcnt vmcnt(0)")
        A("s_add_u32 s61, s61, 1")
        A("s_cmp_gt_u32 s61, 0x10000")
        A(f"s_cbranch_scc1 L_k1_{nm}back_{kind}")
        A(ck)
        A(f"{br} L_k1_{nm}spin1_{kind}")
        A(f"s_branch L_k1_{nm}back_{kind}")

STMOD = ""
def gen_k1(A, name, stamp):
    kernel_head(A, name)
    st0 = Stamp(stamp, 1)
    st0.mark(A)
    A("s_cmp_ge_u32 s2, 256")
    A("s_cbranch_scc1 L_k1_end")
    A("s_load_dwordx2 s[4:5], s[0:1], 0")
    A("s_load_dwordx2 s[60:61], s[0:1], 8")
    A("s_load_dwordx4 s[56:59], s[0:1], 32")
    A("s_load_dwordx4 s[12:15], s[0:1], 72")
    A("s_load_dwordx2 s[36:37], s[0:1], 48")
    A("s_load_dwordx2 s[38:39], s[0:1], 16")
    A("s_memrealtime s[18:19]")
    lane, l16, g, T, X = 100, 101, 102, 104, S_X0
    A(f"v_lshrrev_b32 v{T}, 6, v0")
    A(f"v_and_b32 v{lane}, 63, v0")
    A(f"v_readfirstlane_b32 s{S_W}, v{T}")
    A(f"s_and_b32 s{X}, s2, 1")
    A(f"s_lshl_b32 s{X}, s{X}, 2")
    A(f"s_bfe_u32 s{X+1}, s2, 0x20003")
    A(f"s_add_u32 s{S_MB}, s{X}, s{X+1}")
    A(f"s_bfe_u32 s{X}, s2, 0x20001")
    A(f"s_lshl_b32 s{X}, s{X}, 2")
    A(f"s_bfe_u32 s{X+1}, s2, 0x20005")
    A(f"s_add_u32 s{S_NT}, s{X}, s{X+1}")
    A(f"v_and_b32 v{l16}, 15, v{lane}")
    A(f"v_lshrrev_b32 v{g}, 4, v{lane}")
    A(f"v_lshlrev_b32 v{V_L16}, 4, v{lane}")
    A(f"s_lshl_b32 s{X}, s{S_MB}, 8")
    A(f"s_lshl_b32 s{X+1}, s{S_W}, 6")
    A(f"s_add_u32 s{X+1}, s{X}, s{X+1}")
    A(f"s_lshl_b32 s{X+1}, s{X+1}, 11")
    for t in range(4): A(f"s_add_u32 s{S_AROW+t}, s{X+1}, {t*16*2048:#x}")
    A(f"s_max_u32 s{X+1}, s{X}, 16")
    A(f"s_sub_u32 s{X+1}, s{X+1}, 16")
    A(f"s_lshl_b32 s{S_AROW+4}, s{X+1}, 11")
    A(f"s_lshr_b32 s{X+1}, s2, 7")
    A(f"s_lshl_b32 s{X+1}, s{X+1}, 4")
    A(f"s_add_u32 s{X+1}, s{X+1}, s{S_NT}")
    A(f"s_lshl_b32 s{X+1}, s{X+1}, 2")
    A(f"s_add_u32 s{X+1}, s{X+1}, s{S_W}")
    A(f"s_lshl_b32 s{X+1}, s{X+1}, 1")
    A(f"s_add_u32 s{X+1}, s{X+1}, s{X}")
    A(f"s_lshl_b32 s67, s{X+1}, 11")
    A(f"v_lshrrev_b32 v{T+4}, 3, v{lane}")
    A(f"v_and_b32 v{T+5}, 7, v{lane}")
    A(f"v_xor_b32 v{T+5}, v{T+5}, v{g}")
    A(f"v_lshlrev_b32 v{T+4}, 11, v{T+4}")
    A(f"v_lshl_add_u32 v{V_AD}, v{T+5}, 4, v{T+4}")
    A(f"v_xor_b32 v{T+5}, 4, v{T+5}")
    A(f"v_lshl_add_u32 v{V_AD+1}, v{T+5}, 4, v{T+4}")
    A(f"v_add_u32 v{V_AD+1}, 0x4000, v{V_AD+1}")
    A(f"s_mov_b32 s{S_SOFW}, 0")
    A(f"s_mov_b32 s{S_SOFW2}, 4096")
    A("s_cmp_ge_u32 s2, 128")
    A("s_cbranch_scc1 L_k1_qkv")
    P1, M1, P2, M2 = Asm(), Asm(), Asm(), Asm()
    k1_variant(P1, M1, K1Var("w1"), stamp)
    k1_variant(P2, M2, K1Var("qkv"), stamp)
    A.L += P1.L
    A.label("L_k1_qkv")
    A.L += P2.L + M1.L + M2.L
    A.label("L_k1_end")
    A("s_endpgm")

def qkv_attention(A, V):
    T = V_T
    XCH = RING0 + V.SL
    lane8, l16, g = T + 8, T + 1, T + 2
    def Q(t, sp): return V.acc(t, 2 * sp)
    KP = 200
    def K(t, sp): return V.acc(t, 4 + 2 * sp) if t >= 0 else KP + 4 * sp
    def VT(jj): return 128 + 16 * jj
    X = T + 4
    A(f"v_lshrrev_b32 v{lane8}, 1, v{V_L16}")
    A(f"v_bfe_u32 v{l16}, v{V_L16}, 4, 4")
    A(f"v_lshrrev_b32 v{g}, 8, v{V_L16}")
    for jj in range(4):
        A(f"s_xor_b32 s46, s{S_W}, {jj}")
        A("s_lshl_b32 s46, s46, 9")
        A(f"s_lshl_b32 s47, s{S_W}, 12")
        A("s_add_u32 s46, s46, s47")
        A(f"v_add_u32 v{X+jj}, s46, v{lane8}")
    A(f"s_lshl_b32 s46, s{S_W}, 9")
    A(f"v_add_u32 v{lane8}, s46, v{lane8}")
    for jj in range(4):
        k = K(3, jj >> 1) + 2 * (jj & 1)
        A(f"ds_write_b64 v{X+jj}, v[{k}:{k+1}] offset:{XCH + 4096}")
        v = VT(jj) + 8
        A(f"ds_write_b64 v{X+jj}, v[{v}:{v+1}] offset:{XCH + 4096 + 2048}")
    A(f"ds_write_b64 v{lane8}, v[192:193] offset:{XCH}")
    A(f"ds_write_b64 v{lane8}, v[196:197] offset:{XCH + 2048}")
    par_ = T + 9
    MP, MA, MB_, VA_, VB_ = "s[46:47]", "s[48:49]", "s[50:51]", "s[52:53]", "s[54:55]"
    A(f"v_and_b32 v{par_}, 1, v{l16}")
    A(f"v_cmp_eq_u32 {MP}, 1, v{par_}")
    A(f"s_or_b32 s60, s{S_MB}, s{S_W}")
    A("s_cmp_eq_u32 s60, 0")
    A(f"s_cselect_b64 {VA_}, {MA}, -1")
    A(f"s_cselect_b64 {VB_}, {MB_}, -1")
    FQ = 232
    A("s_mov_b32 s61, 0x3e8293ee")
    for t in range(4): A(f"v_mul_f32 v{RSQ+t}, s61, v{RSQ+t}")
    A(f"v_cndmask_b32 v{RSK}, 0, v{RSK}, {VA_}")
    A(f"v_cndmask_b32 v{RSK+1}, 0, v{RSK+1}, {VB_}")
    for t in range(4):
        for e in range(2): A(f"v_mul_f32 v{FQ+2*t+e}, v{RSQ+t}, v{RSK+2*t+e}")
    SEL = 208
    A(f"v_mov_b32 v{T+10}, 0x0c0c0100")
    A(f"v_mov_b32 v{T+11}, 0x01000c0c")
    A(f"v_cndmask_b32 v{SEL+2}, v{T+10}, v{T+11}, {MP}")
    A(f"v_mov_b32 v{T+10}, 0x0c0c0302")
    A(f"v_mov_b32 v{T+11}, 0x03020c0c")
    A(f"v_cndmask_b32 v{SEL+3}, v{T+10}, v{T+11}, {MP}")
    A(f"v_mov_b32 v{T+10}, 0x0c0c0c0c")
    A(f"v_cndmask_b32 v{SEL}, v{SEL+2}, v{T+10}, {MA}")
    A(f"v_cndmask_b32 v{SEL+1}, v{SEL+3}, v{T+10}, {MB_}")
    A(f"v_cndmask_b32 v{SEL+2}, v{T+10}, v{SEL+2}, {MA}")
    A(f"v_cndmask_b32 v{SEL+3}, v{T+10}, v{SEL+3}, {MB_}")
    A("s_waitcnt lgkmcnt(0)")
    A("s_barrier")
    for jj in range(4):
        k = KP + 4 * (jj >> 1) + 2 * (jj & 1)
        A(f"ds_read_b64 v[{k}:{k+1}], v{X+jj} offset:{XCH}")
        v = VT(jj)
        A(f"ds_read_b64 v[{v}:{v+1}], v{X+jj} offset:{XCH + 2048}")
    A(f"v_mov_b32 v{T+11}, 0xce6e6b28")
    units = [(t, sp) for t in (1, 2, 3, 0) for sp in range(2)]
    def Sc(t, sp): return V.acc(t, 2 * sp + 1)
    def Sp(t, sp): return V.acc(t, 4 + 2 * sp + 1)
    for n, (t, sp) in enumerate(units):
        if t == 0 and sp == 0: A("s_waitcnt lgkmcnt(0)")
        A(f"v_mfma_f32_16x16x32_bf16 {vr(Sc(t,sp),4)}, {vr(K(t,sp),4)}, {vr(Q(t,sp),4)}, 0")
        A(f"v_mfma_f32_16x16x32_bf16 {vr(Sp(t,sp),4)}, {vr(K(t-1,sp),4)}, {vr(Q(t,sp),4)}, 0")
    A("s_nop 1")
    def stage(fn):
        for (t, sp) in units: fn(t, sp, Sc(t, sp), Sp(t, sp))
    stage(lambda t, sp, c, p: A(f"v_cndmask_b32 v{c}, v{c}, v{c+1}, {MP}"))
    stage(lambda t, sp, c, p: A(f"v_cndmask_b32 v{c+1}, v{c+2}, v{c+3}, {MP}"))
    stage(lambda t, sp, c, p: A(f"v_cndmask_b32 v{p}, v{p}, v{p+1}, {MP}"))
    stage(lambda t, sp, c, p: A(f"v_cndmask_b32 v{p+1}, v{p+2}, v{p+3}, {MP}"))
    stage(lambda t, sp, c, p: A(f"v_cndmask_b32 v{c}, v{p}, v{c}, {MA}"))
    stage(lambda t, sp, c, p: A(f"v_cndmask_b32 v{c+1}, v{p+1}, v{c+1}, {MB_}"))
    stage(lambda t, sp, c, p: A(f"v_mul_f32 v{c}, v{c}, v{FQ+2*t}"))
    stage(lambda t, sp, c, p: A(f"v_mul_f32 v{c+1}, v{c+1}, v{FQ+2*t+1}"))
    for sp in range(2):
        c = Sc(0, sp)
        A(f"v_cndmask_b32 v{c}, v{T+11}, v{c}, {VA_}")
        A(f"v_cndmask_b32 v{c+1}, v{T+11}, v{c+1}, {VB_}")
    P = [Sp(t, sp) for (t, sp) in units]
    quads = [P[0:4], P[4:8]]
    def xreduce(op, mid=None, filler=()):
        fl = list(filler)
        def pad(n):
            for _ in range(n): A(fl.pop(0) if fl else "s_nop 0")
        for q in quads:
            A(f"v_permlane16_swap_b32 v{q[0]}, v{q[1]}"); A(f"v_permlane16_swap_b32 v{q[2]}, v{q[3]}")
        for q in quads:
            A(f"{op} v{q[0]}, v{q[0]}, v{q[1]}"); A(f"{op} v{q[2]}, v{q[2]}, v{q[3]}")
        pad(1)
        for q in quads: A(f"v_permlane32_swap_b32 v{q[0]}, v{q[2]}")
        for q in quads: A(f"{op} v{q[0]}, v{q[0]}, v{q[2]}")
        if mid:
            for q in quads: A(f"{mid} v{q[0]}, v{q[0]}")
            pad(1)
        for q in quads: A(f"v_mov_b32 v{q[2]}, v{q[0]}")
        pad(1)
        for q in quads: A(f"v_permlane32_swap_b32 v{q[0]}, v{q[2]}")
        for q in quads:
            A(f"v_mov_b32 v{q[1]}, v{q[0]}"); A(f"v_mov_b32 v{q[3]}, v{q[2]}")
        pad(0)
        for q in quads:
            A(f"v_permlane16_swap_b32 v{q[0]}, v{q[1]}"); A(f"v_permlane16_swap_b32 v{q[2]}, v{q[3]}")
        for x in fl: A(x)
    stage(lambda t, sp, c, p: A(f"v_max_f32 v{p}, v{c}, v{c+1}"))
    xreduce("v_max_f32")
    stage(lambda t, sp, c, p: A(f"v_sub_f32 v{c}, v{c}, v{p}"))
    stage(lambda t, sp, c, p: A(f"v_sub_f32 v{c+1}, v{c+1}, v{p}"))
    stage(lambda t, sp, c, p: A(f"v_exp_f32 v{c}, v{c}"))
    stage(lambda t, sp, c, p: A(f"v_exp_f32 v{c+1}, v{c+1}"))
    stage(lambda t, sp, c, p: A(f"v_add_f32 v{p}, v{c}, v{c+1}"))
    fl = []
    for (t, sp) in units:
        c = Sc(t, sp)
        fl += [f"v_mul_f32 v{c}, v{c}, v{RSK+2*t}", f"v_mul_f32 v{c+1}, v{c+1}, v{RSK+2*t+1}"]
    xreduce("v_add_f32", mid="v_rcp_f32", filler=fl)
    stage(lambda t, sp, c, p: A(f"v_mul_f32 v{c}, v{c}, v{p}"))
    stage(lambda t, sp, c, p: A(f"v_mul_f32 v{c+1}, v{c+1}, v{p}"))
    stage(lambda t, sp, c, p: A(f"v_cvt_pk_bf16_f32 v{c}, v{c}, v{c+1}"))
    for i in range(4):
        stage(lambda t, sp, c, p: A(f"v_perm_b32 v{p+i}, v{c}, v{c}, v{SEL+i}"))
    for (t, sp) in units:
        for e in range(2):
            d = Q(t, sp) if e == 0 else Sc(t, sp)
            v = VT(2 * sp + e) + 2 * t
            A(f"v_mfma_f32_16x16x32_bf16 {vr(d,4)}, {vr(v,4)}, {vr(Sp(t,sp),4)}, 0")
    A(f"s_lshl_b32 s60, s{S_MB}, 3")
    A(f"s_lshl_b32 s61, s{S_W}, 1")
    A("s_add_u32 s60, s60, s61")
    A("s_mul_i32 s60, s60, 144")
    A(f"s_lshl_b32 s61, s{S_NT}, 1")
    A("s_add_u32 s60, s60, s61")
    A(f"s_lshr_b32 s61, s{S_W}, 1")
    A("s_add_u32 s62, s60, s61")
    A("s_xor_b32 s61, s61, 1")
    A("s_add_u32 s63, s60, s61")
    A("s_lshl_b32 s62, s62, 11")
    A("s_lshl_b32 s63, s63, 11")
    for (t, sp) in units:
        a, b = Q(t, sp), Sc(t, sp)
        A(f"v_cvt_pk_bf16_f32 v{a}, v{a}, v{a+1}")
        A(f"v_cvt_pk_bf16_f32 v{a+1}, v{a+2}, v{a+3}")
        A(f"v_cvt_pk_bf16_f32 v{a+2}, v{b}, v{b+1}")
        A(f"v_cvt_pk_bf16_f32 v{a+3}, v{b+2}, v{b+3}")
    A(f"s_bitcmp1_b32 s{S_W}, 0")
    A("s_cbranch_scc0 L_k1_noswap")
    for (t, sp) in units:
        a = Q(t, sp)
        A(f"v_swap_b32 v{a}, v{a+2}")
        A(f"v_swap_b32 v{a+1}, v{a+3}")
    A.label("L_k1_noswap")
    for (t, sp) in units:
        a = Q(t, sp)
        A(f"s_add_u32 s64, s{62+sp}, {(t>>1)*144*2048:#x}")
        A(f"buffer_store_dwordx4 v[{a}:{a+3}], v{V_L16}, {sq(S_SRDO)}, s64 offen offset:{(t&1)*1024}{STMOD}")

def gen_k2(A, name, stamp):
    st = Stamp(stamp, 2)
    kernel_head(A, name)
    st.mark(A)
    SA, SW2, SWO, SX, SB, SO, SP, SF = 4, 8, 12, 16, 20, 24, 28, 32
    S_M0, S_WV, S_SA, S_SW, S_PS, S_PR, S_FS, S_FR = 36, 37, 38, 39, 40, 41, 42, 43
    A("s_cmp_ge_u32 s2, 256")
    A("s_cbranch_scc1 L_k2_end")
    A("s_load_dwordx2 s[44:45], s[0:1], 0")
    A("s_load_dwordx2 s[46:47], s[0:1], 16")
    A("s_load_dwordx4 s[48:51], s[0:1], 48")
    A("s_load_dwordx2 s[52:53], s[0:1], 64")
    A("s_load_dwordx2 s[54:55], s[0:1], 80")
    lane, l16, g = 65, 66, 67
    VA, VD, VR, VX, VB, VL, VF, T = 68, 70, 76, 84, 85, 86, 88, 92
    XT = 100
    A("v_lshrrev_b32 v64, 6, v0")
    A(f"v_and_b32 v{lane}, 63, v0")
    A(f"v_readfirstlane_b32 s{S_WV}, v64")
    A("s_and_b32 s56, s2, 1")
    A("s_bfe_u32 s57, s2, 0x20001")
    A("s_lshl_b32 s57, s57, 2")
    A("s_bfe_u32 s58, s2, 0x20003")
    A("s_add_u32 s57, s57, s58")
    A("s_lshr_b32 s58, s2, 5")
    A(f"v_and_b32 v{l16}, 15, v{lane}")
    A(f"v_lshrrev_b32 v{g}, 4, v{lane}")
    A("s_lshl_b32 s59, s57, 2")
    A(f"s_add_u32 s59, s59, s{S_WV}")
    A(f"s_mul_i32 s60, s59, {144*2048}")
    A(f"v_lshlrev_b32 v{VL}, 4, v{lane}")
    A(f"v_add_u32 v{VA}, s60, v{VL}")
    A(f"s_mul_i32 s{S_SA}, s56, {56*2048}")
    A(f"s_add_u32 s{S_SA}, s{S_SA}, {32*2048}")
    A(f"s_mul_i32 s{S_SW}, s56, {1792*2048}")
    A(f"v_lshrrev_b32 v{T}, 3, v{lane}")
    A(f"v_bfe_u32 v{T+1}, v{lane}, 1, 2")
    A(f"v_xor_b32 v{T+1}, v{T+1}, v{g}")
    A(f"v_lshlrev_b32 v{T}, 11, v{T}")
    A(f"v_lshl_add_u32 v{T+2}, v{T+1}, 5, v{T}")
    A(f"v_and_b32 v{T+1}, 1, v{lane}")
    A(f"v_lshl_add_u32 v{T+2}, v{T+1}, 4, v{T+2}")
    A(f"s_lshl_b32 s60, s{S_WV}, 15")
    A("s_lshl_b32 s61, s58, 8")
    A("s_lshl_b32 s62, s56, 7")
    A("s_add_u32 s61, s61, s62")
    A("s_add_u32 s60, s60, s61")
    A(f"v_add_u32 v{VD}, s60, v{T+2}")
    A(f"v_add_u32 v{VD+1}, 0x4000, v{VD}")
    A(f"v_xor_b32 v{VD+2}, 0x80, v{VD}")
    A(f"v_xor_b32 v{VD+3}, 0x80, v{VD+1}")
    A(f"s_lshl_b32 s{S_M0}, s{S_WV}, 11")
    A("s_lshl_b32 s60, s59, 16")
    A("s_add_u32 s60, s60, s61")
    A(f"v_and_b32 v{T+1}, 7, v{lane}")
    A(f"v_lshl_add_u32 v{VX}, v{T+1}, 4, v{T}")
    A(f"v_add_u32 v{VX}, s60, v{VX}")
    A(f"v_lshlrev_b32 v{VB}, 4, v{T+1}")
    A(f"v_add_u32 v{VB}, s61, v{VB}")
    A(f"v_bfe_u32 v{T}, v{lane}, 2, 4")
    A(f"v_lshlrev_b32 v{T}, 7, v{T}")
    A(f"v_and_b32 v{T+1}, 3, v{lane}")
    A(f"v_lshl_add_u32 v{T}, v{T+1}, 3, v{T}")
    A(f"v_bfe_u32 v{T+1}, v{lane}, 3, 2")
    for jj in range(4):
        A(f"v_xor_b32 v{T+2}, {jj}, v{T+1}")
        A(f"v_lshl_add_u32 v{VR+jj}, v{T+2}, 5, v{T}")
        A(f"v_add_u32 v{VR+4+jj}, 0x10000, v{VR+jj}")
    VPW1, VPW2, VPA = 74, 75, 69
    A("s_lshr_b32 s60, s2, 3")
    A("s_lshl_b32 s60, s60, 2")
    A(f"s_add_u32 s60, s60, s{S_WV}")
    A("s_lshl_b32 s60, s60, 11")
    A(f"v_lshrrev_b32 v{T}, 2, v{lane}")
    A(f"v_lshlrev_b32 v{T}, 7, v{T}")
    A(f"v_add_u32 v{VPW1}, s60, v{T}")
    A("s_add_u32 s60, s60, s62")
    A(f"v_lshrrev_b32 v{T}, 3, v{lane}")
    A(f"v_lshlrev_b32 v{T+1}, 8, v{T}")
    A(f"v_add_u32 v{VPW2}, s60, v{T+1}")
    A(f"s_mul_i32 s60, s59, {144*2048}")
    A("s_lshl_b32 s63, s58, 10")
    A("s_add_u32 s60, s60, s63")
    A(f"v_lshlrev_b32 v{T}, 7, v{T}")
    A(f"v_add_u32 v{VPA}, s60, v{T}")
    A(f"s_mov_b32 s{S_FS}, s{S_SW}")
    A(f"s_mov_b32 s{S_FR}, s{S_SA}")
    A("s_xor_b32 s63, s2, 1")
    A(f"s_lshl_b32 s60, s{S_WV}, 12")
    A(f"s_lshl_b32 s{S_PS}, s2, 14")
    A(f"s_add_u32 s{S_PS}, s{S_PS}, s60")
    A(f"s_lshl_b32 s{S_PR}, s63, 14")
    A(f"s_add_u32 s{S_PR}, s{S_PR}, s60")
    A("s_waitcnt lgkmcnt(0)")
    srd(A, SA, 54, 55, A2_BYTES, WS_A2)
    srd(A, SW2, 48, 49, 3584 * 2048)
    srd(A, SWO, 46, 47, 1024 * 2048)
    srd(A, SX, 44, 45, 4 << 20)
    srd(A, SB, 50, 51, 2048)
    srd(A, SO, 52, 53, 4 << 20)
    srd(A, SP, 54, 55, 4 << 20, WS_PART)
    srd(A, SF, 54, 55, SD_BYTES, WS_SIDE)
    vm, lg = Score(63), Score(15)
    N1, N2 = 28, 16
    RCV, XLD, PRO = N1 + par('k2rcv', 10), N1 + par('k2xld', 11), par('k2pro', 3)
    NS = N1 + N2
    RW, RA = 8, par('k2ra', 7)
    DW = par('k2dw', RW - 1)
    def acc(t, j): return (j * 2 + t) * 4
    def acc2(t, j): return 128 + (j * 2 + t) * 4
    def wf(j, ks): return (j * 2 + ks) * 4
    def af(s, ks, t): return 64 + ((s % RA) * 4 + ks * 2 + t) * 4
    def nj(s): return 8 if s < N1 else 4
    def aloads(s):
        o = []
        if s == N1: o.append(("s", f"s_mov_b32 s{S_SA}, 0", None))
        for ks in range(2):
            for t in range(2):
                o.append(("vmA", f"buffer_load_dwordx4 {ar(af(s, ks, t), 4)}, v{VA}, s[{SA}:{SA+3}], s{S_SA} offen offset:{ks*2048 + t*1024}", ("A", s) if (ks, t) == (1, 1) else None))
        o.append(("s", f"s_add_u32 s{S_SA}, s{S_SA}, 4096", None))
        return o
    def dmas(s):
        o = []
        if s == N1: o.append(("s", f"s_mov_b32 s{S_SW}, 0", None))
        W = SW2 if s < N1 else SWO
        n = 4 if s < N1 else 2
        for q in range(n):
            c, u = divmod(q, 2)
            o.append(("m0", f"s_add_u32 m0, s{S_M0}, {(s % RW)*16384 + c*8192 + u*1024:#x}", None))
            o.append(("vmD", f"buffer_load_dwordx4 v{VD+q}, s[{W}:{W+3}], s{S_SW} offen lds", ("D", s) if q == n - 1 else None))
        o.append(("s", f"s_add_u32 s{S_SW}, s{S_SW}, 0x20000", None))
        return o
    def pfw(f):
        if f < N1: return [("s", f"s_add_u32 s61, s{S_FS}, {f*0x20000:#x}", None), ("vmP", f"buffer_load_dword v{VF}, v{VPW1}, s[{SW2}:{SW2+3}], s61 offen", None)]
        return [("s", f"s_mov_b32 s61, {(f-N1)*0x20000:#x}", None), ("vmP", f"buffer_load_dword v{VF}, v{VPW2}, s[{SWO}:{SWO+3}], s61 offen", None)]
    def pfa(f):
        pre = f"s_add_u32 s61, s{S_FR}, {f*4096:#x}" if f < N1 else f"s_mov_b32 s61, {(f-N1)*4096:#x}"
        return [("s", pre, None), ("vmP", f"buffer_load_dword v{VF}, v{VPA}, s[{SA}:{SA+3}], s61 offen", None)]
    PD, PB = par("k2pd", 0), par("k2pb", 4)
    fw = fa = 0
    if PD:
        for f in range(0, PB, 2):
            for kind, x, tg in pfa(f) + pfw(f):
                A(x)
                if kind.startswith("vm"): vm.issue(tg)
        fw = fa = PB
    def read(s, j, ks, p):
        hi, so = divmod(s % RW, 4)
        c, jj = divmod(j, 4)
        return f"ds_read_b64_tr_b16 {ar(wf(j, ks) + 2*p, 2)}, v{VR + hi*4 + jj} offset:{so*16384 + c*8192 + ks*4096 + p*2048}"
    for s in range(PRO):
        if s == 1 and "nocpf" not in OPT:
            A("s_getpc_b64 s[64:65]")
            A.label("L_k2_pc")
            A("s_mov_b32 s66, L_k2_spin-L_k2_pc")
            A("s_mov_b32 s67, 0x20000")
            A(f"s_lshl_b32 s60, s{S_WV}, 13")
            A(f"v_lshlrev_b32 v{T}, 3, v{VL}")
            A(f"buffer_load_dword v{T+1}, v{T}, s[64:67], s60 offen"); vm.issue()
        for kind, x, tg in dmas(s) + aloads(s):
            A(x)
            if kind == "m0": A("s_nop 0")
            if kind.startswith("vm"): vm.issue(tg)
    n = vm.need([("D", 0)]); A(f"s_waitcnt vmcnt({n})")
    A("s_barrier")
    st.mark(A)
    for j in range(3):
        for q in range(4): A(read(0, j, q >> 1, q & 1)); lg.issue(("W", 0, j))
    S = Stream(vm, lg)
    first, last = {}, {}
    for s in range(NS):
        n = 0
        for j in range(nj(s)):
            for t in ((0, 1) if j % 2 == 0 else (1, 0)):
                for ks in ((0, 1) if n % 2 == 0 else (1, 0)):
                    c = vr(acc(t, j) if s < N1 else acc2(t, j), 4)
                    cin = "0" if (s in (0, N1) and ks == (0 if n % 2 == 0 else 1)) else c
                    idx = S.add_mfma(f"v_mfma_f32_16x16x32_bf16 {c}, {ar(wf(j, ks), 4)}, {ar(af(s, ks, t), 4)}, {cin}",
                                     [("lg", ("W", s, j)), ("vm", ("A", s))])
                    first.setdefault((s, j), idx); last[(s, j)] = idx
                n += 1
    i = 0
    for j in range(3, 8):
        for q in range(4): i = S.place(i, "ds", read(0, j, q >> 1, q & 1), gives=("W", 0, j) if q == 3 else None) + 1
    BK, BK0 = par("k2bar", 1), par("k2bar0", 4)
    def isbar(s): return s < BK0 or (s - BK0) % BK == 0
    def lastbar(s):
        while not isbar(s): s -= 1
        return s
    resv = set()
    if "k2mix" not in OPT:
        for s in range(1, N1):
            for k in range(8): resv.add(first[(s, 0)] + 4 * k + 3)
    for i in resv: S.used[i] = 50
    for s in range(NS - 1):
        b = first[(s, 0)] + 1
        if isbar(s):
            k_ = s + 1
            while k_ + 1 < NS and not isbar(k_): k_ += 1
            S.gaps[b].append(("barv", None, None, [("vm", ("D", k_))]))
        for j in range(nj(s + 1)):
            i = last[(s, j)]
            if i in resv:
                for n_, q in enumerate((2, 3, 0, 1)):
                    S.place(i + (1, 1, 2, 3)[n_], "ds", read(s + 1, j, q >> 1, q & 1), gives=("W", s + 1, j) if q == 1 else None, cap=2)
                continue
            for q in (2, 3, 0, 1):
                i = S.place(i, "ds", read(s + 1, j, q >> 1, q & 1), gives=("W", s + 1, j) if q == 1 else None, cap=(2 if s == 0 else 1)) + 1
    cur = 0
    def spread(i0, i1, items):
        nonlocal cur
        i0 = max(i0, cur)
        nv = sum(1 for it in items if it[0].startswith("vm"))
        k = 0
        for kind, x, tg, *nd in items:
            nd = nd[0] if nd else []
            tgt = max(cur, i0 + (k * max(i1 - i0, 0)) // nv)
            if kind == "m0":
                fr = [r_ for r_ in sorted(resv) if r_ > cur and r_ < i1 + 2]
                if fr and len(fr) >= nv - k: tgt = fr[0]
                cur = S.place(max(cur, tgt - 1), "s", x, cap=9) + 1
            elif kind == "s":
                cur = S.place(cur, "s", x, cap=9, needs=nd)
            else:
                free = [r_ for r_ in sorted(resv) if r_ >= cur and r_ < i1 + 2]
                if free and len(free) >= nv - k:
                    cur = free[0]; resv.discard(cur)
                    S.gaps[cur].append((kind, x, tg, list(nd)))
                else:
                    cur = S.place(tgt, kind, x, gives=tg, needs=nd, cap=9)
                k += 1
    nd_, na_ = PRO, PRO
    for s in range(NS):
        b = first[(s, 0)] + 2
        e = first[(s + 1, 0)] + 1 if s + 1 < NS else len(S.mf)
        items = []
        if s == N1:
            for q in range(4):
                r0 = 32 + 8 * q
                cv = "\n".join(f"v_cvt_pk_bf16_f32 v{32+4*q+k}, v{r0+2*k}, v{r0+2*k+1}" for k in range(4))
                items.append(("s", ("s_nop 4\n" if q == 0 else "") + cv, None))
                items.append(("vmS", f"buffer_store_dwordx4 v[{32+4*q}:{35+4*q}], v{VL}, s[{SP}:{SP+3}], s{S_PS} offen offset:{q*1024} sc1", None))
        if PD:
            fw = max(fw, (nd_ + 1) & ~1); fa = max(fa, (na_ + 1) & ~1)
            for _ in range(2 if s < 6 else 1):
                if fw <= fa and fw < NS and fw < nd_ + PD + 2: items += pfw(fw); fw += 2
                elif fa < NS and fa < na_ + PD + 2: items += pfa(fa); fa += 2
        ramp = 2 if (s % par("k2ramp", 2) == 0) else 1
        for _ in range(ramp):
            if nd_ < NS and nd_ <= min(s + DW, lastbar(s) + RW - 1): items += dmas(nd_); nd_ += 1
            if na_ < NS and na_ <= s + RA - 1: items += aloads(na_); na_ += 1
        if stamp and s in (14, N1, N1 + 6, N1 + 13):
            S.gaps[first[(s, 0)] + 1].append(("s", st.text(), None, []))
        if s == XLD:
            items.append(("vmX", f"buffer_load_dwordx4 v[{XT+16}:{XT+19}], v{VB}, s[{SB}:{SB+3}], 0 offen", None))
            items.append(("s", f"s_lshl_b32 s60, s59, 7\ns_add_u32 s60, s60, {SD_RS:#x}\nv_lshlrev_b32 v{VF+3}, 2, v{l16}", None))
            for t in range(2):
                items.append(("vmX", f"buffer_load_dword v{98+t}, v{VF+3}, s[{SF}:{SF+3}], s60 offen offset:{64*t}", None))
            for q in range(4):
                items.append(("s", f"s_mov_b32 s60, {q*8*2048:#x}", None))
                items.append(("vmX", f"buffer_load_dwordx4 v[{XT+4*q}:{XT+4*q+3}], v{VX}, s[{SX}:{SX+3}], s60 offen", None))
        if s == RCV:
            for q in range(4):
                items.append(("vmX", f"buffer_load_dwordx4 v[{48+4*q}:{51+4*q}], v{VL}, s[{SP}:{SP+3}], s{S_PR} offen offset:{q*1024} sc1", None))
        if items:
            cur = max(cur, b)
            spread(b, e, items)
    for x in S.emit("k2"): A(x)
    st.mark(A)
    A(f"s_lshl_b32 s60, s{S_WV}, 14")
    A("s_add_u32 s60, s60, 8192")
    A(f"v_and_b32 v{T}, 7, v{l16}")
    A(f"v_xor_b32 v{T}, v{T}, v{g}")
    A(f"v_lshlrev_b32 v{T+1}, 8, v{l16}")
    A(f"v_add_u32 v{T+1}, s60, v{T+1}")
    A(f"v_lshl_add_u32 v{T+2}, v{T}, 4, v{T+1}")
    A(f"v_xor_b32 v{T}, 4, v{T}")
    A(f"v_lshl_add_u32 v{T+3}, v{T}, 4, v{T+1}")
    A(f"v_lshrrev_b32 v{T}, 3, v{lane}")
    A(f"v_and_b32 v{T+1}, 7, v{lane}")
    A(f"v_lshlrev_b32 v{T+1}, 1, v{T+1}")
    A(f"v_xor_b32 v{T+1}, v{T+1}, v{T}")
    A(f"v_lshlrev_b32 v{T}, 8, v{T}")
    A(f"v_add_u32 v{T}, s60, v{T}")
    A(f"v_lshl_add_u32 v{T+4}, v{T+1}, 4, v{T}")
    A(f"v_xor_b32 v{T+5}, 16, v{T+4}")
    A("s_mov_b32 s62, 0xffff0000")
    A("s_mov_b32 s61, 0")
    A.label("L_k2_back")
    A("s_waitcnt vmcnt(0)")
    A("v_max3_u32 v32, v48, v49, v50")
    A("v_max3_u32 v33, v51, v52, v53")
    for k in range(54, 64, 4):
        A(f"v_max3_u32 v32, v32, v{k}, v{k+1}")
        if k + 3 < 64: A(f"v_max3_u32 v33, v33, v{k+2}, v{k+3}")
    A("v_max_u32 v32, v32, v33")
    A("v_cmp_eq_u32 vcc, -1, v32")
    A("s_cbranch_vccnz L_k2_spin")
    A.label("L_k2_go")
    A("v_pk_mul_f32 v[98:99], v[98:99], v[98:99]")
    for i in range(4):
        A(f"v_lshlrev_b32 v{XT+20+2*i}, 16, v{XT+16+i}")
        A(f"v_and_b32 v{XT+21+2*i}, s62, v{XT+16+i}")
    for j in range(4):
        for t in range(2):
            c = acc(t, j)
            for k in range(2):
                A(f"v_lshlrev_b32 v{32+2*k}, 16, v{48 + c//2 + k}")
                A(f"v_and_b32 v{33+2*k}, s62, v{48 + c//2 + k}")
            A(f"v_pk_add_f32 v[{c}:{c+1}], v[{c}:{c+1}], v[32:33]")
            A(f"v_pk_add_f32 v[{c+2}:{c+3}], v[{c+2}:{c+3}], v[34:35]")
            o = "op_sel_hi:[1,0,1]" if t == 0 else "op_sel:[0,1,0]"
            A(f"v_pk_fma_f32 v[{c}:{c+1}], v[{c}:{c+1}], v[98:99], v[{c+128}:{c+129}] {o}")
            A(f"v_pk_fma_f32 v[{c+2}:{c+3}], v[{c+2}:{c+3}], v[98:99], v[{c+130}:{c+131}] {o}")
            A(f"ds_write_b128 v{T+2+(j&1)}, v[{c}:{c+3}] offset:{t*4096 + (j>>1)*128}")
    A("s_waitcnt lgkmcnt(0)")
    for q in range(4):
        A(f"ds_read_b128 v[{32+8*q}:{35+8*q}], v{T+4} offset:{q*2048}")
        A(f"ds_read_b128 v[{36+8*q}:{39+8*q}], v{T+5} offset:{q*2048}")
    for q in range(4):
        for i in range(4):
            A(f"v_lshlrev_b32 v{2*i}, 16, v{XT+4*q+i}")
            A(f"v_and_b32 v{2*i+1}, s62, v{XT+4*q+i}")
        for i in range(4): A(f"v_pk_add_f32 v[{2*i}:{2*i+1}], v[{2*i}:{2*i+1}], v[{XT+20+2*i}:{XT+21+2*i}]")
        A(f"s_waitcnt lgkmcnt({6-2*q})")
        for i in range(4): A(f"v_pk_add_f32 v[{2*i}:{2*i+1}], v[{2*i}:{2*i+1}], v[{32+8*q+2*i}:{33+8*q+2*i}]")
        for i in range(4): A(f"v_cvt_pk_bf16_f32 v{8+4*q+i}, v{2*i}, v{2*i+1}")
        A(f"s_mov_b32 s60, {q*8*2048:#x}")
        A(f"buffer_store_dwordx4 v[{8+4*q}:{11+4*q}], v{VX}, s[{SO}:{SO+3}], s60 offen")
    if "dbgptr" in OPT:
        A("s_load_dwordx16 s[64:79], s[0:1], 0")
        A("s_load_dwordx4 s[80:83], s[0:1], 64")
        A("s_load_dwordx2 s[84:85], s[0:1], 80")
        A("s_waitcnt lgkmcnt(0)")
        srd(A, 8, 82, 83, 64)
        for i in range(11): A(f"v_mov_b32 v{100+i}, s{64+2*i}")
        A("v_mov_b32 v111, s0")
        A("s_mov_b64 exec, 1")
        for q in range(3): A(f"buffer_store_dwordx4 v[{100+4*q}:{103+4*q}], off, s[8:11], 0 offset:{16*q}")
    st.flush(A, 54, 55, 100, f"s{S_WV}")
    A.label("L_k2_end")
    A("s_endpgm")
    A.label("L_k2_spin")
    A("s_add_u32 s61, s61, 1")
    A("s_cmp_gt_u32 s61, 0x10000")
    A("s_cbranch_scc1 L_k2_go")
    A("s_sleep 2")
    for q in range(4):
        A(f"buffer_load_dwordx4 v[{48+4*q}:{51+4*q}], v{VL}, s[{SP}:{SP+3}], s{S_PR} offen offset:{q*1024} sc1")
    A("s_branch L_k2_back")

def main():
    global STMOD
    ap = argparse.ArgumentParser()
    ap.add_argument("--stamp", action="store_true")
    ap.add_argument("-o", default=None)
    ap.add_argument("--opt", default="")
    ap.add_argument("--par", default="")
    ap.add_argument("--stmod", default="sc1")
    a = ap.parse_args()
    OPT.update(x for x in a.opt.split(",") if x)
    PAR.update(dict(x.split("=") for x in a.par.split(",") if x))
    STMOD = (" " + a.stmod.replace("+", " ")) if a.stmod else ""
    A = Asm()
    hdr = open("cdna_kernels/%s.s.ref" % NAME).read().split("\n")
    for line in hdr:
        if line.startswith(";") and "@launch" not in line and "Override" not in line and "grid=ceil" not in line:
            A.raw(line)
    A.raw("; @launch kernel=gemm1_kernel grid=(256,1,1) block=(256,1,1) lds=163840")
    A.raw("; @launch kernel=gemm2_kernel grid=(256,1,1) block=(256,1,1) lds=131072")
    A.raw('.amdgcn_target "amdgcn-amd-amdhsa--gfx950"\n.text')
    gen_k1(A, "gemm1_kernel", a.stamp)
    gen_k2(A, "gemm2_kernel", a.stamp)
    if not any(o.startswith(('k1no', 'k2no')) for o in OPT): check_hazards(A.L)
    A.raw('.section .rodata,"a"')
    kernel_desc(A, "gemm1_kernel", 512, 256)
    kernel_desc(A, "gemm2_kernel", 160 + 176, 160)
    out = a.o or "cdna_kernels/%s.s" % NAME
    open(out, "w").write(A.text())

if __name__ == "__main__":
    main()
```

```python
import sys, argparse

NAME = "parallel_sum__sliding_local_dilated__dense_activation_squared_relu__prompt"

WS_A2 = 4 << 20
A2_BYTES = 2048 * 4608 * 2
WS_PART = 32 << 20
WS_SIDE = 48 << 20
SD_FLAG, SD_Q, SD_RS, SD_P = 0, 0x10000, 0x20000, 0x40000
SD_BYTES = SD_P + 416 * 1024
WS_STAMP = 64 << 20

OPT = set()
PAR = {}
def par(k, d): return int(PAR.get(k, d))

class Asm:
    def __init__(self): self.L = []
    def __call__(self, s):
        for line in s.split("\n"):
            t = line.strip()
            self.L.append(t if t.endswith(":") else "  " + t)
    def label(self, s): self.L.append(s + ":")
    def raw(self, s): self.L.append(s)
    def text(self): return "\n".join(self.L) + "\n"

def vr(b, n=1, f="v"): return f"{f}{b}" if n == 1 else f"{f}[{b}:{b+n-1}]"
def ar(b, n=1): return vr(b, n, "a")
def sq(b): return f"s[{b}:{b+3}]"

def kernel_head(A, name):
    A.raw(f".globl {name}\n.p2align 8\n.type {name},@function\n{name}:")

def kernel_desc(A, name, nvgpr, accum, nsgpr=102):
    A.raw(f".p2align 6\n.amdhsa_kernel {name}\n  .amdhsa_next_free_vgpr {nvgpr}\n  .amdhsa_next_free_sgpr {nsgpr}\n"
          f"  .amdhsa_accum_offset {accum}\n  .amdhsa_group_segment_fixed_size 0\n  .amdhsa_kernarg_size 88\n"
          f"  .amdhsa_user_sgpr_count 2\n  .amdhsa_user_sgpr_kernarg_segment_ptr 1\n  .amdhsa_system_sgpr_workgroup_id_x 1\n"
          f"  .amdhsa_float_denorm_mode_32 3\n.end_amdhsa_kernel")

def srd(A, d, lo, hi, nbytes, add=0):
    if add:
        A(f"s_add_u32 s{d}, s{lo}, {add:#x}")
        A(f"s_addc_u32 s{d+1}, s{hi}, 0")
    else:
        A(f"s_mov_b32 s{d}, s{lo}")
        A(f"s_mov_b32 s{d+1}, s{hi}")
    if nbytes is not None: A(f"s_mov_b32 s{d+2}, {nbytes:#x}")
    A(f"s_mov_b32 s{d+3}, 0x20000")

class Stamp:
    def __init__(self, on, kidx): self.on, self.kidx, self.n = on, kidx, 0
    def text(self):
        if not self.on: return None
        t = f"s_memrealtime s[{68+2*self.n}:{69+2*self.n}]\ns_memtime s[{84+2*self.n}:{85+2*self.n}]"
        self.n += 1
        assert self.n <= 8
        return t
    def mark(self, A):
        t = self.text()
        if t: A(t)
    def flush(self, A, ws_lo, ws_hi, vtmp, s_wave):
        if not self.on: return
        self.mark(A)
        A("s_waitcnt lgkmcnt(0)")
        A(f"s_lshl_b32 s100, s2, 3")
        A(f"s_add_u32 s100, s100, {s_wave}")
        A(f"s_lshl_b32 s100, s100, 6")
        srd(A, 8, ws_lo, ws_hi, 0x100000, WS_STAMP + self.kidx * 0x40000)
        for i in range(16):
            A(f"v_mov_b32 v{vtmp+i}, s{68+2*i}" if i % 8 < self.n else f"v_mov_b32 v{vtmp+i}, 0")
        A(f"v_mov_b32 v{vtmp+16}, s100")
        A("s_mov_b64 exec, 1")
        for q in range(4):
            A(f"buffer_store_dwordx4 v[{vtmp+4*q}:{vtmp+4*q+3}], v{vtmp+16}, s[8:11], 0 offen offset:{16*q}")

class Score:
    def __init__(self, maxn):
        self.n = 0; self.idx = {}; self.done = 0; self.maxn = maxn
    def issue(self, tag=None):
        self.n += 1
        if tag is not None: self.idx[tag] = self.n
        assert self.n - self.done <= 63 or self.maxn == 15, "too many outstanding"
    def need(self, tags, slack=None):
        y = max(self.idx[t] for t in tags)
        if y <= self.done: return None
        N = self.n - y
        if slack is not None: N = min(N, slack)
        N = min(N, self.maxn)
        self.done = self.n - N
        return N
    def drain(self): self.done = self.n
    def skip(self, tag=None):
        if tag is not None: self.idx[tag] = 0

LG_SLACK = 8
class Stream:
    def __init__(self, vm, lg):
        self.mf = []; self.gaps = []; self.used = []; self.vm, self.lg = vm, lg
    def add_mfma(self, text, needs=()):
        self.mf.append((text, list(needs))); self.gaps.append([]); self.used.append(0)
        return len(self.mf) - 1
    def place(self, i0, kind, text, gives=None, needs=(), cap=1, spill=False):
        i = i0
        while i < len(self.mf) and self.used[i] >= cap: i += 1
        if i >= len(self.mf):
            assert spill, "no free gap"
            i = len(self.mf) - 1
        self.used[i] += 1
        self.gaps[i].append((kind, text, gives, list(needs)))
        return i
    def waits(self, needs, out, lgz=False):
        w = []
        lt = [t for c, t in needs if c == "lg"]; vt = [t for c, t in needs if c == "vm"]
        if lgz:
            if self.lg.done < self.lg.n: w.append("lgkmcnt(0)")
            self.lg.drain()
        elif lt:
            n = self.lg.need(lt, slack=LG_SLACK)
            if n is not None: w.append(f"lgkmcnt({n})")
        if vt:
            n = self.vm.need(vt)
            if n is not None: w.append(f"vmcnt({n})")
        if w: out.append("s_waitcnt " + " ".join(w))
    def emit(self, pfx):
        out = []
        for (text, needs), gap in zip(self.mf, self.gaps):
            self.waits(needs, out)
            if pfx + "nomfma" not in OPT: out.append(text)
            for kind, t, gives, nd in gap:
                if kind == "ds" and pfx + "nords" in OPT: self.lg.skip(gives); continue
                if kind == "vmA" and pfx + "noA" in OPT: self.vm.skip(gives); continue
                if kind == "vmD" and pfx + "noD" in OPT: self.vm.skip(gives); continue
                if kind in ("bar", "barv"):
                    self.waits(nd, out, lgz=(kind == "bar"))
                    out.append("s_barrier")
                    continue
                self.waits(nd, out)
                if kind == "ds": self.lg.issue(gives)
                if kind.startswith("vm"): self.vm.issue(gives)
                out.append(t)
        return out

def check_hazards(lines):
    import re
    def regs(tok):
        tok = tok.strip().strip("|").lstrip("-")
        m = re.fullmatch(r"([va])(\d+)", tok)
        if m: return {(m.group(1), int(m.group(2)))}
        m = re.fullmatch(r"([va])\[(\d+):(\d+)\]", tok)
        if m: return {(m.group(1), i) for i in range(int(m.group(2)), int(m.group(3)) + 1)}
        return set()
    hist = []
    pos = 0
    for ln in lines:
        t = ln.strip()
        if not t or t.endswith(":") or t.startswith(";") or t.startswith("."): continue
        mn = t.split()[0]
        ops = [o.split()[0] if o.split() else o for o in t[len(mn):].split(",")]
        R = [regs(o) for o in ops]
        if mn == "s_nop":
            pos += int(ops[0]) + 1; continue
        is_mfma = mn.startswith("v_mfma"); is_valu = mn.startswith("v_") and not is_mfma
        is_mem = mn.startswith("buffer_") or mn.startswith("ds_")
        if is_mfma or is_valu or is_mem:
            allr = set().union(*R) if R else set()
            for kind, wr, sc, p in hist[-24:]:
                d = pos - p - 1
                if kind == "mfma":
                    if is_mfma:
                        if (R[1] | R[2]) & wr and d < 8: raise Exception(f"hazard MFMA->MFMA AB: {t}")
                        if R[3] & wr and R[3] != wr and d < 6: raise Exception(f"hazard MFMA->MFMA C overlap: {t}")
                    else:
                        if allr & wr and d < 8: raise Exception(f"hazard MFMA->{mn} d={d}: {t}")
                        if is_valu and R[0] & sc and d < 3: raise Exception(f"hazard MFMA srcC WAR: {t}")
                elif kind == "valu":
                    if is_mfma and (R[1] | R[2] | R[3]) & wr and d < 2: raise Exception(f"hazard VALU->MFMA: {t}")
                    if is_valu and ("dpp" in mn or "permlane" in mn) and allr & wr and d < 2: raise Exception(f"hazard VALU->DPP: {t}")
                    if mn.startswith("v_readfirstlane") and R[1] & wr and d < 1: raise Exception(f"hazard VALU->readlane: {t}")
                elif kind == "trans":
                    if is_mfma and (R[1] | R[2] | R[3]) & wr and d < 2: raise Exception(f"hazard VALU->MFMA: {t}")
                    if is_valu and set().union(*R[1:]) & wr and d < 1: raise Exception(f"hazard trans->VALU: {t}")
                elif kind == "store":
                    if is_valu and R[0] & wr and d < 2: raise Exception(f"hazard store data WAR: {t}")
            if is_mfma: hist.append(("mfma", R[0], R[3], pos))
            elif is_valu:
                wr = set(R[0])
                if "swap" in mn: wr |= R[1]
                tr = any(mn.startswith(x) for x in ("v_exp", "v_rcp", "v_rsq", "v_sqrt", "v_log"))
                hist.append(("trans" if tr else "valu", wr, set(), pos))
            elif mn.startswith("buffer_store_dwordx4"): hist.append(("store", R[0], set(), pos))
        pos += 1

RING0 = 2048
S_SRDA, S_SRDW, S_SRDO, S_SRDS, S_SRDB, S_SRDC, S_SRDP, S_SRDT = 4, 8, 12, 16, 28, 32, 36, 40
S_C, S_SOFW, S_SOFW2, S_M0B, S_M0A, S_W, S_MB, S_NT = 20, 21, 22, 23, 24, 25, 26, 27
S_CF, S_CHF = 44, 45
S_X0 = 46
S_CODE = 48
S_AROW = 62
V_AD, V_AR, V_L16, V_D, V_R, V_RH, V_T = 224, 226, 228, 229, 232, 240, 244
A_CS, A_P, A_Q, A_SEL, A_DUM, A_RAW, A_ONE = 136, 136, 200, 220, 224, 228, 244
A_TAG, A_NEG = 226, 248

RSQ, RSK = 212, 216

class K1Var:
    def __init__(self, kind):
        self.kind = kind
        if kind == "w1": self.NJ, self.NT, self.CH, self.pitch = 14, 4, 7168, 7168
        else: self.NJ, self.NT, self.CH, self.pitch = 12, 5, 6144, 6144
        self.SL = 4 * self.CH
        self.ASL = self.NT * 2048
        self.ABASE = RING0 + 3 * self.SL
        self.AA = 56
    def wfrag(self, j, ks): return (j % (self.NJ // 2)) * 8 + ks * 4
    def afrag(self, st, ks, t): return self.AA + ((st * 2 + ks) * self.NT + t) * 4
    def acc(self, t, j):
        if t < 4: return (j * 4 + t) * 4
        return 192 + (0 if j == 4 else 4)
    def groups(self):
        return [(j, [0, 1, 2, 3] + ([4] if self.kind == "qkv" and j in (4, 8) else [])) for j in range(self.NJ)]
    def mm(self, t, j, w, x, zero=False):
        c = vr(self.acc(t, j), 4)
        cin = "0" if zero else c
        if self.kind == "qkv" and j >= 8: w, x = x, w
        return f"v_mfma_f32_16x16x32_bf16 {c}, {w}, {x}, {cin}"
    def mfma(self, s, ks, t, j, zero=False):
        return self.mm(t, j, ar(self.wfrag(j, ks), 4), ar(self.afrag(s % 2, ks, t), 4), zero)
    def corr(self, t, j): return self.mm(t, j, ar(A_P + 4 * j, 4), ar(A_Q + 4 * t, 4))
    def read(self, s, ks, j, p):
        st, so = divmod(s % 3, 2)
        base = RING0 + so * self.SL + ks * 2 * self.CH
        d = ar(self.wfrag(j, ks) + 2 * p, 2)
        if j < 12:
            b, jj = divmod(j, 4)
            return f"ds_read_b64_tr_b16 {d}, v{V_R + st*4 + jj} offset:{base + b*1024 + p*512}"
        return f"ds_read_b64_tr_b16 {d}, v{V_RH + st*2 + (j-12)} offset:{base + p*256}"
    def aread(self, s, ks, t):
        return f"ds_read_b128 {ar(self.afrag(s % 2, ks, t), 4)}, v{V_AR+ks} offset:{(s % 2)*self.ASL + t*2048}"
    def admas(self, s, t):
        out = []
        for u in range(2):
            tgt = (s % 2) * self.ASL + t * 2048 + u * 1024
            out.append((f"s_add_u32 m0, s{S_M0A}, {tgt + 2048 - s*128:#x}",
                        f"buffer_load_dwordx4 v{V_AD+u}, {sq(S_SRDA)}, s{S_AROW+t} offen offset:{s*128} lds"))
        return out
    def dmas(self, s):
        out = []
        base = RING0 + (s % 3) * self.SL
        W = sq(S_SRDW)
        for rg in range(2):
            for b in range(3):
                tgt = base + rg * 3072 + b * 1024
                if self.kind == "w1": imm, so = b * 128, S_SOFW
                else: imm, so = (b * 2048, S_SOFW) if b < 2 else (0, S_SOFW2)
                out.append((f"s_add_u32 m0, s{S_M0B}, {tgt - imm:#x}",
                            f"buffer_load_dwordx4 v{V_D+rg}, {W}, s{so} offen offset:{imm} lds"))
        if self.kind == "w1":
            out.append((f"s_add_u32 m0, s{S_M0B}, {base + 6144:#x}",
                        f"buffer_load_dwordx4 v{V_D+2}, {W}, s{S_SOFW} offen lds"))
        return out
    def sof_adv(self):
        r = [f"s_add_u32 s{S_SOFW}, s{S_SOFW}, {64*self.pitch:#x}"]
        if self.kind == "qkv": r.append(f"s_add_u32 s{S_SOFW2}, s{S_SOFW2}, {64*self.pitch:#x}")
        return r

def xlane_sum2(A, a, b):
    for r in (8, 4, 2, 1):
        A("s_nop 0")
        for v in (a, b): A(f"v_add_f32_dpp v{v}, v{v}, v{v} row_ror:{r} row_mask:0xf bank_mask:0xf")
    for sw in ("v_permlane16_swap_b32", "v_permlane32_swap_b32"):
        for v in (a, b): A(f"v_mov_b32 v{v+1}, v{v}")
        A("s_nop 0")
        for v in (a, b): A(f"{sw} v{v}, v{v+1}")
        for v in (a, b): A(f"v_add_f32 v{v}, v{v}, v{v+1}")

def k1_variant(A1, A2_, V, stamp):
    A = A1
    kind = V.kind
    st = Stamp(stamp, 1); st.n = 1
    NS, H, CH = 16, V.NJ // 2, V.CH
    lane, l16, g = 100, 101, 102
    T = 104
    X = S_X0
    if kind == "w1":
        A(f"s_mul_i32 s{X}, s{S_NT}, 448")
        A(f"s_and_b32 s{X+1}, s{S_NT}, 1")
        A(f"s_lshl_b32 s{X+2}, s{X+1}, 6")
        A(f"s_add_u32 s{S_CF}, s{X}, s{X+2}")
        A(f"s_xor_b32 s{X+2}, s{X+1}, 1")
        A(f"s_mul_i32 s{X+2}, s{X+2}, 384")
        A(f"s_add_u32 s{S_CHF}, s{X}, s{X+2}")
    else:
        A(f"s_lshl_b32 s{S_CF}, s{S_NT}, 7")
    r, pc, x, y = T, T + 1, T + 2, T + 3
    A(f"v_lshrrev_b32 v{r}, 3, v{lane}")
    A(f"v_bfe_u32 v{x}, v{lane}, 1, 2")
    A(f"v_bfe_u32 v{y}, v{lane}, 4, 1")
    A(f"v_xor_b32 v{x}, v{x}, v{y}")
    A(f"v_and_b32 v{pc}, 1, v{lane}")
    A(f"v_mul_u32_u24 v{r}, {V.pitch}, v{r}")
    A(f"v_lshl_add_u32 v{y}, v{pc}, 4, v{r}")
    A(f"s_mul_i32 s{X+3}, s{S_W}, {16*V.pitch}")
    A(f"s_add_u32 s{X+4}, s{X+3}, s{S_CF}")
    A(f"v_lshl_add_u32 v{V_D}, v{x}, 5, v{y}")
    A(f"v_add_u32 v{V_D}, s{X+4}, v{V_D}")
    A(f"v_xor_b32 v{x}, 2, v{x}")
    A(f"v_lshl_add_u32 v{V_D+1}, v{x}, 5, v{y}")
    A(f"s_add_u32 s{X+4}, s{X+4}, {8*V.pitch}")
    A(f"v_add_u32 v{V_D+1}, s{X+4}, v{V_D+1}")
    if kind == "w1":
        A(f"v_lshrrev_b32 v{T+4}, 2, v{lane}")
        A(f"v_mul_u32_u24 v{T+4}, {V.pitch}, v{T+4}")
        A(f"v_bfe_u32 v{T+5}, v{lane}, 1, 1")
        A(f"v_bfe_u32 v{T+6}, v{lane}, 5, 1")
        A(f"v_xor_b32 v{T+5}, v{T+5}, v{T+6}")
        A(f"v_lshl_add_u32 v{T+4}, v{T+5}, 5, v{T+4}")
        A(f"v_lshl_add_u32 v{T+4}, v{pc}, 4, v{T+4}")
        A(f"s_add_u32 s{X+4}, s{X+3}, s{S_CHF}")
        A(f"v_add_u32 v{V_D+2}, s{X+4}, v{T+4}")
    A(f"s_mul_i32 s{S_M0B}, s{S_W}, {CH}")
    A(f"s_mul_i32 s{S_M0A}, s{S_W}, {2*V.ASL}")
    A(f"s_add_u32 s{S_M0A}, s{S_M0A}, {V.ABASE - 2048}")
    VPW, VPX = V_T + 4, V_T + 5
    rounds = [x.split(":") for x in PAR.get("k1r", "p:0:4").split("+") if x]
    if rounds:
        A(f"v_lshlrev_b32 v{VPW}, 7, v{lane}")
        A(f"v_lshrrev_b32 v{VPX}, 1, v{lane}")
        A(f"v_lshlrev_b32 v{VPX}, 7, v{VPX}")
        A(f"v_lshl_add_u32 v{VPX}, v{pc}, 11, v{VPX}")
        A(f"s_and_b32 s{S_C}, s2, 127")
        A(f"s_lshl_b32 s{S_C}, s{S_C}, 2")
        A(f"s_add_u32 s{S_C}, s{S_C}, s{S_W}")
    def pfr(s0, n):
        nl = V.pitch // 128 * n // 8
        def ex(k):
            v = (1 << k) - 1
            return f"s_mov_b32 exec_lo, {v & 0xffffffff:#x}\ns_mov_b32 exec_hi, {v >> 32:#x}\n"
        w_ = (f"s_mul_i32 s3, s{S_C}, {nl*128}\ns_add_u32 s3, s3, {64*s0*V.pitch:#x}\n" + ex(nl) +
              f"buffer_load_dword a{A_DUM}, v{VPW}, {sq(S_SRDW)}, s3 offen\ns_mov_b64 exec, -1")
        x_ = ex(2 * n) + f"buffer_load_dword a{A_DUM}, v{VPX}, {sq(S_SRDA)}, s67 offen offset:{s0*128}\ns_mov_b64 exec, -1"
        return [w_, x_]
    VSL, VSX = 200, 201
    slow = [x.split(":") for x in PAR.get("k1slow" if kind == "qkv" else "k1sloww", "p:0:4+r:4:12+6:10:6" if kind == "qkv" else "").split("+") if x]
    slowx = PAR.get("k1slowx", "")
    S_SLOT = 55
    LPR = 4 if kind == "qkv" else 2
    if slow:
        A(f"v_lshrrev_b32 v{VSL}, {2 if kind == 'qkv' else 1}, v{lane}")
        A(f"v_mul_u32_u24 v{VSL}, {V.pitch}, v{VSL}")
        A(f"s_bfe_u32 s{X+5}, s2, 0x20001")
        if kind == "qkv":
            A(f"v_and_b32 v{T+4}, 3, v{lane}")
            A(f"v_min_u32 v{T+4}, 2, v{T+4}")
            A(f"v_lshl_add_u32 v{VSL}, v{T+4}, 11, v{VSL}")
            A(f"s_lshl_b32 s{X+5}, s{X+5}, 9")
            A(f"s_add_u32 s{X+5}, s{X+5}, 384")
            A(f"s_bitcmp1_b32 s2, 1")
            A(f"s_cselect_b32 s{X+5}, 0x7000000, s{X+5}")
        else:
            A(f"v_lshl_add_u32 v{VSL}, v{pc}, 10, v{VSL}")
            A(f"s_lshl_b32 s{X+5}, s{X+5}, 11")
            A(f"s_min_u32 s{X+5}, s{X+5}, 5120")
            A(f"s_add_u32 s{X+5}, s{X+5}, 384")
        A(f"v_add_u32 v{VSL}, s{X+5}, v{VSL}")
        A(f"s_bfe_u32 s{S_SLOT}, s2, 0x40003")
        A(f"s_lshl_b32 s{S_SLOT}, s{S_SLOT}, 2")
        A(f"s_add_u32 s{S_SLOT}, s{S_SLOT}, s{S_W}")
    if slowx:
        A(f"v_lshlrev_b32 v{VSX}, 10, v{lane}")
        A(f"s_lshr_b32 s{X+5}, s2, 3")
        A(f"s_lshl_b32 s{X+5}, s{X+5}, 2")
        A(f"s_add_u32 s{X+5}, s{X+5}, s{S_W}")
        A(f"s_lshl_b32 s{X+5}, s{X+5}, 14")
        A(f"s_and_b32 s{X+6}, s2, 1")
        A(f"s_lshl_b32 s{X+6}, s{X+6}, 21")
        A(f"s_add_u32 s{X+5}, s{X+5}, s{X+6}")
        A(f"v_add_u32 v{VSX}, s{X+5}, v{VSX}")
    def slowpf(s0, n):
        v = (1 << (LPR * n)) - 1
        return (f"s_mul_i32 s3, s{S_SLOT}, {n*V.pitch}\ns_add_u32 s3, s3, {64*s0*V.pitch:#x}\n"
                f"s_mov_b32 exec_lo, {v & 0xffffffff:#x}\ns_mov_b32 exec_hi, {v >> 32:#x}\n"
                f"buffer_load_dword a{A_DUM}, v{VSL}, {sq(S_SRDW)}, s3 offen\ns_mov_b64 exec, -1")
    def pro_R(where):
        for wh, s0, n in slow:
            if wh == where: A1(slowpf(int(s0), int(n))); vm.issue()
        if slowx == where:
            A1(f"s_mov_b64 exec, 0xffff\nbuffer_load_dword a{A_DUM}, v{VSX}, {sq(S_SRDA)}, 0 offen offset:384\ns_mov_b64 exec, -1"); vm.issue()
        for wh, s0, n in rounds:
            if wh == where:
                for b_ in pfr(int(s0), int(n)): A1(b_); vm.issue()
    A("s_waitcnt lgkmcnt(0)")
    if "promarks" in OPT: st.mark(A)
    A(f"s_mov_b32 s{S_SRDA+2}, {4 << 20:#x}"); A(f"s_mov_b32 s{S_SRDA+3}, 0x20000")
    if kind == "w1": srd(A, S_SRDW, 56, 57, 1024 * 7168)
    else: srd(A, S_SRDW, 60, 61, 1024 * 6144)
    vm, lg = Score(63), Score(15)
    def pro_A(s):
        for t in range(V.NT):
            for u, (m0, d) in enumerate(V.admas(s, t)):
                A1(m0); A1("s_nop 0"); A1(d); vm.issue(("A", s, t) if u == 1 else None)
    def pro_W(s):
        dm = V.dmas(s)
        for n, (m0, d) in enumerate(dm):
            A1(m0); A1("s_nop 0"); A1(d); vm.issue(("D", s) if n == len(dm) - 1 else None)
        for x_ in V.sof_adv(): A1(x_)
    if kind == "w1":
        A(f"s_or_b32 s3, s2, s{S_W}")
        A("s_cmp_lg_u32 s3, 0")
        A("s_cbranch_scc1 L_k1_notag")
        srd(A, S_SRDC, 12, 13, 8)
        A("s_or_b32 s18, s18, 1")
        A(f"v_mov_b32 v{T+4}, s18"); A(f"v_mov_b32 v{T+5}, s19")
        A(f"buffer_store_dwordx2 v[{T+4}:{T+5}], v{V_L16}, {sq(S_SRDC)}, 0 offen sc1")
        A.label("L_k1_notag")
    pro_R("p")
    pro_W(0); pro_A(0)
    pro_R("q")
    if "promarks" in OPT: st.mark(A)
    if "late1" not in OPT: pro_W(1); pro_A(1)
    else: pro_W(1)
    pro_R("r")
    if "promarks" in OPT: st.mark(A)
    A(f"s_branch L_k1_main_{kind}")
    A = A2_
    A.label(f"L_k1_main_{kind}")
    WSL, WSH = 14, 15
    A(f"s_mov_b32 s100, s{WSL}"); A(f"s_mov_b32 s101, s{WSH}")
    srd(A, S_SRDC, 12, 13, 8)
    srd(A, S_SRDT, 100, 101, None, WS_SIDE + SD_FLAG)
    A(f"s_cmp_eq_u32 s{S_W}, 0")
    A(f"s_cselect_b32 s{S_SRDT+2}, 0x8000, 0")
    srd(A, S_SRDS, 100, 101, SD_BYTES, WS_SIDE)
    srd(A, S_SRDO, 100, 101, A2_BYTES, WS_A2)
    if kind == "w1":
        srd(A, S_SRDB, 58, 59, None)
        A(f"s_cmp_eq_u32 s{S_MB}, 0")
        A(f"s_cselect_b32 s{S_SRDB+2}, 7168, 0")
    A("s_mov_b32 s0, s38"); A("s_mov_b32 s1, s39")
    A(f"s_mov_b32 s{S_SRDP+2}, {3584*2048:#x}")
    A(f"s_mov_b32 s{S_SRDP+3}, 0x20000")
    A("s_mov_b32 s58, s100"); A("s_mov_b32 s59, s101")
    A(f"s_lshl_b32 s100, s2, 2")
    A(f"s_add_u32 s100, s100, s{S_W}")
    VCA, VCS, VB1, VDC, VW = V_T, V_T + 1, V_T + 2, V_T + 4, V_T + 8
    A(f"v_and_b32 v{T+4}, 7, v{lane}")
    A(f"v_lshl_add_u32 v{VCA}, v{T+4}, 4, v{r}")
    if kind == "w1":
        A(f"s_lshl_b32 s{X+5}, s{S_W}, 7")
        A(f"s_add_u32 s{X+5}, s{X+5}, s{X}")
        A(f"v_lshlrev_b32 v{VB1}, 4, v{T+4}")
        A(f"v_lshl_add_u32 v{VB1}, v{g}, 3, v{VB1}")
        A(f"v_add_u32 v{VB1}, s{X+5}, v{VB1}")
        A(f"s_lshr_b32 s{X+6}, s{X+5}, 5")
        A(f"s_add_u32 s{X+6}, s{X+6}, 192")
    else:
        A(f"s_min_u32 s{X+5}, s{S_W}, 2")
        A(f"s_lshl_b32 s{X+5}, s{X+5}, 11")
        A(f"s_add_u32 s{X+5}, s{X+5}, s{S_CF}")
        A(f"v_mov_b32 v{VB1}, 0"); A(f"v_mov_b32 v{VB1+1}, 0"); vm.skip("B1")
        A(f"s_lshr_b32 s{X+6}, s{X+5}, 5")
    A(f"s_and_b32 s{X+7}, s{S_MB}, 3")
    A(f"s_lshl_b32 s{X+7}, s{X+7}, 1")
    A(f"s_lshr_b32 s3, s{S_MB}, 2")
    A(f"s_add_u32 s{X+7}, s{X+7}, s3")
    A(f"s_mul_i32 s{X+7}, s{X+7}, {128*V.pitch:#x}")
    A(f"s_add_u32 s{X+7}, s{X+7}, s{X+5}")
    S_CSL, S_CSS = X + 7, X + 6
    A(f"s_lshl_b32 s{S_CSS}, s{S_CSS}, 10")
    A(f"s_lshr_b32 s{X+5}, s{S_MB}, 1")
    A(f"s_lshl_b32 s{X+5}, s{X+5}, 8")
    A(f"s_add_u32 s{S_CSS}, s{S_CSS}, s{X+5}")
    A(f"s_and_b32 s{X+5}, s{S_MB}, 1")
    A(f"s_lshl_b32 s{X+5}, s{X+5}, 3")
    A(f"s_add_u32 s{S_CSS}, s{S_CSS}, s{X+5}")
    A(f"s_add_u32 s{S_CSS}, s{S_CSS}, {SD_P:#x}")
    A(f"v_lshrrev_b32 v{T+5}, 1, v{T+4}")
    A(f"v_lshlrev_b32 v{VCS}, 10, v{T+5}")
    A(f"v_lshl_add_u32 v{VCS}, v{pc}, 7, v{VCS}")
    A(f"v_lshl_add_u32 v{VCS}, v{g}, 6, v{VCS}")
    if kind == "w1":
        A(f"s_cmp_eq_u32 s{S_W}, 3")
        A(f"s_cselect_b32 s{X+5}, 0x2c, 0x28")
    else:
        A(f"s_mov_b32 s{X+5}, 0x28")
    A(f"v_and_b32 v{T+5}, s{X+5}, v{lane}")
    A(f"v_lshl_add_u32 v{VCS}, v{T+5}, 24, v{VCS}")
    A(f"v_lshlrev_b32 v{T+5}, 4, v{pc}")
    A(f"v_mov_b32 v{T+6}, 0x3f80")
    A(f"v_lshlrev_b32 v{T+6}, v{T+5}, v{T+6}")
    A(f"v_lshrrev_b32 v{T+5}, 1, v{l16}")
    for q in range(4):
        A(f"v_cmp_eq_u32 vcc, {q}, v{T+5}")
        A("s_nop 1")
        A(f"v_cndmask_b32 v{T+7}, 0, v{T+6}, vcc")
        A(f"v_accvgpr_write_b32 a{A_SEL+q}, v{T+7}")
    A(f"v_xor_b32 v{T+4}, v{T+5}, v{g}")
    A(f"v_lshlrev_b32 v{T+5}, 7, v{l16}")
    A(f"v_add_u32 v{T+5}, s{S_M0A}, v{T+5}")
    A(f"v_add_u32 v{T+5}, 2048, v{T+5}")
    A(f"v_lshl_add_u32 v{V_AR}, v{T+4}, 4, v{T+5}")
    A(f"v_xor_b32 v{T+4}, 4, v{T+4}")
    A(f"v_lshl_add_u32 v{V_AR+1}, v{T+4}, 4, v{T+5}")
    rp, c, sw, b = T + 4, T + 5, T + 6, T + 7
    A(f"v_bfe_u32 v{rp}, v{lane}, 2, 2")
    A(f"v_and_b32 v{c}, 3, v{lane}")
    A(f"v_bfe_u32 v{sw}, v{lane}, 3, 2")
    if kind == "qkv": A(f"v_xor_b32 v{sw}, s{S_W}, v{sw}")
    A(f"v_lshrrev_b32 v{b}, 5, v{lane}")
    A(f"v_mul_u32_u24 v{b}, {CH}, v{b}")
    A(f"v_lshl_add_u32 v{b}, v{c}, 3, v{b}")
    A(f"v_bfe_u32 v{T+8}, v{lane}, 4, 1")
    A(f"v_mul_u32_u24 v{T+9}, 3072, v{T+8}")
    A(f"v_lshl_add_u32 v{T+9}, v{rp}, 7, v{T+9}")
    A(f"v_add_u32 v{T+9}, v{T+9}, v{b}")
    for jj in range(4):
        A(f"v_xor_b32 v{T+10}, {jj}, v{sw}")
        A(f"v_lshl_add_u32 v{V_R+jj}, v{T+10}, 5, v{T+9}")
        A(f"v_add_u32 v{V_R+4+jj}, {2*V.SL}, v{V_R+jj}")
    if kind == "w1":
        A(f"v_lshl_add_u32 v{T+9}, v{T+8}, 3, v{rp}")
        A(f"v_lshl_add_u32 v{T+9}, v{T+9}, 6, v{b}")
        A(f"v_add_u32 v{T+9}, 6144, v{T+9}")
        for jj in range(2):
            A(f"v_xor_b32 v{T+10}, {jj}, v{T+8}")
            A(f"v_lshl_add_u32 v{V_RH+jj}, v{T+10}, 5, v{T+9}")
            A(f"v_add_u32 v{V_RH+2+jj}, {2*V.SL}, v{V_RH+jj}")
    S_HI = X + 8
    A(f"s_mov_b32 s{S_HI}, 0xffff0000")
    for q in range(4): A(f"v_accvgpr_write_b32 a{A_NEG+q}, -1")
    A(f"v_mov_b32 v{T+4}, 0x3f803f80")
    for q in range(4): A(f"v_accvgpr_write_b32 a{A_ONE+q}, v{T+4}")
    A(f"v_cmp_eq_u32 vcc, 1, v{pc}")
    if "promarks" in OPT: st.mark(A)
    n = vm.need([("D", 0), ("A", 0, V.NT - 1)])
    A(f"s_waitcnt vmcnt({n})")
    if "promarks" in OPT: st.mark(A)
    A("s_barrier")
    st.mark(A)
    for ks in range(2): A(V.aread(0, ks, 0)); lg.issue(("AF", 0, 0))
    for q in range(4): A(V.read(0, q >> 1, 0, q & 1)); lg.issue(("W", 0, 0))
    for t in range(1, V.NT):
        for ks in range(2): A(V.aread(0, ks, t)); lg.issue(("AF", 0, t))
    S = Stream(vm, lg)
    groups = V.groups()
    first, last, fin = {}, {}, {}
    for s in range(NS):
        n = 0
        for j, ts in groups:
            ts = list(ts) if j % 2 == 0 else list(reversed(ts))
            if 4 in ts: ts = [4, 0, 1, 2, 3]
            for t in ts:
                kk = (0, 1) if n % 2 == 0 else (1, 0)
                for ks in kk:
                    needs = [("lg", ("W", s, j)), ("lg", ("AF", s, t))]
                    idx = S.add_mfma(V.mfma(s, ks, t, j, zero=(s == 0 and ks == kk[0])), needs)
                    first.setdefault((s, j), idx); last[(s, j)] = idx
                    if s == NS - 1 and ks == kk[0]:
                        S.add_mfma(V.corr(t, j), [("vm", ("P", j)), ("vm", ("Q", t))])
                fin[(t, j)] = idx
                n += 1
    i = 0
    for j in range(1, H):
        for q in range(4):
            i = S.place(i, "ds", V.read(0, q >> 1, j, q & 1), gives=("W", 0, j) if q == 3 else None) + 1
    bar = {}
    SIG0, SIG, POLL, CHK = par("k1sig0", 5), par("k1sig", 8), par("k1poll", 12), par("k1chk", 13)
    for s in range(NS):
        if s + 1 < NS:
            bar[s] = last[(s, H)]
            S.gaps[bar[s]].append(("bar", None, None, [("vm", ("D", s + 1))] + ([("vm", "CS")] if s == SIG else []) + ([("vm", "ST")] if s == SIG0 else [])))
        for j, _ in groups:
            s2, j2 = (s, j + H) if j < H else (s + 1, j - H)
            if s2 >= NS: continue
            i = last[(s, j)]
            step = 1 if (j == H - 1 or (s == 0 and j < H)) else 2
            for q in range(4):
                i = S.place(i, "ds", V.read(s2, q >> 1, j2, q & 1), gives=("W", s2, j2) if q == 3 else None) + step
    cur = 0
    def dma_seq(i0, i1, lst, vcap=1):
        nonlocal cur
        i0 = max(i0, cur)
        n = len(lst)
        for k, (pre, d, kd, gives, needs) in enumerate(lst):
            tgt = max(cur, i0 + (k * (i1 - i0)) // n)
            i = S.place(tgt, "s", pre, cap=vcap + 1)
            cur = S.place(i + 1, kd, d, gives=gives, needs=needs, cap=vcap)
    def merge(a, b):
        if not b: return a
        out, k = [], 0
        for i, x in enumerate(a):
            out.append(x)
            while k < len(b) and (k + 1) * len(a) <= (i + 1) * len(b): out.append(b[k]); k += 1
        return out + b[k:]
    def wlist(s):
        dm = V.dmas(s)
        return [(m0, d, "vmD", ("D", s) if n == len(dm) - 1 else None, []) for n, (m0, d) in enumerate(dm)]
    def alist(s, dep=True):
        return [(m0, d, "vmA", ("A", s, t) if u == 1 else None, [("lg", ("AF", s - 2, t))] if dep else [])
                for t in range(V.NT) for u, (m0, d) in enumerate(V.admas(s, t))]
    def areads(s, i0, i1):
        for t in range(V.NT):
            i = i0 + (t * (i1 - i0)) // V.NT
            i = S.place(i, "ds", V.aread(s, 0, t), needs=[("vm", ("A", s, t))])
            S.place(i + 1, "ds", V.aread(s, 1, t), gives=("AF", s, t))
    extra = {}
    cs = [(f"s_add_u32 s60, s{S_CSL}, {i*8*V.pitch:#x}",
           f"buffer_load_dwordx4 {ar(A_CS+4*i, 4)}, v{VCA}, {sq(S_SRDW)}, s60 offen", "vmX", ("CL", i), []) for i in range(16)]
    cs0, csn = par("cs0", 1), par("csn", 4)
    slots = [(s_, h_) for s_ in range(cs0, cs0 + csn) for h_ in range(2)]
    for i_, it in enumerate(cs): extra.setdefault(slots[i_ * len(slots) // 16], []).append(it)
    if kind == "w1":
        extra.setdefault((cs0 + 1, 0), []).append(("s_nop 0", f"buffer_load_dwordx2 v[{VB1}:{VB1+1}], v{VB1}, {sq(S_SRDB)}, 0 offen", "vmX", "B1", []))
    rows = [("s_nop 0", f"buffer_load_dwordx4 {ar(A_RAW+4*q, 4)}, v{V_L16}, {sq(S_SRDA)}, s67 offen offset:{q*1024}", "vmX", "ROWS" if q == 3 else None, []) for q in range(4)]
    cpf = []
    if "nocpf" not in OPT:
        cpf = [(f"s_getpc_b64 s[{S_CODE}:{S_CODE+1}]\nL_k1_pc_{kind}:\ns_mov_b32 s{S_CODE+2}, L_k1_spin_{kind}-L_k1_pc_{kind}\ns_mov_b32 s{S_CODE+3}, 0x20000\n"
                f"s_bfe_u32 s60, s2, 0x20003\ns_lshl_b32 s60, s60, 2\ns_add_u32 s60, s60, s{S_W}\ns_mul_i32 s60, s60, {par('cpfb', 2560)}\n"
                f"v_lshlrev_b32 v{VW}, 3, v{V_L16}\ns_mov_b64 exec, {hex((1 << (par('cpfb', 2560) // 128)) - 1)}\n"
                f"buffer_load_dword a{A_DUM}, v{VW}, {sq(S_CODE)}, s60 offen\ns_mov_b64 exec, -1")]
    def addx(key, lst): extra.setdefault(key, []).extend(lst)
    pf = []
    for i in range(9):
        pre = f"s_lshl_b32 s60, s100, 10\ns_add_u32 s60, s60, {(i if i < 7 else i - 7) << 20:#x}"
        if i == 0: pre = f"v_lshlrev_b32 v{VCA}, 3, v{V_L16}\n" + pre
        if i == 7: pre = f"s_mov_b32 s{S_SRDP}, s0\ns_mov_b32 s{S_SRDP+1}, s1\ns_mov_b32 s{S_SRDP+2}, {1024*2048:#x}\n" + pre
        pf.append((pre, f"s_mov_b64 exec, 0xff\nbuffer_load_dword a{A_DUM}, v{VCA}, {sq(S_SRDP)}, s60 offen\ns_mov_b64 exec, -1", "vmX", None, []))
    if "nopf" not in OPT:
        p0 = 2 * (cs0 + csn); p1 = 2 * CHK + 1
        for i_, it in enumerate(pf):
            h_ = p0 + i_ * (p1 - p0) // len(pf)
            addx((h_ // 2, h_ % 2), [it])
    cl = []
    for q in range(4):
        pre = "s_lshl_b32 s60, s100, 12"
        if q == 0:
            pre = (f"s_add_u32 s{S_SRDB}, s58, {WS_PART:#x}\ns_addc_u32 s{S_SRDB+1}, s59, 0\ns_mov_b32 s{S_SRDB+2}, {4 << 20:#x}\n"
                   f"s_mov_b32 s{S_SRDB+3}, 0x20000\n" + pre)
        cl.append((pre, f"buffer_store_dwordx4 {ar(A_NEG,4)}, v{V_L16}, {sq(S_SRDB)}, s60 offen offset:{q*1024} sc1", "vmS", None, []))
    if "noclr" not in OPT:
        for i_, it in enumerate(cl): addx((par("k1clr", 9) + i_, 0), [it])
    for wh, s0, n in slow:
        if wh.isdigit(): addx((int(wh), 0), [("s_nop 0", slowpf(int(s0), int(n)), "vmX", None, [])])
    tagld = f"buffer_load_dwordx2 {ar(A_TAG,2)}, off, {sq(S_SRDC)}, 0 sc1"
    tagchk = (f"v_accvgpr_read_b32 v{VW}, a{A_TAG}\nv_accvgpr_read_b32 v{VW+1}, a{A_TAG+1}\ns_nop 0\n"
              f"v_readfirstlane_b32 s56, v{VW}\nv_readfirstlane_b32 s57, v{VW+1}\ns_nop 3\ns_cmp_lg_u32 s56, 0")
    addx((2, 1), [("s_nop 0", tagld, "vmX", "TAG", [])])
    def flagst(off): return f"s_mov_b64 exec, 1\nbuffer_store_dwordx2 {ar(A_TAG,2)}, off, {sq(S_SRDT)}, s60 offset:{off} sc1\ns_mov_b64 exec, -1"
    addx((SIG0, 1), [("s_lshl_b32 s60, s2, 7", flagst(0), "vmS", None, [])])
    addx((SIG, 1), [("s_lshl_b32 s60, s2, 7", flagst(64), "vmS", None, [])])
    VFA = VW + 2
    fa = [f"v_and_b32 v{VFA}, 0x30, v{V_L16}", f"v_lshlrev_b32 v{VFA}, 4, v{VFA}", f"v_and_b32 v{VFA+1}, 0x1c0, v{V_L16}",
          f"v_lshl_add_u32 v{VFA}, v{VFA+1}, 6, v{VFA}", "s_and_b32 s60, s2, 0x19", "s_lshl_b32 s60, s60, 7", f"v_add_u32 v{VFA}, s60, v{VFA}",
          "s_mov_b32 exec_lo, 0",
          f"v_and_b32 v{VFA}, 0x10, v{V_L16}", f"v_lshlrev_b32 v{VFA}, 3, v{VFA}", f"v_and_b32 v{VFA+1}, 0x60, v{V_L16}",
          f"v_lshl_add_u32 v{VFA}, v{VFA+1}, 5, v{VFA}", "s_and_b32 s60, s2, 0xe6", "s_lshl_b32 s60, s60, 7", "s_add_u32 s60, s60, 64",
          f"v_add_u32 v{VFA}, s60, v{VFA}"]
    if kind == "qkv":
        fa += ["s_mov_b32 exec_hi, 0xffffff00", f"s_max_u32 s60, s{S_MB}, 1", "s_sub_u32 s60, s60, 1", "s_lshr_b32 s3, s60, 2",
               "s_and_b32 s60, s60, 3", "s_lshl_b32 s60, s60, 3", "s_or_b32 s60, s60, s3", "s_or_b32 s60, s60, 0xc6", "s_lshl_b32 s60, s60, 7",
               f"v_and_b32 v{VFA}, 0x10, v{V_L16}", f"v_lshlrev_b32 v{VFA}, 8, v{VFA}", f"v_add_u32 v{VFA}, s60, v{VFA}"]
    fa += ["s_mov_b64 exec, -1"]
    pollld = f"buffer_load_dwordx2 v[{VW}:{VW+1}], v{VFA}, {sq(S_SRDS)}, 0 offen sc1"
    addx((POLL, 1), [("\n".join(fa), pollld, "vmX", "POLL", [])])
    chk = f"v_cmp_ne_u64 vcc, s[56:57], v[{VW}:{VW+1}]"
    pl = []
    for t in range(V.NT):
        pre = f"s_lshr_b32 s60, s{S_AROW+t}, 7\ns_add_u32 s60, s60, {SD_Q:#x}"
        if t == 0: pre = f"v_and_b32 v{VCA}, 0xff, v{V_L16}\n" + pre
        pl.append((pre, f"buffer_load_dwordx4 {ar(A_Q+4*t, 4)}, v{VCA}, {sq(S_SRDS)}, s60 offen sc1", "vmX", ("Q", t), []))
    for j in range(V.NJ):
        if kind == "w1":
            pre = f"s_lshl_b32 s60, s{S_CF if j < 12 else S_CHF}, 5\ns_add_u32 s60, s60, {SD_P + (192 + (j if j < 12 else j - 12))*1024:#x}"
        else:
            pre = (f"s_xor_b32 s60, s{S_W}, {j & 3}\ns_lshl_b32 s60, s60, 5\ns_add_u32 s60, s60, s{S_CF}\ns_lshl_b32 s60, s60, 5\n"
                   f"s_add_u32 s60, s60, {SD_P + (j >> 2)*65536:#x}")
        pl.append((pre, f"buffer_load_dwordx4 {ar(A_P+4*j, 4)}, v{V_L16}, {sq(S_SRDS)}, s60 offen sc1", "vmX", ("P", j), []))
    if kind == "qkv":
        for t in range(4):
            pre = f"s_lshr_b32 s60, s{S_AROW+t}, 9\ns_add_u32 s60, s60, {SD_RS - 64:#x}"
            if t == 0:
                pre = (f"v_lshrrev_b32 v{VCS}, 2, v{VCA}\n"
                       f"v_lshrrev_b32 v{VB1}, 4, v{V_L16}\nv_and_b32 v{VB1}, 0x30, v{VB1}\n"
                       f"v_and_b32 v{VB1+1}, 4, v{VCS}\nv_add_u32 v{VB1}, v{VB1}, v{VB1+1}\n"
                       f"v_add_u32 v{VB1+1}, 8, v{VB1}\n"
                       f"v_cmp_le_u32 s[48:49], v{VB1}, v{VCS}\nv_cmp_le_u32 s[50:51], v{VB1+1}, v{VCS}\n"
                       f"v_add_u32 v{VDC}, 64, v{VB1}\nv_add_u32 v{VDC+1}, 64, v{VB1+1}\n"
                       f"v_cndmask_b32 v{VB1}, v{VB1}, v{VDC}, s[48:49]\nv_cndmask_b32 v{VB1+1}, v{VB1+1}, v{VDC+1}, s[50:51]\n" + pre)
            pl.append((pre, f"buffer_load_dword v{RSQ+t}, v{VCS}, {sq(S_SRDS)}, s60 offen offset:64 sc1", "vmX", None, []))
            pl.append(("s_nop 0", f"buffer_load_dword v{RSK+2*t}, v{VB1}, {sq(S_SRDS)}, s60 offen sc1", "vmX", None, []))
            pl.append(("s_nop 0", f"buffer_load_dword v{RSK+2*t+1}, v{VB1+1}, {sq(S_SRDS)}, s60 offen sc1", "vmX", "RS" if t == 3 else None, []))
    h = len(pl) // 2
    addx((CHK, 1), pl[:h]); addx((CHK + 1, 0), pl[h:])
    for s in range(NS):
        b0 = first[(s, 0)]
        b1 = first[(s + 1, 0)] if s + 1 < NS else len(S.mf)
        if s == 0:
            for wh, s0, n in rounds:
                if wh == "s":
                    for b_ in pfr(int(s0), int(n)): cur = S.place(cur + 1, "vmX", b_, cap=3)
            for c_ in cpf: cur = S.place(cur + 1, "vmX", c_, cap=3)
            dma_seq(b0, bar[0], ([] if "late1" not in OPT else alist(1, dep=False)) + wlist(2) + alist(2), vcap=2)
            for x_ in V.sof_adv(): cur = S.place(cur, "s", x_, cap=4)
            areads(1, b1 - 28, b1 - 8)
            dma_seq(bar[0] + 1, b1, rows + wlist(3))
            for x_ in V.sof_adv(): cur = S.place(cur, "s", x_, cap=3)
            continue
        if s == 1:
            for wh, s0, n in rounds:
                if wh == "t":
                    for b_ in pfr(int(s0), int(n)): cur = S.place(max(cur + 1, b0), "vmX", b_, cap=3)
            areads(2, bar[1] - 8, bar[1] + 20)
            dma_seq(b0, bar[1], merge(alist(3), extra.get((1, 0), [])))
            dma_seq(bar[1] + 1, b1 + 4, merge(wlist(4) + alist(4), extra.get((1, 1), [])))
            for x_ in V.sof_adv(): cur = S.place(cur, "s", x_, cap=3)
            continue
        if s + 1 < NS:
            lo = b0 + (24 if s == 2 else 0)
            areads(s + 1, lo, bar[s] - 8)
            l0 = merge(alist(s + 3) if s + 3 < NS else [], extra.get((s, 0), []))
            if l0: dma_seq(lo + 8, bar[s], l0)
            if s == CHK:
                cur = S.place(max(cur, bar[s] + 1), "s", chk + "\n"
                              f"s_cbranch_vccnz L_k1_spin_{kind}\nL_k1_back_{kind}:", needs=[("vm", "POLL")], cap=3)
            if s == SIG0:
                cur = S.place(max(cur, bar[s] + 1), "s", tagchk + f"\ns_cbranch_scc0 L_k1_tspin_{kind}\nL_k1_tback_{kind}:", needs=[("vm", "TAG")], cap=3)
            l1 = merge(wlist(s + 3) if s + 3 < NS else [], extra.get((s, 1), []))
            if l1: dma_seq(bar[s] + 1, b1 + 4, l1)
            if s + 3 < NS:
                for x_ in V.sof_adv(): cur = S.place(cur, "s", x_, cap=3)
    i = first[(2, 0)]
    def fill(o, gapstep=1, needs=(), kd="s", gives=None):
        nonlocal i
        i = S.place(i, kd, o, needs=needs, cap=2, gives=gives) + gapstep
    mA, mB = VDC, VW
    for rr, d in ((0, mA), (1, mB)):
        for q in range(2):
            fill(f"v_mfma_f32_16x16x32_bf16 {vr(d,4)}, {ar(A_ONE,4)}, {ar(A_RAW+8*rr+4*q,4)}, {'0' if q == 0 else vr(d,4)}", needs=[("vm", "ROWS")])
    i += 8
    for r_ in (8, 4, 2, 1):
        for d in (mA, mB): fill(f"v_add_f32_dpp v{d}, v{d}, v{d} row_ror:{r_} row_mask:0xf bank_mask:0xf")
    for d in (mA, mB): fill(f"v_mul_f32 v{d}, 0x3a800000, v{d}", 0)
    for d in (mA, mB): fill(f"v_mov_b32 v{d+1}, 0", 0)
    for q in range(8):
        for rr, d in ((0, mA), (1, mB)):
            for o in (f"v_accvgpr_read_b32 v{d+2}, a{A_RAW+8*rr+q}", f"v_and_b32 v{d+3}, s{S_HI}, v{d+2}", f"v_lshlrev_b32 v{d+2}, 16, v{d+2}",
                      f"v_sub_f32 v{d+3}, v{d+3}, v{d}", f"v_sub_f32 v{d+2}, v{d+2}, v{d}",
                      f"v_fmac_f32 v{d+1}, v{d+3}, v{d+3}", f"v_fmac_f32 v{d+1}, v{d+2}, v{d+2}"):
                fill(o, 0)
    i += 2
    qA, qB = mA + 1, mB + 1
    for r_ in (8, 4, 2, 1):
        for d in (qA, qB): fill(f"v_add_f32_dpp v{d}, v{d}, v{d} row_ror:{r_} row_mask:0xf bank_mask:0xf")
    for sw_ in ("v_permlane16_swap_b32", "v_permlane32_swap_b32"):
        for d in (qA, qB): fill(f"v_mov_b32 v{d+1}, v{d}")
        i += 1
        for d in (qA, qB): fill(f"{sw_} v{d}, v{d+1}")
        for d in (qA, qB): fill(f"v_add_f32 v{d}, v{d}, v{d+1}")
    for o in (f"v_cndmask_b32 v{mA}, v{mA}, v{mB}, vcc", f"v_cndmask_b32 v{qA}, v{qA}, v{qB}, vcc",
              f"v_mul_f32 v{qA}, 0x3a800000, v{qA}", f"v_cvt_pk_bf16_f32 v{VW}, -v{mA}, -v{mA}",
              f"v_cvt_pk_bf16_f32 v{qA}, v{qA}, v{qA}", f"v_and_b32 v{qA}, s{S_HI}, v{qA}", f"v_add_f32 v{qA}, 0x3727c5ac, v{qA}",
              f"v_cvt_pk_bf16_f32 v{qA}, v{qA}, v{qA}", f"v_and_b32 v{qA}, s{S_HI}, v{qA}", f"v_sqrt_f32 v{qA}, v{qA}",
              f"v_mov_b32 v{VW+2}, v{VW}", f"v_cvt_pk_bf16_f32 v{VW+1}, -v{mA}, v{qA}", f"v_and_b32 v{qA}, s{S_HI}, v{VW+1}",
              f"v_rcp_f32 v{qA}, v{qA}", f"v_mov_b32 v{VW+3}, v{VW+1}", f"v_lshrrev_b32 v{mA+2}, 2, v{V_L16}"):
        fill(o)
    fill(f"s_lshr_b32 s61, s67, 7\ns_add_u32 s61, s61, {SD_Q:#x}\ns_mov_b64 exec, 3\n"
         f"buffer_store_dwordx4 {vr(VW,4)}, v{V_L16}, {sq(S_SRDS)}, s61 offen sc1\ns_mov_b64 exec, -1", kd="vmS")
    fill(f"s_lshr_b32 s61, s67, 9\ns_add_u32 s61, s61, {SD_RS:#x}\ns_mov_b64 exec, 3\n"
         f"buffer_store_dword v{qA}, v{mA+2}, {sq(S_SRDS)}, s61 offen sc1\ns_mov_b64 exec, -1", kd="vmS", gives="ST")
    if "verbose" in OPT: print(kind, "stats done at step", [s_ for s_ in range(NS) if first[(s_, 0)] <= i][-1], i, bar, file=sys.stderr)
    assert i < bar[SIG0 - 1] + 40
    i = i + 2
    for q in range(16):
        cin = "0" if q == 0 else vr(VDC, 4)
        sl_ = slots[q * len(slots) // 16]
        i = max(i, first[(sl_[0] + 2, 0 if sl_[1] == 0 else H)])
        i = S.place(i, "s", f"v_mfma_f32_16x16x32_bf16 {vr(VDC,4)}, {ar(A_SEL,4)}, {ar(A_CS+4*q,4)}, {cin}", needs=[("vm", ("CL", q))], cap=2) + 4
    i += 8
    for r_ in range(4):
        i = S.place(i, "s", f"v_add_f32_dpp v{VDC+r_}, v{VDC+r_}, v{VDC+r_} row_ror:8 row_mask:0xf bank_mask:0xf", cap=2) + 1
    for r_ in range(4):
        d = VDC + r_
        sel = "0x05040302" if r_ % 2 == 0 else "0x07060302"
        ops = [f"v_and_b32 v{VW+2}, s{S_HI}, v{d}", f"v_sub_f32 v{VW+2}, v{d}, v{VW+2}",
               f"v_and_b32 v{VW+3}, s{S_HI}, v{VW+2}", f"v_sub_f32 v{VW+3}, v{VW+2}, v{VW+3}",
               f"s_mov_b32 s61, 0x07060302\nv_perm_b32 v{VW}, v{VW+2}, v{d}, s61",
               f"s_mov_b32 s61, {sel}\nv_perm_b32 v{VW+1}, v{VB1 + (r_ >> 1)}, v{VW+3}, s61"]
        for k, o in enumerate(ops):
            i = S.place(i, "s", o, cap=2, needs=[("vm", "B1")] if k == 5 else []) + 1
        i = S.place(i, "vmS", f"buffer_store_dwordx2 v[{VW}:{VW+1}], v{VCS}, {sq(S_SRDS)}, s{S_CSS} offen offset:{16*r_} sc1",
                    gives="CS" if r_ == 3 else None, cap=2) + 2
    assert i < bar[SIG - 1]
    tail = []
    if kind == "w1":
        pre = [f"s_lshl_b32 s{X}, s{S_MB}, 3", f"s_lshl_b32 s{X+1}, s{S_W}, 1", f"s_add_u32 s{X}, s{X}, s{X+1}",
               f"s_mul_i32 s{X}, s{X}, 144", f"s_add_u32 s{X}, s{X}, 32", f"s_lshr_b32 s{X+1}, s{S_CF}, 6", f"s_lshr_b32 s{X+2}, s{S_CHF}, 6",
               f"s_add_u32 s{X+1}, s{X+1}, s{X}", f"s_add_u32 s{X+2}, s{X+2}, s{X}", f"s_lshl_b32 s{X+1}, s{X+1}, 11", f"s_lshl_b32 s{X+2}, s{X+2}, 11"]
        i = first[(14, 0)]
        for o in pre: i = S.place(i, "s", o, cap=2) + 1
        for j in range(14):
            for t in (range(4) if j % 2 == 0 else range(3, -1, -1)):
                a = V.acc(t, j); e = fin[(t, j)] + 8
                dst = a if j % 2 == 0 else V.acc(t, j - 1) + 2
                for r_ in range(4): tail.append((e, "s", f"v_mul_f32 v{a+r_}, v{a+r_}, |v{a+r_}|", []))
                tail.append((e, "s", f"v_cvt_pk_bf16_f32 v{dst}, v{a}, v{a+1}", []))
                tail.append((e, "s", f"v_cvt_pk_bf16_f32 v{dst+1}, v{a+2}, v{a+3}", []))
                for r_ in range(2): tail.append((e, "s", f"v_pk_max_i16 v{dst+r_}, v{dst+r_}, 0", []))
                if j % 2 == 1:
                    p = j // 2; a0 = V.acc(t, j - 1)
                    off = (t >> 1) * 144 * 2048 + (p * 2048 if p < 6 else 0)
                    tail.append((e, "vmS", f"s_add_u32 s60, s{X+1 if p < 6 else X+2}, {off:#x}\n"
                                 f"buffer_store_dwordx4 v[{a0}:{a0+3}], v{V_L16}, {sq(S_SRDO)}, s60 offen offset:{(t&1)*1024}{STMOD}", []))
    else:
        for j, ts in groups:
            ts = list(ts) if j % 2 == 0 else list(reversed(ts))
            if 4 in ts: ts = [4, 0, 1, 2, 3]
            if j >= 8: ts = [t for t in ts if t == 4] + [0, 1, 2, 3]
            for t in ts:
                a = V.acc(t, j); e = (fin[(t, j)] if j < 8 else last[(NS - 1, j)]) + 8
                if t == 4: d0 = a
                elif j < 8: d0 = a if j % 2 == 0 else V.acc(t, j - 1) + 2
                else: d0 = V.acc(0, j) + 2 + 2 * t
                cv = [f"v_cvt_pk_bf16_f32 v{d0}, v{a}, v{a+1}", f"v_cvt_pk_bf16_f32 v{d0+1}, v{a+2}, v{a+3}"]
                if j >= 8 and t == 0: cv.reverse()
                for o in cv: tail.append((e, "s", o, []))
    i = 0
    rest = []
    for e, kd, text, nd in tail:
        if rest or max(i, e) >= len(S.mf) - 1:
            rest.append((kd, text, nd)); continue
        k = max(i, e)
        while k < len(S.mf) - 1 and S.used[k] >= par("tailcap", 3): k += 1
        if k >= len(S.mf) - 1:
            rest.append((kd, text, nd)); continue
        i = S.place(k, kd, text, needs=nd, cap=par("tailcap", 3))
    if stamp:
        for m in PAR.get("k1marks", "15").split(":"):
            if "promarks" in OPT: break
            S.gaps[first[(int(m), 0)]].append(("s", st.text(), None, []))
    for x_ in S.emit("k1"): A(x_)
    if st.n < 7: st.mark(A)
    A("s_nop 7")
    for kd, text, nd in rest:
        o = []
        S.waits(nd, o)
        for x_ in o: A(x_)
        A(text)
    if kind == "qkv":
        o = []; S.waits([("vm", "RS")], o)
        for x_ in o: A(x_)
        qkv_attention(A, V)
    st.flush(A, 58, 59, 0, f"s{S_W}")
    A("s_endpgm")
    for nm, ld, ck, br in (("", pollld, chk, "s_cbranch_vccnz"), ("t", tagld, tagchk, "s_cbranch_scc0")):
        A.label(f"L_k1_{nm}spin_{kind}")
        A("s_mov_b32 s61, 0")
        A.label(f"L_k1_{nm}spin1_{kind}")
        A("s_sleep 8")
        A(ld)
        A("s_waitcnt vmcnt(0)")
        A("s_add_u32 s61, s61, 1")
        A("s_cmp_gt_u32 s61, 0x10000")
        A(f"s_cbranch_scc1 L_k1_{nm}back_{kind}")
        A(ck)
        A(f"{br} L_k1_{nm}spin1_{kind}")
        A(f"s_branch L_k1_{nm}back_{kind}")

STMOD = ""
def gen_k1(A, name, stamp):
    kernel_head(A, name)
    st0 = Stamp(stamp, 1)
    st0.mark(A)
    A("s_cmp_ge_u32 s2, 256")
    A("s_cbranch_scc1 L_k1_end")
    A("s_load_dwordx2 s[4:5], s[0:1], 0")
    A("s_load_dwordx2 s[60:61], s[0:1], 8")
    A("s_load_dwordx4 s[56:59], s[0:1], 32")
    A("s_load_dwordx4 s[12:15], s[0:1], 72")
    A("s_load_dwordx2 s[36:37], s[0:1], 48")
    A("s_load_dwordx2 s[38:39], s[0:1], 16")
    A("s_memrealtime s[18:19]")
    lane, l16, g, T, X = 100, 101, 102, 104, S_X0
    A(f"v_lshrrev_b32 v{T}, 6, v0")
    A(f"v_and_b32 v{lane}, 63, v0")
    A(f"v_readfirstlane_b32 s{S_W}, v{T}")
    A(f"s_and_b32 s{X}, s2, 1")
    A(f"s_lshl_b32 s{X}, s{X}, 2")
    A(f"s_bfe_u32 s{X+1}, s2, 0x20003")
    A(f"s_add_u32 s{S_MB}, s{X}, s{X+1}")
    A(f"s_bfe_u32 s{X}, s2, 0x20001")
    A(f"s_lshl_b32 s{X}, s{X}, 2")
    A(f"s_bfe_u32 s{X+1}, s2, 0x20005")
    A(f"s_add_u32 s{S_NT}, s{X}, s{X+1}")
    A(f"v_and_b32 v{l16}, 15, v{lane}")
    A(f"v_lshrrev_b32 v{g}, 4, v{lane}")
    A(f"v_lshlrev_b32 v{V_L16}, 4, v{lane}")
    A(f"s_lshl_b32 s{X}, s{S_MB}, 8")
    A(f"s_lshl_b32 s{X+1}, s{S_W}, 6")
    A(f"s_add_u32 s{X+1}, s{X}, s{X+1}")
    A(f"s_lshl_b32 s{X+1}, s{X+1}, 11")
    for t in range(4): A(f"s_add_u32 s{S_AROW+t}, s{X+1}, {t*16*2048:#x}")
    A(f"s_max_u32 s{X+1}, s{X}, 16")
    A(f"s_sub_u32 s{X+1}, s{X+1}, 16")
    A(f"s_lshl_b32 s{S_AROW+4}, s{X+1}, 11")
    A(f"s_lshr_b32 s{X+1}, s2, 7")
    A(f"s_lshl_b32 s{X+1}, s{X+1}, 4")
    A(f"s_add_u32 s{X+1}, s{X+1}, s{S_NT}")
    A(f"s_lshl_b32 s{X+1}, s{X+1}, 2")
    A(f"s_add_u32 s{X+1}, s{X+1}, s{S_W}")
    A(f"s_lshl_b32 s{X+1}, s{X+1}, 1")
    A(f"s_add_u32 s{X+1}, s{X+1}, s{X}")
    A(f"s_lshl_b32 s67, s{X+1}, 11")
    A(f"v_lshrrev_b32 v{T+4}, 3, v{lane}")
    A(f"v_and_b32 v{T+5}, 7, v{lane}")
    A(f"v_xor_b32 v{T+5}, v{T+5}, v{g}")
    A(f"v_lshlrev_b32 v{T+4}, 11, v{T+4}")
    A(f"v_lshl_add_u32 v{V_AD}, v{T+5}, 4, v{T+4}")
    A(f"v_xor_b32 v{T+5}, 4, v{T+5}")
    A(f"v_lshl_add_u32 v{V_AD+1}, v{T+5}, 4, v{T+4}")
    A(f"v_add_u32 v{V_AD+1}, 0x4000, v{V_AD+1}")
    A(f"s_mov_b32 s{S_SOFW}, 0")
    A(f"s_mov_b32 s{S_SOFW2}, 4096")
    A("s_cmp_ge_u32 s2, 128")
    A("s_cbranch_scc1 L_k1_qkv")
    P1, M1, P2, M2 = Asm(), Asm(), Asm(), Asm()
    k1_variant(P1, M1, K1Var("w1"), stamp)
    k1_variant(P2, M2, K1Var("qkv"), stamp)
    A.L += P1.L
    A.label("L_k1_qkv")
    A.L += P2.L + M1.L + M2.L
    A.label("L_k1_end")
    A("s_endpgm")

def qkv_attention(A, V):
    T = V_T
    XCH = RING0 + V.SL
    lane8, l16, g = T + 8, T + 1, T + 2
    def Q(t, sp): return V.acc(t, 2 * sp)
    KP = 200
    def K(t, sp): return V.acc(t, 4 + 2 * sp) if t >= 0 else KP + 4 * sp
    def VT(jj): return 128 + 16 * jj
    X = T + 4
    A(f"v_lshrrev_b32 v{lane8}, 1, v{V_L16}")
    A(f"v_bfe_u32 v{l16}, v{V_L16}, 4, 4")
    A(f"v_lshrrev_b32 v{g}, 8, v{V_L16}")
    for jj in range(4):
        A(f"s_xor_b32 s46, s{S_W}, {jj}")
        A("s_lshl_b32 s46, s46, 9")
        A(f"s_lshl_b32 s47, s{S_W}, 12")
        A("s_add_u32 s46, s46, s47")
        A(f"v_add_u32 v{X+jj}, s46, v{lane8}")
    A(f"s_lshl_b32 s46, s{S_W}, 9")
    A(f"v_add_u32 v{lane8}, s46, v{lane8}")
    for jj in range(4):
        k = K(3, jj >> 1) + 2 * (jj & 1)
        A(f"ds_write_b64 v{X+jj}, v[{k}:{k+1}] offset:{XCH + 4096}")
        v = VT(jj) + 8
        A(f"ds_write_b64 v{X+jj}, v[{v}:{v+1}] offset:{XCH + 4096 + 2048}")
    A(f"ds_write_b64 v{lane8}, v[192:193] offset:{XCH}")
    A(f"ds_write_b64 v{lane8}, v[196:197] offset:{XCH + 2048}")
    par_ = T + 9
    MP, MA, MB_, VA_, VB_ = "s[46:47]", "s[48:49]", "s[50:51]", "s[52:53]", "s[54:55]"
    A(f"v_and_b32 v{par_}, 1, v{l16}")
    A(f"v_cmp_eq_u32 {MP}, 1, v{par_}")
    A(f"s_or_b32 s60, s{S_MB}, s{S_W}")
    A("s_cmp_eq_u32 s60, 0")
    A(f"s_cselect_b64 {VA_}, {MA}, -1")
    A(f"s_cselect_b64 {VB_}, {MB_}, -1")
    FQ = 232
    A("s_mov_b32 s61, 0x3e8293ee")
    for t in range(4): A(f"v_mul_f32 v{RSQ+t}, s61, v{RSQ+t}")
    A(f"v_cndmask_b32 v{RSK}, 0, v{RSK}, {VA_}")
    A(f"v_cndmask_b32 v{RSK+1}, 0, v{RSK+1}, {VB_}")
    for t in range(4):
        for e in range(2): A(f"v_mul_f32 v{FQ+2*t+e}, v{RSQ+t}, v{RSK+2*t+e}")
    SEL = 208
    A(f"v_mov_b32 v{T+10}, 0x0c0c0100")
    A(f"v_mov_b32 v{T+11}, 0x01000c0c")
    A(f"v_cndmask_b32 v{SEL+2}, v{T+10}, v{T+11}, {MP}")
    A(f"v_mov_b32 v{T+10}, 0x0c0c0302")
    A(f"v_mov_b32 v{T+11}, 0x03020c0c")
    A(f"v_cndmask_b32 v{SEL+3}, v{T+10}, v{T+11}, {MP}")
    A(f"v_mov_b32 v{T+10}, 0x0c0c0c0c")
    A(f"v_cndmask_b32 v{SEL}, v{SEL+2}, v{T+10}, {MA}")
    A(f"v_cndmask_b32 v{SEL+1}, v{SEL+3}, v{T+10}, {MB_}")
    A(f"v_cndmask_b32 v{SEL+2}, v{T+10}, v{SEL+2}, {MA}")
    A(f"v_cndmask_b32 v{SEL+3}, v{T+10}, v{SEL+3}, {MB_}")
    A("s_waitcnt lgkmcnt(0)")
    A("s_barrier")
    for jj in range(4):
        k = KP + 4 * (jj >> 1) + 2 * (jj & 1)
        A(f"ds_read_b64 v[{k}:{k+1}], v{X+jj} offset:{XCH}")
        v = VT(jj)
        A(f"ds_read_b64 v[{v}:{v+1}], v{X+jj} offset:{XCH + 2048}")
    A(f"v_mov_b32 v{T+11}, 0xce6e6b28")
    units = [(t, sp) for t in (1, 2, 3, 0) for sp in range(2)]
    def Sc(t, sp): return V.acc(t, 2 * sp + 1)
    def Sp(t, sp): return V.acc(t, 4 + 2 * sp + 1)
    for n, (t, sp) in enumerate(units):
        if t == 0 and sp == 0: A("s_waitcnt lgkmcnt(0)")
        A(f"v_mfma_f32_16x16x32_bf16 {vr(Sc(t,sp),4)}, {vr(K(t,sp),4)}, {vr(Q(t,sp),4)}, 0")
        A(f"v_mfma_f32_16x16x32_bf16 {vr(Sp(t,sp),4)}, {vr(K(t-1,sp),4)}, {vr(Q(t,sp),4)}, 0")
    A("s_nop 1")
    def stage(fn):
        for (t, sp) in units: fn(t, sp, Sc(t, sp), Sp(t, sp))
    stage(lambda t, sp, c, p: A(f"v_cndmask_b32 v{c}, v{c}, v{c+1}, {MP}"))
    stage(lambda t, sp, c, p: A(f"v_cndmask_b32 v{c+1}, v{c+2}, v{c+3}, {MP}"))
    stage(lambda t, sp, c, p: A(f"v_cndmask_b32 v{p}, v{p}, v{p+1}, {MP}"))
    stage(lambda t, sp, c, p: A(f"v_cndmask_b32 v{p+1}, v{p+2}, v{p+3}, {MP}"))
    stage(lambda t, sp, c, p: A(f"v_cndmask_b32 v{c}, v{p}, v{c}, {MA}"))
    stage(lambda t, sp, c, p: A(f"v_cndmask_b32 v{c+1}, v{p+1}, v{c+1}, {MB_}"))
    stage(lambda t, sp, c, p: A(f"v_mul_f32 v{c}, v{c}, v{FQ+2*t}"))
    stage(lambda t, sp, c, p: A(f"v_mul_f32 v{c+1}, v{c+1}, v{FQ+2*t+1}"))
    for sp in range(2):
        c = Sc(0, sp)
        A(f"v_cndmask_b32 v{c}, v{T+11}, v{c}, {VA_}")
        A(f"v_cndmask_b32 v{c+1}, v{T+11}, v{c+1}, {VB_}")
    P = [Sp(t, sp) for (t, sp) in units]
    quads = [P[0:4], P[4:8]]
    def xreduce(op, mid=None, filler=()):
        fl = list(filler)
        def pad(n):
            for _ in range(n): A(fl.pop(0) if fl else "s_nop 0")
        for q in quads:
            A(f"v_permlane16_swap_b32 v{q[0]}, v{q[1]}"); A(f"v_permlane16_swap_b32 v{q[2]}, v{q[3]}")
        for q in quads:
            A(f"{op} v{q[0]}, v{q[0]}, v{q[1]}"); A(f"{op} v{q[2]}, v{q[2]}, v{q[3]}")
        pad(1)
        for q in quads: A(f"v_permlane32_swap_b32 v{q[0]}, v{q[2]}")
        for q in quads: A(f"{op} v{q[0]}, v{q[0]}, v{q[2]}")
        if mid:
            for q in quads: A(f"{mid} v{q[0]}, v{q[0]}")
            pad(1)
        for q in quads: A(f"v_mov_b32 v{q[2]}, v{q[0]}")
        pad(1)
        for q in quads: A(f"v_permlane32_swap_b32 v{q[0]}, v{q[2]}")
        for q in quads:
            A(f"v_mov_b32 v{q[1]}, v{q[0]}"); A(f"v_mov_b32 v{q[3]}, v{q[2]}")
        pad(0)
        for q in quads:
            A(f"v_permlane16_swap_b32 v{q[0]}, v{q[1]}"); A(f"v_permlane16_swap_b32 v{q[2]}, v{q[3]}")
        for x in fl: A(x)
    stage(lambda t, sp, c, p: A(f"v_max_f32 v{p}, v{c}, v{c+1}"))
    xreduce("v_max_f32")
    stage(lambda t, sp, c, p: A(f"v_sub_f32 v{c}, v{c}, v{p}"))
    stage(lambda t, sp, c, p: A(f"v_sub_f32 v{c+1}, v{c+1}, v{p}"))
    stage(lambda t, sp, c, p: A(f"v_exp_f32 v{c}, v{c}"))
    stage(lambda t, sp, c, p: A(f"v_exp_f32 v{c+1}, v{c+1}"))
    stage(lambda t, sp, c, p: A(f"v_add_f32 v{p}, v{c}, v{c+1}"))
    fl = []
    for (t, sp) in units:
        c = Sc(t, sp)
        fl += [f"v_mul_f32 v{c}, v{c}, v{RSK+2*t}", f"v_mul_f32 v{c+1}, v{c+1}, v{RSK+2*t+1}"]
    xreduce("v_add_f32", mid="v_rcp_f32", filler=fl)
    stage(lambda t, sp, c, p: A(f"v_mul_f32 v{c}, v{c}, v{p}"))
    stage(lambda t, sp, c, p: A(f"v_mul_f32 v{c+1}, v{c+1}, v{p}"))
    stage(lambda t, sp, c, p: A(f"v_cvt_pk_bf16_f32 v{c}, v{c}, v{c+1}"))
    for i in range(4):
        stage(lambda t, sp, c, p: A(f"v_perm_b32 v{p+i}, v{c}, v{c}, v{SEL+i}"))
    for (t, sp) in units:
        for e in range(2):
            d = Q(t, sp) if e == 0 else Sc(t, sp)
            v = VT(2 * sp + e) + 2 * t
            A(f"v_mfma_f32_16x16x32_bf16 {vr(d,4)}, {vr(v,4)}, {vr(Sp(t,sp),4)}, 0")
    A(f"s_lshl_b32 s60, s{S_MB}, 3")
    A(f"s_lshl_b32 s61, s{S_W}, 1")
    A("s_add_u32 s60, s60, s61")
    A("s_mul_i32 s60, s60, 144")
    A(f"s_lshl_b32 s61, s{S_NT}, 1")
    A("s_add_u32 s60, s60, s61")
    A(f"s_lshr_b32 s61, s{S_W}, 1")
    A("s_add_u32 s62, s60, s61")
    A("s_xor_b32 s61, s61, 1")
    A("s_add_u32 s63, s60, s61")
    A("s_lshl_b32 s62, s62, 11")
    A("s_lshl_b32 s63, s63, 11")
    for (t, sp) in units:
        a, b = Q(t, sp), Sc(t, sp)
        A(f"v_cvt_pk_bf16_f32 v{a}, v{a}, v{a+1}")
        A(f"v_cvt_pk_bf16_f32 v{a+1}, v{a+2}, v{a+3}")
        A(f"v_cvt_pk_bf16_f32 v{a+2}, v{b}, v{b+1}")
        A(f"v_cvt_pk_bf16_f32 v{a+3}, v{b+2}, v{b+3}")
    A(f"s_bitcmp1_b32 s{S_W}, 0")
    A("s_cbranch_scc0 L_k1_noswap")
    for (t, sp) in units:
        a = Q(t, sp)
        A(f"v_swap_b32 v{a}, v{a+2}")
        A(f"v_swap_b32 v{a+1}, v{a+3}")
    A.label("L_k1_noswap")
    for (t, sp) in units:
        a = Q(t, sp)
        A(f"s_add_u32 s64, s{62+sp}, {(t>>1)*144*2048:#x}")
        A(f"buffer_store_dwordx4 v[{a}:{a+3}], v{V_L16}, {sq(S_SRDO)}, s64 offen offset:{(t&1)*1024}{STMOD}")

def gen_k2(A, name, stamp):
    st = Stamp(stamp, 2)
    kernel_head(A, name)
    st.mark(A)
    SA, SW2, SWO, SX, SB, SO, SP, SF = 4, 8, 12, 16, 20, 24, 28, 32
    S_M0, S_WV, S_SA, S_SW, S_PS, S_PR, S_FS, S_FR = 36, 37, 38, 39, 40, 41, 42, 43
    A("s_cmp_ge_u32 s2, 256")
    A("s_cbranch_scc1 L_k2_end")
    A("s_load_dwordx2 s[44:45], s[0:1], 0")
    A("s_load_dwordx2 s[46:47], s[0:1], 16")
    A("s_load_dwordx4 s[48:51], s[0:1], 48")
    A("s_load_dwordx2 s[52:53], s[0:1], 64")
    A("s_load_dwordx2 s[54:55], s[0:1], 80")
    lane, l16, g = 65, 66, 67
    VA, VD, VR, VX, VB, VL, VF, T = 68, 70, 76, 84, 85, 86, 88, 92
    XT = 100
    A("v_lshrrev_b32 v64, 6, v0")
    A(f"v_and_b32 v{lane}, 63, v0")
    A(f"v_readfirstlane_b32 s{S_WV}, v64")
    A("s_and_b32 s56, s2, 1")
    A("s_bfe_u32 s57, s2, 0x20001")
    A("s_lshl_b32 s57, s57, 2")
    A("s_bfe_u32 s58, s2, 0x20003")
    A("s_add_u32 s57, s57, s58")
    A("s_lshr_b32 s58, s2, 5")
    A(f"v_and_b32 v{l16}, 15, v{lane}")
    A(f"v_lshrrev_b32 v{g}, 4, v{lane}")
    A("s_lshl_b32 s59, s57, 2")
    A(f"s_add_u32 s59, s59, s{S_WV}")
    A(f"s_mul_i32 s60, s59, {144*2048}")
    A(f"v_lshlrev_b32 v{VL}, 4, v{lane}")
    A(f"v_add_u32 v{VA}, s60, v{VL}")
    A(f"s_mul_i32 s{S_SA}, s56, {56*2048}")
    A(f"s_add_u32 s{S_SA}, s{S_SA}, {32*2048}")
    A(f"s_mul_i32 s{S_SW}, s56, {1792*2048}")
    A(f"v_lshrrev_b32 v{T}, 3, v{lane}")
    A(f"v_bfe_u32 v{T+1}, v{lane}, 1, 2")
    A(f"v_xor_b32 v{T+1}, v{T+1}, v{g}")
    A(f"v_lshlrev_b32 v{T}, 11, v{T}")
    A(f"v_lshl_add_u32 v{T+2}, v{T+1}, 5, v{T}")
    A(f"v_and_b32 v{T+1}, 1, v{lane}")
    A(f"v_lshl_add_u32 v{T+2}, v{T+1}, 4, v{T+2}")
    A(f"s_lshl_b32 s60, s{S_WV}, 15")
    A("s_lshl_b32 s61, s58, 8")
    A("s_lshl_b32 s62, s56, 7")
    A("s_add_u32 s61, s61, s62")
    A("s_add_u32 s60, s60, s61")
    A(f"v_add_u32 v{VD}, s60, v{T+2}")
    A(f"v_add_u32 v{VD+1}, 0x4000, v{VD}")
    A(f"v_xor_b32 v{VD+2}, 0x80, v{VD}")
    A(f"v_xor_b32 v{VD+3}, 0x80, v{VD+1}")
    A(f"s_lshl_b32 s{S_M0}, s{S_WV}, 11")
    A("s_lshl_b32 s60, s59, 16")
    A("s_add_u32 s60, s60, s61")
    A(f"v_and_b32 v{T+1}, 7, v{lane}")
    A(f"v_lshl_add_u32 v{VX}, v{T+1}, 4, v{T}")
    A(f"v_add_u32 v{VX}, s60, v{VX}")
    A(f"v_lshlrev_b32 v{VB}, 4, v{T+1}")
    A(f"v_add_u32 v{VB}, s61, v{VB}")
    A(f"v_bfe_u32 v{T}, v{lane}, 2, 4")
    A(f"v_lshlrev_b32 v{T}, 7, v{T}")
    A(f"v_and_b32 v{T+1}, 3, v{lane}")
    A(f"v_lshl_add_u32 v{T}, v{T+1}, 3, v{T}")
    A(f"v_bfe_u32 v{T+1}, v{lane}, 3, 2")
    for jj in range(4):
        A(f"v_xor_b32 v{T+2}, {jj}, v{T+1}")
        A(f"v_lshl_add_u32 v{VR+jj}, v{T+2}, 5, v{T}")
        A(f"v_add_u32 v{VR+4+jj}, 0x10000, v{VR+jj}")
    VPW1, VPW2, VPA = 74, 75, 69
    A("s_lshr_b32 s60, s2, 3")
    A("s_lshl_b32 s60, s60, 2")
    A(f"s_add_u32 s60, s60, s{S_WV}")
    A("s_lshl_b32 s60, s60, 11")
    A(f"v_lshrrev_b32 v{T}, 2, v{lane}")
    A(f"v_lshlrev_b32 v{T}, 7, v{T}")
    A(f"v_add_u32 v{VPW1}, s60, v{T}")
    A("s_add_u32 s60, s60, s62")
    A(f"v_lshrrev_b32 v{T}, 3, v{lane}")
    A(f"v_lshlrev_b32 v{T+1}, 8, v{T}")
    A(f"v_add_u32 v{VPW2}, s60, v{T+1}")
    A(f"s_mul_i32 s60, s59, {144*2048}")
    A("s_lshl_b32 s63, s58, 10")
    A("s_add_u32 s60, s60, s63")
    A(f"v_lshlrev_b32 v{T}, 7, v{T}")
    A(f"v_add_u32 v{VPA}, s60, v{T}")
    A(f"s_mov_b32 s{S_FS}, s{S_SW}")
    A(f"s_mov_b32 s{S_FR}, s{S_SA}")
    A("s_xor_b32 s63, s2, 1")
    A(f"s_lshl_b32 s60, s{S_WV}, 12")
    A(f"s_lshl_b32 s{S_PS}, s2, 14")
    A(f"s_add_u32 s{S_PS}, s{S_PS}, s60")
    A(f"s_lshl_b32 s{S_PR}, s63, 14")
    A(f"s_add_u32 s{S_PR}, s{S_PR}, s60")
    A("s_waitcnt lgkmcnt(0)")
    srd(A, SA, 54, 55, A2_BYTES, WS_A2)
    srd(A, SW2, 48, 49, 3584 * 2048)
    srd(A, SWO, 46, 47, 1024 * 2048)
    srd(A, SX, 44, 45, 4 << 20)
    srd(A, SB, 50, 51, 2048)
    srd(A, SO, 52, 53, 4 << 20)
    srd(A, SP, 54, 55, 4 << 20, WS_PART)
    srd(A, SF, 54, 55, SD_BYTES, WS_SIDE)
    vm, lg = Score(63), Score(15)
    N1, N2 = 28, 16
    RCV, XLD, PRO = N1 + par('k2rcv', 10), N1 + par('k2xld', 11), par('k2pro', 3)
    NS = N1 + N2
    RW, RA = 8, par('k2ra', 7)
    DW = par('k2dw', RW - 1)
    def acc(t, j): return (j * 2 + t) * 4
    def acc2(t, j): return 128 + (j * 2 + t) * 4
    def wf(j, ks): return (j * 2 + ks) * 4
    def af(s, ks, t): return 64 + ((s % RA) * 4 + ks * 2 + t) * 4
    def nj(s): return 8 if s < N1 else 4
    def aloads(s):
        o = []
        if s == N1: o.append(("s", f"s_mov_b32 s{S_SA}, 0", None))
        for ks in range(2):
            for t in range(2):
                o.append(("vmA", f"buffer_load_dwordx4 {ar(af(s, ks, t), 4)}, v{VA}, s[{SA}:{SA+3}], s{S_SA} offen offset:{ks*2048 + t*1024}", ("A", s) if (ks, t) == (1, 1) else None))
        o.append(("s", f"s_add_u32 s{S_SA}, s{S_SA}, 4096", None))
        return o
    def dmas(s):
        o = []
        if s == N1: o.append(("s", f"s_mov_b32 s{S_SW}, 0", None))
        W = SW2 if s < N1 else SWO
        n = 4 if s < N1 else 2
        for q in range(n):
            c, u = divmod(q, 2)
            o.append(("m0", f"s_add_u32 m0, s{S_M0}, {(s % RW)*16384 + c*8192 + u*1024:#x}", None))
            o.append(("vmD", f"buffer_load_dwordx4 v{VD+q}, s[{W}:{W+3}], s{S_SW} offen lds", ("D", s) if q == n - 1 else None))
        o.append(("s", f"s_add_u32 s{S_SW}, s{S_SW}, 0x20000", None))
        return o
    def pfw(f):
        if f < N1: return [("s", f"s_add_u32 s61, s{S_FS}, {f*0x20000:#x}", None), ("vmP", f"buffer_load_dword v{VF}, v{VPW1}, s[{SW2}:{SW2+3}], s61 offen", None)]
        return [("s", f"s_mov_b32 s61, {(f-N1)*0x20000:#x}", None), ("vmP", f"buffer_load_dword v{VF}, v{VPW2}, s[{SWO}:{SWO+3}], s61 offen", None)]
    def pfa(f):
        pre = f"s_add_u32 s61, s{S_FR}, {f*4096:#x}" if f < N1 else f"s_mov_b32 s61, {(f-N1)*4096:#x}"
        return [("s", pre, None), ("vmP", f"buffer_load_dword v{VF}, v{VPA}, s[{SA}:{SA+3}], s61 offen", None)]
    PD, PB = par("k2pd", 0), par("k2pb", 4)
    fw = fa = 0
    if PD:
        for f in range(0, PB, 2):
            for kind, x, tg in pfa(f) + pfw(f):
                A(x)
                if kind.startswith("vm"): vm.issue(tg)
        fw = fa = PB
    def read(s, j, ks, p):
        hi, so = divmod(s % RW, 4)
        c, jj = divmod(j, 4)
        return f"ds_read_b64_tr_b16 {ar(wf(j, ks) + 2*p, 2)}, v{VR + hi*4 + jj} offset:{so*16384 + c*8192 + ks*4096 + p*2048}"
    for s in range(PRO):
        if s == 1 and "nocpf" not in OPT:
            A("s_getpc_b64 s[64:65]")
            A.label("L_k2_pc")
            A("s_mov_b32 s66, L_k2_spin-L_k2_pc")
            A("s_mov_b32 s67, 0x20000")
            A(f"s_lshl_b32 s60, s{S_WV}, 13")
            A(f"v_lshlrev_b32 v{T}, 3, v{VL}")
            A(f"buffer_load_dword v{T+1}, v{T}, s[64:67], s60 offen"); vm.issue()
        for kind, x, tg in dmas(s) + aloads(s):
            A(x)
            if kind == "m0": A("s_nop 0")
            if kind.startswith("vm"): vm.issue(tg)
    n = vm.need([("D", 0)]); A(f"s_waitcnt vmcnt({n})")
    A("s_barrier")
    st.mark(A)
    for j in range(3):
        for q in range(4): A(read(0, j, q >> 1, q & 1)); lg.issue(("W", 0, j))
    S = Stream(vm, lg)
    first, last = {}, {}
    for s in range(NS):
        n = 0
        for j in range(nj(s)):
            for t in ((0, 1) if j % 2 == 0 else (1, 0)):
                for ks in ((0, 1) if n % 2 == 0 else (1, 0)):
                    c = vr(acc(t, j) if s < N1 else acc2(t, j), 4)
                    cin = "0" if (s in (0, N1) and ks == (0 if n % 2 == 0 else 1)) else c
                    idx = S.add_mfma(f"v_mfma_f32_16x16x32_bf16 {c}, {ar(wf(j, ks), 4)}, {ar(af(s, ks, t), 4)}, {cin}",
                                     [("lg", ("W", s, j)), ("vm", ("A", s))])
                    first.setdefault((s, j), idx); last[(s, j)] = idx
                n += 1
    i = 0
    for j in range(3, 8):
        for q in range(4): i = S.place(i, "ds", read(0, j, q >> 1, q & 1), gives=("W", 0, j) if q == 3 else None) + 1
    BK, BK0 = par("k2bar", 1), par("k2bar0", 4)
    def isbar(s): return s < BK0 or (s - BK0) % BK == 0
    def lastbar(s):
        while not isbar(s): s -= 1
        return s
    resv = set()
    if "k2mix" not in OPT:
        for s in range(1, N1):
            for k in range(8): resv.add(first[(s, 0)] + 4 * k + 3)
    for i in resv: S.used[i] = 50
    for s in range(NS - 1):
        b = first[(s, 0)] + 1
        if isbar(s):
            k_ = s + 1
            while k_ + 1 < NS and not isbar(k_): k_ += 1
            S.gaps[b].append(("barv", None, None, [("vm", ("D", k_))]))
        for j in range(nj(s + 1)):
            i = last[(s, j)]
            if i in resv:
                for n_, q in enumerate((2, 3, 0, 1)):
                    S.place(i + (1, 1, 2, 3)[n_], "ds", read(s + 1, j, q >> 1, q & 1), gives=("W", s + 1, j) if q == 1 else None, cap=2)
                continue
            for q in (2, 3, 0, 1):
                i = S.place(i, "ds", read(s + 1, j, q >> 1, q & 1), gives=("W", s + 1, j) if q == 1 else None, cap=(2 if s == 0 else 1)) + 1
    cur = 0
    def spread(i0, i1, items):
        nonlocal cur
        i0 = max(i0, cur)
        nv = sum(1 for it in items if it[0].startswith("vm"))
        k = 0
        for kind, x, tg, *nd in items:
            nd = nd[0] if nd else []
            tgt = max(cur, i0 + (k * max(i1 - i0, 0)) // nv)
            if kind == "m0":
                fr = [r_ for r_ in sorted(resv) if r_ > cur and r_ < i1 + 2]
                if fr and len(fr) >= nv - k: tgt = fr[0]
                cur = S.place(max(cur, tgt - 1), "s", x, cap=9) + 1
            elif kind == "s":
                cur = S.place(cur, "s", x, cap=9, needs=nd)
            else:
                free = [r_ for r_ in sorted(resv) if r_ >= cur and r_ < i1 + 2]
                if free and len(free) >= nv - k:
                    cur = free[0]; resv.discard(cur)
                    S.gaps[cur].append((kind, x, tg, list(nd)))
                else:
                    cur = S.place(tgt, kind, x, gives=tg, needs=nd, cap=9)
                k += 1
    nd_, na_ = PRO, PRO
    for s in range(NS):
        b = first[(s, 0)] + 2
        e = first[(s + 1, 0)] + 1 if s + 1 < NS else len(S.mf)
        items = []
        if s == N1:
            for q in range(4):
                r0 = 32 + 8 * q
                cv = "\n".join(f"v_cvt_pk_bf16_f32 v{32+4*q+k}, v{r0+2*k}, v{r0+2*k+1}" for k in range(4))
                items.append(("s", ("s_nop 4\n" if q == 0 else "") + cv, None))
                items.append(("vmS", f"buffer_store_dwordx4 v[{32+4*q}:{35+4*q}], v{VL}, s[{SP}:{SP+3}], s{S_PS} offen offset:{q*1024} sc1", None))
        if PD:
            fw = max(fw, (nd_ + 1) & ~1); fa = max(fa, (na_ + 1) & ~1)
            for _ in range(2 if s < 6 else 1):
                if fw <= fa and fw < NS and fw < nd_ + PD + 2: items += pfw(fw); fw += 2
                elif fa < NS and fa < na_ + PD + 2: items += pfa(fa); fa += 2
        ramp = 2 if (s % par("k2ramp", 2) == 0) else 1
        for _ in range(ramp):
            if nd_ < NS and nd_ <= min(s + DW, lastbar(s) + RW - 1): items += dmas(nd_); nd_ += 1
            if na_ < NS and na_ <= s + RA - 1: items += aloads(na_); na_ += 1
        if stamp and s in (14, N1, N1 + 6, N1 + 13):
            S.gaps[first[(s, 0)] + 1].append(("s", st.text(), None, []))
        if s == XLD:
            items.append(("vmX", f"buffer_load_dwordx4 v[{XT+16}:{XT+19}], v{VB}, s[{SB}:{SB+3}], 0 offen", None))
            items.append(("s", f"s_lshl_b32 s60, s59, 7\ns_add_u32 s60, s60, {SD_RS:#x}\nv_lshlrev_b32 v{VF+3}, 2, v{l16}", None))
            for t in range(2):
                items.append(("vmX", f"buffer_load_dword v{98+t}, v{VF+3}, s[{SF}:{SF+3}], s60 offen offset:{64*t}", None))
            for q in range(4):
                items.append(("s", f"s_mov_b32 s60, {q*8*2048:#x}", None))
                items.append(("vmX", f"buffer_load_dwordx4 v[{XT+4*q}:{XT+4*q+3}], v{VX}, s[{SX}:{SX+3}], s60 offen", None))
        if s == RCV:
            for q in range(4):
                items.append(("vmX", f"buffer_load_dwordx4 v[{48+4*q}:{51+4*q}], v{VL}, s[{SP}:{SP+3}], s{S_PR} offen offset:{q*1024} sc1", None))
        if items:
            cur = max(cur, b)
            spread(b, e, items)
    for x in S.emit("k2"): A(x)
    st.mark(A)
    A(f"s_lshl_b32 s60, s{S_WV}, 14")
    A("s_add_u32 s60, s60, 8192")
    A(f"v_and_b32 v{T}, 7, v{l16}")
    A(f"v_xor_b32 v{T}, v{T}, v{g}")
    A(f"v_lshlrev_b32 v{T+1}, 8, v{l16}")
    A(f"v_add_u32 v{T+1}, s60, v{T+1}")
    A(f"v_lshl_add_u32 v{T+2}, v{T}, 4, v{T+1}")
    A(f"v_xor_b32 v{T}, 4, v{T}")
    A(f"v_lshl_add_u32 v{T+3}, v{T}, 4, v{T+1}")
    A(f"v_lshrrev_b32 v{T}, 3, v{lane}")
    A(f"v_and_b32 v{T+1}, 7, v{lane}")
    A(f"v_lshlrev_b32 v{T+1}, 1, v{T+1}")
    A(f"v_xor_b32 v{T+1}, v{T+1}, v{T}")
    A(f"v_lshlrev_b32 v{T}, 8, v{T}")
    A(f"v_add_u32 v{T}, s60, v{T}")
    A(f"v_lshl_add_u32 v{T+4}, v{T+1}, 4, v{T}")
    A(f"v_xor_b32 v{T+5}, 16, v{T+4}")
    A("s_mov_b32 s62, 0xffff0000")
    A("s_mov_b32 s61, 0")
    A.label("L_k2_back")
    A("s_waitcnt vmcnt(0)")
    A("v_max3_u32 v32, v48, v49, v50")
    A("v_max3_u32 v33, v51, v52, v53")
    for k in range(54, 64, 4):
        A(f"v_max3_u32 v32, v32, v{k}, v{k+1}")
        if k + 3 < 64: A(f"v_max3_u32 v33, v33, v{k+2}, v{k+3}")
    A("v_max_u32 v32, v32, v33")
    A("v_cmp_eq_u32 vcc, -1, v32")
    A("s_cbranch_vccnz L_k2_spin")
    A.label("L_k2_go")
    A("v_pk_mul_f32 v[98:99], v[98:99], v[98:99]")
    for i in range(4):
        A(f"v_lshlrev_b32 v{XT+20+2*i}, 16, v{XT+16+i}")
        A(f"v_and_b32 v{XT+21+2*i}, s62, v{XT+16+i}")
    for j in range(4):
        for t in range(2):
            c = acc(t, j)
            for k in range(2):
                A(f"v_lshlrev_b32 v{32+2*k}, 16, v{48 + c//2 + k}")
                A(f"v_and_b32 v{33+2*k}, s62, v{48 + c//2 + k}")
            A(f"v_pk_add_f32 v[{c}:{c+1}], v[{c}:{c+1}], v[32:33]")
            A(f"v_pk_add_f32 v[{c+2}:{c+3}], v[{c+2}:{c+3}], v[34:35]")
            o = "op_sel_hi:[1,0,1]" if t == 0 else "op_sel:[0,1,0]"
            A(f"v_pk_fma_f32 v[{c}:{c+1}], v[{c}:{c+1}], v[98:99], v[{c+128}:{c+129}] {o}")
            A(f"v_pk_fma_f32 v[{c+2}:{c+3}], v[{c+2}:{c+3}], v[98:99], v[{c+130}:{c+131}] {o}")
            A(f"ds_write_b128 v{T+2+(j&1)}, v[{c}:{c+3}] offset:{t*4096 + (j>>1)*128}")
    A("s_waitcnt lgkmcnt(0)")
    for q in range(4):
        A(f"ds_read_b128 v[{32+8*q}:{35+8*q}], v{T+4} offset:{q*2048}")
        A(f"ds_read_b128 v[{36+8*q}:{39+8*q}], v{T+5} offset:{q*2048}")
    for q in range(4):
        for i in range(4):
            A(f"v_lshlrev_b32 v{2*i}, 16, v{XT+4*q+i}")
            A(f"v_and_b32 v{2*i+1}, s62, v{XT+4*q+i}")
        for i in range(4): A(f"v_pk_add_f32 v[{2*i}:{2*i+1}], v[{2*i}:{2*i+1}], v[{XT+20+2*i}:{XT+21+2*i}]")
        A(f"s_waitcnt lgkmcnt({6-2*q})")
        for i in range(4): A(f"v_pk_add_f32 v[{2*i}:{2*i+1}], v[{2*i}:{2*i+1}], v[{32+8*q+2*i}:{33+8*q+2*i}]")
        for i in range(4): A(f"v_cvt_pk_bf16_f32 v{8+4*q+i}, v{2*i}, v{2*i+1}")
        A(f"s_mov_b32 s60, {q*8*2048:#x}")
        A(f"buffer_store_dwordx4 v[{8+4*q}:{11+4*q}], v{VX}, s[{SO}:{SO+3}], s60 offen")
    if "dbgtime" in OPT:
        A("s_memrealtime s[82:83]")
        A("s_load_dwordx2 s[64:65], s[0:1], 72")
        A("s_waitcnt lgkmcnt(0)")
        srd(A, 8, 54, 55, 0x100000, WS_STAMP + 0x40000)
        srd(A, 12, 64, 65, 64)
        A(f"s_lshl_b32 s60, s2, 3"); A(f"s_add_u32 s60, s60, s{S_WV}"); A("s_lshl_b32 s60, s60, 6")
        A("s_mov_b64 exec, 1")
        A("buffer_load_dwordx4 v[100:103], off, s[8:11], s60")
        A("buffer_load_dword v104, off, s[8:11], s60 offset:16")
        A("s_waitcnt vmcnt(0)")
        A("v_not_b32 v105, v100"); A("v_not_b32 v106, v104")
        A("v_mov_b32 v107, s68"); A("v_not_b32 v107, v107")
        A("v_mov_b32 v108, s70"); A("v_mov_b32 v109, s74"); A("v_mov_b32 v110, s82")
        for i, r in enumerate((105, 101, 104, 107, 108, 109, 110, 106, 100)):
            A(f"buffer_atomic_umax v{r}, off, s[12:15], 0 offset:{4*i}")
        A("s_endpgm")
    if "dbgptr" in OPT:
        A("s_load_dwordx16 s[64:79], s[0:1], 0")
        A("s_load_dwordx4 s[80:83], s[0:1], 64")
        A("s_load_dwordx2 s[84:85], s[0:1], 80")
        A("s_waitcnt lgkmcnt(0)")
        srd(A, 8, 82, 83, 64)
        for i in range(11): A(f"v_mov_b32 v{100+i}, s{64+2*i}")
        A("v_mov_b32 v111, s0")
        A("s_mov_b64 exec, 1")
        for q in range(3): A(f"buffer_store_dwordx4 v[{100+4*q}:{103+4*q}], off, s[8:11], 0 offset:{16*q}")
    st.flush(A, 54, 55, 100, f"s{S_WV}")
    A.label("L_k2_end")
    A("s_endpgm")
    A.label("L_k2_spin")
    A("s_add_u32 s61, s61, 1")
    A("s_cmp_gt_u32 s61, 0x10000")
    A("s_cbranch_scc1 L_k2_go")
    A("s_sleep 2")
    for q in range(4):
        A(f"buffer_load_dwordx4 v[{48+4*q}:{51+4*q}], v{VL}, s[{SP}:{SP+3}], s{S_PR} offen offset:{q*1024} sc1")
    A("s_branch L_k2_back")

def main():
    global STMOD
    ap = argparse.ArgumentParser()
    ap.add_argument("--stamp", action="store_true")
    ap.add_argument("-o", default=None)
    ap.add_argument("--opt", default="")
    ap.add_argument("--par", default="")
    ap.add_argument("--stmod", default="sc1")
    a = ap.parse_args()
    OPT.update(x for x in a.opt.split(",") if x)
    PAR.update(dict(x.split("=") for x in a.par.split(",") if x))
    STMOD = (" " + a.stmod.replace("+", " ")) if a.stmod else ""
    A = Asm()
    hdr = open("cdna_kernels/%s.s.ref" % NAME).read().split("\n")
    for line in hdr:
        if line.startswith(";") and "@launch" not in line and "Override" not in line and "grid=ceil" not in line:
            A.raw(line)
    A.raw("; @launch kernel=gemm1_kernel grid=(256,1,1) block=(256,1,1) lds=163840")
    A.raw("; @launch kernel=gemm2_kernel grid=(256,1,1) block=(256,1,1) lds=131072")
    A.raw('.amdgcn_target "amdgcn-amd-amdhsa--gfx950"\n.text')
    gen_k1(A, "gemm1_kernel", a.stamp)
    gen_k2(A, "gemm2_kernel", a.stamp)
    if not any(o.startswith(('k1no', 'k2no')) for o in OPT): check_hazards(A.L)
    A.raw('.section .rodata,"a"')
    kernel_desc(A, "gemm1_kernel", 512, 256)
    kernel_desc(A, "gemm2_kernel", 160 + 176, 160)
    out = a.o or "cdna_kernels/%s.s" % NAME
    open(out, "w").write(A.text())

if __name__ == "__main__":
    main()
```

```python
import sys, argparse

NAME = "parallel_sum__sliding_local_dilated__dense_activation_squared_relu__prompt"

WS_A2 = 4 << 20
A2_BYTES = 2048 * 4608 * 2
WS_PART = 32 << 20
WS_SIDE = 48 << 20
SD_FLAG, SD_Q, SD_RS, SD_P = 0, 0x10000, 0x20000, 0x40000
SD_BYTES = SD_P + 416 * 1024
WS_STAMP = 64 << 20

OPT = set()
PAR = {}
def par(k, d): return int(PAR.get(k, d))

class Asm:
    def __init__(self): self.L = []
    def __call__(self, s):
        for line in s.split("\n"):
            t = line.strip()
            self.L.append(t if t.endswith(":") else "  " + t)
    def label(self, s): self.L.append(s + ":")
    def raw(self, s): self.L.append(s)
    def text(self): return "\n".join(self.L) + "\n"

def vr(b, n=1, f="v"): return f"{f}{b}" if n == 1 else f"{f}[{b}:{b+n-1}]"
def ar(b, n=1): return vr(b, n, "a")
def sq(b): return f"s[{b}:{b+3}]"

def kernel_head(A, name):
    A.raw(f".globl {name}\n.p2align 8\n.type {name},@function\n{name}:")

def kernel_desc(A, name, nvgpr, accum, nsgpr=102):
    A.raw(f".p2align 6\n.amdhsa_kernel {name}\n  .amdhsa_next_free_vgpr {nvgpr}\n  .amdhsa_next_free_sgpr {nsgpr}\n"
          f"  .amdhsa_accum_offset {accum}\n  .amdhsa_group_segment_fixed_size 0\n  .amdhsa_kernarg_size 88\n"
          f"  .amdhsa_user_sgpr_count 2\n  .amdhsa_user_sgpr_kernarg_segment_ptr 1\n  .amdhsa_system_sgpr_workgroup_id_x 1\n"
          f"  .amdhsa_float_denorm_mode_32 3\n.end_amdhsa_kernel")

def srd(A, d, lo, hi, nbytes, add=0):
    if add:
        A(f"s_add_u32 s{d}, s{lo}, {add:#x}")
        A(f"s_addc_u32 s{d+1}, s{hi}, 0")
    else:
        A(f"s_mov_b32 s{d}, s{lo}")
        A(f"s_mov_b32 s{d+1}, s{hi}")
    if nbytes is not None: A(f"s_mov_b32 s{d+2}, {nbytes:#x}")
    A(f"s_mov_b32 s{d+3}, 0x20000")

class Stamp:
    def __init__(self, on, kidx): self.on, self.kidx, self.n = on, kidx, 0
    def text(self):
        if not self.on: return None
        t = f"s_memrealtime s[{68+2*self.n}:{69+2*self.n}]\ns_memtime s[{84+2*self.n}:{85+2*self.n}]"
        self.n += 1
        assert self.n <= 8
        return t
    def mark(self, A):
        t = self.text()
        if t: A(t)
    def flush(self, A, ws_lo, ws_hi, vtmp, s_wave):
        if not self.on: return
        self.mark(A)
        A("s_waitcnt lgkmcnt(0)")
        A(f"s_lshl_b32 s100, s2, 3")
        A(f"s_add_u32 s100, s100, {s_wave}")
        A(f"s_lshl_b32 s100, s100, 6")
        srd(A, 8, ws_lo, ws_hi, 0x100000, WS_STAMP + self.kidx * 0x40000)
        for i in range(16):
            A(f"v_mov_b32 v{vtmp+i}, s{68+2*i}" if i % 8 < self.n else f"v_mov_b32 v{vtmp+i}, 0")
        A(f"v_mov_b32 v{vtmp+16}, s100")
        A("s_mov_b64 exec, 1")
        for q in range(4):
            A(f"buffer_store_dwordx4 v[{vtmp+4*q}:{vtmp+4*q+3}], v{vtmp+16}, s[8:11], 0 offen offset:{16*q}")

class Score:
    def __init__(self, maxn):
        self.n = 0; self.idx = {}; self.done = 0; self.maxn = maxn
    def issue(self, tag=None):
        self.n += 1
        if tag is not None: self.idx[tag] = self.n
        assert self.n - self.done <= 63 or self.maxn == 15, "too many outstanding"
    def need(self, tags, slack=None):
        y = max(self.idx[t] for t in tags)
        if y <= self.done: return None
        N = self.n - y
        if slack is not None: N = min(N, slack)
        N = min(N, self.maxn)
        self.done = self.n - N
        return N
    def drain(self): self.done = self.n
    def skip(self, tag=None):
        if tag is not None: self.idx[tag] = 0

LG_SLACK = 8
class Stream:
    def __init__(self, vm, lg):
        self.mf = []; self.gaps = []; self.used = []; self.vm, self.lg = vm, lg
    def add_mfma(self, text, needs=()):
        self.mf.append((text, list(needs))); self.gaps.append([]); self.used.append(0)
        return len(self.mf) - 1
    def place(self, i0, kind, text, gives=None, needs=(), cap=1, spill=False):
        i = i0
        while i < len(self.mf) and self.used[i] >= cap: i += 1
        if i >= len(self.mf):
            assert spill, "no free gap"
            i = len(self.mf) - 1
        self.used[i] += 1
        self.gaps[i].append((kind, text, gives, list(needs)))
        return i
    def waits(self, needs, out, lgz=False):
        w = []
        lt = [t for c, t in needs if c == "lg"]; vt = [t for c, t in needs if c == "vm"]
        if lgz:
            if self.lg.done < self.lg.n: w.append("lgkmcnt(0)")
            self.lg.drain()
        elif lt:
            n = self.lg.need(lt, slack=LG_SLACK)
            if n is not None: w.append(f"lgkmcnt({n})")
        if vt:
            n = self.vm.need(vt)
            if n is not None: w.append(f"vmcnt({n})")
        if w: out.append("s_waitcnt " + " ".join(w))
    def emit(self, pfx):
        out = []
        for (text, needs), gap in zip(self.mf, self.gaps):
            self.waits(needs, out)
            if pfx + "nomfma" not in OPT: out.append(text)
            for kind, t, gives, nd in gap:
                if kind == "ds" and pfx + "nords" in OPT: self.lg.skip(gives); continue
                if kind == "vmA" and pfx + "noA" in OPT: self.vm.skip(gives); continue
                if kind == "vmD" and pfx + "noD" in OPT: self.vm.skip(gives); continue
                if kind in ("bar", "barv"):
                    self.waits(nd, out, lgz=(kind == "bar"))
                    out.append("s_barrier")
                    continue
                self.waits(nd, out)
                if kind == "ds": self.lg.issue(gives)
                if kind.startswith("vm"): self.vm.issue(gives)
                out.append(t)
        return out

def check_hazards(lines):
    import re
    def regs(tok):
        tok = tok.strip().strip("|").lstrip("-")
        m = re.fullmatch(r"([va])(\d+)", tok)
        if m: return {(m.group(1), int(m.group(2)))}
        m = re.fullmatch(r"([va])\[(\d+):(\d+)\]", tok)
        if m: return {(m.group(1), i) for i in range(int(m.group(2)), int(m.group(3)) + 1)}
        return set()
    hist = []
    pos = 0
    for ln in lines:
        t = ln.strip()
        if not t or t.endswith(":") or t.startswith(";") or t.startswith("."): continue
        mn = t.split()[0]
        ops = [o.split()[0] if o.split() else o for o in t[len(mn):].split(",")]
        R = [regs(o) for o in ops]
        if mn == "s_nop":
            pos += int(ops[0]) + 1; continue
        is_mfma = mn.startswith("v_mfma"); is_valu = mn.startswith("v_") and not is_mfma
        is_mem = mn.startswith("buffer_") or mn.startswith("ds_")
        if is_mfma or is_valu or is_mem:
            allr = set().union(*R) if R else set()
            for kind, wr, sc, p in hist[-24:]:
                d = pos - p - 1
                if kind == "mfma":
                    if is_mfma:
                        if (R[1] | R[2]) & wr and d < 8: raise Exception(f"hazard MFMA->MFMA AB: {t}")
                        if R[3] & wr and R[3] != wr and d < 6: raise Exception(f"hazard MFMA->MFMA C overlap: {t}")
                    else:
                        if allr & wr and d < 8: raise Exception(f"hazard MFMA->{mn} d={d}: {t}")
                        if is_valu and R[0] & sc and d < 3: raise Exception(f"hazard MFMA srcC WAR: {t}")
                elif kind == "valu":
                    if is_mfma and (R[1] | R[2] | R[3]) & wr and d < 2: raise Exception(f"hazard VALU->MFMA: {t}")
                    if is_valu and ("dpp" in mn or "permlane" in mn) and allr & wr and d < 2: raise Exception(f"hazard VALU->DPP: {t}")
                    if mn.startswith("v_readfirstlane") and R[1] & wr and d < 1: raise Exception(f"hazard VALU->readlane: {t}")
                elif kind == "trans":
                    if is_mfma and (R[1] | R[2] | R[3]) & wr and d < 2: raise Exception(f"hazard VALU->MFMA: {t}")
                    if is_valu and set().union(*R[1:]) & wr and d < 1: raise Exception(f"hazard trans->VALU: {t}")
                elif kind == "store":
                    if is_valu and R[0] & wr and d < 2: raise Exception(f"hazard store data WAR: {t}")
            if is_mfma: hist.append(("mfma", R[0], R[3], pos))
            elif is_valu:
                wr = set(R[0])
                if "swap" in mn: wr |= R[1]
                tr = any(mn.startswith(x) for x in ("v_exp", "v_rcp", "v_rsq", "v_sqrt", "v_log"))
                hist.append(("trans" if tr else "valu", wr, set(), pos))
            elif mn.startswith("buffer_store_dwordx4"): hist.append(("store", R[0], set(), pos))
        pos += 1

RING0 = 2048
S_SRDA, S_SRDW, S_SRDO, S_SRDS, S_SRDB, S_SRDC, S_SRDP, S_SRDT = 4, 8, 12, 16, 28, 32, 36, 40
S_C, S_SOFW, S_SOFW2, S_M0B, S_M0A, S_W, S_MB, S_NT = 20, 21, 22, 23, 24, 25, 26, 27
S_CF, S_CHF = 44, 45
S_X0 = 46
S_CODE = 48
S_AROW = 62
V_AD, V_AR, V_L16, V_D, V_R, V_RH, V_T = 224, 226, 228, 229, 232, 240, 244
A_CS, A_P, A_Q, A_SEL, A_DUM, A_RAW, A_ONE = 136, 136, 200, 220, 224, 228, 244
A_TAG, A_NEG = 226, 248

RSQ, RSK = 212, 216

class K1Var:
    def __init__(self, kind):
        self.kind = kind
        if kind == "w1": self.NJ, self.NT, self.CH, self.pitch = 14, 4, 7168, 7168
        else: self.NJ, self.NT, self.CH, self.pitch = 12, 5, 6144, 6144
        self.SL = 4 * self.CH
        self.ASL = self.NT * 2048
        self.ABASE = RING0 + 3 * self.SL
        self.AA = 56
    def wfrag(self, j, ks): return (j % (self.NJ // 2)) * 8 + ks * 4
    def afrag(self, st, ks, t): return self.AA + ((st * 2 + ks) * self.NT + t) * 4
    def acc(self, t, j):
        if t < 4: return (j * 4 + t) * 4
        return 192 + (0 if j == 4 else 4)
    def groups(self):
        return [(j, [0, 1, 2, 3] + ([4] if self.kind == "qkv" and j in (4, 8) else [])) for j in range(self.NJ)]
    def mm(self, t, j, w, x, zero=False):
        c = vr(self.acc(t, j), 4)
        cin = "0" if zero else c
        if self.kind == "qkv" and j >= 8: w, x = x, w
        return f"v_mfma_f32_16x16x32_bf16 {c}, {w}, {x}, {cin}"
    def mfma(self, s, ks, t, j, zero=False):
        return self.mm(t, j, ar(self.wfrag(j, ks), 4), ar(self.afrag(s % 2, ks, t), 4), zero)
    def corr(self, t, j): return self.mm(t, j, ar(A_P + 4 * j, 4), ar(A_Q + 4 * t, 4))
    def read(self, s, ks, j, p):
        st, so = divmod(s % 3, 2)
        base = RING0 + so * self.SL + ks * 2 * self.CH
        d = ar(self.wfrag(j, ks) + 2 * p, 2)
        if j < 12:
            b, jj = divmod(j, 4)
            return f"ds_read_b64_tr_b16 {d}, v{V_R + st*4 + jj} offset:{base + b*1024 + p*512}"
        return f"ds_read_b64_tr_b16 {d}, v{V_RH + st*2 + (j-12)} offset:{base + p*256}"
    def aread(self, s, ks, t):
        return f"ds_read_b128 {ar(self.afrag(s % 2, ks, t), 4)}, v{V_AR+ks} offset:{(s % 2)*self.ASL + t*2048}"
    def admas(self, s, t):
        out = []
        for u in range(2):
            tgt = (s % 2) * self.ASL + t * 2048 + u * 1024
            out.append((f"s_add_u32 m0, s{S_M0A}, {tgt + 2048 - s*128:#x}",
                        f"buffer_load_dwordx4 v{V_AD+u}, {sq(S_SRDA)}, s{S_AROW+t} offen offset:{s*128} lds"))
        return out
    def dmas(self, s):
        out = []
        base = RING0 + (s % 3) * self.SL
        W = sq(S_SRDW)
        for rg in range(2):
            for b in range(3):
                tgt = base + rg * 3072 + b * 1024
                if self.kind == "w1": imm, so = b * 128, S_SOFW
                else: imm, so = (b * 2048, S_SOFW) if b < 2 else (0, S_SOFW2)
                out.append((f"s_add_u32 m0, s{S_M0B}, {tgt - imm:#x}",
                            f"buffer_load_dwordx4 v{V_D+rg}, {W}, s{so} offen offset:{imm} lds"))
        if self.kind == "w1":
            out.append((f"s_add_u32 m0, s{S_M0B}, {base + 6144:#x}",
                        f"buffer_load_dwordx4 v{V_D+2}, {W}, s{S_SOFW} offen lds"))
        return out
    def sof_adv(self):
        r = [f"s_add_u32 s{S_SOFW}, s{S_SOFW}, {64*self.pitch:#x}"]
        if self.kind == "qkv": r.append(f"s_add_u32 s{S_SOFW2}, s{S_SOFW2}, {64*self.pitch:#x}")
        return r

def xlane_sum2(A, a, b):
    for r in (8, 4, 2, 1):
        A("s_nop 0")
        for v in (a, b): A(f"v_add_f32_dpp v{v}, v{v}, v{v} row_ror:{r} row_mask:0xf bank_mask:0xf")
    for sw in ("v_permlane16_swap_b32", "v_permlane32_swap_b32"):
        for v in (a, b): A(f"v_mov_b32 v{v+1}, v{v}")
        A("s_nop 0")
        for v in (a, b): A(f"{sw} v{v}, v{v+1}")
        for v in (a, b): A(f"v_add_f32 v{v}, v{v}, v{v+1}")

def k1_variant(A1, A2_, V, stamp):
    A = A1
    kind = V.kind
    st = Stamp(stamp, 1); st.n = 1
    NS, H, CH = 16, V.NJ // 2, V.CH
    lane, l16, g = 100, 101, 102
    T = 104
    X = S_X0
    if kind == "w1":
        A(f"s_mul_i32 s{X}, s{S_NT}, 448")
        A(f"s_and_b32 s{X+1}, s{S_NT}, 1")
        A(f"s_lshl_b32 s{X+2}, s{X+1}, 6")
        A(f"s_add_u32 s{S_CF}, s{X}, s{X+2}")
        A(f"s_xor_b32 s{X+2}, s{X+1}, 1")
        A(f"s_mul_i32 s{X+2}, s{X+2}, 384")
        A(f"s_add_u32 s{S_CHF}, s{X}, s{X+2}")
    else:
        A(f"s_lshl_b32 s{S_CF}, s{S_NT}, 7")
    r, pc, x, y = T, T + 1, T + 2, T + 3
    A(f"v_lshrrev_b32 v{r}, 3, v{lane}")
    A(f"v_bfe_u32 v{x}, v{lane}, 1, 2")
    A(f"v_bfe_u32 v{y}, v{lane}, 4, 1")
    A(f"v_xor_b32 v{x}, v{x}, v{y}")
    A(f"v_and_b32 v{pc}, 1, v{lane}")
    A(f"v_mul_u32_u24 v{r}, {V.pitch}, v{r}")
    A(f"v_lshl_add_u32 v{y}, v{pc}, 4, v{r}")
    A(f"s_mul_i32 s{X+3}, s{S_W}, {16*V.pitch}")
    A(f"s_add_u32 s{X+4}, s{X+3}, s{S_CF}")
    A(f"v_lshl_add_u32 v{V_D}, v{x}, 5, v{y}")
    A(f"v_add_u32 v{V_D}, s{X+4}, v{V_D}")
    A(f"v_xor_b32 v{x}, 2, v{x}")
    A(f"v_lshl_add_u32 v{V_D+1}, v{x}, 5, v{y}")
    A(f"s_add_u32 s{X+4}, s{X+4}, {8*V.pitch}")
    A(f"v_add_u32 v{V_D+1}, s{X+4}, v{V_D+1}")
    if kind == "w1":
        A(f"v_lshrrev_b32 v{T+4}, 2, v{lane}")
        A(f"v_mul_u32_u24 v{T+4}, {V.pitch}, v{T+4}")
        A(f"v_bfe_u32 v{T+5}, v{lane}, 1, 1")
        A(f"v_bfe_u32 v{T+6}, v{lane}, 5, 1")
        A(f"v_xor_b32 v{T+5}, v{T+5}, v{T+6}")
        A(f"v_lshl_add_u32 v{T+4}, v{T+5}, 5, v{T+4}")
        A(f"v_lshl_add_u32 v{T+4}, v{pc}, 4, v{T+4}")
        A(f"s_add_u32 s{X+4}, s{X+3}, s{S_CHF}")
        A(f"v_add_u32 v{V_D+2}, s{X+4}, v{T+4}")
    A(f"s_mul_i32 s{S_M0B}, s{S_W}, {CH}")
    A(f"s_mul_i32 s{S_M0A}, s{S_W}, {2*V.ASL}")
    A(f"s_add_u32 s{S_M0A}, s{S_M0A}, {V.ABASE - 2048}")
    VPW, VPX = V_T + 4, V_T + 5
    rounds = [x.split(":") for x in PAR.get("k1r", "p:0:4").split("+") if x]
    if rounds:
        A(f"v_lshlrev_b32 v{VPW}, 7, v{lane}")
        A(f"v_lshrrev_b32 v{VPX}, 1, v{lane}")
        A(f"v_lshlrev_b32 v{VPX}, 7, v{VPX}")
        A(f"v_lshl_add_u32 v{VPX}, v{pc}, 11, v{VPX}")
        A(f"s_and_b32 s{S_C}, s2, 127")
        A(f"s_lshl_b32 s{S_C}, s{S_C}, 2")
        A(f"s_add_u32 s{S_C}, s{S_C}, s{S_W}")
    def pfr(s0, n):
        nl = V.pitch // 128 * n // 8
        def ex(k):
            v = (1 << k) - 1
            return f"s_mov_b32 exec_lo, {v & 0xffffffff:#x}\ns_mov_b32 exec_hi, {v >> 32:#x}\n"
        w_ = (f"s_mul_i32 s3, s{S_C}, {nl*128}\ns_add_u32 s3, s3, {64*s0*V.pitch:#x}\n" + ex(nl) +
              f"buffer_load_dword a{A_DUM}, v{VPW}, {sq(S_SRDW)}, s3 offen\ns_mov_b64 exec, -1")
        x_ = ex(2 * n) + f"buffer_load_dword a{A_DUM}, v{VPX}, {sq(S_SRDA)}, s67 offen offset:{s0*128}\ns_mov_b64 exec, -1"
        return [w_, x_]
    VSL, VSX = 200, 201
    slow = [x.split(":") for x in PAR.get("k1slow" if kind == "qkv" else "k1sloww", "p:0:4+r:4:12+6:10:6" if kind == "qkv" else "").split("+") if x]
    slowx = PAR.get("k1slowx", "")
    S_SLOT = 55
    LPR = 4 if kind == "qkv" else 2
    if slow:
        A(f"v_lshrrev_b32 v{VSL}, {2 if kind == 'qkv' else 1}, v{lane}")
        A(f"v_mul_u32_u24 v{VSL}, {V.pitch}, v{VSL}")
        A(f"s_bfe_u32 s{X+5}, s2, 0x20001")
        if kind == "qkv":
            A(f"v_and_b32 v{T+4}, 3, v{lane}")
            A(f"v_min_u32 v{T+4}, 2, v{T+4}")
            A(f"v_lshl_add_u32 v{VSL}, v{T+4}, 11, v{VSL}")
            A(f"s_lshl_b32 s{X+5}, s{X+5}, 9")
            A(f"s_add_u32 s{X+5}, s{X+5}, 384")
            A(f"s_bitcmp1_b32 s2, 1")
            A(f"s_cselect_b32 s{X+5}, 0x7000000, s{X+5}")
        else:
            A(f"v_lshl_add_u32 v{VSL}, v{pc}, 10, v{VSL}")
            A(f"s_lshl_b32 s{X+5}, s{X+5}, 11")
            A(f"s_min_u32 s{X+5}, s{X+5}, 5120")
            A(f"s_add_u32 s{X+5}, s{X+5}, 384")
        A(f"v_add_u32 v{VSL}, s{X+5}, v{VSL}")
        A(f"s_bfe_u32 s{S_SLOT}, s2, 0x40003")
        A(f"s_lshl_b32 s{S_SLOT}, s{S_SLOT}, 2")
        A(f"s_add_u32 s{S_SLOT}, s{S_SLOT}, s{S_W}")
    if slowx:
        A(f"v_lshlrev_b32 v{VSX}, 10, v{lane}")
        A(f"s_lshr_b32 s{X+5}, s2, 3")
        A(f"s_lshl_b32 s{X+5}, s{X+5}, 2")
        A(f"s_add_u32 s{X+5}, s{X+5}, s{S_W}")
        A(f"s_lshl_b32 s{X+5}, s{X+5}, 14")
        A(f"s_and_b32 s{X+6}, s2, 1")
        A(f"s_lshl_b32 s{X+6}, s{X+6}, 21")
        A(f"s_add_u32 s{X+5}, s{X+5}, s{X+6}")
        A(f"v_add_u32 v{VSX}, s{X+5}, v{VSX}")
    def slowpf(s0, n):
        v = (1 << (LPR * n)) - 1
        return (f"s_mul_i32 s3, s{S_SLOT}, {n*V.pitch}\ns_add_u32 s3, s3, {64*s0*V.pitch:#x}\n"
                f"s_mov_b32 exec_lo, {v & 0xffffffff:#x}\ns_mov_b32 exec_hi, {v >> 32:#x}\n"
                f"buffer_load_dword a{A_DUM}, v{VSL}, {sq(S_SRDW)}, s3 offen\ns_mov_b64 exec, -1")
    def pro_R(where):
        for wh, s0, n in slow:
            if wh == where: A1(slowpf(int(s0), int(n))); vm.issue()
        if slowx == where:
            A1(f"s_mov_b64 exec, 0xffff\nbuffer_load_dword a{A_DUM}, v{VSX}, {sq(S_SRDA)}, 0 offen offset:384\ns_mov_b64 exec, -1"); vm.issue()
        for wh, s0, n in rounds:
            if wh == where:
                for b_ in pfr(int(s0), int(n)): A1(b_); vm.issue()
    A("s_waitcnt lgkmcnt(0)")
    if "promarks" in OPT: st.mark(A)
    A(f"s_mov_b32 s{S_SRDA+2}, {4 << 20:#x}"); A(f"s_mov_b32 s{S_SRDA+3}, 0x20000")
    if kind == "w1": srd(A, S_SRDW, 56, 57, 1024 * 7168)
    else: srd(A, S_SRDW, 60, 61, 1024 * 6144)
    vm, lg = Score(63), Score(15)
    def pro_A(s):
        for t in range(V.NT):
            for u, (m0, d) in enumerate(V.admas(s, t)):
                A1(m0); A1("s_nop 0"); A1(d); vm.issue(("A", s, t) if u == 1 else None)
    def pro_W(s):
        dm = V.dmas(s)
        for n, (m0, d) in enumerate(dm):
            A1(m0); A1("s_nop 0"); A1(d); vm.issue(("D", s) if n == len(dm) - 1 else None)
        for x_ in V.sof_adv(): A1(x_)
    if kind == "w1":
        A(f"s_or_b32 s3, s2, s{S_W}")
        A("s_cmp_lg_u32 s3, 0")
        A("s_cbranch_scc1 L_k1_notag")
        srd(A, S_SRDC, 12, 13, 8)
        A("s_or_b32 s18, s18, 1")
        A(f"v_mov_b32 v{T+4}, s18"); A(f"v_mov_b32 v{T+5}, s19")
        A(f"buffer_store_dwordx2 v[{T+4}:{T+5}], v{V_L16}, {sq(S_SRDC)}, 0 offen sc1")
        A.label("L_k1_notag")
    pro_R("p")
    pro_W(0); pro_A(0)
    pro_R("q")
    if "promarks" in OPT: st.mark(A)
    if "late1" not in OPT: pro_W(1); pro_A(1)
    else: pro_W(1)
    pro_R("r")
    if "promarks" in OPT: st.mark(A)
    A(f"s_branch L_k1_main_{kind}")
    A = A2_
    A.label(f"L_k1_main_{kind}")
    WSL, WSH = 14, 15
    A(f"s_mov_b32 s100, s{WSL}"); A(f"s_mov_b32 s101, s{WSH}")
    srd(A, S_SRDC, 12, 13, 8)
    srd(A, S_SRDT, 100, 101, None, WS_SIDE + SD_FLAG)
    A(f"s_cmp_eq_u32 s{S_W}, 0")
    A(f"s_cselect_b32 s{S_SRDT+2}, 0x8000, 0")
    srd(A, S_SRDS, 100, 101, SD_BYTES, WS_SIDE)
    srd(A, S_SRDO, 100, 101, A2_BYTES, WS_A2)
    if kind == "w1":
        srd(A, S_SRDB, 58, 59, None)
        A(f"s_cmp_eq_u32 s{S_MB}, 0")
        A(f"s_cselect_b32 s{S_SRDB+2}, 7168, 0")
    A("s_mov_b32 s0, s38"); A("s_mov_b32 s1, s39")
    A(f"s_mov_b32 s{S_SRDP+2}, {3584*2048:#x}")
    A(f"s_mov_b32 s{S_SRDP+3}, 0x20000")
    A("s_mov_b32 s58, s100"); A("s_mov_b32 s59, s101")
    A(f"s_lshl_b32 s100, s2, 2")
    A(f"s_add_u32 s100, s100, s{S_W}")
    VCA, VCS, VB1, VDC, VW = V_T, V_T + 1, V_T + 2, V_T + 4, V_T + 8
    A(f"v_and_b32 v{T+4}, 7, v{lane}")
    A(f"v_lshl_add_u32 v{VCA}, v{T+4}, 4, v{r}")
    if kind == "w1":
        A(f"s_lshl_b32 s{X+5}, s{S_W}, 7")
        A(f"s_add_u32 s{X+5}, s{X+5}, s{X}")
        A(f"v_lshlrev_b32 v{VB1}, 4, v{T+4}")
        A(f"v_lshl_add_u32 v{VB1}, v{g}, 3, v{VB1}")
        A(f"v_add_u32 v{VB1}, s{X+5}, v{VB1}")
        A(f"s_lshr_b32 s{X+6}, s{X+5}, 5")
        A(f"s_add_u32 s{X+6}, s{X+6}, 192")
    else:
        A(f"s_min_u32 s{X+5}, s{S_W}, 2")
        A(f"s_lshl_b32 s{X+5}, s{X+5}, 11")
        A(f"s_add_u32 s{X+5}, s{X+5}, s{S_CF}")
        A(f"v_mov_b32 v{VB1}, 0"); A(f"v_mov_b32 v{VB1+1}, 0"); vm.skip("B1")
        A(f"s_lshr_b32 s{X+6}, s{X+5}, 5")
    A(f"s_and_b32 s{X+7}, s{S_MB}, 3")
    A(f"s_lshl_b32 s{X+7}, s{X+7}, 1")
    A(f"s_lshr_b32 s3, s{S_MB}, 2")
    A(f"s_add_u32 s{X+7}, s{X+7}, s3")
    A(f"s_mul_i32 s{X+7}, s{X+7}, {128*V.pitch:#x}")
    A(f"s_add_u32 s{X+7}, s{X+7}, s{X+5}")
    S_CSL, S_CSS = X + 7, X + 6
    A(f"s_lshl_b32 s{S_CSS}, s{S_CSS}, 10")
    A(f"s_lshr_b32 s{X+5}, s{S_MB}, 1")
    A(f"s_lshl_b32 s{X+5}, s{X+5}, 8")
    A(f"s_add_u32 s{S_CSS}, s{S_CSS}, s{X+5}")
    A(f"s_and_b32 s{X+5}, s{S_MB}, 1")
    A(f"s_lshl_b32 s{X+5}, s{X+5}, 3")
    A(f"s_add_u32 s{S_CSS}, s{S_CSS}, s{X+5}")
    A(f"s_add_u32 s{S_CSS}, s{S_CSS}, {SD_P:#x}")
    A(f"v_lshrrev_b32 v{T+5}, 1, v{T+4}")
    A(f"v_lshlrev_b32 v{VCS}, 10, v{T+5}")
    A(f"v_lshl_add_u32 v{VCS}, v{pc}, 7, v{VCS}")
    A(f"v_lshl_add_u32 v{VCS}, v{g}, 6, v{VCS}")
    if kind == "w1":
        A(f"s_cmp_eq_u32 s{S_W}, 3")
        A(f"s_cselect_b32 s{X+5}, 0x2c, 0x28")
    else:
        A(f"s_mov_b32 s{X+5}, 0x28")
    A(f"v_and_b32 v{T+5}, s{X+5}, v{lane}")
    A(f"v_lshl_add_u32 v{VCS}, v{T+5}, 24, v{VCS}")
    A(f"v_lshlrev_b32 v{T+5}, 4, v{pc}")
    A(f"v_mov_b32 v{T+6}, 0x3f80")
    A(f"v_lshlrev_b32 v{T+6}, v{T+5}, v{T+6}")
    A(f"v_lshrrev_b32 v{T+5}, 1, v{l16}")
    for q in range(4):
        A(f"v_cmp_eq_u32 vcc, {q}, v{T+5}")
        A("s_nop 1")
        A(f"v_cndmask_b32 v{T+7}, 0, v{T+6}, vcc")
        A(f"v_accvgpr_write_b32 a{A_SEL+q}, v{T+7}")
    A(f"v_xor_b32 v{T+4}, v{T+5}, v{g}")
    A(f"v_lshlrev_b32 v{T+5}, 7, v{l16}")
    A(f"v_add_u32 v{T+5}, s{S_M0A}, v{T+5}")
    A(f"v_add_u32 v{T+5}, 2048, v{T+5}")
    A(f"v_lshl_add_u32 v{V_AR}, v{T+4}, 4, v{T+5}")
    A(f"v_xor_b32 v{T+4}, 4, v{T+4}")
    A(f"v_lshl_add_u32 v{V_AR+1}, v{T+4}, 4, v{T+5}")
    rp, c, sw, b = T + 4, T + 5, T + 6, T + 7
    A(f"v_bfe_u32 v{rp}, v{lane}, 2, 2")
    A(f"v_and_b32 v{c}, 3, v{lane}")
    A(f"v_bfe_u32 v{sw}, v{lane}, 3, 2")
    if kind == "qkv": A(f"v_xor_b32 v{sw}, s{S_W}, v{sw}")
    A(f"v_lshrrev_b32 v{b}, 5, v{lane}")
    A(f"v_mul_u32_u24 v{b}, {CH}, v{b}")
    A(f"v_lshl_add_u32 v{b}, v{c}, 3, v{b}")
    A(f"v_bfe_u32 v{T+8}, v{lane}, 4, 1")
    A(f"v_mul_u32_u24 v{T+9}, 3072, v{T+8}")
    A(f"v_lshl_add_u32 v{T+9}, v{rp}, 7, v{T+9}")
    A(f"v_add_u32 v{T+9}, v{T+9}, v{b}")
    for jj in range(4):
        A(f"v_xor_b32 v{T+10}, {jj}, v{sw}")
        A(f"v_lshl_add_u32 v{V_R+jj}, v{T+10}, 5, v{T+9}")
        A(f"v_add_u32 v{V_R+4+jj}, {2*V.SL}, v{V_R+jj}")
    if kind == "w1":
        A(f"v_lshl_add_u32 v{T+9}, v{T+8}, 3, v{rp}")
        A(f"v_lshl_add_u32 v{T+9}, v{T+9}, 6, v{b}")
        A(f"v_add_u32 v{T+9}, 6144, v{T+9}")
        for jj in range(2):
            A(f"v_xor_b32 v{T+10}, {jj}, v{T+8}")
            A(f"v_lshl_add_u32 v{V_RH+jj}, v{T+10}, 5, v{T+9}")
            A(f"v_add_u32 v{V_RH+2+jj}, {2*V.SL}, v{V_RH+jj}")
    S_HI = X + 8
    A(f"s_mov_b32 s{S_HI}, 0xffff0000")
    for q in range(4): A(f"v_accvgpr_write_b32 a{A_NEG+q}, -1")
    A(f"v_mov_b32 v{T+4}, 0x3f803f80")
    for q in range(4): A(f"v_accvgpr_write_b32 a{A_ONE+q}, v{T+4}")
    A(f"v_cmp_eq_u32 vcc, 1, v{pc}")
    if "promarks" in OPT: st.mark(A)
    n = vm.need([("D", 0), ("A", 0, V.NT - 1)])
    A(f"s_waitcnt vmcnt({n})")
    if "promarks" in OPT: st.mark(A)
    A("s_barrier")
    st.mark(A)
    for ks in range(2): A(V.aread(0, ks, 0)); lg.issue(("AF", 0, 0))
    for q in range(4): A(V.read(0, q >> 1, 0, q & 1)); lg.issue(("W", 0, 0))
    for t in range(1, V.NT):
        for ks in range(2): A(V.aread(0, ks, t)); lg.issue(("AF", 0, t))
    S = Stream(vm, lg)
    groups = V.groups()
    first, last, fin = {}, {}, {}
    for s in range(NS):
        n = 0
        for j, ts in groups:
            ts = list(ts) if j % 2 == 0 else list(reversed(ts))
            if 4 in ts: ts = [4, 0, 1, 2, 3]
            for t in ts:
                kk = (0, 1) if n % 2 == 0 else (1, 0)
                for ks in kk:
                    needs = [("lg", ("W", s, j)), ("lg", ("AF", s, t))]
                    idx = S.add_mfma(V.mfma(s, ks, t, j, zero=(s == 0 and ks == kk[0])), needs)
                    first.setdefault((s, j), idx); last[(s, j)] = idx
                    if s == NS - 1 and ks == kk[0]:
                        S.add_mfma(V.corr(t, j), [("vm", ("P", j)), ("vm", ("Q", t))])
                fin[(t, j)] = idx
                n += 1
    i = 0
    for j in range(1, H):
        for q in range(4):
            i = S.place(i, "ds", V.read(0, q >> 1, j, q & 1), gives=("W", 0, j) if q == 3 else None) + 1
    bar = {}
    SIG0, SIG, POLL, CHK = par("k1sig0", 5), par("k1sig", 8), par("k1poll", 12), par("k1chk", 13)
    for s in range(NS):
        if s + 1 < NS:
            bar[s] = last[(s, H)]
            S.gaps[bar[s]].append(("bar", None, None, [("vm", ("D", s + 1))] + ([("vm", "CS")] if s == SIG else []) + ([("vm", "ST")] if s == SIG0 else [])))
        for j, _ in groups:
            s2, j2 = (s, j + H) if j < H else (s + 1, j - H)
            if s2 >= NS: continue
            i = last[(s, j)]
            step = 1 if (j == H - 1 or (s == 0 and j < H)) else 2
            for q in range(4):
                i = S.place(i, "ds", V.read(s2, q >> 1, j2, q & 1), gives=("W", s2, j2) if q == 3 else None) + step
    cur = 0
    def dma_seq(i0, i1, lst, vcap=1):
        nonlocal cur
        i0 = max(i0, cur)
        n = len(lst)
        for k, (pre, d, kd, gives, needs) in enumerate(lst):
            tgt = max(cur, i0 + (k * (i1 - i0)) // n)
            i = S.place(tgt, "s", pre, cap=vcap + 1)
            cur = S.place(i + 1, kd, d, gives=gives, needs=needs, cap=vcap)
    def merge(a, b):
        if not b: return a
        out, k = [], 0
        for i, x in enumerate(a):
            out.append(x)
            while k < len(b) and (k + 1) * len(a) <= (i + 1) * len(b): out.append(b[k]); k += 1
        return out + b[k:]
    def wlist(s):
        dm = V.dmas(s)
        return [(m0, d, "vmD", ("D", s) if n == len(dm) - 1 else None, []) for n, (m0, d) in enumerate(dm)]
    def alist(s, dep=True):
        return [(m0, d, "vmA", ("A", s, t) if u == 1 else None, [("lg", ("AF", s - 2, t))] if dep else [])
                for t in range(V.NT) for u, (m0, d) in enumerate(V.admas(s, t))]
    def areads(s, i0, i1):
        for t in range(V.NT):
            i = i0 + (t * (i1 - i0)) // V.NT
            i = S.place(i, "ds", V.aread(s, 0, t), needs=[("vm", ("A", s, t))])
            S.place(i + 1, "ds", V.aread(s, 1, t), gives=("AF", s, t))
    extra = {}
    cs = [(f"s_add_u32 s60, s{S_CSL}, {i*8*V.pitch:#x}",
           f"buffer_load_dwordx4 {ar(A_CS+4*i, 4)}, v{VCA}, {sq(S_SRDW)}, s60 offen", "vmX", ("CL", i), []) for i in range(16)]
    cs0, csn = par("cs0", 1), par("csn", 4)
    slots = [(s_, h_) for s_ in range(cs0, cs0 + csn) for h_ in range(2)]
    for i_, it in enumerate(cs): extra.setdefault(slots[i_ * len(slots) // 16], []).append(it)
    if kind == "w1":
        extra.setdefault((cs0 + 1, 0), []).append(("s_nop 0", f"buffer_load_dwordx2 v[{VB1}:{VB1+1}], v{VB1}, {sq(S_SRDB)}, 0 offen", "vmX", "B1", []))
    rows = [("s_nop 0", f"buffer_load_dwordx4 {ar(A_RAW+4*q, 4)}, v{V_L16}, {sq(S_SRDA)}, s67 offen offset:{q*1024}", "vmX", "ROWS" if q == 3 else None, []) for q in range(4)]
    cpf = []
    if "nocpf" not in OPT:
        cpf = [(f"s_getpc_b64 s[{S_CODE}:{S_CODE+1}]\nL_k1_pc_{kind}:\ns_mov_b32 s{S_CODE+2}, L_k1_spin_{kind}-L_k1_pc_{kind}\ns_mov_b32 s{S_CODE+3}, 0x20000\n"
                f"s_bfe_u32 s60, s2, 0x20003\ns_lshl_b32 s60, s60, 2\ns_add_u32 s60, s60, s{S_W}\ns_mul_i32 s60, s60, {par('cpfb', 2560)}\n"
                f"v_lshlrev_b32 v{VW}, 3, v{V_L16}\ns_mov_b64 exec, {hex((1 << (par('cpfb', 2560) // 128)) - 1)}\n"
                f"buffer_load_dword a{A_DUM}, v{VW}, {sq(S_CODE)}, s60 offen\ns_mov_b64 exec, -1")]
    def addx(key, lst): extra.setdefault(key, []).extend(lst)
    pf = []
    for i in range(9):
        pre = f"s_lshl_b32 s60, s100, 10\ns_add_u32 s60, s60, {(i if i < 7 else i - 7) << 20:#x}"
        if i == 0: pre = f"v_lshlrev_b32 v{VCA}, 3, v{V_L16}\n" + pre
        if i == 7: pre = f"s_mov_b32 s{S_SRDP}, s0\ns_mov_b32 s{S_SRDP+1}, s1\ns_mov_b32 s{S_SRDP+2}, {1024*2048:#x}\n" + pre
        pf.append((pre, f"s_mov_b64 exec, 0xff\nbuffer_load_dword a{A_DUM}, v{VCA}, {sq(S_SRDP)}, s60 offen\ns_mov_b64 exec, -1", "vmX", None, []))
    if "nopf" not in OPT:
        p0 = 2 * (cs0 + csn); p1 = 2 * CHK + 1
        for i_, it in enumerate(pf):
            h_ = p0 + i_ * (p1 - p0) // len(pf)
            addx((h_ // 2, h_ % 2), [it])
    cl = []
    for q in range(4):
        pre = "s_lshl_b32 s60, s100, 12"
        if q == 0:
            pre = (f"s_add_u32 s{S_SRDB}, s58, {WS_PART:#x}\ns_addc_u32 s{S_SRDB+1}, s59, 0\ns_mov_b32 s{S_SRDB+2}, {4 << 20:#x}\n"
                   f"s_mov_b32 s{S_SRDB+3}, 0x20000\n" + pre)
        cl.append((pre, f"buffer_store_dwordx4 {ar(A_NEG,4)}, v{V_L16}, {sq(S_SRDB)}, s60 offen offset:{q*1024} sc1", "vmS", None, []))
    if "noclr" not in OPT:
        for i_, it in enumerate(cl): addx((par("k1clr", 9) + i_, 0), [it])
    for wh, s0, n in slow:
        if wh.isdigit(): addx((int(wh), 0), [("s_nop 0", slowpf(int(s0), int(n)), "vmX", None, [])])
    tagld = f"buffer_load_dwordx2 {ar(A_TAG,2)}, off, {sq(S_SRDC)}, 0 sc1"
    tagchk = (f"v_accvgpr_read_b32 v{VW}, a{A_TAG}\nv_accvgpr_read_b32 v{VW+1}, a{A_TAG+1}\ns_nop 0\n"
              f"v_readfirstlane_b32 s56, v{VW}\nv_readfirstlane_b32 s57, v{VW+1}\ns_nop 3\ns_cmp_lg_u32 s56, 0")
    addx((2, 1), [("s_nop 0", tagld, "vmX", "TAG", [])])
    def flagst(off): return f"s_mov_b64 exec, 1\nbuffer_store_dwordx2 {ar(A_TAG,2)}, off, {sq(S_SRDT)}, s60 offset:{off} sc1\ns_mov_b64 exec, -1"
    addx((SIG0, 1), [("s_lshl_b32 s60, s2, 7", flagst(0), "vmS", None, [])])
    addx((SIG, 1), [("s_lshl_b32 s60, s2, 7", flagst(64), "vmS", None, [])])
    VFA = VW + 2
    fa = [f"v_and_b32 v{VFA}, 0x30, v{V_L16}", f"v_lshlrev_b32 v{VFA}, 4, v{VFA}", f"v_and_b32 v{VFA+1}, 0x1c0, v{V_L16}",
          f"v_lshl_add_u32 v{VFA}, v{VFA+1}, 6, v{VFA}", "s_and_b32 s60, s2, 0x19", "s_lshl_b32 s60, s60, 7", f"v_add_u32 v{VFA}, s60, v{VFA}",
          "s_mov_b32 exec_lo, 0",
          f"v_and_b32 v{VFA}, 0x10, v{V_L16}", f"v_lshlrev_b32 v{VFA}, 3, v{VFA}", f"v_and_b32 v{VFA+1}, 0x60, v{V_L16}",
          f"v_lshl_add_u32 v{VFA}, v{VFA+1}, 5, v{VFA}", "s_and_b32 s60, s2, 0xe6", "s_lshl_b32 s60, s60, 7", "s_add_u32 s60, s60, 64",
          f"v_add_u32 v{VFA}, s60, v{VFA}"]
    if kind == "qkv":
        fa += ["s_mov_b32 exec_hi, 0xffffff00", f"s_max_u32 s60, s{S_MB}, 1", "s_sub_u32 s60, s60, 1", "s_lshr_b32 s3, s60, 2",
               "s_and_b32 s60, s60, 3", "s_lshl_b32 s60, s60, 3", "s_or_b32 s60, s60, s3", "s_or_b32 s60, s60, 0xc6", "s_lshl_b32 s60, s60, 7",
               f"v_and_b32 v{VFA}, 0x10, v{V_L16}", f"v_lshlrev_b32 v{VFA}, 8, v{VFA}", f"v_add_u32 v{VFA}, s60, v{VFA}"]
    fa += ["s_mov_b64 exec, -1"]
    pollld = f"buffer_load_dwordx2 v[{VW}:{VW+1}], v{VFA}, {sq(S_SRDS)}, 0 offen sc1"
    addx((POLL, 1), [("\n".join(fa), pollld, "vmX", "POLL", [])])
    chk = f"v_cmp_ne_u64 vcc, s[56:57], v[{VW}:{VW+1}]"
    pl = []
    for t in range(V.NT):
        pre = f"s_lshr_b32 s60, s{S_AROW+t}, 7\ns_add_u32 s60, s60, {SD_Q:#x}"
        if t == 0: pre = f"v_and_b32 v{VCA}, 0xff, v{V_L16}\n" + pre
        pl.append((pre, f"buffer_load_dwordx4 {ar(A_Q+4*t, 4)}, v{VCA}, {sq(S_SRDS)}, s60 offen sc1", "vmX", ("Q", t), []))
    for j in range(V.NJ):
        if kind == "w1":
            pre = f"s_lshl_b32 s60, s{S_CF if j < 12 else S_CHF}, 5\ns_add_u32 s60, s60, {SD_P + (192 + (j if j < 12 else j - 12))*1024:#x}"
        else:
            pre = (f"s_xor_b32 s60, s{S_W}, {j & 3}\ns_lshl_b32 s60, s60, 5\ns_add_u32 s60, s60, s{S_CF}\ns_lshl_b32 s60, s60, 5\n"
                   f"s_add_u32 s60, s60, {SD_P + (j >> 2)*65536:#x}")
        pl.append((pre, f"buffer_load_dwordx4 {ar(A_P+4*j, 4)}, v{V_L16}, {sq(S_SRDS)}, s60 offen sc1", "vmX", ("P", j), []))
    if kind == "qkv":
        for t in range(4):
            pre = f"s_lshr_b32 s60, s{S_AROW+t}, 9\ns_add_u32 s60, s60, {SD_RS - 64:#x}"
            if t == 0:
                pre = (f"v_lshrrev_b32 v{VCS}, 2, v{VCA}\n"
                       f"v_lshrrev_b32 v{VB1}, 4, v{V_L16}\nv_and_b32 v{VB1}, 0x30, v{VB1}\n"
                       f"v_and_b32 v{VB1+1}, 4, v{VCS}\nv_add_u32 v{VB1}, v{VB1}, v{VB1+1}\n"
                       f"v_add_u32 v{VB1+1}, 8, v{VB1}\n"
                       f"v_cmp_le_u32 s[48:49], v{VB1}, v{VCS}\nv_cmp_le_u32 s[50:51], v{VB1+1}, v{VCS}\n"
                       f"v_add_u32 v{VDC}, 64, v{VB1}\nv_add_u32 v{VDC+1}, 64, v{VB1+1}\n"
                       f"v_cndmask_b32 v{VB1}, v{VB1}, v{VDC}, s[48:49]\nv_cndmask_b32 v{VB1+1}, v{VB1+1}, v{VDC+1}, s[50:51]\n" + pre)
            pl.append((pre, f"buffer_load_dword v{RSQ+t}, v{VCS}, {sq(S_SRDS)}, s60 offen offset:64 sc1", "vmX", None, []))
            pl.append(("s_nop 0", f"buffer_load_dword v{RSK+2*t}, v{VB1}, {sq(S_SRDS)}, s60 offen sc1", "vmX", None, []))
            pl.append(("s_nop 0", f"buffer_load_dword v{RSK+2*t+1}, v{VB1+1}, {sq(S_SRDS)}, s60 offen sc1", "vmX", "RS" if t == 3 else None, []))
    h = len(pl) // 2
    addx((CHK, 1), pl[:h]); addx((CHK + 1, 0), pl[h:])
    for s in range(NS):
        b0 = first[(s, 0)]
        b1 = first[(s + 1, 0)] if s + 1 < NS else len(S.mf)
        if s == 0:
            for wh, s0, n in rounds:
                if wh == "s":
                    for b_ in pfr(int(s0), int(n)): cur = S.place(cur + 1, "vmX", b_, cap=3)
            for c_ in cpf: cur = S.place(cur + 1, "vmX", c_, cap=3)
            dma_seq(b0, bar[0], ([] if "late1" not in OPT else alist(1, dep=False)) + wlist(2) + alist(2), vcap=2)
            for x_ in V.sof_adv(): cur = S.place(cur, "s", x_, cap=4)
            areads(1, b1 - 28, b1 - 8)
            dma_seq(bar[0] + 1, b1, rows + wlist(3))
            for x_ in V.sof_adv(): cur = S.place(cur, "s", x_, cap=3)
            continue
        if s == 1:
            for wh, s0, n in rounds:
                if wh == "t":
                    for b_ in pfr(int(s0), int(n)): cur = S.place(max(cur + 1, b0), "vmX", b_, cap=3)
            areads(2, bar[1] - 8, bar[1] + 20)
            dma_seq(b0, bar[1], merge(alist(3), extra.get((1, 0), [])))
            dma_seq(bar[1] + 1, b1 + 4, merge(wlist(4) + alist(4), extra.get((1, 1), [])))
            for x_ in V.sof_adv(): cur = S.place(cur, "s", x_, cap=3)
            continue
        if s + 1 < NS:
            lo = b0 + (24 if s == 2 else 0)
            areads(s + 1, lo, bar[s] - 8)
            l0 = merge(alist(s + 3) if s + 3 < NS else [], extra.get((s, 0), []))
            if l0: dma_seq(lo + 8, bar[s], l0)
            if s == CHK:
                cur = S.place(max(cur, bar[s] + 1), "s", chk + "\n"
                              f"s_cbranch_vccnz L_k1_spin_{kind}\nL_k1_back_{kind}:", needs=[("vm", "POLL")], cap=3)
            if s == SIG0:
                cur = S.place(max(cur, bar[s] + 1), "s", tagchk + f"\ns_cbranch_scc0 L_k1_tspin_{kind}\nL_k1_tback_{kind}:", needs=[("vm", "TAG")], cap=3)
            l1 = merge(wlist(s + 3) if s + 3 < NS else [], extra.get((s, 1), []))
            if l1: dma_seq(bar[s] + 1, b1 + 4, l1)
            if s + 3 < NS:
                for x_ in V.sof_adv(): cur = S.place(cur, "s", x_, cap=3)
    i = first[(2, 0)]
    def fill(o, gapstep=1, needs=(), kd="s", gives=None):
        nonlocal i
        i = S.place(i, kd, o, needs=needs, cap=2, gives=gives) + gapstep
    mA, mB = VDC, VW
    for rr, d in ((0, mA), (1, mB)):
        for q in range(2):
            fill(f"v_mfma_f32_16x16x32_bf16 {vr(d,4)}, {ar(A_ONE,4)}, {ar(A_RAW+8*rr+4*q,4)}, {'0' if q == 0 else vr(d,4)}", needs=[("vm", "ROWS")])
    i += 8
    for r_ in (8, 4, 2, 1):
        for d in (mA, mB): fill(f"v_add_f32_dpp v{d}, v{d}, v{d} row_ror:{r_} row_mask:0xf bank_mask:0xf")
    for d in (mA, mB): fill(f"v_mul_f32 v{d}, 0x3a800000, v{d}", 0)
    for d in (mA, mB): fill(f"v_mov_b32 v{d+1}, 0", 0)
    for q in range(8):
        for rr, d in ((0, mA), (1, mB)):
            for o in (f"v_accvgpr_read_b32 v{d+2}, a{A_RAW+8*rr+q}", f"v_and_b32 v{d+3}, s{S_HI}, v{d+2}", f"v_lshlrev_b32 v{d+2}, 16, v{d+2}",
                      f"v_sub_f32 v{d+3}, v{d+3}, v{d}", f"v_sub_f32 v{d+2}, v{d+2}, v{d}",
                      f"v_fmac_f32 v{d+1}, v{d+3}, v{d+3}", f"v_fmac_f32 v{d+1}, v{d+2}, v{d+2}"):
                fill(o, 0)
    i += 2
    qA, qB = mA + 1, mB + 1
    for r_ in (8, 4, 2, 1):
        for d in (qA, qB): fill(f"v_add_f32_dpp v{d}, v{d}, v{d} row_ror:{r_} row_mask:0xf bank_mask:0xf")
    for sw_ in ("v_permlane16_swap_b32", "v_permlane32_swap_b32"):
        for d in (qA, qB): fill(f"v_mov_b32 v{d+1}, v{d}")
        i += 1
        for d in (qA, qB): fill(f"{sw_} v{d}, v{d+1}")
        for d in (qA, qB): fill(f"v_add_f32 v{d}, v{d}, v{d+1}")
    for o in (f"v_cndmask_b32 v{mA}, v{mA}, v{mB}, vcc", f"v_cndmask_b32 v{qA}, v{qA}, v{qB}, vcc",
              f"v_mul_f32 v{qA}, 0x3a800000, v{qA}", f"v_cvt_pk_bf16_f32 v{VW}, -v{mA}, -v{mA}",
              f"v_cvt_pk_bf16_f32 v{qA}, v{qA}, v{qA}", f"v_and_b32 v{qA}, s{S_HI}, v{qA}", f"v_add_f32 v{qA}, 0x3727c5ac, v{qA}",
              f"v_cvt_pk_bf16_f32 v{qA}, v{qA}, v{qA}", f"v_and_b32 v{qA}, s{S_HI}, v{qA}", f"v_sqrt_f32 v{qA}, v{qA}",
              f"v_mov_b32 v{VW+2}, v{VW}", f"v_cvt_pk_bf16_f32 v{VW+1}, -v{mA}, v{qA}", f"v_and_b32 v{qA}, s{S_HI}, v{VW+1}",
              f"v_rcp_f32 v{qA}, v{qA}", f"v_mov_b32 v{VW+3}, v{VW+1}", f"v_lshrrev_b32 v{mA+2}, 2, v{V_L16}"):
        fill(o)
    fill(f"s_lshr_b32 s61, s67, 7\ns_add_u32 s61, s61, {SD_Q:#x}\ns_mov_b64 exec, 3\n"
         f"buffer_store_dwordx4 {vr(VW,4)}, v{V_L16}, {sq(S_SRDS)}, s61 offen sc1\ns_mov_b64 exec, -1", kd="vmS")
    fill(f"s_lshr_b32 s61, s67, 9\ns_add_u32 s61, s61, {SD_RS:#x}\ns_mov_b64 exec, 3\n"
         f"buffer_store_dword v{qA}, v{mA+2}, {sq(S_SRDS)}, s61 offen sc1\ns_mov_b64 exec, -1", kd="vmS", gives="ST")
    if "verbose" in OPT: print(kind, "stats done at step", [s_ for s_ in range(NS) if first[(s_, 0)] <= i][-1], i, bar, file=sys.stderr)
    assert i < bar[SIG0 - 1] + 40
    i = i + 2
    for q in range(16):
        cin = "0" if q == 0 else vr(VDC, 4)
        sl_ = slots[q * len(slots) // 16]
        i = max(i, first[(sl_[0] + 2, 0 if sl_[1] == 0 else H)])
        i = S.place(i, "s", f"v_mfma_f32_16x16x32_bf16 {vr(VDC,4)}, {ar(A_SEL,4)}, {ar(A_CS+4*q,4)}, {cin}", needs=[("vm", ("CL", q))], cap=2) + 4
    i += 8
    for r_ in range(4):
        i = S.place(i, "s", f"v_add_f32_dpp v{VDC+r_}, v{VDC+r_}, v{VDC+r_} row_ror:8 row_mask:0xf bank_mask:0xf", cap=2) + 1
    for r_ in range(4):
        d = VDC + r_
        sel = "0x05040302" if r_ % 2 == 0 else "0x07060302"
        ops = [f"v_and_b32 v{VW+2}, s{S_HI}, v{d}", f"v_sub_f32 v{VW+2}, v{d}, v{VW+2}",
               f"v_and_b32 v{VW+3}, s{S_HI}, v{VW+2}", f"v_sub_f32 v{VW+3}, v{VW+2}, v{VW+3}",
               f"s_mov_b32 s61, 0x07060302\nv_perm_b32 v{VW}, v{VW+2}, v{d}, s61",
               f"s_mov_b32 s61, {sel}\nv_perm_b32 v{VW+1}, v{VB1 + (r_ >> 1)}, v{VW+3}, s61"]
        for k, o in enumerate(ops):
            i = S.place(i, "s", o, cap=2, needs=[("vm", "B1")] if k == 5 else []) + 1
        i = S.place(i, "vmS", f"buffer_store_dwordx2 v[{VW}:{VW+1}], v{VCS}, {sq(S_SRDS)}, s{S_CSS} offen offset:{16*r_} sc1",
                    gives="CS" if r_ == 3 else None, cap=2) + 2
    assert i < bar[SIG - 1]
    tail = []
    if kind == "w1":
        pre = [f"s_lshl_b32 s{X}, s{S_MB}, 3", f"s_lshl_b32 s{X+1}, s{S_W}, 1", f"s_add_u32 s{X}, s{X}, s{X+1}",
               f"s_mul_i32 s{X}, s{X}, 144", f"s_add_u32 s{X}, s{X}, 32", f"s_lshr_b32 s{X+1}, s{S_CF}, 6", f"s_lshr_b32 s{X+2}, s{S_CHF}, 6",
               f"s_add_u32 s{X+1}, s{X+1}, s{X}", f"s_add_u32 s{X+2}, s{X+2}, s{X}", f"s_lshl_b32 s{X+1}, s{X+1}, 11", f"s_lshl_b32 s{X+2}, s{X+2}, 11"]
        i = first[(14, 0)]
        for o in pre: i = S.place(i, "s", o, cap=2) + 1
        for j in range(14):
            for t in (range(4) if j % 2 == 0 else range(3, -1, -1)):
                a = V.acc(t, j); e = fin[(t, j)] + 8
                dst = a if j % 2 == 0 else V.acc(t, j - 1) + 2
                for r_ in range(4): tail.append((e, "s", f"v_mul_f32 v{a+r_}, v{a+r_}, |v{a+r_}|", []))
                tail.append((e, "s", f"v_cvt_pk_bf16_f32 v{dst}, v{a}, v{a+1}", []))
                tail.append((e, "s", f"v_cvt_pk_bf16_f32 v{dst+1}, v{a+2}, v{a+3}", []))
                for r_ in range(2): tail.append((e, "s", f"v_pk_max_i16 v{dst+r_}, v{dst+r_}, 0", []))
                if j % 2 == 1:
                    p = j // 2; a0 = V.acc(t, j - 1)
                    off = (t >> 1) * 144 * 2048 + (p * 2048 if p < 6 else 0)
                    tail.append((e, "vmS", f"s_add_u32 s60, s{X+1 if p < 6 else X+2}, {off:#x}\n"
                                 f"buffer_store_dwordx4 v[{a0}:{a0+3}], v{V_L16}, {sq(S_SRDO)}, s60 offen offset:{(t&1)*1024}{STMOD}", []))
    else:
        for j, ts in groups:
            ts = list(ts) if j % 2 == 0 else list(reversed(ts))
            if 4 in ts: ts = [4, 0, 1, 2, 3]
            if j >= 8: ts = [t for t in ts if t == 4] + [0, 1, 2, 3]
            for t in ts:
                a = V.acc(t, j); e = (fin[(t, j)] if j < 8 else last[(NS - 1, j)]) + 8
                if t == 4: d0 = a
                elif j < 8: d0 = a if j % 2 == 0 else V.acc(t, j - 1) + 2
                else: d0 = V.acc(0, j) + 2 + 2 * t
                cv = [f"v_cvt_pk_bf16_f32 v{d0}, v{a}, v{a+1}", f"v_cvt_pk_bf16_f32 v{d0+1}, v{a+2}, v{a+3}"]
                if j >= 8 and t == 0: cv.reverse()
                for o in cv: tail.append((e, "s", o, []))
    i = 0
    rest = []
    for e, kd, text, nd in tail:
        if rest or max(i, e) >= len(S.mf) - 1:
            rest.append((kd, text, nd)); continue
        k = max(i, e)
        while k < len(S.mf) - 1 and S.used[k] >= par("tailcap", 3): k += 1
        if k >= len(S.mf) - 1:
            rest.append((kd, text, nd)); continue
        i = S.place(k, kd, text, needs=nd, cap=par("tailcap", 3))
    if stamp:
        for m in PAR.get("k1marks", "15").split(":"):
            if "promarks" in OPT: break
            S.gaps[first[(int(m), 0)]].append(("s", st.text(), None, []))
    for x_ in S.emit("k1"): A(x_)
    if st.n < 7: st.mark(A)
    A("s_nop 7")
    for kd, text, nd in rest:
        o = []
        S.waits(nd, o)
        for x_ in o: A(x_)
        A(text)
    if kind == "qkv":
        o = []; S.waits([("vm", "RS")], o)
        for x_ in o: A(x_)
        qkv_attention(A, V)
    st.flush(A, 58, 59, 0, f"s{S_W}")
    A("s_endpgm")
    for nm, ld, ck, br in (("", pollld, chk, "s_cbranch_vccnz"), ("t", tagld, tagchk, "s_cbranch_scc0")):
        A.label(f"L_k1_{nm}spin_{kind}")
        A("s_mov_b32 s61, 0")
        A.label(f"L_k1_{nm}spin1_{kind}")
        A("s_sleep 8")
        A(ld)
        A("s_waitcnt vmcnt(0)")
        A("s_add_u32 s61, s61, 1")
        A("s_cmp_gt_u32 s61, 0x10000")
        A(f"s_cbranch_scc1 L_k1_{nm}back_{kind}")
        A(ck)
        A(f"{br} L_k1_{nm}spin1_{kind}")
        A(f"s_branch L_k1_{nm}back_{kind}")

STMOD = ""
def gen_k1(A, name, stamp):
    kernel_head(A, name)
    st0 = Stamp(stamp, 1)
    st0.mark(A)
    A("s_cmp_ge_u32 s2, 256")
    A("s_cbranch_scc1 L_k1_end")
    A("s_load_dwordx2 s[4:5], s[0:1], 0")
    A("s_load_dwordx2 s[60:61], s[0:1], 8")
    A("s_load_dwordx4 s[56:59], s[0:1], 32")
    A("s_load_dwordx4 s[12:15], s[0:1], 72")
    A("s_load_dwordx2 s[36:37], s[0:1], 48")
    A("s_load_dwordx2 s[38:39], s[0:1], 16")
    A("s_memrealtime s[18:19]")
    lane, l16, g, T, X = 100, 101, 102, 104, S_X0
    A(f"v_lshrrev_b32 v{T}, 6, v0")
    A(f"v_and_b32 v{lane}, 63, v0")
    A(f"v_readfirstlane_b32 s{S_W}, v{T}")
    A(f"s_and_b32 s{X}, s2, 1")
    A(f"s_lshl_b32 s{X}, s{X}, 2")
    A(f"s_bfe_u32 s{X+1}, s2, 0x20003")
    A(f"s_add_u32 s{S_MB}, s{X}, s{X+1}")
    A(f"s_bfe_u32 s{X}, s2, 0x20001")
    A(f"s_lshl_b32 s{X}, s{X}, 2")
    A(f"s_bfe_u32 s{X+1}, s2, 0x20005")
    A(f"s_add_u32 s{S_NT}, s{X}, s{X+1}")
    A(f"v_and_b32 v{l16}, 15, v{lane}")
    A(f"v_lshrrev_b32 v{g}, 4, v{lane}")
    A(f"v_lshlrev_b32 v{V_L16}, 4, v{lane}")
    A(f"s_lshl_b32 s{X}, s{S_MB}, 8")
    A(f"s_lshl_b32 s{X+1}, s{S_W}, 6")
    A(f"s_add_u32 s{X+1}, s{X}, s{X+1}")
    A(f"s_lshl_b32 s{X+1}, s{X+1}, 11")
    for t in range(4): A(f"s_add_u32 s{S_AROW+t}, s{X+1}, {t*16*2048:#x}")
    A(f"s_max_u32 s{X+1}, s{X}, 16")
    A(f"s_sub_u32 s{X+1}, s{X+1}, 16")
    A(f"s_lshl_b32 s{S_AROW+4}, s{X+1}, 11")
    A(f"s_lshr_b32 s{X+1}, s2, 7")
    A(f"s_lshl_b32 s{X+1}, s{X+1}, 4")
    A(f"s_add_u32 s{X+1}, s{X+1}, s{S_NT}")
    A(f"s_lshl_b32 s{X+1}, s{X+1}, 2")
    A(f"s_add_u32 s{X+1}, s{X+1}, s{S_W}")
    A(f"s_lshl_b32 s{X+1}, s{X+1}, 1")
    A(f"s_add_u32 s{X+1}, s{X+1}, s{X}")
    A(f"s_lshl_b32 s67, s{X+1}, 11")
    A(f"v_lshrrev_b32 v{T+4}, 3, v{lane}")
    A(f"v_and_b32 v{T+5}, 7, v{lane}")
    A(f"v_xor_b32 v{T+5}, v{T+5}, v{g}")
    A(f"v_lshlrev_b32 v{T+4}, 11, v{T+4}")
    A(f"v_lshl_add_u32 v{V_AD}, v{T+5}, 4, v{T+4}")
    A(f"v_xor_b32 v{T+5}, 4, v{T+5}")
    A(f"v_lshl_add_u32 v{V_AD+1}, v{T+5}, 4, v{T+4}")
    A(f"v_add_u32 v{V_AD+1}, 0x4000, v{V_AD+1}")
    A(f"s_mov_b32 s{S_SOFW}, 0")
    A(f"s_mov_b32 s{S_SOFW2}, 4096")
    A("s_cmp_ge_u32 s2, 128")
    A("s_cbranch_scc1 L_k1_qkv")
    P1, M1, P2, M2 = Asm(), Asm(), Asm(), Asm()
    k1_variant(P1, M1, K1Var("w1"), stamp)
    k1_variant(P2, M2, K1Var("qkv"), stamp)
    A.L += P1.L
    A.label("L_k1_qkv")
    A.L += P2.L + M1.L + M2.L
    A.label("L_k1_end")
    A("s_endpgm")

def qkv_attention(A, V):
    T = V_T
    XCH = RING0 + V.SL
    lane8, l16, g = T + 8, T + 1, T + 2
    def Q(t, sp): return V.acc(t, 2 * sp)
    KP = 200
    def K(t, sp): return V.acc(t, 4 + 2 * sp) if t >= 0 else KP + 4 * sp
    def VT(jj): return 128 + 16 * jj
    X = T + 4
    A(f"v_lshrrev_b32 v{lane8}, 1, v{V_L16}")
    A(f"v_bfe_u32 v{l16}, v{V_L16}, 4, 4")
    A(f"v_lshrrev_b32 v{g}, 8, v{V_L16}")
    for jj in range(4):
        A(f"s_xor_b32 s46, s{S_W}, {jj}")
        A("s_lshl_b32 s46, s46, 9")
        A(f"s_lshl_b32 s47, s{S_W}, 12")
        A("s_add_u32 s46, s46, s47")
        A(f"v_add_u32 v{X+jj}, s46, v{lane8}")
    A(f"s_lshl_b32 s46, s{S_W}, 9")
    A(f"v_add_u32 v{lane8}, s46, v{lane8}")
    for jj in range(4):
        k = K(3, jj >> 1) + 2 * (jj & 1)
        A(f"ds_write_b64 v{X+jj}, v[{k}:{k+1}] offset:{XCH + 4096}")
        v = VT(jj) + 8
        A(f"ds_write_b64 v{X+jj}, v[{v}:{v+1}] offset:{XCH + 4096 + 2048}")
    A(f"ds_write_b64 v{lane8}, v[192:193] offset:{XCH}")
    A(f"ds_write_b64 v{lane8}, v[196:197] offset:{XCH + 2048}")
    par_ = T + 9
    MP, MA, MB_, VA_, VB_ = "s[46:47]", "s[48:49]", "s[50:51]", "s[52:53]", "s[54:55]"
    A(f"v_and_b32 v{par_}, 1, v{l16}")
    A(f"v_cmp_eq_u32 {MP}, 1, v{par_}")
    A(f"s_or_b32 s60, s{S_MB}, s{S_W}")
    A("s_cmp_eq_u32 s60, 0")
    A(f"s_cselect_b64 {VA_}, {MA}, -1")
    A(f"s_cselect_b64 {VB_}, {MB_}, -1")
    FQ = 232
    A("s_mov_b32 s61, 0x3e8293ee")
    for t in range(4): A(f"v_mul_f32 v{RSQ+t}, s61, v{RSQ+t}")
    A(f"v_cndmask_b32 v{RSK}, 0, v{RSK}, {VA_}")
    A(f"v_cndmask_b32 v{RSK+1}, 0, v{RSK+1}, {VB_}")
    for t in range(4):
        for e in range(2): A(f"v_mul_f32 v{FQ+2*t+e}, v{RSQ+t}, v{RSK+2*t+e}")
    SEL = 208
    A(f"v_mov_b32 v{T+10}, 0x0c0c0100")
    A(f"v_mov_b32 v{T+11}, 0x01000c0c")
    A(f"v_cndmask_b32 v{SEL+2}, v{T+10}, v{T+11}, {MP}")
    A(f"v_mov_b32 v{T+10}, 0x0c0c0302")
    A(f"v_mov_b32 v{T+11}, 0x03020c0c")
    A(f"v_cndmask_b32 v{SEL+3}, v{T+10}, v{T+11}, {MP}")
    A(f"v_mov_b32 v{T+10}, 0x0c0c0c0c")
    A(f"v_cndmask_b32 v{SEL}, v{SEL+2}, v{T+10}, {MA}")
    A(f"v_cndmask_b32 v{SEL+1}, v{SEL+3}, v{T+10}, {MB_}")
    A(f"v_cndmask_b32 v{SEL+2}, v{T+10}, v{SEL+2}, {MA}")
    A(f"v_cndmask_b32 v{SEL+3}, v{T+10}, v{SEL+3}, {MB_}")
    A("s_waitcnt lgkmcnt(0)")
    A("s_barrier")
    for jj in range(4):
        k = KP + 4 * (jj >> 1) + 2 * (jj & 1)
        A(f"ds_read_b64 v[{k}:{k+1}], v{X+jj} offset:{XCH}")
        v = VT(jj)
        A(f"ds_read_b64 v[{v}:{v+1}], v{X+jj} offset:{XCH + 2048}")
    A(f"v_mov_b32 v{T+11}, 0xce6e6b28")
    units = [(t, sp) for t in (1, 2, 3, 0) for sp in range(2)]
    def Sc(t, sp): return V.acc(t, 2 * sp + 1)
    def Sp(t, sp): return V.acc(t, 4 + 2 * sp + 1)
    for n, (t, sp) in enumerate(units):
        if t == 0 and sp == 0: A("s_waitcnt lgkmcnt(0)")
        A(f"v_mfma_f32_16x16x32_bf16 {vr(Sc(t,sp),4)}, {vr(K(t,sp),4)}, {vr(Q(t,sp),4)}, 0")
        A(f"v_mfma_f32_16x16x32_bf16 {vr(Sp(t,sp),4)}, {vr(K(t-1,sp),4)}, {vr(Q(t,sp),4)}, 0")
    A("s_nop 1")
    def stage(fn):
        for (t, sp) in units: fn(t, sp, Sc(t, sp), Sp(t, sp))
    stage(lambda t, sp, c, p: A(f"v_cndmask_b32 v{c}, v{c}, v{c+1}, {MP}"))
    stage(lambda t, sp, c, p: A(f"v_cndmask_b32 v{c+1}, v{c+2}, v{c+3}, {MP}"))
    stage(lambda t, sp, c, p: A(f"v_cndmask_b32 v{p}, v{p}, v{p+1}, {MP}"))
    stage(lambda t, sp, c, p: A(f"v_cndmask_b32 v{p+1}, v{p+2}, v{p+3}, {MP}"))
    stage(lambda t, sp, c, p: A(f"v_cndmask_b32 v{c}, v{p}, v{c}, {MA}"))
    stage(lambda t, sp, c, p: A(f"v_cndmask_b32 v{c+1}, v{p+1}, v{c+1}, {MB_}"))
    stage(lambda t, sp, c, p: A(f"v_mul_f32 v{c}, v{c}, v{FQ+2*t}"))
    stage(lambda t, sp, c, p: A(f"v_mul_f32 v{c+1}, v{c+1}, v{FQ+2*t+1}"))
    for sp in range(2):
        c = Sc(0, sp)
        A(f"v_cndmask_b32 v{c}, v{T+11}, v{c}, {VA_}")
        A(f"v_cndmask_b32 v{c+1}, v{T+11}, v{c+1}, {VB_}")
    P = [Sp(t, sp) for (t, sp) in units]
    quads = [P[0:4], P[4:8]]
    def xreduce(op, mid=None, filler=()):
        fl = list(filler)
        def pad(n):
            for _ in range(n): A(fl.pop(0) if fl else "s_nop 0")
        for q in quads:
            A(f"v_permlane16_swap_b32 v{q[0]}, v{q[1]}"); A(f"v_permlane16_swap_b32 v{q[2]}, v{q[3]}")
        for q in quads:
            A(f"{op} v{q[0]}, v{q[0]}, v{q[1]}"); A(f"{op} v{q[2]}, v{q[2]}, v{q[3]}")
        pad(1)
        for q in quads: A(f"v_permlane32_swap_b32 v{q[0]}, v{q[2]}")
        for q in quads: A(f"{op} v{q[0]}, v{q[0]}, v{q[2]}")
        if mid:
            for q in quads: A(f"{mid} v{q[0]}, v{q[0]}")
            pad(1)
        for q in quads: A(f"v_mov_b32 v{q[2]}, v{q[0]}")
        pad(1)
        for q in quads: A(f"v_permlane32_swap_b32 v{q[0]}, v{q[2]}")
        for q in quads:
            A(f"v_mov_b32 v{q[1]}, v{q[0]}"); A(f"v_mov_b32 v{q[3]}, v{q[2]}")
        pad(0)
        for q in quads:
            A(f"v_permlane16_swap_b32 v{q[0]}, v{q[1]}"); A(f"v_permlane16_swap_b32 v{q[2]}, v{q[3]}")
        for x in fl: A(x)
    stage(lambda t, sp, c, p: A(f"v_max_f32 v{p}, v{c}, v{c+1}"))
    xreduce("v_max_f32")
    stage(lambda t, sp, c, p: A(f"v_sub_f32 v{c}, v{c}, v{p}"))
    stage(lambda t, sp, c, p: A(f"v_sub_f32 v{c+1}, v{c+1}, v{p}"))
    stage(lambda t, sp, c, p: A(f"v_exp_f32 v{c}, v{c}"))
    stage(lambda t, sp, c, p: A(f"v_exp_f32 v{c+1}, v{c+1}"))
    stage(lambda t, sp, c, p: A(f"v_add_f32 v{p}, v{c}, v{c+1}"))
    fl = []
    for (t, sp) in units:
        c = Sc(t, sp)
        fl += [f"v_mul_f32 v{c}, v{c}, v{RSK+2*t}", f"v_mul_f32 v{c+1}, v{c+1}, v{RSK+2*t+1}"]
    xreduce("v_add_f32", mid="v_rcp_f32", filler=fl)
    stage(lambda t, sp, c, p: A(f"v_mul_f32 v{c}, v{c}, v{p}"))
    stage(lambda t, sp, c, p: A(f"v_mul_f32 v{c+1}, v{c+1}, v{p}"))
    stage(lambda t, sp, c, p: A(f"v_cvt_pk_bf16_f32 v{c}, v{c}, v{c+1}"))
    for i in range(4):
        stage(lambda t, sp, c, p: A(f"v_perm_b32 v{p+i}, v{c}, v{c}, v{SEL+i}"))
    for (t, sp) in units:
        for e in range(2):
            d = Q(t, sp) if e == 0 else Sc(t, sp)
            v = VT(2 * sp + e) + 2 * t
            A(f"v_mfma_f32_16x16x32_bf16 {vr(d,4)}, {vr(v,4)}, {vr(Sp(t,sp),4)}, 0")
    A(f"s_lshl_b32 s60, s{S_MB}, 3")
    A(f"s_lshl_b32 s61, s{S_W}, 1")
    A("s_add_u32 s60, s60, s61")
    A("s_mul_i32 s60, s60, 144")
    A(f"s_lshl_b32 s61, s{S_NT}, 1")
    A("s_add_u32 s60, s60, s61")
    A(f"s_lshr_b32 s61, s{S_W}, 1")
    A("s_add_u32 s62, s60, s61")
    A("s_xor_b32 s61, s61, 1")
    A("s_add_u32 s63, s60, s61")
    A("s_lshl_b32 s62, s62, 11")
    A("s_lshl_b32 s63, s63, 11")
    for (t, sp) in units:
        a, b = Q(t, sp), Sc(t, sp)
        A(f"v_cvt_pk_bf16_f32 v{a}, v{a}, v{a+1}")
        A(f"v_cvt_pk_bf16_f32 v{a+1}, v{a+2}, v{a+3}")
        A(f"v_cvt_pk_bf16_f32 v{a+2}, v{b}, v{b+1}")
        A(f"v_cvt_pk_bf16_f32 v{a+3}, v{b+2}, v{b+3}")
    A(f"s_bitcmp1_b32 s{S_W}, 0")
    A("s_cbranch_scc0 L_k1_noswap")
    for (t, sp) in units:
        a = Q(t, sp)
        A(f"v_swap_b32 v{a}, v{a+2}")
        A(f"v_swap_b32 v{a+1}, v{a+3}")
    A.label("L_k1_noswap")
    for (t, sp) in units:
        a = Q(t, sp)
        A(f"s_add_u32 s64, s{62+sp}, {(t>>1)*144*2048:#x}")
        A(f"buffer_store_dwordx4 v[{a}:{a+3}], v{V_L16}, {sq(S_SRDO)}, s64 offen offset:{(t&1)*1024}{STMOD}")

def gen_k2(A, name, stamp):
    st = Stamp(stamp, 2)
    kernel_head(A, name)
    st.mark(A)
    SA, SW2, SWO, SX, SB, SO, SP, SF = 4, 8, 12, 16, 20, 24, 28, 32
    S_M0, S_WV, S_SA, S_SW, S_PS, S_PR, S_FS, S_FR = 36, 37, 38, 39, 40, 41, 42, 43
    A("s_cmp_ge_u32 s2, 256")
    A("s_cbranch_scc1 L_k2_end")
    A("s_load_dwordx2 s[44:45], s[0:1], 0")
    A("s_load_dwordx2 s[46:47], s[0:1], 16")
    A("s_load_dwordx4 s[48:51], s[0:1], 48")
    A("s_load_dwordx2 s[52:53], s[0:1], 64")
    A("s_load_dwordx2 s[54:55], s[0:1], 80")
    lane, l16, g = 65, 66, 67
    VA, VD, VR, VX, VB, VL, VF, T = 68, 70, 76, 84, 85, 86, 88, 92
    XT = 100
    A("v_lshrrev_b32 v64, 6, v0")
    A(f"v_and_b32 v{lane}, 63, v0")
    A(f"v_readfirstlane_b32 s{S_WV}, v64")
    A("s_and_b32 s56, s2, 1")
    A("s_bfe_u32 s57, s2, 0x20001")
    A("s_lshl_b32 s57, s57, 2")
    A("s_bfe_u32 s58, s2, 0x20003")
    A("s_add_u32 s57, s57, s58")
    A("s_lshr_b32 s58, s2, 5")
    A(f"v_and_b32 v{l16}, 15, v{lane}")
    A(f"v_lshrrev_b32 v{g}, 4, v{lane}")
    A("s_lshl_b32 s59, s57, 2")
    A(f"s_add_u32 s59, s59, s{S_WV}")
    A(f"s_mul_i32 s60, s59, {144*2048}")
    A(f"v_lshlrev_b32 v{VL}, 4, v{lane}")
    A(f"v_add_u32 v{VA}, s60, v{VL}")
    A(f"s_mul_i32 s{S_SA}, s56, {56*2048}")
    A(f"s_add_u32 s{S_SA}, s{S_SA}, {32*2048}")
    A(f"s_mul_i32 s{S_SW}, s56, {1792*2048}")
    A(f"v_lshrrev_b32 v{T}, 3, v{lane}")
    A(f"v_bfe_u32 v{T+1}, v{lane}, 1, 2")
    A(f"v_xor_b32 v{T+1}, v{T+1}, v{g}")
    A(f"v_lshlrev_b32 v{T}, 11, v{T}")
    A(f"v_lshl_add_u32 v{T+2}, v{T+1}, 5, v{T}")
    A(f"v_and_b32 v{T+1}, 1, v{lane}")
    A(f"v_lshl_add_u32 v{T+2}, v{T+1}, 4, v{T+2}")
    A(f"s_lshl_b32 s60, s{S_WV}, 15")
    A("s_lshl_b32 s61, s58, 8")
    A("s_lshl_b32 s62, s56, 7")
    A("s_add_u32 s61, s61, s62")
    A("s_add_u32 s60, s60, s61")
    A(f"v_add_u32 v{VD}, s60, v{T+2}")
    A(f"v_add_u32 v{VD+1}, 0x4000, v{VD}")
    A(f"v_xor_b32 v{VD+2}, 0x80, v{VD}")
    A(f"v_xor_b32 v{VD+3}, 0x80, v{VD+1}")
    A(f"s_lshl_b32 s{S_M0}, s{S_WV}, 11")
    A("s_lshl_b32 s60, s59, 16")
    A("s_add_u32 s60, s60, s61")
    A(f"v_and_b32 v{T+1}, 7, v{lane}")
    A(f"v_lshl_add_u32 v{VX}, v{T+1}, 4, v{T}")
    A(f"v_add_u32 v{VX}, s60, v{VX}")
    A(f"v_lshlrev_b32 v{VB}, 4, v{T+1}")
    A(f"v_add_u32 v{VB}, s61, v{VB}")
    A(f"v_bfe_u32 v{T}, v{lane}, 2, 4")
    A(f"v_lshlrev_b32 v{T}, 7, v{T}")
    A(f"v_and_b32 v{T+1}, 3, v{lane}")
    A(f"v_lshl_add_u32 v{T}, v{T+1}, 3, v{T}")
    A(f"v_bfe_u32 v{T+1}, v{lane}, 3, 2")
    for jj in range(4):
        A(f"v_xor_b32 v{T+2}, {jj}, v{T+1}")
        A(f"v_lshl_add_u32 v{VR+jj}, v{T+2}, 5, v{T}")
        A(f"v_add_u32 v{VR+4+jj}, 0x10000, v{VR+jj}")
    VPW1, VPW2, VPA = 74, 75, 69
    A("s_lshr_b32 s60, s2, 3")
    A("s_lshl_b32 s60, s60, 2")
    A(f"s_add_u32 s60, s60, s{S_WV}")
    A("s_lshl_b32 s60, s60, 11")
    A(f"v_lshrrev_b32 v{T}, 2, v{lane}")
    A(f"v_lshlrev_b32 v{T}, 7, v{T}")
    A(f"v_add_u32 v{VPW1}, s60, v{T}")
    A("s_add_u32 s60, s60, s62")
    A(f"v_lshrrev_b32 v{T}, 3, v{lane}")
    A(f"v_lshlrev_b32 v{T+1}, 8, v{T}")
    A(f"v_add_u32 v{VPW2}, s60, v{T+1}")
    A(f"s_mul_i32 s60, s59, {144*2048}")
    A("s_lshl_b32 s63, s58, 10")
    A("s_add_u32 s60, s60, s63")
    A(f"v_lshlrev_b32 v{T}, 7, v{T}")
    A(f"v_add_u32 v{VPA}, s60, v{T}")
    A(f"s_mov_b32 s{S_FS}, s{S_SW}")
    A(f"s_mov_b32 s{S_FR}, s{S_SA}")
    A("s_xor_b32 s63, s2, 1")
    A(f"s_lshl_b32 s60, s{S_WV}, 12")
    A(f"s_lshl_b32 s{S_PS}, s2, 14")
    A(f"s_add_u32 s{S_PS}, s{S_PS}, s60")
    A(f"s_lshl_b32 s{S_PR}, s63, 14")
    A(f"s_add_u32 s{S_PR}, s{S_PR}, s60")
    A("s_waitcnt lgkmcnt(0)")
    srd(A, SA, 54, 55, A2_BYTES, WS_A2)
    srd(A, SW2, 48, 49, 3584 * 2048)
    srd(A, SWO, 46, 47, 1024 * 2048)
    srd(A, SX, 44, 45, 4 << 20)
    srd(A, SB, 50, 51, 2048)
    srd(A, SO, 52, 53, 4 << 20)
    srd(A, SP, 54, 55, 4 << 20, WS_PART)
    srd(A, SF, 54, 55, SD_BYTES, WS_SIDE)
    vm, lg = Score(63), Score(15)
    N1, N2 = 28, 16
    RCV, XLD, PRO = N1 + par('k2rcv', 10), N1 + par('k2xld', 11), par('k2pro', 3)
    NS = N1 + N2
    RW, RA = 8, par('k2ra', 7)
    DW = par('k2dw', RW - 1)
    def acc(t, j): return (j * 2 + t) * 4
    def acc2(t, j): return 128 + (j * 2 + t) * 4
    def wf(j, ks): return (j * 2 + ks) * 4
    def af(s, ks, t): return 64 + ((s % RA) * 4 + ks * 2 + t) * 4
    def nj(s): return 8 if s < N1 else 4
    def aloads(s):
        o = []
        if s == N1: o.append(("s", f"s_mov_b32 s{S_SA}, 0", None))
        for ks in range(2):
            for t in range(2):
                o.append(("vmA", f"buffer_load_dwordx4 {ar(af(s, ks, t), 4)}, v{VA}, s[{SA}:{SA+3}], s{S_SA} offen offset:{ks*2048 + t*1024}", ("A", s) if (ks, t) == (1, 1) else None))
        o.append(("s", f"s_add_u32 s{S_SA}, s{S_SA}, 4096", None))
        return o
    def dmas(s):
        o = []
        if s == N1: o.append(("s", f"s_mov_b32 s{S_SW}, 0", None))
        W = SW2 if s < N1 else SWO
        n = 4 if s < N1 else 2
        for q in range(n):
            c, u = divmod(q, 2)
            o.append(("m0", f"s_add_u32 m0, s{S_M0}, {(s % RW)*16384 + c*8192 + u*1024:#x}", None))
            o.append(("vmD", f"buffer_load_dwordx4 v{VD+q}, s[{W}:{W+3}], s{S_SW} offen lds", ("D", s) if q == n - 1 else None))
        o.append(("s", f"s_add_u32 s{S_SW}, s{S_SW}, 0x20000", None))
        return o
    def pfw(f):
        if f < N1: return [("s", f"s_add_u32 s61, s{S_FS}, {f*0x20000:#x}", None), ("vmP", f"buffer_load_dword v{VF}, v{VPW1}, s[{SW2}:{SW2+3}], s61 offen", None)]
        return [("s", f"s_mov_b32 s61, {(f-N1)*0x20000:#x}", None), ("vmP", f"buffer_load_dword v{VF}, v{VPW2}, s[{SWO}:{SWO+3}], s61 offen", None)]
    def pfa(f):
        pre = f"s_add_u32 s61, s{S_FR}, {f*4096:#x}" if f < N1 else f"s_mov_b32 s61, {(f-N1)*4096:#x}"
        return [("s", pre, None), ("vmP", f"buffer_load_dword v{VF}, v{VPA}, s[{SA}:{SA+3}], s61 offen", None)]
    PD, PB = par("k2pd", 0), par("k2pb", 4)
    fw = fa = 0
    if PD:
        for f in range(0, PB, 2):
            for kind, x, tg in pfa(f) + pfw(f):
                A(x)
                if kind.startswith("vm"): vm.issue(tg)
        fw = fa = PB
    def read(s, j, ks, p):
        hi, so = divmod(s % RW, 4)
        c, jj = divmod(j, 4)
        return f"ds_read_b64_tr_b16 {ar(wf(j, ks) + 2*p, 2)}, v{VR + hi*4 + jj} offset:{so*16384 + c*8192 + ks*4096 + p*2048}"
    for s in range(PRO):
        if s == 1 and "nocpf" not in OPT:
            A("s_getpc_b64 s[64:65]")
            A.label("L_k2_pc")
            A("s_mov_b32 s66, L_k2_spin-L_k2_pc")
            A("s_mov_b32 s67, 0x20000")
            A(f"s_lshl_b32 s60, s{S_WV}, 13")
            A(f"v_lshlrev_b32 v{T}, 3, v{VL}")
            A(f"buffer_load_dword v{T+1}, v{T}, s[64:67], s60 offen"); vm.issue()
        for kind, x, tg in dmas(s) + aloads(s):
            A(x)
            if kind == "m0": A("s_nop 0")
            if kind.startswith("vm"): vm.issue(tg)
    n = vm.need([("D", 0)]); A(f"s_waitcnt vmcnt({n})")
    A("s_barrier")
    st.mark(A)
    for j in range(3):
        for q in range(4): A(read(0, j, q >> 1, q & 1)); lg.issue(("W", 0, j))
    S = Stream(vm, lg)
    first, last = {}, {}
    for s in range(NS):
        n = 0
        for j in range(nj(s)):
            for t in ((0, 1) if j % 2 == 0 else (1, 0)):
                for ks in ((0, 1) if n % 2 == 0 else (1, 0)):
                    c = vr(acc(t, j) if s < N1 else acc2(t, j), 4)
                    cin = "0" if (s in (0, N1) and ks == (0 if n % 2 == 0 else 1)) else c
                    idx = S.add_mfma(f"v_mfma_f32_16x16x32_bf16 {c}, {ar(wf(j, ks), 4)}, {ar(af(s, ks, t), 4)}, {cin}",
                                     [("lg", ("W", s, j)), ("vm", ("A", s))])
                    first.setdefault((s, j), idx); last[(s, j)] = idx
                n += 1
    i = 0
    for j in range(3, 8):
        for q in range(4): i = S.place(i, "ds", read(0, j, q >> 1, q & 1), gives=("W", 0, j) if q == 3 else None) + 1
    BK, BK0 = par("k2bar", 1), par("k2bar0", 4)
    def isbar(s): return s < BK0 or (s - BK0) % BK == 0
    def lastbar(s):
        while not isbar(s): s -= 1
        return s
    resv = set()
    if "k2mix" not in OPT:
        for s in range(1, N1):
            for k in range(8): resv.add(first[(s, 0)] + 4 * k + 3)
    for i in resv: S.used[i] = 50
    for s in range(NS - 1):
        b = first[(s, 0)] + 1
        if isbar(s):
            k_ = s + 1
            while k_ + 1 < NS and not isbar(k_): k_ += 1
            S.gaps[b].append(("barv", None, None, [("vm", ("D", k_))]))
        for j in range(nj(s + 1)):
            i = last[(s, j)]
            if i in resv:
                for n_, q in enumerate((2, 3, 0, 1)):
                    S.place(i + (1, 1, 2, 3)[n_], "ds", read(s + 1, j, q >> 1, q & 1), gives=("W", s + 1, j) if q == 1 else None, cap=2)
                continue
            for q in (2, 3, 0, 1):
                i = S.place(i, "ds", read(s + 1, j, q >> 1, q & 1), gives=("W", s + 1, j) if q == 1 else None, cap=(2 if s == 0 else 1)) + 1
    cur = 0
    def spread(i0, i1, items):
        nonlocal cur
        i0 = max(i0, cur)
        nv = sum(1 for it in items if it[0].startswith("vm"))
        k = 0
        for kind, x, tg, *nd in items:
            nd = nd[0] if nd else []
            tgt = max(cur, i0 + (k * max(i1 - i0, 0)) // nv)
            if kind == "m0":
                fr = [r_ for r_ in sorted(resv) if r_ > cur and r_ < i1 + 2]
                if fr and len(fr) >= nv - k: tgt = fr[0]
                cur = S.place(max(cur, tgt - 1), "s", x, cap=9) + 1
            elif kind == "s":
                cur = S.place(cur, "s", x, cap=9, needs=nd)
            else:
                free = [r_ for r_ in sorted(resv) if r_ >= cur and r_ < i1 + 2]
                if free and len(free) >= nv - k:
                    cur = free[0]; resv.discard(cur)
                    S.gaps[cur].append((kind, x, tg, list(nd)))
                else:
                    cur = S.place(tgt, kind, x, gives=tg, needs=nd, cap=9)
                k += 1
    nd_, na_ = PRO, PRO
    for s in range(NS):
        b = first[(s, 0)] + 2
        e = first[(s + 1, 0)] + 1 if s + 1 < NS else len(S.mf)
        items = []
        if s == N1:
            for q in range(4):
                r0 = 32 + 8 * q
                cv = "\n".join(f"v_cvt_pk_bf16_f32 v{32+4*q+k}, v{r0+2*k}, v{r0+2*k+1}" for k in range(4))
                items.append(("s", ("s_nop 4\n" if q == 0 else "") + cv, None))
                items.append(("vmS", f"buffer_store_dwordx4 v[{32+4*q}:{35+4*q}], v{VL}, s[{SP}:{SP+3}], s{S_PS} offen offset:{q*1024} sc1", None))
        if PD:
            fw = max(fw, (nd_ + 1) & ~1); fa = max(fa, (na_ + 1) & ~1)
            for _ in range(2 if s < 6 else 1):
                if fw <= fa and fw < NS and fw < nd_ + PD + 2: items += pfw(fw); fw += 2
                elif fa < NS and fa < na_ + PD + 2: items += pfa(fa); fa += 2
        ramp = 2 if (s % par("k2ramp", 2) == 0) else 1
        for _ in range(ramp):
            if nd_ < NS and nd_ <= min(s + DW, lastbar(s) + RW - 1): items += dmas(nd_); nd_ += 1
            if na_ < NS and na_ <= s + RA - 1: items += aloads(na_); na_ += 1
        if stamp and s in (14, N1, N1 + 6, N1 + 13):
            S.gaps[first[(s, 0)] + 1].append(("s", st.text(), None, []))
        if s == XLD:
            items.append(("vmX", f"buffer_load_dwordx4 v[{XT+16}:{XT+19}], v{VB}, s[{SB}:{SB+3}], 0 offen", None))
            items.append(("s", f"s_lshl_b32 s60, s59, 7\ns_add_u32 s60, s60, {SD_RS:#x}\nv_lshlrev_b32 v{VF+3}, 2, v{l16}", None))
            for t in range(2):
                items.append(("vmX", f"buffer_load_dword v{98+t}, v{VF+3}, s[{SF}:{SF+3}], s60 offen offset:{64*t}", None))
            for q in range(4):
                items.append(("s", f"s_mov_b32 s60, {q*8*2048:#x}", None))
                items.append(("vmX", f"buffer_load_dwordx4 v[{XT+4*q}:{XT+4*q+3}], v{VX}, s[{SX}:{SX+3}], s60 offen", None))
        if s == RCV:
            for q in range(4):
                items.append(("vmX", f"buffer_load_dwordx4 v[{48+4*q}:{51+4*q}], v{VL}, s[{SP}:{SP+3}], s{S_PR} offen offset:{q*1024} sc1", None))
        if items:
            cur = max(cur, b)
            spread(b, e, items)
    for x in S.emit("k2"): A(x)
    st.mark(A)
    A(f"s_lshl_b32 s60, s{S_WV}, 14")
    A("s_add_u32 s60, s60, 8192")
    A(f"v_and_b32 v{T}, 7, v{l16}")
    A(f"v_xor_b32 v{T}, v{T}, v{g}")
    A(f"v_lshlrev_b32 v{T+1}, 8, v{l16}")
    A(f"v_add_u32 v{T+1}, s60, v{T+1}")
    A(f"v_lshl_add_u32 v{T+2}, v{T}, 4, v{T+1}")
    A(f"v_xor_b32 v{T}, 4, v{T}")
    A(f"v_lshl_add_u32 v{T+3}, v{T}, 4, v{T+1}")
    A(f"v_lshrrev_b32 v{T}, 3, v{lane}")
    A(f"v_and_b32 v{T+1}, 7, v{lane}")
    A(f"v_lshlrev_b32 v{T+1}, 1, v{T+1}")
    A(f"v_xor_b32 v{T+1}, v{T+1}, v{T}")
    A(f"v_lshlrev_b32 v{T}, 8, v{T}")
    A(f"v_add_u32 v{T}, s60, v{T}")
    A(f"v_lshl_add_u32 v{T+4}, v{T+1}, 4, v{T}")
    A(f"v_xor_b32 v{T+5}, 16, v{T+4}")
    A("s_mov_b32 s62, 0xffff0000")
    A("s_mov_b32 s61, 0")
    A.label("L_k2_back")
    A("s_waitcnt vmcnt(0)")
    A("v_max3_u32 v32, v48, v49, v50")
    A("v_max3_u32 v33, v51, v52, v53")
    for k in range(54, 64, 4):
        A(f"v_max3_u32 v32, v32, v{k}, v{k+1}")
        if k + 3 < 64: A(f"v_max3_u32 v33, v33, v{k+2}, v{k+3}")
    A("v_max_u32 v32, v32, v33")
    A("v_cmp_eq_u32 vcc, -1, v32")
    A("s_cbranch_vccnz L_k2_spin")
    A.label("L_k2_go")
    A("v_pk_mul_f32 v[98:99], v[98:99], v[98:99]")
    for i in range(4):
        A(f"v_lshlrev_b32 v{XT+20+2*i}, 16, v{XT+16+i}")
        A(f"v_and_b32 v{XT+21+2*i}, s62, v{XT+16+i}")
    for j in range(4):
        for t in range(2):
            c = acc(t, j)
            for k in range(2):
                A(f"v_lshlrev_b32 v{32+2*k}, 16, v{48 + c//2 + k}")
                A(f"v_and_b32 v{33+2*k}, s62, v{48 + c//2 + k}")
            A(f"v_pk_add_f32 v[{c}:{c+1}], v[{c}:{c+1}], v[32:33]")
            A(f"v_pk_add_f32 v[{c+2}:{c+3}], v[{c+2}:{c+3}], v[34:35]")
            o = "op_sel_hi:[1,0,1]" if t == 0 else "op_sel:[0,1,0]"
            A(f"v_pk_fma_f32 v[{c}:{c+1}], v[{c}:{c+1}], v[98:99], v[{c+128}:{c+129}] {o}")
            A(f"v_pk_fma_f32 v[{c+2}:{c+3}], v[{c+2}:{c+3}], v[98:99], v[{c+130}:{c+131}] {o}")
            A(f"ds_write_b128 v{T+2+(j&1)}, v[{c}:{c+3}] offset:{t*4096 + (j>>1)*128}")
    A("s_waitcnt lgkmcnt(0)")
    for q in range(4):
        A(f"ds_read_b128 v[{32+8*q}:{35+8*q}], v{T+4} offset:{q*2048}")
        A(f"ds_read_b128 v[{36+8*q}:{39+8*q}], v{T+5} offset:{q*2048}")
    for q in range(4):
        for i in range(4):
            A(f"v_lshlrev_b32 v{2*i}, 16, v{XT+4*q+i}")
            A(f"v_and_b32 v{2*i+1}, s62, v{XT+4*q+i}")
        for i in range(4): A(f"v_pk_add_f32 v[{2*i}:{2*i+1}], v[{2*i}:{2*i+1}], v[{XT+20+2*i}:{XT+21+2*i}]")
        A(f"s_waitcnt lgkmcnt({6-2*q})")
        for i in range(4): A(f"v_pk_add_f32 v[{2*i}:{2*i+1}], v[{2*i}:{2*i+1}], v[{32+8*q+2*i}:{33+8*q+2*i}]")
        for i in range(4): A(f"v_cvt_pk_bf16_f32 v{8+4*q+i}, v{2*i}, v{2*i+1}")
        A(f"s_mov_b32 s60, {q*8*2048:#x}")
        A(f"buffer_store_dwordx4 v[{8+4*q}:{11+4*q}], v{VX}, s[{SO}:{SO+3}], s60 offen")
    st.flush(A, 54, 55, 100, f"s{S_WV}")
    A.label("L_k2_end")
    A("s_endpgm")
    A.label("L_k2_spin")
    A("s_add_u32 s61, s61, 1")
    A("s_cmp_gt_u32 s61, 0x10000")
    A("s_cbranch_scc1 L_k2_go")
    A("s_sleep 2")
    for q in range(4):
        A(f"buffer_load_dwordx4 v[{48+4*q}:{51+4*q}], v{VL}, s[{SP}:{SP+3}], s{S_PR} offen offset:{q*1024} sc1")
    A("s_branch L_k2_back")

def main():
    global STMOD
    ap = argparse.ArgumentParser()
    ap.add_argument("--stamp", action="store_true")
    ap.add_argument("-o", default=None)
    ap.add_argument("--opt", default="")
    ap.add_argument("--par", default="")
    ap.add_argument("--stmod", default="sc1")
    a = ap.parse_args()
    OPT.update(x for x in a.opt.split(",") if x)
    PAR.update(dict(x.split("=") for x in a.par.split(",") if x))
    STMOD = (" " + a.stmod.replace("+", " ")) if a.stmod else ""
    A = Asm()
    hdr = open("cdna_kernels/%s.s.ref" % NAME).read().split("\n")
    for line in hdr:
        if line.startswith(";") and "@launch" not in line and "Override" not in line and "grid=ceil" not in line:
            A.raw(line)
    A.raw("; @launch kernel=gemm1_kernel grid=(256,1,1) block=(256,1,1) lds=163840")
    A.raw("; @launch kernel=gemm2_kernel grid=(256,1,1) block=(256,1,1) lds=131072")
    A.raw('.amdgcn_target "amdgcn-amd-amdhsa--gfx950"\n.text')
    gen_k1(A, "gemm1_kernel", a.stamp)
    gen_k2(A, "gemm2_kernel", a.stamp)
    if not any(o.startswith(('k1no', 'k2no')) for o in OPT): check_hazards(A.L)
    A.raw('.section .rodata,"a"')
    kernel_desc(A, "gemm1_kernel", 512, 256)
    kernel_desc(A, "gemm2_kernel", 160 + 176, 160)
    out = a.o or "cdna_kernels/%s.s" % NAME
    open(out, "w").write(A.text())

if __name__ == "__main__":
    main()
```

```python
import sys, argparse

NAME = "parallel_sum__sliding_local_dilated__dense_activation_squared_relu__prompt"

WS_A2 = 4 << 20
A2_BYTES = 2048 * 4608 * 2
WS_PART = 32 << 20
WS_SIDE = 48 << 20
SD_FLAG, SD_Q, SD_RS, SD_P = 0, 0x10000, 0x20000, 0x40000
SD_BYTES = SD_P + 416 * 1024
WS_STAMP = 64 << 20

OPT = set()
PAR = {}
def par(k, d): return int(PAR.get(k, d))

class Asm:
    def __init__(self): self.L = []
    def __call__(self, s):
        for line in s.split("\n"):
            t = line.strip()
            self.L.append(t if t.endswith(":") else "  " + t)
    def label(self, s): self.L.append(s + ":")
    def raw(self, s): self.L.append(s)
    def text(self): return "\n".join(self.L) + "\n"

def vr(b, n=1, f="v"): return f"{f}{b}" if n == 1 else f"{f}[{b}:{b+n-1}]"
def ar(b, n=1): return vr(b, n, "a")
def sq(b): return f"s[{b}:{b+3}]"

def kernel_head(A, name):
    A.raw(f".globl {name}\n.p2align 8\n.type {name},@function\n{name}:")

def kernel_desc(A, name, nvgpr, accum, nsgpr=102):
    A.raw(f".p2align 6\n.amdhsa_kernel {name}\n  .amdhsa_next_free_vgpr {nvgpr}\n  .amdhsa_next_free_sgpr {nsgpr}\n"
          f"  .amdhsa_accum_offset {accum}\n  .amdhsa_group_segment_fixed_size 0\n  .amdhsa_kernarg_size 88\n"
          f"  .amdhsa_user_sgpr_count 2\n  .amdhsa_user_sgpr_kernarg_segment_ptr 1\n  .amdhsa_system_sgpr_workgroup_id_x 1\n"
          f"  .amdhsa_float_denorm_mode_32 3\n.end_amdhsa_kernel")

def srd(A, d, lo, hi, nbytes, add=0):
    if add:
        A(f"s_add_u32 s{d}, s{lo}, {add:#x}")
        A(f"s_addc_u32 s{d+1}, s{hi}, 0")
    else:
        A(f"s_mov_b32 s{d}, s{lo}")
        A(f"s_mov_b32 s{d+1}, s{hi}")
    if nbytes is not None: A(f"s_mov_b32 s{d+2}, {nbytes:#x}")
    A(f"s_mov_b32 s{d+3}, 0x20000")

class Stamp:
    def __init__(self, on, kidx): self.on, self.kidx, self.n = on, kidx, 0
    def text(self):
        if not self.on: return None
        t = f"s_memrealtime s[{68+2*self.n}:{69+2*self.n}]\ns_memtime s[{84+2*self.n}:{85+2*self.n}]"
        self.n += 1
        assert self.n <= 8
        return t
    def mark(self, A):
        t = self.text()
        if t: A(t)
    def flush(self, A, ws_lo, ws_hi, vtmp, s_wave):
        if not self.on: return
        self.mark(A)
        A("s_waitcnt lgkmcnt(0)")
        A(f"s_lshl_b32 s100, s2, 3")
        A(f"s_add_u32 s100, s100, {s_wave}")
        A(f"s_lshl_b32 s100, s100, 6")
        srd(A, 8, ws_lo, ws_hi, 0x100000, WS_STAMP + self.kidx * 0x40000)
        for i in range(16):
            A(f"v_mov_b32 v{vtmp+i}, s{68+2*i}" if i % 8 < self.n else f"v_mov_b32 v{vtmp+i}, 0")
        A(f"v_mov_b32 v{vtmp+16}, s100")
        A("s_mov_b64 exec, 1")
        for q in range(4):
            A(f"buffer_store_dwordx4 v[{vtmp+4*q}:{vtmp+4*q+3}], v{vtmp+16}, s[8:11], 0 offen offset:{16*q}")

class Score:
    def __init__(self, maxn):
        self.n = 0; self.idx = {}; self.done = 0; self.maxn = maxn
    def issue(self, tag=None):
        self.n += 1
        if tag is not None: self.idx[tag] = self.n
        assert self.n - self.done <= 63 or self.maxn == 15, "too many outstanding"
    def need(self, tags, slack=None):
        y = max(self.idx[t] for t in tags)
        if y <= self.done: return None
        N = self.n - y
        if slack is not None: N = min(N, slack)
        N = min(N, self.maxn)
        self.done = self.n - N
        return N
    def drain(self): self.done = self.n
    def skip(self, tag=None):
        if tag is not None: self.idx[tag] = 0

LG_SLACK = 8
class Stream:
    def __init__(self, vm, lg):
        self.mf = []; self.gaps = []; self.used = []; self.vm, self.lg = vm, lg
    def add_mfma(self, text, needs=()):
        self.mf.append((text, list(needs))); self.gaps.append([]); self.used.append(0)
        return len(self.mf) - 1
    def place(self, i0, kind, text, gives=None, needs=(), cap=1, spill=False):
        i = i0
        while i < len(self.mf) and self.used[i] >= cap: i += 1
        if i >= len(self.mf):
            assert spill, "no free gap"
            i = len(self.mf) - 1
        self.used[i] += 1
        self.gaps[i].append((kind, text, gives, list(needs)))
        return i
    def waits(self, needs, out, lgz=False):
        w = []
        lt = [t for c, t in needs if c == "lg"]; vt = [t for c, t in needs if c == "vm"]
        if lgz:
            if self.lg.done < self.lg.n: w.append("lgkmcnt(0)")
            self.lg.drain()
        elif lt:
            n = self.lg.need(lt, slack=LG_SLACK)
            if n is not None: w.append(f"lgkmcnt({n})")
        if vt:
            n = self.vm.need(vt)
            if n is not None: w.append(f"vmcnt({n})")
        if w: out.append("s_waitcnt " + " ".join(w))
    def emit(self, pfx):
        out = []
        for (text, needs), gap in zip(self.mf, self.gaps):
            self.waits(needs, out)
            if pfx + "nomfma" not in OPT: out.append(text)
            for kind, t, gives, nd in gap:
                if kind == "ds" and pfx + "nords" in OPT: self.lg.skip(gives); continue
                if kind == "vmA" and pfx + "noA" in OPT: self.vm.skip(gives); continue
                if kind == "vmD" and pfx + "noD" in OPT: self.vm.skip(gives); continue
                if kind in ("bar", "barv"):
                    self.waits(nd, out, lgz=(kind == "bar"))
                    out.append("s_barrier")
                    continue
                self.waits(nd, out)
                if kind == "ds": self.lg.issue(gives)
                if kind.startswith("vm"):
                    if self.vm.n - self.vm.done >= 60:
                        out.append("s_waitcnt vmcnt(44)"); self.vm.done = self.vm.n - 44
                    self.vm.issue(gives)
                out.append(t)
        return out

def check_hazards(lines):
    import re
    def regs(tok):
        tok = tok.strip().strip("|").lstrip("-")
        m = re.fullmatch(r"([va])(\d+)", tok)
        if m: return {(m.group(1), int(m.group(2)))}
        m = re.fullmatch(r"([va])\[(\d+):(\d+)\]", tok)
        if m: return {(m.group(1), i) for i in range(int(m.group(2)), int(m.group(3)) + 1)}
        return set()
    hist = []
    pos = 0
    for ln in lines:
        t = ln.strip()
        if not t or t.endswith(":") or t.startswith(";") or t.startswith("."): continue
        mn = t.split()[0]
        ops = [o.split()[0] if o.split() else o for o in t[len(mn):].split(",")]
        R = [regs(o) for o in ops]
        if mn == "s_nop":
            pos += int(ops[0]) + 1; continue
        is_mfma = mn.startswith("v_mfma"); is_valu = mn.startswith("v_") and not is_mfma
        is_mem = mn.startswith("buffer_") or mn.startswith("ds_")
        if is_mfma or is_valu or is_mem:
            allr = set().union(*R) if R else set()
            for kind, wr, sc, p in hist[-24:]:
                d = pos - p - 1
                if kind == "mfma":
                    if is_mfma:
                        if (R[1] | R[2]) & wr and d < 8: raise Exception(f"hazard MFMA->MFMA AB: {t}")
                        if R[3] & wr and R[3] != wr and d < 6: raise Exception(f"hazard MFMA->MFMA C overlap: {t}")
                    else:
                        if allr & wr and d < 8: raise Exception(f"hazard MFMA->{mn} d={d}: {t}")
                        if is_valu and R[0] & sc and d < 3: raise Exception(f"hazard MFMA srcC WAR: {t}")
                elif kind == "valu":
                    if is_mfma and (R[1] | R[2] | R[3]) & wr and d < 2: raise Exception(f"hazard VALU->MFMA: {t}")
                    if is_valu and ("dpp" in mn or "permlane" in mn) and allr & wr and d < 2: raise Exception(f"hazard VALU->DPP: {t}")
                    if mn.startswith("v_readfirstlane") and R[1] & wr and d < 1: raise Exception(f"hazard VALU->readlane: {t}")
                elif kind == "trans":
                    if is_mfma and (R[1] | R[2] | R[3]) & wr and d < 2: raise Exception(f"hazard VALU->MFMA: {t}")
                    if is_valu and set().union(*R[1:]) & wr and d < 1: raise Exception(f"hazard trans->VALU: {t}")
                elif kind == "store":
                    if is_valu and R[0] & wr and d < 2: raise Exception(f"hazard store data WAR: {t}")
            if is_mfma: hist.append(("mfma", R[0], R[3], pos))
            elif is_valu:
                wr = set(R[0])
                if "swap" in mn: wr |= R[1]
                tr = any(mn.startswith(x) for x in ("v_exp", "v_rcp", "v_rsq", "v_sqrt", "v_log"))
                hist.append(("trans" if tr else "valu", wr, set(), pos))
            elif mn.startswith("buffer_store_dwordx4"): hist.append(("store", R[0], set(), pos))
        pos += 1

RING0 = 2048
S_SRDA, S_SRDW, S_SRDO, S_SRDS, S_SRDB, S_SRDC, S_SRDP, S_SRDT = 4, 8, 12, 16, 28, 32, 36, 40
S_C, S_SOFW, S_SOFW2, S_M0B, S_M0A, S_W, S_MB, S_NT = 20, 21, 22, 23, 24, 25, 26, 27
S_CF, S_CHF = 44, 45
S_X0 = 46
S_CODE = 48
S_AROW = 62
V_AD, V_AR, V_L16, V_D, V_R, V_RH, V_T = 224, 226, 228, 229, 232, 240, 244
A_CS, A_P, A_Q, A_SEL, A_DUM, A_RAW, A_ONE = 136, 136, 200, 220, 224, 228, 244
A_TAG, A_NEG = 226, 248

RSQ, RSK = 212, 216

class K1Var:
    def __init__(self, kind):
        self.kind = kind
        if kind == "w1": self.NJ, self.NT, self.CH, self.pitch = 14, 4, 7168, 7168
        else: self.NJ, self.NT, self.CH, self.pitch = 12, 5, 6144, 6144
        self.SL = 4 * self.CH
        self.ASL = self.NT * 2048
        self.ABASE = RING0 + 3 * self.SL
        self.AA = 56
    def wfrag(self, j, ks): return (j % (self.NJ // 2)) * 8 + ks * 4
    def afrag(self, st, ks, t): return self.AA + ((st * 2 + ks) * self.NT + t) * 4
    def acc(self, t, j):
        if t < 4: return (j * 4 + t) * 4
        return 192 + (0 if j == 4 else 4)
    def groups(self):
        return [(j, [0, 1, 2, 3] + ([4] if self.kind == "qkv" and j in (4, 8) else [])) for j in range(self.NJ)]
    def mm(self, t, j, w, x, zero=False):
        c = vr(self.acc(t, j), 4)
        cin = "0" if zero else c
        if self.kind == "qkv" and j >= 8: w, x = x, w
        return f"v_mfma_f32_16x16x32_bf16 {c}, {w}, {x}, {cin}"
    def mfma(self, s, ks, t, j, zero=False):
        return self.mm(t, j, ar(self.wfrag(j, ks), 4), ar(self.afrag(s % 2, ks, t), 4), zero)
    def corr(self, t, j): return self.mm(t, j, ar(A_P + 4 * j, 4), ar(A_Q + 4 * t, 4))
    def read(self, s, ks, j, p):
        st, so = divmod(s % 3, 2)
        base = RING0 + so * self.SL + ks * 2 * self.CH
        d = ar(self.wfrag(j, ks) + 2 * p, 2)
        if j < 12:
            b, jj = divmod(j, 4)
            return f"ds_read_b64_tr_b16 {d}, v{V_R + st*4 + jj} offset:{base + b*1024 + p*512}"
        return f"ds_read_b64_tr_b16 {d}, v{V_RH + st*2 + (j-12)} offset:{base + p*256}"
    def aread(self, s, ks, t):
        return f"ds_read_b128 {ar(self.afrag(s % 2, ks, t), 4)}, v{V_AR+ks} offset:{(s % 2)*self.ASL + t*2048}"
    def admas(self, s, t):
        out = []
        for u in range(2):
            tgt = (s % 2) * self.ASL + t * 2048 + u * 1024
            out.append((f"s_add_u32 m0, s{S_M0A}, {tgt + 2048 - s*128:#x}",
                        f"buffer_load_dwordx4 v{V_AD+u}, {sq(S_SRDA)}, s{S_AROW+t} offen offset:{s*128} lds"))
        return out
    def dmas(self, s):
        out = []
        base = RING0 + (s % 3) * self.SL
        W = sq(S_SRDW)
        for rg in range(2):
            for b in range(3):
                tgt = base + rg * 3072 + b * 1024
                if self.kind == "w1": imm, so = b * 128, S_SOFW
                else: imm, so = (b * 2048, S_SOFW) if b < 2 else (0, S_SOFW2)
                out.append((f"s_add_u32 m0, s{S_M0B}, {tgt - imm:#x}",
                            f"buffer_load_dwordx4 v{V_D+rg}, {W}, s{so} offen offset:{imm} lds"))
        if self.kind == "w1":
            out.append((f"s_add_u32 m0, s{S_M0B}, {base + 6144:#x}",
                        f"buffer_load_dwordx4 v{V_D+2}, {W}, s{S_SOFW} offen lds"))
        return out
    def sof_adv(self):
        r = [f"s_add_u32 s{S_SOFW}, s{S_SOFW}, {64*self.pitch:#x}"]
        if self.kind == "qkv": r.append(f"s_add_u32 s{S_SOFW2}, s{S_SOFW2}, {64*self.pitch:#x}")
        return r

def xlane_sum2(A, a, b):
    for r in (8, 4, 2, 1):
        A("s_nop 0")
        for v in (a, b): A(f"v_add_f32_dpp v{v}, v{v}, v{v} row_ror:{r} row_mask:0xf bank_mask:0xf")
    for sw in ("v_permlane16_swap_b32", "v_permlane32_swap_b32"):
        for v in (a, b): A(f"v_mov_b32 v{v+1}, v{v}")
        A("s_nop 0")
        for v in (a, b): A(f"{sw} v{v}, v{v+1}")
        for v in (a, b): A(f"v_add_f32 v{v}, v{v}, v{v+1}")

def k1_variant(A1, A2_, V, stamp):
    A = A1
    kind = V.kind
    st = Stamp(stamp, 1); st.n = 1
    NS, H, CH = 16, V.NJ // 2, V.CH
    lane, l16, g = 100, 101, 102
    T = 104
    X = S_X0
    if kind == "w1":
        A(f"s_mul_i32 s{X}, s{S_NT}, 448")
        A(f"s_and_b32 s{X+1}, s{S_NT}, 1")
        A(f"s_lshl_b32 s{X+2}, s{X+1}, 6")
        A(f"s_add_u32 s{S_CF}, s{X}, s{X+2}")
        A(f"s_xor_b32 s{X+2}, s{X+1}, 1")
        A(f"s_mul_i32 s{X+2}, s{X+2}, 384")
        A(f"s_add_u32 s{S_CHF}, s{X}, s{X+2}")
    else:
        A(f"s_lshl_b32 s{S_CF}, s{S_NT}, 7")
    r, pc, x, y = T, T + 1, T + 2, T + 3
    A(f"v_lshrrev_b32 v{r}, 3, v{lane}")
    A(f"v_bfe_u32 v{x}, v{lane}, 1, 2")
    A(f"v_bfe_u32 v{y}, v{lane}, 4, 1")
    A(f"v_xor_b32 v{x}, v{x}, v{y}")
    A(f"v_and_b32 v{pc}, 1, v{lane}")
    A(f"v_mul_u32_u24 v{r}, {V.pitch}, v{r}")
    A(f"v_lshl_add_u32 v{y}, v{pc}, 4, v{r}")
    A(f"s_mul_i32 s{X+3}, s{S_W}, {16*V.pitch}")
    A(f"s_add_u32 s{X+4}, s{X+3}, s{S_CF}")
    A(f"v_lshl_add_u32 v{V_D}, v{x}, 5, v{y}")
    A(f"v_add_u32 v{V_D}, s{X+4}, v{V_D}")
    A(f"v_xor_b32 v{x}, 2, v{x}")
    A(f"v_lshl_add_u32 v{V_D+1}, v{x}, 5, v{y}")
    A(f"s_add_u32 s{X+4}, s{X+4}, {8*V.pitch}")
    A(f"v_add_u32 v{V_D+1}, s{X+4}, v{V_D+1}")
    if kind == "w1":
        A(f"v_lshrrev_b32 v{T+4}, 2, v{lane}")
        A(f"v_mul_u32_u24 v{T+4}, {V.pitch}, v{T+4}")
        A(f"v_bfe_u32 v{T+5}, v{lane}, 1, 1")
        A(f"v_bfe_u32 v{T+6}, v{lane}, 5, 1")
        A(f"v_xor_b32 v{T+5}, v{T+5}, v{T+6}")
        A(f"v_lshl_add_u32 v{T+4}, v{T+5}, 5, v{T+4}")
        A(f"v_lshl_add_u32 v{T+4}, v{pc}, 4, v{T+4}")
        A(f"s_add_u32 s{X+4}, s{X+3}, s{S_CHF}")
        A(f"v_add_u32 v{V_D+2}, s{X+4}, v{T+4}")
    A(f"s_mul_i32 s{S_M0B}, s{S_W}, {CH}")
    A(f"s_mul_i32 s{S_M0A}, s{S_W}, {2*V.ASL}")
    A(f"s_add_u32 s{S_M0A}, s{S_M0A}, {V.ABASE - 2048}")
    VPW, VPX = V_T + 4, V_T + 5
    rounds = [x.split(":") for x in PAR.get("k1r", "p:0:4").split("+") if x]
    if rounds:
        A(f"v_lshlrev_b32 v{VPW}, 7, v{lane}")
        A(f"v_lshrrev_b32 v{VPX}, 1, v{lane}")
        A(f"v_lshlrev_b32 v{VPX}, 7, v{VPX}")
        A(f"v_lshl_add_u32 v{VPX}, v{pc}, 11, v{VPX}")
        A(f"s_and_b32 s{S_C}, s2, 127")
        A(f"s_lshl_b32 s{S_C}, s{S_C}, 2")
        A(f"s_add_u32 s{S_C}, s{S_C}, s{S_W}")
    def pfr(s0, n):
        nl = V.pitch // 128 * n // 8
        def ex(k):
            v = (1 << k) - 1
            return f"s_mov_b32 exec_lo, {v & 0xffffffff:#x}\ns_mov_b32 exec_hi, {v >> 32:#x}\n"
        w_ = (f"s_mul_i32 s3, s{S_C}, {nl*128}\ns_add_u32 s3, s3, {64*s0*V.pitch:#x}\n" + ex(nl) +
              f"buffer_load_dword a{A_DUM}, v{VPW}, {sq(S_SRDW)}, s3 offen\ns_mov_b64 exec, -1")
        x_ = ex(2 * n) + f"buffer_load_dword a{A_DUM}, v{VPX}, {sq(S_SRDA)}, s67 offen offset:{s0*128}\ns_mov_b64 exec, -1"
        return [w_, x_]
    VSL, VSX = 200, 201
    slow = [x.split(":") for x in PAR.get("k1slow" if kind == "qkv" else "k1sloww", "p:0:4+r:4:12+6:10:6" if kind == "qkv" else "").split("+") if x]
    slowx = PAR.get("k1slowx", "")
    S_SLOT = 55
    LPR = 4 if kind == "qkv" else 2
    if slow:
        A(f"v_lshrrev_b32 v{VSL}, {2 if kind == 'qkv' else 1}, v{lane}")
        A(f"v_mul_u32_u24 v{VSL}, {V.pitch}, v{VSL}")
        A(f"s_bfe_u32 s{X+5}, s2, 0x20001")
        if kind == "qkv":
            A(f"v_and_b32 v{T+4}, 3, v{lane}")
            A(f"v_min_u32 v{T+4}, 2, v{T+4}")
            A(f"v_lshl_add_u32 v{VSL}, v{T+4}, 11, v{VSL}")
            A(f"s_lshl_b32 s{X+5}, s{X+5}, 9")
            A(f"s_add_u32 s{X+5}, s{X+5}, 384")
            A(f"s_bitcmp1_b32 s2, 1")
            A(f"s_cselect_b32 s{X+5}, 0x7000000, s{X+5}")
        else:
            A(f"v_lshl_add_u32 v{VSL}, v{pc}, 10, v{VSL}")
            A(f"s_lshl_b32 s{X+5}, s{X+5}, 11")
            A(f"s_min_u32 s{X+5}, s{X+5}, 5120")
            A(f"s_add_u32 s{X+5}, s{X+5}, 384")
        A(f"v_add_u32 v{VSL}, s{X+5}, v{VSL}")
        A(f"s_bfe_u32 s{S_SLOT}, s2, 0x40003")
        A(f"s_lshl_b32 s{S_SLOT}, s{S_SLOT}, 2")
        A(f"s_add_u32 s{S_SLOT}, s{S_SLOT}, s{S_W}")
    if slowx:
        A(f"v_lshlrev_b32 v{VSX}, 10, v{lane}")
        A(f"s_lshr_b32 s{X+5}, s2, 3")
        A(f"s_lshl_b32 s{X+5}, s{X+5}, 2")
        A(f"s_add_u32 s{X+5}, s{X+5}, s{S_W}")
        A(f"s_lshl_b32 s{X+5}, s{X+5}, 14")
        A(f"s_and_b32 s{X+6}, s2, 1")
        A(f"s_lshl_b32 s{X+6}, s{X+6}, 21")
        A(f"s_add_u32 s{X+5}, s{X+5}, s{X+6}")
        A(f"v_add_u32 v{VSX}, s{X+5}, v{VSX}")
    def slowpf(s0, n):
        v = (1 << (LPR * n)) - 1
        return (f"s_mul_i32 s3, s{S_SLOT}, {n*V.pitch}\ns_add_u32 s3, s3, {64*s0*V.pitch:#x}\n"
                f"s_mov_b32 exec_lo, {v & 0xffffffff:#x}\ns_mov_b32 exec_hi, {v >> 32:#x}\n"
                f"buffer_load_dword a{A_DUM}, v{VSL}, {sq(S_SRDW)}, s3 offen\ns_mov_b64 exec, -1")
    def pro_R(where):
        for wh, s0, n in slow:
            if wh == where: A1(slowpf(int(s0), int(n))); vm.issue()
        if slowx == where:
            A1(f"s_mov_b64 exec, 0xffff\nbuffer_load_dword a{A_DUM}, v{VSX}, {sq(S_SRDA)}, 0 offen offset:384\ns_mov_b64 exec, -1"); vm.issue()
        for wh, s0, n in rounds:
            if wh == where:
                for b_ in pfr(int(s0), int(n)): A1(b_); vm.issue()
    A("s_waitcnt lgkmcnt(0)")
    if "promarks" in OPT: st.mark(A)
    A(f"s_mov_b32 s{S_SRDA+2}, {4 << 20:#x}"); A(f"s_mov_b32 s{S_SRDA+3}, 0x20000")
    if kind == "w1": srd(A, S_SRDW, 56, 57, 1024 * 7168)
    else: srd(A, S_SRDW, 60, 61, 1024 * 6144)
    vm, lg = Score(63), Score(15)
    def pro_A(s):
        for t in range(V.NT):
            for u, (m0, d) in enumerate(V.admas(s, t)):
                A1(m0); A1("s_nop 0"); A1(d); vm.issue(("A", s, t) if u == 1 else None)
    def pro_W(s):
        dm = V.dmas(s)
        for n, (m0, d) in enumerate(dm):
            A1(m0); A1("s_nop 0"); A1(d); vm.issue(("D", s) if n == len(dm) - 1 else None)
        for x_ in V.sof_adv(): A1(x_)
    if kind == "w1":
        A(f"s_or_b32 s3, s2, s{S_W}")
        A("s_cmp_lg_u32 s3, 0")
        A("s_cbranch_scc1 L_k1_notag")
        srd(A, S_SRDC, 12, 13, 8)
        A("s_or_b32 s18, s18, 1")
        A(f"v_mov_b32 v{T+4}, s18"); A(f"v_mov_b32 v{T+5}, s19")
        A(f"buffer_store_dwordx2 v[{T+4}:{T+5}], v{V_L16}, {sq(S_SRDC)}, 0 offen sc1")
        A.label("L_k1_notag")
    pro_R("p")
    pro_W(0); pro_A(0)
    pro_R("q")
    if "promarks" in OPT: st.mark(A)
    if "late1" not in OPT: pro_W(1); pro_A(1)
    else: pro_W(1)
    pro_R("r")
    if "promarks" in OPT: st.mark(A)
    A(f"s_branch L_k1_main_{kind}")
    A = A2_
    A.label(f"L_k1_main_{kind}")
    WSL, WSH = 14, 15
    A(f"s_mov_b32 s100, s{WSL}"); A(f"s_mov_b32 s101, s{WSH}")
    srd(A, S_SRDC, 12, 13, 8)
    srd(A, S_SRDT, 100, 101, None, WS_SIDE + SD_FLAG)
    A(f"s_cmp_eq_u32 s{S_W}, 0")
    A(f"s_cselect_b32 s{S_SRDT+2}, 0x8000, 0")
    srd(A, S_SRDS, 100, 101, SD_BYTES, WS_SIDE)
    srd(A, S_SRDO, 100, 101, A2_BYTES, WS_A2)
    if kind == "w1":
        srd(A, S_SRDB, 58, 59, None)
        A(f"s_cmp_eq_u32 s{S_MB}, 0")
        A(f"s_cselect_b32 s{S_SRDB+2}, 7168, 0")
    A("s_mov_b32 s0, s38"); A("s_mov_b32 s1, s39")
    A(f"s_mov_b32 s{S_SRDP+2}, {3584*2048:#x}")
    A(f"s_mov_b32 s{S_SRDP+3}, 0x20000")
    A("s_mov_b32 s58, s100"); A("s_mov_b32 s59, s101")
    A(f"s_lshl_b32 s100, s2, 2")
    A(f"s_add_u32 s100, s100, s{S_W}")
    VCA, VCS, VB1, VDC, VW = V_T, V_T + 1, V_T + 2, V_T + 4, V_T + 8
    A(f"v_and_b32 v{T+4}, 7, v{lane}")
    A(f"v_lshl_add_u32 v{VCA}, v{T+4}, 4, v{r}")
    if kind == "w1":
        A(f"s_lshl_b32 s{X+5}, s{S_W}, 7")
        A(f"s_add_u32 s{X+5}, s{X+5}, s{X}")
        A(f"v_lshlrev_b32 v{VB1}, 4, v{T+4}")
        A(f"v_lshl_add_u32 v{VB1}, v{g}, 3, v{VB1}")
        A(f"v_add_u32 v{VB1}, s{X+5}, v{VB1}")
        A(f"s_lshr_b32 s{X+6}, s{X+5}, 5")
        A(f"s_add_u32 s{X+6}, s{X+6}, 192")
    else:
        A(f"s_min_u32 s{X+5}, s{S_W}, 2")
        A(f"s_lshl_b32 s{X+5}, s{X+5}, 11")
        A(f"s_add_u32 s{X+5}, s{X+5}, s{S_CF}")
        A(f"v_mov_b32 v{VB1}, 0"); A(f"v_mov_b32 v{VB1+1}, 0"); vm.skip("B1")
        A(f"s_lshr_b32 s{X+6}, s{X+5}, 5")
    A(f"s_and_b32 s{X+7}, s{S_MB}, 3")
    A(f"s_lshl_b32 s{X+7}, s{X+7}, 1")
    A(f"s_lshr_b32 s3, s{S_MB}, 2")
    A(f"s_add_u32 s{X+7}, s{X+7}, s3")
    A(f"s_mul_i32 s{X+7}, s{X+7}, {128*V.pitch:#x}")
    A(f"s_add_u32 s{X+7}, s{X+7}, s{X+5}")
    S_CSL, S_CSS = X + 7, X + 6
    A(f"s_lshl_b32 s{S_CSS}, s{S_CSS}, 10")
    A(f"s_lshr_b32 s{X+5}, s{S_MB}, 1")
    A(f"s_lshl_b32 s{X+5}, s{X+5}, 8")
    A(f"s_add_u32 s{S_CSS}, s{S_CSS}, s{X+5}")
    A(f"s_and_b32 s{X+5}, s{S_MB}, 1")
    A(f"s_lshl_b32 s{X+5}, s{X+5}, 3")
    A(f"s_add_u32 s{S_CSS}, s{S_CSS}, s{X+5}")
    A(f"s_add_u32 s{S_CSS}, s{S_CSS}, {SD_P:#x}")
    A(f"v_lshrrev_b32 v{T+5}, 1, v{T+4}")
    A(f"v_lshlrev_b32 v{VCS}, 10, v{T+5}")
    A(f"v_lshl_add_u32 v{VCS}, v{pc}, 7, v{VCS}")
    A(f"v_lshl_add_u32 v{VCS}, v{g}, 6, v{VCS}")
    if kind == "w1":
        A(f"s_cmp_eq_u32 s{S_W}, 3")
        A(f"s_cselect_b32 s{X+5}, 0x2c, 0x28")
    else:
        A(f"s_mov_b32 s{X+5}, 0x28")
    A(f"v_and_b32 v{T+5}, s{X+5}, v{lane}")
    A(f"v_lshl_add_u32 v{VCS}, v{T+5}, 24, v{VCS}")
    A(f"v_lshlrev_b32 v{T+5}, 4, v{pc}")
    A(f"v_mov_b32 v{T+6}, 0x3f80")
    A(f"v_lshlrev_b32 v{T+6}, v{T+5}, v{T+6}")
    A(f"v_lshrrev_b32 v{T+5}, 1, v{l16}")
    for q in range(4):
        A(f"v_cmp_eq_u32 vcc, {q}, v{T+5}")
        A("s_nop 1")
        A(f"v_cndmask_b32 v{T+7}, 0, v{T+6}, vcc")
        A(f"v_accvgpr_write_b32 a{A_SEL+q}, v{T+7}")
    A(f"v_xor_b32 v{T+4}, v{T+5}, v{g}")
    A(f"v_lshlrev_b32 v{T+5}, 7, v{l16}")
    A(f"v_add_u32 v{T+5}, s{S_M0A}, v{T+5}")
    A(f"v_add_u32 v{T+5}, 2048, v{T+5}")
    A(f"v_lshl_add_u32 v{V_AR}, v{T+4}, 4, v{T+5}")
    A(f"v_xor_b32 v{T+4}, 4, v{T+4}")
    A(f"v_lshl_add_u32 v{V_AR+1}, v{T+4}, 4, v{T+5}")
    rp, c, sw, b = T + 4, T + 5, T + 6, T + 7
    A(f"v_bfe_u32 v{rp}, v{lane}, 2, 2")
    A(f"v_and_b32 v{c}, 3, v{lane}")
    A(f"v_bfe_u32 v{sw}, v{lane}, 3, 2")
    if kind == "qkv": A(f"v_xor_b32 v{sw}, s{S_W}, v{sw}")
    A(f"v_lshrrev_b32 v{b}, 5, v{lane}")
    A(f"v_mul_u32_u24 v{b}, {CH}, v{b}")
    A(f"v_lshl_add_u32 v{b}, v{c}, 3, v{b}")
    A(f"v_bfe_u32 v{T+8}, v{lane}, 4, 1")
    A(f"v_mul_u32_u24 v{T+9}, 3072, v{T+8}")
    A(f"v_lshl_add_u32 v{T+9}, v{rp}, 7, v{T+9}")
    A(f"v_add_u32 v{T+9}, v{T+9}, v{b}")
    for jj in range(4):
        A(f"v_xor_b32 v{T+10}, {jj}, v{sw}")
        A(f"v_lshl_add_u32 v{V_R+jj}, v{T+10}, 5, v{T+9}")
        A(f"v_add_u32 v{V_R+4+jj}, {2*V.SL}, v{V_R+jj}")
    if kind == "w1":
        A(f"v_lshl_add_u32 v{T+9}, v{T+8}, 3, v{rp}")
        A(f"v_lshl_add_u32 v{T+9}, v{T+9}, 6, v{b}")
        A(f"v_add_u32 v{T+9}, 6144, v{T+9}")
        for jj in range(2):
            A(f"v_xor_b32 v{T+10}, {jj}, v{T+8}")
            A(f"v_lshl_add_u32 v{V_RH+jj}, v{T+10}, 5, v{T+9}")
            A(f"v_add_u32 v{V_RH+2+jj}, {2*V.SL}, v{V_RH+jj}")
    S_HI = X + 8
    A(f"s_mov_b32 s{S_HI}, 0xffff0000")
    for q in range(4): A(f"v_accvgpr_write_b32 a{A_NEG+q}, -1")
    A(f"v_mov_b32 v{T+4}, 0x3f803f80")
    for q in range(4): A(f"v_accvgpr_write_b32 a{A_ONE+q}, v{T+4}")
    A(f"v_cmp_eq_u32 vcc, 1, v{pc}")
    if "promarks" in OPT: st.mark(A)
    n = vm.need([("D", 0), ("A", 0, V.NT - 1)])
    A(f"s_waitcnt vmcnt({n})")
    if "promarks" in OPT: st.mark(A)
    A("s_barrier")
    st.mark(A)
    for ks in range(2): A(V.aread(0, ks, 0)); lg.issue(("AF", 0, 0))
    for q in range(4): A(V.read(0, q >> 1, 0, q & 1)); lg.issue(("W", 0, 0))
    for t in range(1, V.NT):
        for ks in range(2): A(V.aread(0, ks, t)); lg.issue(("AF", 0, t))
    S = Stream(vm, lg)
    groups = V.groups()
    first, last, fin = {}, {}, {}
    for s in range(NS):
        n = 0
        for j, ts in groups:
            ts = list(ts) if j % 2 == 0 else list(reversed(ts))
            if 4 in ts: ts = [4, 0, 1, 2, 3]
            for t in ts:
                kk = (0, 1) if n % 2 == 0 else (1, 0)
                for ks in kk:
                    needs = [("lg", ("W", s, j)), ("lg", ("AF", s, t))]
                    idx = S.add_mfma(V.mfma(s, ks, t, j, zero=(s == 0 and ks == kk[0])), needs)
                    first.setdefault((s, j), idx); last[(s, j)] = idx
                    if s == NS - 1 and ks == kk[0]:
                        S.add_mfma(V.corr(t, j), [("vm", ("P", j)), ("vm", ("Q", t))])
                fin[(t, j)] = idx
                n += 1
    i = 0
    for j in range(1, H):
        for q in range(4):
            i = S.place(i, "ds", V.read(0, q >> 1, j, q & 1), gives=("W", 0, j) if q == 3 else None) + 1
    bar = {}
    SIG0, SIG, POLL, CHK = par("k1sig0", 5), par("k1sig", 8), par("k1poll", 12), par("k1chk", 13)
    for s in range(NS):
        if s + 1 < NS:
            bar[s] = last[(s, H)]
            S.gaps[bar[s]].append(("bar", None, None, [("vm", ("D", s + 1))] + ([("vm", "CS")] if s == SIG else []) + ([("vm", "ST")] if s == SIG0 else [])))
        for j, _ in groups:
            s2, j2 = (s, j + H) if j < H else (s + 1, j - H)
            if s2 >= NS: continue
            i = last[(s, j)]
            step = 1 if (j == H - 1 or (s == 0 and j < H)) else 2
            for q in range(4):
                i = S.place(i, "ds", V.read(s2, q >> 1, j2, q & 1), gives=("W", s2, j2) if q == 3 else None) + step
    cur = 0
    def dma_seq(i0, i1, lst, vcap=1):
        nonlocal cur
        i0 = max(i0, cur)
        n = len(lst)
        for k, (pre, d, kd, gives, needs) in enumerate(lst):
            tgt = max(cur, i0 + (k * (i1 - i0)) // n)
            i = S.place(tgt, "s", pre, cap=vcap + 1)
            cur = S.place(i + 1, kd, d, gives=gives, needs=needs, cap=vcap)
    def merge(a, b):
        if not b: return a
        out, k = [], 0
        for i, x in enumerate(a):
            out.append(x)
            while k < len(b) and (k + 1) * len(a) <= (i + 1) * len(b): out.append(b[k]); k += 1
        return out + b[k:]
    def wlist(s):
        dm = V.dmas(s)
        return [(m0, d, "vmD", ("D", s) if n == len(dm) - 1 else None, []) for n, (m0, d) in enumerate(dm)]
    def alist(s, dep=True):
        return [(m0, d, "vmA", ("A", s, t) if u == 1 else None, [("lg", ("AF", s - 2, t))] if dep else [])
                for t in range(V.NT) for u, (m0, d) in enumerate(V.admas(s, t))]
    def areads(s, i0, i1):
        for t in range(V.NT):
            i = i0 + (t * (i1 - i0)) // V.NT
            i = S.place(i, "ds", V.aread(s, 0, t), needs=[("vm", ("A", s, t))])
            S.place(i + 1, "ds", V.aread(s, 1, t), gives=("AF", s, t))
    extra = {}
    cs = [(f"s_add_u32 s60, s{S_CSL}, {i*8*V.pitch:#x}",
           f"buffer_load_dwordx4 {ar(A_CS+4*i, 4)}, v{VCA}, {sq(S_SRDW)}, s60 offen", "vmX", ("CL", i), []) for i in range(16)]
    cs0, csn = par("cs0", 1), par("csn", 4)
    slots = [(s_, h_) for s_ in range(cs0, cs0 + csn) for h_ in range(2)]
    for i_, it in enumerate(cs): extra.setdefault(slots[i_ * len(slots) // 16], []).append(it)
    if kind == "w1":
        extra.setdefault((cs0 + 1, 0), []).append(("s_nop 0", f"buffer_load_dwordx2 v[{VB1}:{VB1+1}], v{VB1}, {sq(S_SRDB)}, 0 offen", "vmX", "B1", []))
    rows = [("s_nop 0", f"buffer_load_dwordx4 {ar(A_RAW+4*q, 4)}, v{V_L16}, {sq(S_SRDA)}, s67 offen offset:{q*1024}", "vmX", "ROWS" if q == 3 else None, []) for q in range(4)]
    cpf = []
    if "nocpf" not in OPT:
        cpf = [(f"s_getpc_b64 s[{S_CODE}:{S_CODE+1}]\nL_k1_pc_{kind}:\ns_mov_b32 s{S_CODE+2}, L_k1_spin_{kind}-L_k1_pc_{kind}\ns_mov_b32 s{S_CODE+3}, 0x20000\n"
                f"s_bfe_u32 s60, s2, 0x20003\ns_lshl_b32 s60, s60, 2\ns_add_u32 s60, s60, s{S_W}\ns_mul_i32 s60, s60, {par('cpfb', 2560)}\n"
                f"v_lshlrev_b32 v{VW}, 3, v{V_L16}\ns_mov_b64 exec, {hex((1 << (par('cpfb', 2560) // 128)) - 1)}\n"
                f"buffer_load_dword a{A_DUM}, v{VW}, {sq(S_CODE)}, s60 offen\ns_mov_b64 exec, -1")]
    def addx(key, lst): extra.setdefault(key, []).extend(lst)
    pf = []
    for i in range(9):
        pre = f"s_lshl_b32 s60, s100, 10\ns_add_u32 s60, s60, {(i if i < 7 else i - 7) << 20:#x}"
        if i == 0: pre = f"v_lshlrev_b32 v{VCA}, 3, v{V_L16}\n" + pre
        if i == 7: pre = f"s_mov_b32 s{S_SRDP}, s0\ns_mov_b32 s{S_SRDP+1}, s1\ns_mov_b32 s{S_SRDP+2}, {1024*2048:#x}\n" + pre
        pf.append((pre, f"s_mov_b64 exec, 0xff\nbuffer_load_dword a{A_DUM}, v{VCA}, {sq(S_SRDP)}, s60 offen\ns_mov_b64 exec, -1", "vmX", None, []))
    if "nopf" not in OPT:
        p0 = 2 * (cs0 + csn); p1 = 2 * CHK + 1
        for i_, it in enumerate(pf):
            h_ = p0 + i_ * (p1 - p0) // len(pf)
            addx((h_ // 2, h_ % 2), [it])
    cl = []
    NCL = 4 if "k2old" in OPT else 12
    for q in range(NCL):
        pre = f"s_mul_i32 s60, s100, {NCL*1024}" + (f"\ns_add_u32 s60, s60, {(q >> 2)*4096}" if q >= 4 else "")
        if q == 0:
            pre = (f"s_add_u32 s{S_SRDB}, s58, {WS_PART:#x}\ns_addc_u32 s{S_SRDB+1}, s59, 0\ns_mov_b32 s{S_SRDB+2}, {NCL << 20:#x}\n"
                   f"s_mov_b32 s{S_SRDB+3}, 0x20000\n" + pre)
        cl.append((pre, f"buffer_store_dwordx4 {ar(A_NEG,4)}, v{V_L16}, {sq(S_SRDB)}, s60 offen offset:{(q & 3)*1024} sc1", "vmS", None, []))
    if "noclr" not in OPT:
        c0, c1 = 2 * par("k1clr", 9 if NCL == 4 else 6), 2 * 13
        for i_, it in enumerate(cl):
            h_ = c0 + i_ * (c1 - c0) // len(cl)
            addx((h_ // 2, h_ % 2), [it])
    for wh, s0, n in slow:
        if wh.isdigit(): addx((int(wh), 0), [("s_nop 0", slowpf(int(s0), int(n)), "vmX", None, [])])
    if "k2cpf_self" not in OPT and "nocpf" not in OPT:
        addx((par("k2cpf_at", 11), 1), [(f"s_getpc_b64 s[{S_SRDC}:{S_SRDC+1}]\nL_k1_pc2_{kind}:\ns_add_u32 s{S_SRDC}, s{S_SRDC}, gemm2_kernel-L_k1_pc2_{kind}\n"
               f"s_addc_u32 s{S_SRDC+1}, s{S_SRDC+1}, 0\ns_mov_b32 s{S_SRDC+2}, L_k2_spin-gemm2_kernel\n"
               f"s_lshr_b32 s60, s2, 3\ns_lshl_b32 s60, s60, 2\ns_add_u32 s60, s60, s{S_W}\ns_lshl_b32 s60, s60, 8",
               f"s_mov_b64 exec, 3\nbuffer_load_dword a{A_DUM}, v{VCA}, {sq(S_SRDC)}, s60 offen\ns_mov_b64 exec, -1", "vmX", None, [])])
    tagld = f"buffer_load_dwordx2 {ar(A_TAG,2)}, off, {sq(S_SRDC)}, 0 sc1"
    tagchk = (f"v_accvgpr_read_b32 v{VW}, a{A_TAG}\nv_accvgpr_read_b32 v{VW+1}, a{A_TAG+1}\ns_nop 0\n"
              f"v_readfirstlane_b32 s56, v{VW}\nv_readfirstlane_b32 s57, v{VW+1}\ns_nop 3\ns_cmp_lg_u32 s56, 0")
    addx((2, 1), [("s_nop 0", tagld, "vmX", "TAG", [])])
    def flagst(off): return f"s_mov_b64 exec, 1\nbuffer_store_dwordx2 {ar(A_TAG,2)}, off, {sq(S_SRDT)}, s60 offset:{off} sc1\ns_mov_b64 exec, -1"
    addx((SIG0, 1), [("s_lshl_b32 s60, s2, 7", flagst(0), "vmS", None, [])])
    addx((SIG, 1), [("s_lshl_b32 s60, s2, 7", flagst(64), "vmS", None, [])])
    VFA = VW + 2
    fa = [f"v_and_b32 v{VFA}, 0x30, v{V_L16}", f"v_lshlrev_b32 v{VFA}, 4, v{VFA}", f"v_and_b32 v{VFA+1}, 0x1c0, v{V_L16}",
          f"v_lshl_add_u32 v{VFA}, v{VFA+1}, 6, v{VFA}", "s_and_b32 s60, s2, 0x19", "s_lshl_b32 s60, s60, 7", f"v_add_u32 v{VFA}, s60, v{VFA}",
          "s_mov_b32 exec_lo, 0",
          f"v_and_b32 v{VFA}, 0x10, v{V_L16}", f"v_lshlrev_b32 v{VFA}, 3, v{VFA}", f"v_and_b32 v{VFA+1}, 0x60, v{V_L16}",
          f"v_lshl_add_u32 v{VFA}, v{VFA+1}, 5, v{VFA}", "s_and_b32 s60, s2, 0xe6", "s_lshl_b32 s60, s60, 7", "s_add_u32 s60, s60, 64",
          f"v_add_u32 v{VFA}, s60, v{VFA}"]
    if kind == "qkv":
        fa += ["s_mov_b32 exec_hi, 0xffffff00", f"s_max_u32 s60, s{S_MB}, 1", "s_sub_u32 s60, s60, 1", "s_lshr_b32 s3, s60, 2",
               "s_and_b32 s60, s60, 3", "s_lshl_b32 s60, s60, 3", "s_or_b32 s60, s60, s3", "s_or_b32 s60, s60, 0xc6", "s_lshl_b32 s60, s60, 7",
               f"v_and_b32 v{VFA}, 0x10, v{V_L16}", f"v_lshlrev_b32 v{VFA}, 8, v{VFA}", f"v_add_u32 v{VFA}, s60, v{VFA}"]
    fa += ["s_mov_b64 exec, -1"]
    pollld = f"buffer_load_dwordx2 v[{VW}:{VW+1}], v{VFA}, {sq(S_SRDS)}, 0 offen sc1"
    addx((POLL, 1), [("\n".join(fa), pollld, "vmX", "POLL", [])])
    chk = f"v_cmp_ne_u64 vcc, s[56:57], v[{VW}:{VW+1}]"
    pl = []
    for t in range(V.NT):
        pre = f"s_lshr_b32 s60, s{S_AROW+t}, 7\ns_add_u32 s60, s60, {SD_Q:#x}"
        if t == 0: pre = f"v_and_b32 v{VCA}, 0xff, v{V_L16}\n" + pre
        pl.append((pre, f"buffer_load_dwordx4 {ar(A_Q+4*t, 4)}, v{VCA}, {sq(S_SRDS)}, s60 offen sc1", "vmX", ("Q", t), []))
    for j in range(V.NJ):
        if kind == "w1":
            pre = f"s_lshl_b32 s60, s{S_CF if j < 12 else S_CHF}, 5\ns_add_u32 s60, s60, {SD_P + (192 + (j if j < 12 else j - 12))*1024:#x}"
        else:
            pre = (f"s_xor_b32 s60, s{S_W}, {j & 3}\ns_lshl_b32 s60, s60, 5\ns_add_u32 s60, s60, s{S_CF}\ns_lshl_b32 s60, s60, 5\n"
                   f"s_add_u32 s60, s60, {SD_P + (j >> 2)*65536:#x}")
        pl.append((pre, f"buffer_load_dwordx4 {ar(A_P+4*j, 4)}, v{V_L16}, {sq(S_SRDS)}, s60 offen sc1", "vmX", ("P", j), []))
    if kind == "qkv":
        for t in range(4):
            pre = f"s_lshr_b32 s60, s{S_AROW+t}, 9\ns_add_u32 s60, s60, {SD_RS - 64:#x}"
            if t == 0:
                pre = (f"v_lshrrev_b32 v{VCS}, 2, v{VCA}\n"
                       f"v_lshrrev_b32 v{VB1}, 4, v{V_L16}\nv_and_b32 v{VB1}, 0x30, v{VB1}\n"
                       f"v_and_b32 v{VB1+1}, 4, v{VCS}\nv_add_u32 v{VB1}, v{VB1}, v{VB1+1}\n"
                       f"v_add_u32 v{VB1+1}, 8, v{VB1}\n"
                       f"v_cmp_le_u32 s[48:49], v{VB1}, v{VCS}\nv_cmp_le_u32 s[50:51], v{VB1+1}, v{VCS}\n"
                       f"v_add_u32 v{VDC}, 64, v{VB1}\nv_add_u32 v{VDC+1}, 64, v{VB1+1}\n"
                       f"v_cndmask_b32 v{VB1}, v{VB1}, v{VDC}, s[48:49]\nv_cndmask_b32 v{VB1+1}, v{VB1+1}, v{VDC+1}, s[50:51]\n" + pre)
            pl.append((pre, f"buffer_load_dword v{RSQ+t}, v{VCS}, {sq(S_SRDS)}, s60 offen offset:64 sc1", "vmX", None, []))
            pl.append(("s_nop 0", f"buffer_load_dword v{RSK+2*t}, v{VB1}, {sq(S_SRDS)}, s60 offen sc1", "vmX", None, []))
            pl.append(("s_nop 0", f"buffer_load_dword v{RSK+2*t+1}, v{VB1+1}, {sq(S_SRDS)}, s60 offen sc1", "vmX", "RS" if t == 3 else None, []))
    h = len(pl) // 2
    addx((CHK, 1), pl[:h]); addx((CHK + 1, 0), pl[h:])
    for s in range(NS):
        b0 = first[(s, 0)]
        b1 = first[(s + 1, 0)] if s + 1 < NS else len(S.mf)
        if s == 0:
            for wh, s0, n in rounds:
                if wh == "s":
                    for b_ in pfr(int(s0), int(n)): cur = S.place(cur + 1, "vmX", b_, cap=3)
            for c_ in cpf: cur = S.place(cur + 1, "vmX", c_, cap=3)
            dma_seq(b0, bar[0], ([] if "late1" not in OPT else alist(1, dep=False)) + wlist(2) + alist(2), vcap=2)
            for x_ in V.sof_adv(): cur = S.place(cur, "s", x_, cap=4)
            areads(1, b1 - 28, b1 - 8)
            dma_seq(bar[0] + 1, b1, rows + wlist(3))
            for x_ in V.sof_adv(): cur = S.place(cur, "s", x_, cap=3)
            continue
        if s == 1:
            for wh, s0, n in rounds:
                if wh == "t":
                    for b_ in pfr(int(s0), int(n)): cur = S.place(max(cur + 1, b0), "vmX", b_, cap=3)
            areads(2, bar[1] - 8, bar[1] + 20)
            dma_seq(b0, bar[1], merge(alist(3), extra.get((1, 0), [])))
            dma_seq(bar[1] + 1, b1 + 4, merge(wlist(4) + alist(4), extra.get((1, 1), [])))
            for x_ in V.sof_adv(): cur = S.place(cur, "s", x_, cap=3)
            continue
        if s + 1 < NS:
            lo = b0 + (24 if s == 2 else 0)
            areads(s + 1, lo, bar[s] - 8)
            l0 = merge(alist(s + 3) if s + 3 < NS else [], extra.get((s, 0), []))
            if l0: dma_seq(lo + 8, bar[s], l0)
            if s == CHK:
                cur = S.place(max(cur, bar[s] + 1), "s", chk + "\n"
                              f"s_cbranch_vccnz L_k1_spin_{kind}\nL_k1_back_{kind}:", needs=[("vm", "POLL")], cap=3)
            if s == SIG0:
                cur = S.place(max(cur, bar[s] + 1), "s", tagchk + f"\ns_cbranch_scc0 L_k1_tspin_{kind}\nL_k1_tback_{kind}:", needs=[("vm", "TAG")], cap=3)
            l1 = merge(wlist(s + 3) if s + 3 < NS else [], extra.get((s, 1), []))
            if l1: dma_seq(bar[s] + 1, b1 + 4, l1)
            if s + 3 < NS:
                for x_ in V.sof_adv(): cur = S.place(cur, "s", x_, cap=3)
    i = first[(2, 0)]
    def fill(o, gapstep=1, needs=(), kd="s", gives=None):
        nonlocal i
        i = S.place(i, kd, o, needs=needs, cap=2, gives=gives) + gapstep
    mA, mB = VDC, VW
    for rr, d in ((0, mA), (1, mB)):
        for q in range(2):
            fill(f"v_mfma_f32_16x16x32_bf16 {vr(d,4)}, {ar(A_ONE,4)}, {ar(A_RAW+8*rr+4*q,4)}, {'0' if q == 0 else vr(d,4)}", needs=[("vm", "ROWS")])
    i += 8
    for r_ in (8, 4, 2, 1):
        for d in (mA, mB): fill(f"v_add_f32_dpp v{d}, v{d}, v{d} row_ror:{r_} row_mask:0xf bank_mask:0xf")
    for d in (mA, mB): fill(f"v_mul_f32 v{d}, 0x3a800000, v{d}", 0)
    for d in (mA, mB): fill(f"v_mov_b32 v{d+1}, 0", 0)
    for q in range(8):
        for rr, d in ((0, mA), (1, mB)):
            for o in (f"v_accvgpr_read_b32 v{d+2}, a{A_RAW+8*rr+q}", f"v_and_b32 v{d+3}, s{S_HI}, v{d+2}", f"v_lshlrev_b32 v{d+2}, 16, v{d+2}",
                      f"v_sub_f32 v{d+3}, v{d+3}, v{d}", f"v_sub_f32 v{d+2}, v{d+2}, v{d}",
                      f"v_fmac_f32 v{d+1}, v{d+3}, v{d+3}", f"v_fmac_f32 v{d+1}, v{d+2}, v{d+2}"):
                fill(o, 0)
    i += 2
    qA, qB = mA + 1, mB + 1
    for r_ in (8, 4, 2, 1):
        for d in (qA, qB): fill(f"v_add_f32_dpp v{d}, v{d}, v{d} row_ror:{r_} row_mask:0xf bank_mask:0xf")
    for sw_ in ("v_permlane16_swap_b32", "v_permlane32_swap_b32"):
        for d in (qA, qB): fill(f"v_mov_b32 v{d+1}, v{d}")
        i += 1
        for d in (qA, qB): fill(f"{sw_} v{d}, v{d+1}")
        for d in (qA, qB): fill(f"v_add_f32 v{d}, v{d}, v{d+1}")
    for o in (f"v_cndmask_b32 v{mA}, v{mA}, v{mB}, vcc", f"v_cndmask_b32 v{qA}, v{qA}, v{qB}, vcc",
              f"v_mul_f32 v{qA}, 0x3a800000, v{qA}", f"v_cvt_pk_bf16_f32 v{VW}, -v{mA}, -v{mA}",
              f"v_cvt_pk_bf16_f32 v{qA}, v{qA}, v{qA}", f"v_and_b32 v{qA}, s{S_HI}, v{qA}", f"v_add_f32 v{qA}, 0x3727c5ac, v{qA}",
              f"v_cvt_pk_bf16_f32 v{qA}, v{qA}, v{qA}", f"v_and_b32 v{qA}, s{S_HI}, v{qA}", f"v_sqrt_f32 v{qA}, v{qA}",
              f"v_mov_b32 v{VW+2}, v{VW}", f"v_cvt_pk_bf16_f32 v{VW+1}, -v{mA}, v{qA}", f"v_and_b32 v{qA}, s{S_HI}, v{VW+1}",
              f"v_rcp_f32 v{qA}, v{qA}", f"v_mov_b32 v{VW+3}, v{VW+1}", f"v_lshrrev_b32 v{mA+2}, 2, v{V_L16}"):
        fill(o)
    fill(f"s_lshr_b32 s61, s67, 7\ns_add_u32 s61, s61, {SD_Q:#x}\ns_mov_b64 exec, 3\n"
         f"buffer_store_dwordx4 {vr(VW,4)}, v{V_L16}, {sq(S_SRDS)}, s61 offen sc1\ns_mov_b64 exec, -1", kd="vmS")
    fill(f"s_lshr_b32 s61, s67, 9\ns_add_u32 s61, s61, {SD_RS:#x}\ns_mov_b64 exec, 3\n"
         f"buffer_store_dword v{qA}, v{mA+2}, {sq(S_SRDS)}, s61 offen sc1\ns_mov_b64 exec, -1", kd="vmS", gives="ST")
    if "verbose" in OPT: print(kind, "stats done at step", [s_ for s_ in range(NS) if first[(s_, 0)] <= i][-1], i, bar, file=sys.stderr)
    assert i < bar[SIG0 - 1] + 40
    i = i + 2
    for q in range(16):
        cin = "0" if q == 0 else vr(VDC, 4)
        sl_ = slots[q * len(slots) // 16]
        i = max(i, first[(sl_[0] + 2, 0 if sl_[1] == 0 else H)])
        i = S.place(i, "s", f"v_mfma_f32_16x16x32_bf16 {vr(VDC,4)}, {ar(A_SEL,4)}, {ar(A_CS+4*q,4)}, {cin}", needs=[("vm", ("CL", q))], cap=2) + 4
    i += 8
    for r_ in range(4):
        i = S.place(i, "s", f"v_add_f32_dpp v{VDC+r_}, v{VDC+r_}, v{VDC+r_} row_ror:8 row_mask:0xf bank_mask:0xf", cap=2) + 1
    for r_ in range(4):
        d = VDC + r_
        sel = "0x05040302" if r_ % 2 == 0 else "0x07060302"
        ops = [f"v_and_b32 v{VW+2}, s{S_HI}, v{d}", f"v_sub_f32 v{VW+2}, v{d}, v{VW+2}",
               f"v_and_b32 v{VW+3}, s{S_HI}, v{VW+2}", f"v_sub_f32 v{VW+3}, v{VW+2}, v{VW+3}",
               f"s_mov_b32 s61, 0x07060302\nv_perm_b32 v{VW}, v{VW+2}, v{d}, s61",
               f"s_mov_b32 s61, {sel}\nv_perm_b32 v{VW+1}, v{VB1 + (r_ >> 1)}, v{VW+3}, s61"]
        for k, o in enumerate(ops):
            i = S.place(i, "s", o, cap=2, needs=[("vm", "B1")] if k == 5 else []) + 1
        i = S.place(i, "vmS", f"buffer_store_dwordx2 v[{VW}:{VW+1}], v{VCS}, {sq(S_SRDS)}, s{S_CSS} offen offset:{16*r_} sc1",
                    gives="CS" if r_ == 3 else None, cap=2) + 2
    assert i < bar[SIG - 1]
    tail = []
    if kind == "w1":
        pre = [f"s_lshl_b32 s{X}, s{S_MB}, 3", f"s_lshl_b32 s{X+1}, s{S_W}, 1", f"s_add_u32 s{X}, s{X}, s{X+1}",
               f"s_mul_i32 s{X}, s{X}, 144", f"s_add_u32 s{X}, s{X}, 32", f"s_lshr_b32 s{X+1}, s{S_CF}, 6", f"s_lshr_b32 s{X+2}, s{S_CHF}, 6",
               f"s_add_u32 s{X+1}, s{X+1}, s{X}", f"s_add_u32 s{X+2}, s{X+2}, s{X}", f"s_lshl_b32 s{X+1}, s{X+1}, 11", f"s_lshl_b32 s{X+2}, s{X+2}, 11"]
        i = first[(14, 0)]
        for o in pre: i = S.place(i, "s", o, cap=2) + 1
        for j in range(14):
            for t in (range(4) if j % 2 == 0 else range(3, -1, -1)):
                a = V.acc(t, j); e = fin[(t, j)] + 8
                dst = a if j % 2 == 0 else V.acc(t, j - 1) + 2
                for r_ in range(4): tail.append((e, "s", f"v_mul_f32 v{a+r_}, v{a+r_}, |v{a+r_}|", []))
                tail.append((e, "s", f"v_cvt_pk_bf16_f32 v{dst}, v{a}, v{a+1}", []))
                tail.append((e, "s", f"v_cvt_pk_bf16_f32 v{dst+1}, v{a+2}, v{a+3}", []))
                for r_ in range(2): tail.append((e, "s", f"v_pk_max_i16 v{dst+r_}, v{dst+r_}, 0", []))
                if j % 2 == 1:
                    p = j // 2; a0 = V.acc(t, j - 1)
                    off = (t >> 1) * 144 * 2048 + (p * 2048 if p < 6 else 0)
                    tail.append((e, "vmS", f"s_add_u32 s60, s{X+1 if p < 6 else X+2}, {off:#x}\n"
                                 f"buffer_store_dwordx4 v[{a0}:{a0+3}], v{V_L16}, {sq(S_SRDO)}, s60 offen offset:{(t&1)*1024}{STMOD}", []))
    else:
        for j, ts in groups:
            ts = list(ts) if j % 2 == 0 else list(reversed(ts))
            if 4 in ts: ts = [4, 0, 1, 2, 3]
            if j >= 8: ts = [t for t in ts if t == 4] + [0, 1, 2, 3]
            for t in ts:
                a = V.acc(t, j); e = (fin[(t, j)] if j < 8 else last[(NS - 1, j)]) + 8
                if t == 4: d0 = a
                elif j < 8: d0 = a if j % 2 == 0 else V.acc(t, j - 1) + 2
                else: d0 = V.acc(0, j) + 2 + 2 * t
                cv = [f"v_cvt_pk_bf16_f32 v{d0}, v{a}, v{a+1}", f"v_cvt_pk_bf16_f32 v{d0+1}, v{a+2}, v{a+3}"]
                if j >= 8 and t == 0: cv.reverse()
                for o in cv: tail.append((e, "s", o, []))
    i = 0
    rest = []
    for e, kd, text, nd in tail:
        if rest or max(i, e) >= len(S.mf) - 1:
            rest.append((kd, text, nd)); continue
        k = max(i, e)
        while k < len(S.mf) - 1 and S.used[k] >= par("tailcap", 3): k += 1
        if k >= len(S.mf) - 1:
            rest.append((kd, text, nd)); continue
        i = S.place(k, kd, text, needs=nd, cap=par("tailcap", 3))
    if stamp:
        for m in PAR.get("k1marks", "15").split(":"):
            if "promarks" in OPT: break
            S.gaps[first[(int(m), 0)]].append(("s", st.text(), None, []))
    for x_ in S.emit("k1"): A(x_)
    if st.n < 7: st.mark(A)
    A("s_nop 7")
    for kd, text, nd in rest:
        o = []
        S.waits(nd, o)
        for x_ in o: A(x_)
        A(text)
    if kind == "qkv":
        o = []; S.waits([("vm", "RS")], o)
        for x_ in o: A(x_)
        qkv_attention(A, V)
    st.flush(A, 58, 59, 0, f"s{S_W}")
    A("s_endpgm")
    for nm, ld, ck, br in (("", pollld, chk, "s_cbranch_vccnz"), ("t", tagld, tagchk, "s_cbranch_scc0")):
        A.label(f"L_k1_{nm}spin_{kind}")
        A("s_mov_b32 s61, 0")
        A.label(f"L_k1_{nm}spin1_{kind}")
        A("s_sleep 8")
        A(ld)
        A("s_waitcnt vmcnt(0)")
        A("s_add_u32 s61, s61, 1")
        A("s_cmp_gt_u32 s61, 0x10000")
        A(f"s_cbranch_scc1 L_k1_{nm}back_{kind}")
        A(ck)
        A(f"{br} L_k1_{nm}spin1_{kind}")
        A(f"s_branch L_k1_{nm}back_{kind}")

STMOD = ""
def gen_k1(A, name, stamp):
    kernel_head(A, name)
    st0 = Stamp(stamp, 1)
    st0.mark(A)
    A("s_cmp_ge_u32 s2, 256")
    A("s_cbranch_scc1 L_k1_end")
    A("s_load_dwordx2 s[4:5], s[0:1], 0")
    A("s_load_dwordx2 s[60:61], s[0:1], 8")
    A("s_load_dwordx4 s[56:59], s[0:1], 32")
    A("s_load_dwordx4 s[12:15], s[0:1], 72")
    A("s_load_dwordx2 s[36:37], s[0:1], 48")
    A("s_load_dwordx2 s[38:39], s[0:1], 16")
    A("s_memrealtime s[18:19]")
    lane, l16, g, T, X = 100, 101, 102, 104, S_X0
    A(f"v_lshrrev_b32 v{T}, 6, v0")
    A(f"v_and_b32 v{lane}, 63, v0")
    A(f"v_readfirstlane_b32 s{S_W}, v{T}")
    A(f"s_and_b32 s{X}, s2, 1")
    A(f"s_lshl_b32 s{X}, s{X}, 2")
    A(f"s_bfe_u32 s{X+1}, s2, 0x20003")
    A(f"s_add_u32 s{S_MB}, s{X}, s{X+1}")
    A(f"s_bfe_u32 s{X}, s2, 0x20001")
    A(f"s_lshl_b32 s{X}, s{X}, 2")
    A(f"s_bfe_u32 s{X+1}, s2, 0x20005")
    A(f"s_add_u32 s{S_NT}, s{X}, s{X+1}")
    A(f"v_and_b32 v{l16}, 15, v{lane}")
    A(f"v_lshrrev_b32 v{g}, 4, v{lane}")
    A(f"v_lshlrev_b32 v{V_L16}, 4, v{lane}")
    A(f"s_lshl_b32 s{X}, s{S_MB}, 8")
    A(f"s_lshl_b32 s{X+1}, s{S_W}, 6")
    A(f"s_add_u32 s{X+1}, s{X}, s{X+1}")
    A(f"s_lshl_b32 s{X+1}, s{X+1}, 11")
    for t in range(4): A(f"s_add_u32 s{S_AROW+t}, s{X+1}, {t*16*2048:#x}")
    A(f"s_max_u32 s{X+1}, s{X}, 16")
    A(f"s_sub_u32 s{X+1}, s{X+1}, 16")
    A(f"s_lshl_b32 s{S_AROW+4}, s{X+1}, 11")
    A(f"s_lshr_b32 s{X+1}, s2, 7")
    A(f"s_lshl_b32 s{X+1}, s{X+1}, 4")
    A(f"s_add_u32 s{X+1}, s{X+1}, s{S_NT}")
    A(f"s_lshl_b32 s{X+1}, s{X+1}, 2")
    A(f"s_add_u32 s{X+1}, s{X+1}, s{S_W}")
    A(f"s_lshl_b32 s{X+1}, s{X+1}, 1")
    A(f"s_add_u32 s{X+1}, s{X+1}, s{X}")
    A(f"s_lshl_b32 s67, s{X+1}, 11")
    A(f"v_lshrrev_b32 v{T+4}, 3, v{lane}")
    A(f"v_and_b32 v{T+5}, 7, v{lane}")
    A(f"v_xor_b32 v{T+5}, v{T+5}, v{g}")
    A(f"v_lshlrev_b32 v{T+4}, 11, v{T+4}")
    A(f"v_lshl_add_u32 v{V_AD}, v{T+5}, 4, v{T+4}")
    A(f"v_xor_b32 v{T+5}, 4, v{T+5}")
    A(f"v_lshl_add_u32 v{V_AD+1}, v{T+5}, 4, v{T+4}")
    A(f"v_add_u32 v{V_AD+1}, 0x4000, v{V_AD+1}")
    A(f"s_mov_b32 s{S_SOFW}, 0")
    A(f"s_mov_b32 s{S_SOFW2}, 4096")
    A("s_cmp_ge_u32 s2, 128")
    A("s_cbranch_scc1 L_k1_qkv")
    P1, M1, P2, M2 = Asm(), Asm(), Asm(), Asm()
    k1_variant(P1, M1, K1Var("w1"), stamp)
    k1_variant(P2, M2, K1Var("qkv"), stamp)
    A.L += P1.L
    A.label("L_k1_qkv")
    A.L += P2.L + M1.L + M2.L
    A.label("L_k1_end")
    A("s_endpgm")

def qkv_attention(A, V):
    T = V_T
    XCH = RING0 + V.SL
    lane8, l16, g = T + 8, T + 1, T + 2
    def Q(t, sp): return V.acc(t, 2 * sp)
    KP = 200
    def K(t, sp): return V.acc(t, 4 + 2 * sp) if t >= 0 else KP + 4 * sp
    def VT(jj): return 128 + 16 * jj
    X = T + 4
    A(f"v_lshrrev_b32 v{lane8}, 1, v{V_L16}")
    A(f"v_bfe_u32 v{l16}, v{V_L16}, 4, 4")
    A(f"v_lshrrev_b32 v{g}, 8, v{V_L16}")
    for jj in range(4):
        A(f"s_xor_b32 s46, s{S_W}, {jj}")
        A("s_lshl_b32 s46, s46, 9")
        A(f"s_lshl_b32 s47, s{S_W}, 12")
        A("s_add_u32 s46, s46, s47")
        A(f"v_add_u32 v{X+jj}, s46, v{lane8}")
    A(f"s_lshl_b32 s46, s{S_W}, 9")
    A(f"v_add_u32 v{lane8}, s46, v{lane8}")
    for jj in range(4):
        k = K(3, jj >> 1) + 2 * (jj & 1)
        A(f"ds_write_b64 v{X+jj}, v[{k}:{k+1}] offset:{XCH + 4096}")
        v = VT(jj) + 8
        A(f"ds_write_b64 v{X+jj}, v[{v}:{v+1}] offset:{XCH + 4096 + 2048}")
    A(f"ds_write_b64 v{lane8}, v[192:193] offset:{XCH}")
    A(f"ds_write_b64 v{lane8}, v[196:197] offset:{XCH + 2048}")
    par_ = T + 9
    MP, MA, MB_, VA_, VB_ = "s[46:47]", "s[48:49]", "s[50:51]", "s[52:53]", "s[54:55]"
    A(f"v_and_b32 v{par_}, 1, v{l16}")
    A(f"v_cmp_eq_u32 {MP}, 1, v{par_}")
    A(f"s_or_b32 s60, s{S_MB}, s{S_W}")
    A("s_cmp_eq_u32 s60, 0")
    A(f"s_cselect_b64 {VA_}, {MA}, -1")
    A(f"s_cselect_b64 {VB_}, {MB_}, -1")
    FQ = 232
    A("s_mov_b32 s61, 0x3e8293ee")
    for t in range(4): A(f"v_mul_f32 v{RSQ+t}, s61, v{RSQ+t}")
    A(f"v_cndmask_b32 v{RSK}, 0, v{RSK}, {VA_}")
    A(f"v_cndmask_b32 v{RSK+1}, 0, v{RSK+1}, {VB_}")
    for t in range(4):
        for e in range(2): A(f"v_mul_f32 v{FQ+2*t+e}, v{RSQ+t}, v{RSK+2*t+e}")
    SEL = 208
    A(f"v_mov_b32 v{T+10}, 0x0c0c0100")
    A(f"v_mov_b32 v{T+11}, 0x01000c0c")
    A(f"v_cndmask_b32 v{SEL+2}, v{T+10}, v{T+11}, {MP}")
    A(f"v_mov_b32 v{T+10}, 0x0c0c0302")
    A(f"v_mov_b32 v{T+11}, 0x03020c0c")
    A(f"v_cndmask_b32 v{SEL+3}, v{T+10}, v{T+11}, {MP}")
    A(f"v_mov_b32 v{T+10}, 0x0c0c0c0c")
    A(f"v_cndmask_b32 v{SEL}, v{SEL+2}, v{T+10}, {MA}")
    A(f"v_cndmask_b32 v{SEL+1}, v{SEL+3}, v{T+10}, {MB_}")
    A(f"v_cndmask_b32 v{SEL+2}, v{T+10}, v{SEL+2}, {MA}")
    A(f"v_cndmask_b32 v{SEL+3}, v{T+10}, v{SEL+3}, {MB_}")
    A("s_waitcnt lgkmcnt(0)")
    A("s_barrier")
    for jj in range(4):
        k = KP + 4 * (jj >> 1) + 2 * (jj & 1)
        A(f"ds_read_b64 v[{k}:{k+1}], v{X+jj} offset:{XCH}")
        v = VT(jj)
        A(f"ds_read_b64 v[{v}:{v+1}], v{X+jj} offset:{XCH + 2048}")
    A(f"v_mov_b32 v{T+11}, 0xce6e6b28")
    units = [(t, sp) for t in (1, 2, 3, 0) for sp in range(2)]
    def Sc(t, sp): return V.acc(t, 2 * sp + 1)
    def Sp(t, sp): return V.acc(t, 4 + 2 * sp + 1)
    for n, (t, sp) in enumerate(units):
        if t == 0 and sp == 0: A("s_waitcnt lgkmcnt(0)")
        A(f"v_mfma_f32_16x16x32_bf16 {vr(Sc(t,sp),4)}, {vr(K(t,sp),4)}, {vr(Q(t,sp),4)}, 0")
        A(f"v_mfma_f32_16x16x32_bf16 {vr(Sp(t,sp),4)}, {vr(K(t-1,sp),4)}, {vr(Q(t,sp),4)}, 0")
    A("s_nop 1")
    def stage(fn):
        for (t, sp) in units: fn(t, sp, Sc(t, sp), Sp(t, sp))
    stage(lambda t, sp, c, p: A(f"v_cndmask_b32 v{c}, v{c}, v{c+1}, {MP}"))
    stage(lambda t, sp, c, p: A(f"v_cndmask_b32 v{c+1}, v{c+2}, v{c+3}, {MP}"))
    stage(lambda t, sp, c, p: A(f"v_cndmask_b32 v{p}, v{p}, v{p+1}, {MP}"))
    stage(lambda t, sp, c, p: A(f"v_cndmask_b32 v{p+1}, v{p+2}, v{p+3}, {MP}"))
    stage(lambda t, sp, c, p: A(f"v_cndmask_b32 v{c}, v{p}, v{c}, {MA}"))
    stage(lambda t, sp, c, p: A(f"v_cndmask_b32 v{c+1}, v{p+1}, v{c+1}, {MB_}"))
    stage(lambda t, sp, c, p: A(f"v_mul_f32 v{c}, v{c}, v{FQ+2*t}"))
    stage(lambda t, sp, c, p: A(f"v_mul_f32 v{c+1}, v{c+1}, v{FQ+2*t+1}"))
    for sp in range(2):
        c = Sc(0, sp)
        A(f"v_cndmask_b32 v{c}, v{T+11}, v{c}, {VA_}")
        A(f"v_cndmask_b32 v{c+1}, v{T+11}, v{c+1}, {VB_}")
    P = [Sp(t, sp) for (t, sp) in units]
    quads = [P[0:4], P[4:8]]
    def xreduce(op, mid=None, filler=()):
        fl = list(filler)
        def pad(n):
            for _ in range(n): A(fl.pop(0) if fl else "s_nop 0")
        for q in quads:
            A(f"v_permlane16_swap_b32 v{q[0]}, v{q[1]}"); A(f"v_permlane16_swap_b32 v{q[2]}, v{q[3]}")
        for q in quads:
            A(f"{op} v{q[0]}, v{q[0]}, v{q[1]}"); A(f"{op} v{q[2]}, v{q[2]}, v{q[3]}")
        pad(1)
        for q in quads: A(f"v_permlane32_swap_b32 v{q[0]}, v{q[2]}")
        for q in quads: A(f"{op} v{q[0]}, v{q[0]}, v{q[2]}")
        if mid:
            for q in quads: A(f"{mid} v{q[0]}, v{q[0]}")
            pad(1)
        for q in quads: A(f"v_mov_b32 v{q[2]}, v{q[0]}")
        pad(1)
        for q in quads: A(f"v_permlane32_swap_b32 v{q[0]}, v{q[2]}")
        for q in quads:
            A(f"v_mov_b32 v{q[1]}, v{q[0]}"); A(f"v_mov_b32 v{q[3]}, v{q[2]}")
        pad(0)
        for q in quads:
            A(f"v_permlane16_swap_b32 v{q[0]}, v{q[1]}"); A(f"v_permlane16_swap_b32 v{q[2]}, v{q[3]}")
        for x in fl: A(x)
    stage(lambda t, sp, c, p: A(f"v_max_f32 v{p}, v{c}, v{c+1}"))
    xreduce("v_max_f32")
    stage(lambda t, sp, c, p: A(f"v_sub_f32 v{c}, v{c}, v{p}"))
    stage(lambda t, sp, c, p: A(f"v_sub_f32 v{c+1}, v{c+1}, v{p}"))
    stage(lambda t, sp, c, p: A(f"v_exp_f32 v{c}, v{c}"))
    stage(lambda t, sp, c, p: A(f"v_exp_f32 v{c+1}, v{c+1}"))
    stage(lambda t, sp, c, p: A(f"v_add_f32 v{p}, v{c}, v{c+1}"))
    fl = []
    for (t, sp) in units:
        c = Sc(t, sp)
        fl += [f"v_mul_f32 v{c}, v{c}, v{RSK+2*t}", f"v_mul_f32 v{c+1}, v{c+1}, v{RSK+2*t+1}"]
    xreduce("v_add_f32", mid="v_rcp_f32", filler=fl)
    stage(lambda t, sp, c, p: A(f"v_mul_f32 v{c}, v{c}, v{p}"))
    stage(lambda t, sp, c, p: A(f"v_mul_f32 v{c+1}, v{c+1}, v{p}"))
    stage(lambda t, sp, c, p: A(f"v_cvt_pk_bf16_f32 v{c}, v{c}, v{c+1}"))
    for i in range(4):
        stage(lambda t, sp, c, p: A(f"v_perm_b32 v{p+i}, v{c}, v{c}, v{SEL+i}"))
    for (t, sp) in units:
        for e in range(2):
            d = Q(t, sp) if e == 0 else Sc(t, sp)
            v = VT(2 * sp + e) + 2 * t
            A(f"v_mfma_f32_16x16x32_bf16 {vr(d,4)}, {vr(v,4)}, {vr(Sp(t,sp),4)}, 0")
    A(f"s_lshl_b32 s60, s{S_MB}, 3")
    A(f"s_lshl_b32 s61, s{S_W}, 1")
    A("s_add_u32 s60, s60, s61")
    A("s_mul_i32 s60, s60, 144")
    A(f"s_lshl_b32 s61, s{S_NT}, 1")
    A("s_add_u32 s60, s60, s61")
    A(f"s_lshr_b32 s61, s{S_W}, 1")
    A("s_add_u32 s62, s60, s61")
    A("s_xor_b32 s61, s61, 1")
    A("s_add_u32 s63, s60, s61")
    A("s_lshl_b32 s62, s62, 11")
    A("s_lshl_b32 s63, s63, 11")
    for (t, sp) in units:
        a, b = Q(t, sp), Sc(t, sp)
        A(f"v_cvt_pk_bf16_f32 v{a}, v{a}, v{a+1}")
        A(f"v_cvt_pk_bf16_f32 v{a+1}, v{a+2}, v{a+3}")
        A(f"v_cvt_pk_bf16_f32 v{a+2}, v{b}, v{b+1}")
        A(f"v_cvt_pk_bf16_f32 v{a+3}, v{b+2}, v{b+3}")
    A(f"s_bitcmp1_b32 s{S_W}, 0")
    A("s_cbranch_scc0 L_k1_noswap")
    for (t, sp) in units:
        a = Q(t, sp)
        A(f"v_swap_b32 v{a}, v{a+2}")
        A(f"v_swap_b32 v{a+1}, v{a+3}")
    A.label("L_k1_noswap")
    for (t, sp) in units:
        a = Q(t, sp)
        A(f"s_add_u32 s64, s{62+sp}, {(t>>1)*144*2048:#x}")
        A(f"buffer_store_dwordx4 v[{a}:{a+3}], v{V_L16}, {sq(S_SRDO)}, s64 offen offset:{(t&1)*1024}{STMOD}")

def gen_k2(A, name, stamp):
    st = Stamp(stamp, 2)
    kernel_head(A, name)
    st.mark(A)
    SA, SW2, SWO, SX, SB, SO, SP, SF = 4, 8, 12, 16, 20, 24, 28, 32
    S_M0, S_WV, S_SA, S_SW, S_PS, S_PR, S_FS, S_FR = 36, 37, 38, 39, 40, 41, 42, 43
    A("s_cmp_ge_u32 s2, 256")
    A("s_cbranch_scc1 L_k2_end")
    A("s_load_dwordx2 s[44:45], s[0:1], 0")
    A("s_load_dwordx2 s[46:47], s[0:1], 16")
    A("s_load_dwordx4 s[48:51], s[0:1], 48")
    A("s_load_dwordx2 s[52:53], s[0:1], 64")
    A("s_load_dwordx2 s[54:55], s[0:1], 80")
    lane, l16, g = 65, 66, 67
    VA, VD, VR, VX, VB, VL, VF, T = 68, 70, 76, 84, 85, 86, 88, 92
    XT = 100
    A("v_lshrrev_b32 v64, 6, v0")
    A(f"v_and_b32 v{lane}, 63, v0")
    A(f"v_readfirstlane_b32 s{S_WV}, v64")
    A("s_and_b32 s56, s2, 1")
    A("s_bfe_u32 s57, s2, 0x20001")
    A("s_lshl_b32 s57, s57, 2")
    A("s_bfe_u32 s58, s2, 0x20003")
    A("s_add_u32 s57, s57, s58")
    A("s_lshr_b32 s58, s2, 5")
    A(f"v_and_b32 v{l16}, 15, v{lane}")
    A(f"v_lshrrev_b32 v{g}, 4, v{lane}")
    A("s_lshl_b32 s59, s57, 2")
    A(f"s_add_u32 s59, s59, s{S_WV}")
    A(f"s_mul_i32 s60, s59, {144*2048}")
    A(f"v_lshlrev_b32 v{VL}, 4, v{lane}")
    A(f"v_add_u32 v{VA}, s60, v{VL}")
    A(f"s_mul_i32 s{S_SA}, s56, {56*2048}")
    A(f"s_add_u32 s{S_SA}, s{S_SA}, {32*2048}")
    A(f"s_mul_i32 s{S_SW}, s56, {1792*2048}")
    A(f"v_lshrrev_b32 v{T}, 3, v{lane}")
    A(f"v_bfe_u32 v{T+1}, v{lane}, 1, 2")
    A(f"v_xor_b32 v{T+1}, v{T+1}, v{g}")
    A(f"v_lshlrev_b32 v{T}, 11, v{T}")
    A(f"v_lshl_add_u32 v{T+2}, v{T+1}, 5, v{T}")
    A(f"v_and_b32 v{T+1}, 1, v{lane}")
    A(f"v_lshl_add_u32 v{T+2}, v{T+1}, 4, v{T+2}")
    A(f"s_lshl_b32 s60, s{S_WV}, 15")
    A("s_lshl_b32 s61, s58, 8")
    A("s_lshl_b32 s62, s56, 7")
    A("s_add_u32 s61, s61, s62")
    A("s_add_u32 s60, s60, s61")
    A(f"v_add_u32 v{VD}, s60, v{T+2}")
    A(f"v_add_u32 v{VD+1}, 0x4000, v{VD}")
    A(f"v_xor_b32 v{VD+2}, 0x80, v{VD}")
    A(f"v_xor_b32 v{VD+3}, 0x80, v{VD+1}")
    A(f"s_lshl_b32 s{S_M0}, s{S_WV}, 11")
    A("s_lshl_b32 s60, s59, 16")
    A("s_add_u32 s60, s60, s61")
    A(f"v_and_b32 v{T+1}, 7, v{lane}")
    A(f"v_lshl_add_u32 v{VX}, v{T+1}, 4, v{T}")
    A(f"v_add_u32 v{VX}, s60, v{VX}")
    A(f"v_lshlrev_b32 v{VB}, 4, v{T+1}")
    A(f"v_add_u32 v{VB}, s61, v{VB}")
    A(f"v_bfe_u32 v{T}, v{lane}, 2, 4")
    A(f"v_lshlrev_b32 v{T}, 7, v{T}")
    A(f"v_and_b32 v{T+1}, 3, v{lane}")
    A(f"v_lshl_add_u32 v{T}, v{T+1}, 3, v{T}")
    A(f"v_bfe_u32 v{T+1}, v{lane}, 3, 2")
    for jj in range(4):
        A(f"v_xor_b32 v{T+2}, {jj}, v{T+1}")
        A(f"v_lshl_add_u32 v{VR+jj}, v{T+2}, 5, v{T}")
        A(f"v_add_u32 v{VR+4+jj}, 0x10000, v{VR+jj}")
    VPW1, VPW2, VPA = 74, 75, 69
    A("s_lshr_b32 s60, s2, 3")
    A("s_lshl_b32 s60, s60, 2")
    A(f"s_add_u32 s60, s60, s{S_WV}")
    A("s_lshl_b32 s60, s60, 11")
    A(f"v_lshrrev_b32 v{T}, 2, v{lane}")
    A(f"v_lshlrev_b32 v{T}, 7, v{T}")
    A(f"v_add_u32 v{VPW1}, s60, v{T}")
    A("s_add_u32 s60, s60, s62")
    A(f"v_lshrrev_b32 v{T}, 3, v{lane}")
    A(f"v_lshlrev_b32 v{T+1}, 8, v{T}")
    A(f"v_add_u32 v{VPW2}, s60, v{T+1}")
    A(f"s_mul_i32 s60, s59, {144*2048}")
    A("s_lshl_b32 s63, s58, 10")
    A("s_add_u32 s60, s60, s63")
    A(f"v_lshlrev_b32 v{T}, 7, v{T}")
    A(f"v_add_u32 v{VPA}, s60, v{T}")
    VSL = 87
    A(f"v_lshlrev_b32 v{VSL}, 10, v{lane}")
    A("s_lshr_b32 s64, s2, 3")
    A("s_lshl_b32 s64, s64, 2")
    A(f"s_add_u32 s64, s64, s{S_WV}")
    A(f"s_mov_b32 s{S_FS}, s{S_SW}")
    A(f"s_mov_b32 s{S_FR}, s{S_SA}")
    A("s_xor_b32 s63, s2, 1")
    A(f"s_lshl_b32 s60, s{S_WV}, 12")
    A(f"s_lshl_b32 s{S_PS}, s2, 14")
    A(f"s_add_u32 s{S_PS}, s{S_PS}, s60")
    A(f"s_lshl_b32 s{S_PR}, s63, 14")
    A(f"s_add_u32 s{S_PR}, s{S_PR}, s60")
    A("s_waitcnt lgkmcnt(0)")
    srd(A, SA, 54, 55, A2_BYTES, WS_A2)
    srd(A, SW2, 48, 49, 3584 * 2048)
    srd(A, SWO, 46, 47, 1024 * 2048)
    srd(A, SX, 44, 45, 4 << 20)
    srd(A, SB, 50, 51, 2048)
    srd(A, SO, 52, 53, 4 << 20)
    srd(A, SP, 54, 55, 4 << 20, WS_PART)
    srd(A, SF, 54, 55, SD_BYTES, WS_SIDE)
    vm, lg = Score(63), Score(15)
    N1, N2 = 28, 16
    RCV, XLD, PRO = N1 + par('k2rcv', 10), N1 + par('k2xld', 11), par('k2pro', 3)
    NS = N1 + N2
    RW, RA = 8, par('k2ra', 7)
    DW = par('k2dw', RW - 1)
    def acc(t, j): return (j * 2 + t) * 4
    def acc2(t, j): return 128 + (j * 2 + t) * 4
    def wf(j, ks): return (j * 2 + ks) * 4
    def af(s, ks, t): return 64 + ((s % RA) * 4 + ks * 2 + t) * 4
    def nj(s): return 8 if s < N1 else 4
    def aloads(s):
        o = []
        if s == N1: o.append(("s", f"s_mov_b32 s{S_SA}, 0", None))
        for ks in range(2):
            for t in range(2):
                o.append(("vmA", f"buffer_load_dwordx4 {ar(af(s, ks, t), 4)}, v{VA}, s[{SA}:{SA+3}], s{S_SA} offen offset:{ks*2048 + t*1024}", ("A", s) if (ks, t) == (1, 1) else None))
        o.append(("s", f"s_add_u32 s{S_SA}, s{S_SA}, 4096", None))
        return o
    def dmas(s):
        o = []
        if s == N1: o.append(("s", f"s_mov_b32 s{S_SW}, 0", None))
        W = SW2 if s < N1 else SWO
        n = 4 if s < N1 else 2
        for q in range(n):
            c, u = divmod(q, 2)
            o.append(("m0", f"s_add_u32 m0, s{S_M0}, {(s % RW)*16384 + c*8192 + u*1024:#x}", None))
            o.append(("vmD", f"buffer_load_dwordx4 v{VD+q}, s[{W}:{W+3}], s{S_SW} offen lds", ("D", s) if q == n - 1 else None))
        o.append(("s", f"s_add_u32 s{S_SW}, s{S_SW}, 0x20000", None))
        return o
    def pfw(f):
        if f < N1: return [("s", f"s_add_u32 s61, s{S_FS}, {f*0x20000:#x}", None), ("vmP", f"buffer_load_dword v{VF}, v{VPW1}, s[{SW2}:{SW2+3}], s61 offen", None)]
        return [("s", f"s_mov_b32 s61, {(f-N1)*0x20000:#x}", None), ("vmP", f"buffer_load_dword v{VF}, v{VPW2}, s[{SWO}:{SWO+3}], s61 offen", None)]
    def pfa(f):
        pre = f"s_add_u32 s61, s{S_FR}, {f*4096:#x}" if f < N1 else f"s_mov_b32 s61, {(f-N1)*4096:#x}"
        return [("s", pre, None), ("vmP", f"buffer_load_dword v{VF}, v{VPA}, s[{SA}:{SA+3}], s61 offen", None)]
    def slowpf(f, n):
        v = (1 << n) - 1
        base = f"s_add_u32 s61, s61, s{S_FS}\n" if f < N1 else ""
        W = SW2 if f < N1 else SWO
        return [("vmP", f"s_mul_i32 s61, s64, {n*1024}\n{base}s_add_u32 s61, s61, {(f if f < N1 else f - N1)*0x20000:#x}\n"
                 f"s_mov_b64 exec, {v:#x}\nbuffer_load_dword v{VF}, v{VSL}, s[{W}:{W+3}], s61 offen offset:384\ns_mov_b64 exec, -1", None)]
    k2slow = [tuple(x.split(":")) for x in PAR.get("k2slow", "0:4:10+4:14:14+14:28:16").split("+") if x]
    for wh, f, n in k2slow:
        if wh == "p":
            for kind, x, tg in slowpf(int(f), int(n)): A(x); vm.issue()
    PD, PB = par("k2pd", 0), par("k2pb", 4)
    fw = fa = 0
    if PD:
        for f in range(0, PB, 2):
            for kind, x, tg in pfa(f) + pfw(f):
                A(x)
                if kind.startswith("vm"): vm.issue(tg)
        fw = fa = PB
    def read(s, j, ks, p):
        hi, so = divmod(s % RW, 4)
        c, jj = divmod(j, 4)
        return f"ds_read_b64_tr_b16 {ar(wf(j, ks) + 2*p, 2)}, v{VR + hi*4 + jj} offset:{so*16384 + c*8192 + ks*4096 + p*2048}"
    for s in range(PRO):
        if s == 1 and "k2cpf_self" in OPT:
            A("s_getpc_b64 s[64:65]")
            A.label("L_k2_pc")
            A("s_mov_b32 s66, L_k2_spin-L_k2_pc")
            A("s_mov_b32 s67, 0x20000")
            A(f"s_lshl_b32 s60, s{S_WV}, 13")
            A(f"v_lshlrev_b32 v{T}, 3, v{VL}")
            A(f"buffer_load_dword v{T+1}, v{T}, s[64:67], s60 offen"); vm.issue()
        for kind, x, tg in dmas(s) + aloads(s):
            A(x)
            if kind == "m0": A("s_nop 0")
            if kind.startswith("vm"): vm.issue(tg)
    n = vm.need([("D", 0)]); A(f"s_waitcnt vmcnt({n})")
    A("s_barrier")
    st.mark(A)
    for j in range(3):
        for q in range(4): A(read(0, j, q >> 1, q & 1)); lg.issue(("W", 0, j))
    S = Stream(vm, lg)
    first, last = {}, {}
    for s in range(NS):
        n = 0
        for j in range(nj(s)):
            for t in ((0, 1) if j % 2 == 0 else (1, 0)):
                for ks in ((0, 1) if n % 2 == 0 else (1, 0)):
                    c = vr(acc(t, j) if s < N1 else acc2(t, j), 4)
                    cin = "0" if (s in (0, N1) and ks == (0 if n % 2 == 0 else 1)) else c
                    idx = S.add_mfma(f"v_mfma_f32_16x16x32_bf16 {c}, {ar(wf(j, ks), 4)}, {ar(af(s, ks, t), 4)}, {cin}",
                                     [("lg", ("W", s, j)), ("vm", ("A", s))])
                    first.setdefault((s, j), idx); last[(s, j)] = idx
                n += 1
    i = 0
    for j in range(3, 8):
        for q in range(4): i = S.place(i, "ds", read(0, j, q >> 1, q & 1), gives=("W", 0, j) if q == 3 else None) + 1
    BK, BK0 = par("k2bar", 1), par("k2bar0", 4)
    def isbar(s): return s < BK0 or (s - BK0) % BK == 0
    def lastbar(s):
        while not isbar(s): s -= 1
        return s
    resv = set()
    if "k2mix" not in OPT:
        for s in range(1, N1):
            for k in range(8): resv.add(first[(s, 0)] + 4 * k + 3)
    for i in resv: S.used[i] = 50
    for s in range(NS - 1):
        b = first[(s, 0)] + 1
        if isbar(s):
            k_ = s + 1
            while k_ + 1 < NS and not isbar(k_): k_ += 1
            S.gaps[b].append(("barv", None, None, [("vm", ("D", k_))]))
        for j in range(nj(s + 1)):
            i = last[(s, j)]
            if i in resv:
                for n_, q in enumerate((2, 3, 0, 1)):
                    S.place(i + (1, 1, 2, 3)[n_], "ds", read(s + 1, j, q >> 1, q & 1), gives=("W", s + 1, j) if q == 1 else None, cap=2)
                continue
            for q in (2, 3, 0, 1):
                i = S.place(i, "ds", read(s + 1, j, q >> 1, q & 1), gives=("W", s + 1, j) if q == 1 else None, cap=(2 if s == 0 else 1)) + 1
    cur = 0
    def spread(i0, i1, items):
        nonlocal cur
        i0 = max(i0, cur)
        nv = sum(1 for it in items if it[0].startswith("vm"))
        k = 0
        for kind, x, tg, *nd in items:
            nd = nd[0] if nd else []
            tgt = max(cur, i0 + (k * max(i1 - i0, 0)) // nv)
            if kind == "m0":
                fr = [r_ for r_ in sorted(resv) if r_ > cur and r_ < i1 + 2]
                if fr and len(fr) >= nv - k: tgt = fr[0]
                cur = S.place(max(cur, tgt - 1), "s", x, cap=9) + 1
            elif kind == "s":
                cur = S.place(cur, "s", x, cap=9, needs=nd)
            else:
                free = [r_ for r_ in sorted(resv) if r_ >= cur and r_ < i1 + 2]
                if free and len(free) >= nv - k:
                    cur = free[0]; resv.discard(cur)
                    S.gaps[cur].append((kind, x, tg, list(nd)))
                else:
                    cur = S.place(tgt, kind, x, gives=tg, needs=nd, cap=9)
                k += 1
    nd_, na_ = PRO, PRO
    for s in range(NS):
        b = first[(s, 0)] + 2
        e = first[(s + 1, 0)] + 1 if s + 1 < NS else len(S.mf)
        items = []
        if s == N1:
            for q in range(4):
                r0 = 32 + 8 * q
                cv = "\n".join(f"v_cvt_pk_bf16_f32 v{32+4*q+k}, v{r0+2*k}, v{r0+2*k+1}" for k in range(4))
                items.append(("s", ("s_nop 4\n" if q == 0 else "") + cv, None))
                items.append(("vmS", f"buffer_store_dwordx4 v[{32+4*q}:{35+4*q}], v{VL}, s[{SP}:{SP+3}], s{S_PS} offen offset:{q*1024} sc1", None))
        if PD:
            fw = max(fw, (nd_ + 1) & ~1); fa = max(fa, (na_ + 1) & ~1)
            for _ in range(2 if s < 6 else 1):
                if fw <= fa and fw < NS and fw < nd_ + PD + 2: items += pfw(fw); fw += 2
                elif fa < NS and fa < na_ + PD + 2: items += pfa(fa); fa += 2
        for wh, f, n in k2slow:
            if wh == str(s): items += slowpf(int(f), int(n))
        ramp = 2 if (s % par("k2ramp", 2) == 0) else 1
        for _ in range(ramp):
            if nd_ < NS and nd_ <= min(s + DW, lastbar(s) + RW - 1): items += dmas(nd_); nd_ += 1
            if na_ < NS and na_ <= s + RA - 1: items += aloads(na_); na_ += 1
        if stamp and s in (14, N1, N1 + 6, N1 + 13):
            S.gaps[first[(s, 0)] + 1].append(("s", st.text(), None, []))
        if s == par("k2bld", 9):
            items.append(("vmX", f"buffer_load_dwordx4 v[{XT+16}:{XT+19}], v{VB}, s[{SB}:{SB+3}], 0 offen", None))
            items.append(("s", f"s_lshl_b32 s60, s59, 7\ns_add_u32 s60, s60, {SD_RS:#x}\nv_lshlrev_b32 v{VF+3}, 2, v{l16}", None))
            for t in range(2):
                items.append(("vmX", f"buffer_load_dword v{98+t}, v{VF+3}, s[{SF}:{SF+3}], s60 offen offset:{64*t}", None))
        if s == XLD:
            for q in range(4):
                items.append(("s", f"s_mov_b32 s60, {q*8*2048:#x}", None))
                items.append(("vmX", f"buffer_load_dwordx4 v[{XT+4*q}:{XT+4*q+3}], v{VX}, s[{SX}:{SX+3}], s60 offen", None))
        if s == RCV:
            for q in range(4):
                items.append(("vmX", f"buffer_load_dwordx4 v[{48+4*q}:{51+4*q}], v{VL}, s[{SP}:{SP+3}], s{S_PR} offen offset:{q*1024} sc1", None))
        if items:
            cur = max(cur, b)
            spread(b, e, items)
    for x in S.emit("k2"): A(x)
    st.mark(A)
    A(f"s_lshl_b32 s60, s{S_WV}, 14")
    A("s_add_u32 s60, s60, 8192")
    A(f"v_and_b32 v{T}, 7, v{l16}")
    A(f"v_xor_b32 v{T}, v{T}, v{g}")
    A(f"v_lshlrev_b32 v{T+1}, 8, v{l16}")
    A(f"v_add_u32 v{T+1}, s60, v{T+1}")
    A(f"v_lshl_add_u32 v{T+2}, v{T}, 4, v{T+1}")
    A(f"v_xor_b32 v{T}, 4, v{T}")
    A(f"v_lshl_add_u32 v{T+3}, v{T}, 4, v{T+1}")
    A(f"v_lshrrev_b32 v{T}, 3, v{lane}")
    A(f"v_and_b32 v{T+1}, 7, v{lane}")
    A(f"v_lshlrev_b32 v{T+1}, 1, v{T+1}")
    A(f"v_xor_b32 v{T+1}, v{T+1}, v{T}")
    A(f"v_lshlrev_b32 v{T}, 8, v{T}")
    A(f"v_add_u32 v{T}, s60, v{T}")
    A(f"v_lshl_add_u32 v{T+4}, v{T+1}, 4, v{T}")
    A(f"v_xor_b32 v{T+5}, 16, v{T+4}")
    A("s_mov_b32 s62, 0xffff0000")
    A("s_mov_b32 s61, 0")
    A.label("L_k2_back")
    A("s_waitcnt vmcnt(0)")
    A("v_max3_u32 v32, v48, v49, v50")
    A("v_max3_u32 v33, v51, v52, v53")
    for k in range(54, 64, 4):
        A(f"v_max3_u32 v32, v32, v{k}, v{k+1}")
        if k + 3 < 64: A(f"v_max3_u32 v33, v33, v{k+2}, v{k+3}")
    A("v_max_u32 v32, v32, v33")
    A("v_cmp_eq_u32 vcc, -1, v32")
    A("s_cbranch_vccnz L_k2_spin")
    A.label("L_k2_go")
    A("v_pk_mul_f32 v[98:99], v[98:99], v[98:99]")
    for i in range(4):
        A(f"v_lshlrev_b32 v{XT+20+2*i}, 16, v{XT+16+i}")
        A(f"v_and_b32 v{XT+21+2*i}, s62, v{XT+16+i}")
    for j in range(4):
        for t in range(2):
            c = acc(t, j)
            for k in range(2):
                A(f"v_lshlrev_b32 v{32+2*k}, 16, v{48 + c//2 + k}")
                A(f"v_and_b32 v{33+2*k}, s62, v{48 + c//2 + k}")
            A(f"v_pk_add_f32 v[{c}:{c+1}], v[{c}:{c+1}], v[32:33]")
            A(f"v_pk_add_f32 v[{c+2}:{c+3}], v[{c+2}:{c+3}], v[34:35]")
            o = "op_sel_hi:[1,0,1]" if t == 0 else "op_sel:[0,1,0]"
            A(f"v_pk_fma_f32 v[{c}:{c+1}], v[{c}:{c+1}], v[98:99], v[{c+128}:{c+129}] {o}")
            A(f"v_pk_fma_f32 v[{c+2}:{c+3}], v[{c+2}:{c+3}], v[98:99], v[{c+130}:{c+131}] {o}")
            A(f"ds_write_b128 v{T+2+(j&1)}, v[{c}:{c+3}] offset:{t*4096 + (j>>1)*128}")
    A("s_waitcnt lgkmcnt(0)")
    for q in range(4):
        A(f"ds_read_b128 v[{32+8*q}:{35+8*q}], v{T+4} offset:{q*2048}")
        A(f"ds_read_b128 v[{36+8*q}:{39+8*q}], v{T+5} offset:{q*2048}")
    for q in range(4):
        for i in range(4):
            A(f"v_lshlrev_b32 v{2*i}, 16, v{XT+4*q+i}")
            A(f"v_and_b32 v{2*i+1}, s62, v{XT+4*q+i}")
        for i in range(4): A(f"v_pk_add_f32 v[{2*i}:{2*i+1}], v[{2*i}:{2*i+1}], v[{XT+20+2*i}:{XT+21+2*i}]")
        A(f"s_waitcnt lgkmcnt({6-2*q})")
        for i in range(4): A(f"v_pk_add_f32 v[{2*i}:{2*i+1}], v[{2*i}:{2*i+1}], v[{32+8*q+2*i}:{33+8*q+2*i}]")
        for i in range(4): A(f"v_cvt_pk_bf16_f32 v{8+4*q+i}, v{2*i}, v{2*i+1}")
        A(f"s_mov_b32 s60, {q*8*2048:#x}")
        A(f"buffer_store_dwordx4 v[{8+4*q}:{11+4*q}], v{VX}, s[{SO}:{SO+3}], s60 offen{PAR.get('outmod', ' sc1')}")
    if "dbgtime" in OPT:
        A("s_memrealtime s[82:83]")
        A("s_load_dwordx2 s[64:65], s[0:1], 72")
        A("s_waitcnt lgkmcnt(0)")
        srd(A, 8, 54, 55, 0x100000, WS_STAMP + 0x40000)
        srd(A, 12, 64, 65, 64)
        A(f"s_lshl_b32 s60, s2, 3"); A(f"s_add_u32 s60, s60, s{S_WV}"); A("s_lshl_b32 s60, s60, 6")
        A("s_mov_b64 exec, 1")
        A("buffer_load_dwordx4 v[100:103], off, s[8:11], s60")
        A("buffer_load_dword v104, off, s[8:11], s60 offset:16")
        A("s_waitcnt vmcnt(0)")
        A("v_not_b32 v105, v100"); A("v_not_b32 v106, v104")
        A("v_mov_b32 v107, s68"); A("v_not_b32 v107, v107")
        A("v_mov_b32 v108, s70"); A("v_mov_b32 v109, s74"); A("v_mov_b32 v110, s82")
        for i, r in enumerate((105, 101, 104, 107, 108, 109, 110, 106, 100)):
            A(f"buffer_atomic_umax v{r}, off, s[12:15], 0 offset:{4*i}")
        A("s_endpgm")
    if "dbgptr" in OPT:
        A("s_load_dwordx16 s[64:79], s[0:1], 0")
        A("s_load_dwordx4 s[80:83], s[0:1], 64")
        A("s_load_dwordx2 s[84:85], s[0:1], 80")
        A("s_waitcnt lgkmcnt(0)")
        srd(A, 8, 82, 83, 64)
        for i in range(11): A(f"v_mov_b32 v{100+i}, s{64+2*i}")
        A("v_mov_b32 v111, s0")
        A("s_mov_b64 exec, 1")
        for q in range(3): A(f"buffer_store_dwordx4 v[{100+4*q}:{103+4*q}], off, s[8:11], 0 offset:{16*q}")
    st.flush(A, 54, 55, 100, f"s{S_WV}")
    A.label("L_k2_end")
    A("s_endpgm")
    A.label("L_k2_spin")
    A("s_add_u32 s61, s61, 1")
    A("s_cmp_gt_u32 s61, 0x10000")
    A("s_cbranch_scc1 L_k2_go")
    A("s_sleep 2")
    for q in range(4):
        A(f"buffer_load_dwordx4 v[{48+4*q}:{51+4*q}], v{VL}, s[{SP}:{SP+3}], s{S_PR} offen offset:{q*1024} sc1")
    A("s_branch L_k2_back")

def gen_k2b(A, name, stamp):
    st = Stamp(stamp, 2)
    kernel_head(A, name)
    st.mark(A)
    SA, SW2, SWO, SX, SB, SO, SP, SF = 4, 8, 12, 16, 20, 24, 28, 32
    S_M0, S_WV, S_SA, S_SW, S_PS, S_W0, S_MT, S_SLOT = 36, 37, 38, 39, 40, 41, 42, 43
    A("s_cmp_ge_u32 s2, 256")
    A("s_cbranch_scc1 L_k2_end")
    A("s_load_dwordx2 s[54:55], s[0:1], 80")
    A("s_load_dwordx4 s[48:51], s[0:1], 48")
    A("s_load_dwordx2 s[44:45], s[0:1], 0")
    A("s_load_dwordx2 s[46:47], s[0:1], 16")
    A("s_load_dwordx2 s[52:53], s[0:1], 64")
    lane, l16, g = 161, 162, 163
    VA, VD, VR, VX, VB, VL, VSL, VRS, T = 164, 166, 170, 182, 183, 184, 185, 186, 188
    XT = 196
    A("v_lshrrev_b32 v160, 6, v0")
    A(f"v_and_b32 v{lane}, 63, v0")
    A(f"v_readfirstlane_b32 s{S_WV}, v160")
    A("s_bfe_u32 s56, s2, 0x20001")
    A("s_and_b32 s57, s2, 1")
    A("s_lshl_b32 s57, s57, 2")
    A("s_bfe_u32 s58, s2, 0x20003")
    A("s_add_u32 s57, s57, s58")
    A("s_lshr_b32 s58, s2, 5")
    A(f"v_and_b32 v{l16}, 15, v{lane}")
    A(f"v_lshrrev_b32 v{g}, 4, v{lane}")
    A(f"v_lshlrev_b32 v{VL}, 4, v{lane}")
    A("s_lshl_b32 s59, s57, 2")
    A(f"s_add_u32 s59, s59, s{S_WV}")
    A("s_lshl_b32 s59, s59, 1")
    A("s_lshr_b32 s60, s56, 1")
    A(f"s_add_u32 s{S_MT}, s59, s60")
    A(f"s_mul_i32 s60, s{S_MT}, {144*2048}")
    A(f"v_add_u32 v{VA}, s60, v{VL}")
    A(f"s_xor_b32 s60, s{S_MT}, 1")
    A(f"s_mul_i32 s60, s60, {144*2048}")
    A(f"v_add_u32 v{VA+1}, s60, v{VL}")
    A(f"s_mul_i32 s{S_SA}, s56, {28*2048}")
    A(f"s_add_u32 s{S_SA}, s{S_SA}, {32*2048}")
    A(f"s_mul_i32 s{S_SW}, s56, {896*2048}")
    A(f"s_mov_b32 s{S_W0}, s{S_SW}")
    A(f"v_lshrrev_b32 v{T}, 3, v{lane}")
    A(f"v_bfe_u32 v{T+1}, v{lane}, 1, 2")
    A(f"v_xor_b32 v{T+1}, v{T+1}, v{g}")
    A(f"v_lshlrev_b32 v{T}, 11, v{T}")
    A(f"v_lshl_add_u32 v{T+2}, v{T+1}, 5, v{T}")
    A(f"v_and_b32 v{T+1}, 1, v{lane}")
    A(f"v_lshl_add_u32 v{T+2}, v{T+1}, 4, v{T+2}")
    A(f"s_lshl_b32 s60, s{S_WV}, 15")
    A("s_lshl_b32 s61, s58, 8")
    A("s_and_b32 s62, s56, 1")
    A("s_lshl_b32 s62, s62, 7")
    A("s_add_u32 s61, s61, s62")
    A("s_add_u32 s60, s60, s61")
    A(f"v_add_u32 v{VD}, s60, v{T+2}")
    A(f"v_add_u32 v{VD+1}, 0x4000, v{VD}")
    A(f"v_xor_b32 v{VD+2}, 0x80, v{VD}")
    A(f"v_xor_b32 v{VD+3}, 0x80, v{VD+1}")
    A(f"s_lshl_b32 s{S_M0}, s{S_WV}, 11")
    A("s_waitcnt lgkmcnt(0)")
    srd(A, SA, 54, 55, A2_BYTES, WS_A2)
    srd(A, SW2, 48, 49, 3584 * 2048)
    vm, lg = Score(63), Score(15)
    N1, N2 = 14, 16
    NS = N1 + N2
    NH, NU = par("k2nh", 20), 12
    PRO = par("k2pro", 2)
    def nj(s): return 8 if s < N1 else 4
    def nt(s): return 4 if s < N1 else 2
    def cum(s): return 2 * s if s <= N1 else 2 * N1 + (s - N1)
    def half(s, c): return (cum(s) + c) % NH
    def unit(s, a): return (cum(s) + a) % NU
    def quarter(a, b): return (2 * a + b) * 32
    def acc(t, j): return quarter(t >> 1, j >> 2) + ((j & 3) * 2 + (t & 1)) * 4
    def acc2(t, j): return 128 + (j * 2 + t) * 4
    def wf(j, ks): return (j * 2 + ks) * 4
    def af(s, ks, t): return 64 + unit(s, t >> 1) * 16 + (ks * 2 + (t & 1)) * 4
    def aloads(s):
        o = []
        if s == N1: o.append(("s", f"s_mov_b32 s{S_SA}, 0", None))
        na = nt(s) // 2
        for a in range(na):
            for ks in range(2):
                for t in range(2):
                    o.append(("vmA", f"buffer_load_dwordx4 {ar(af(s, ks, 2*a+t), 4)}, v{VA+a}, s[{SA}:{SA+3}], s{S_SA} offen offset:{ks*2048 + t*1024}",
                              ("A", s) if (a, ks, t) == (na - 1, 1, 1) else None))
        o.append(("s", f"s_add_u32 s{S_SA}, s{S_SA}, 4096", None))
        return o
    def dmas(s):
        o = []
        if s == N1: o.append(("s", f"s_mov_b32 s{S_SW}, 0", None))
        W = SW2 if s < N1 else SWO
        n = 4 if s < N1 else 2
        for q in range(n):
            c, u = divmod(q, 2)
            o.append(("m0", f"s_add_u32 m0, s{S_M0}, {half(s, c)*8192 + u*1024:#x}", None))
            o.append(("vmD", f"buffer_load_dwordx4 v{VD+q}, s[{W}:{W+3}], s{S_SW} offen lds", ("D", s) if q == n - 1 else None))
        o.append(("s", f"s_add_u32 s{S_SW}, s{S_SW}, 0x20000", None))
        return o
    def read(s, j, ks, p):
        c, jj = divmod(j, 4)
        hi, so = divmod(half(s, c), 8)
        return f"ds_read_b64_tr_b16 {ar(wf(j, ks) + 2*p, 2)}, v{VR + hi*4 + jj} offset:{so*8192 + ks*4096 + p*2048}"
    def slowpf(f, n):
        v = (1 << n) - 1
        base = f"s_add_u32 s61, s61, s{S_W0}\n" if f < N1 else ""
        W = SW2 if f < N1 else SWO
        return [("vmP", f"s_mul_i32 s61, s{S_SLOT}, {n*1024}\n{base}s_add_u32 s61, s61, {(f if f < N1 else f - N1)*0x20000:#x}\n"
                 f"s_mov_b64 exec, {v:#x}\nbuffer_load_dword v{T+7}, v{VSL}, s[{W}:{W+3}], s61 offen offset:384\ns_mov_b64 exec, -1", None)]
    k2slow = [tuple(x.split(":")) for x in PAR.get("k2slow", "0:3:11+5:14:16").split("+") if x]
    def emit_items(items):
        for kind, x, tg in items:
            A(x)
            if kind == "m0": A("s_nop 0")
            if kind.startswith("vm"): vm.issue(tg)
    emit_items(dmas(0) + aloads(0))
    srd(A, SWO, 46, 47, 1024 * 2048)
    srd(A, SX, 44, 45, 4 << 20)
    srd(A, SB, 50, 51, 2048)
    srd(A, SO, 52, 53, 4 << 20)
    srd(A, SP, 54, 55, 12 << 20, WS_PART)
    srd(A, SF, 54, 55, SD_BYTES, WS_SIDE)
    A(f"s_lshl_b32 s60, s{S_MT}, 16")
    A("s_add_u32 s60, s60, s61")
    A(f"v_and_b32 v{T+1}, 7, v{lane}")
    A(f"v_lshl_add_u32 v{VX}, v{T+1}, 4, v{T}")
    A(f"v_add_u32 v{VX}, s60, v{VX}")
    A(f"v_lshlrev_b32 v{VB}, 4, v{T+1}")
    A(f"v_add_u32 v{VB}, s61, v{VB}")
    A(f"v_bfe_u32 v{T}, v{lane}, 2, 4")
    A(f"v_lshlrev_b32 v{T}, 7, v{T}")
    A(f"v_and_b32 v{T+1}, 3, v{lane}")
    A(f"v_lshl_add_u32 v{T}, v{T+1}, 3, v{T}")
    A(f"v_bfe_u32 v{T+1}, v{lane}, 3, 2")
    for jj in range(4):
        A(f"v_xor_b32 v{T+2}, {jj}, v{T+1}")
        A(f"v_lshl_add_u32 v{VR+jj}, v{T+2}, 5, v{T}")
        A(f"v_add_u32 v{VR+4+jj}, 0x10000, v{VR+jj}")
        A(f"v_add_u32 v{VR+8+jj}, 0x20000, v{VR+jj}")
    A(f"v_lshlrev_b32 v{VSL}, 10, v{lane}")
    A(f"s_lshr_b32 s{S_SLOT}, s2, 3")
    A(f"s_lshl_b32 s{S_SLOT}, s{S_SLOT}, 2")
    A(f"s_add_u32 s{S_SLOT}, s{S_SLOT}, s{S_WV}")
    A(f"s_mul_i32 s{S_PS}, s{S_WV}, 12288")
    for s in range(1, PRO): emit_items(dmas(s) + aloads(s))
    n = vm.need([("D", 0)]); A(f"s_waitcnt vmcnt({n})")
    A("s_barrier")
    st.mark(A)
    for j in range(2):
        for q in range(4): A(read(0, j, q >> 1, q & 1)); lg.issue(("W", 0, j))
    S = Stream(vm, lg)
    first, last, fin = {}, {}, {}
    order = {}
    for s in range(NS):
        js = list(range(nj(s)))
        if s == N1 - 1: js = [4, 5, 6, 7, 0, 1, 2, 3]
        order[s] = js
    for s in range(NS):
        n = 0
        for k, j in enumerate(order[s]):
            ts = list(range(nt(s)))
            if k % 2: ts.reverse()
            for t in ts:
                kk = (0, 1) if n % 2 == 0 else (1, 0)
                for ks in kk:
                    c = vr(acc(t, j) if s < N1 else acc2(t, j), 4)
                    cin = "0" if (s in (0, N1) and ks == kk[0]) else c
                    idx = S.add_mfma(f"v_mfma_f32_16x16x32_bf16 {c}, {ar(wf(j, ks), 4)}, {ar(af(s, ks, t), 4)}, {cin}",
                                     [("lg", ("W", s, j)), ("vm", ("A", s))])
                    first.setdefault((s, j), idx); first.setdefault(s, idx); last[(s, j)] = idx
                fin[(s, t, j)] = idx
                n += 1
    first[NS] = len(S.mf)
    i = 0
    for j in range(2, 8):
        for q in range(4): i = S.place(i, "ds", read(0, j, q >> 1, q & 1), gives=("W", 0, j) if q == 3 else None) + 1
    for s in range(NS - 1):
        S.gaps[first[s] + 1].append(("barv", None, None, [("vm", ("D", s + 1))]))
        for j in order[s]:
            if j >= nj(s + 1): continue
            i = max(last[(s, j)], first[s] + 2)
            for q in (2, 3, 0, 1):
                i = S.place(i, "ds", read(s + 1, j, q >> 1, q & 1), gives=("W", s + 1, j) if q == 1 else None) + (2 if 0 < s < N1 - 1 else 1)
    cur = 0
    def spread(i0, i1, items):
        nonlocal cur
        i0 = max(i0, cur)
        nv = sum(1 for it in items if it[0].startswith("vm"))
        k = 0
        for kind, x, tg, *rest in items:
            lo = rest[0] if rest else 0
            tgt = max(cur, lo, i0 + (k * max(i1 - i0, 0)) // max(nv, 1))
            if kind == "m0": cur = S.place(max(cur, tgt - 1), "s", x, cap=9, spill=True) + 1
            elif kind == "s": cur = S.place(max(cur, lo), "s", x, cap=9, spill=True)
            else:
                t2 = tgt
                if t2 + 1 < len(S.mf) and S.used[t2] > S.used[t2 + 1] and i1 - i0 >= 3 * nv: t2 += 1
                cur = S.place(t2, kind, x, gives=tg, cap=9, spill=True); k += 1
    nd_, na_ = PRO, PRO
    RATE1, RATE2 = par("k2rate1", 15), par("k2rate2", 8)
    budget = 0
    RCV, XLD = N1 + par("k2rcv", 9), N1 + par("k2xld", 2)
    def send(d):
        a, b = d >> 1, d & 1
        q0 = quarter(a, b)
        lo = max(fin[(N1 - 1, t, j)] for t in (2 * a, 2 * a + 1) for j in range(4 * b, 4 * b + 4)) + 8
        o = [("s", f"s_mul_i32 s62, s2, 49152\ns_add_u32 s62, s62, s{S_PS}\ns_add_u32 s62, s62, {(d-1)*4096}", None, lo)]
        for q in range(4):
            for k in range(4): o.append(("s", f"v_cvt_pk_bf16_f32 v{q0+4*q+k}, v{q0+8*q+2*k}, v{q0+8*q+2*k+1}", None, lo + q * 3 + k // 2))
            o.append(("vmS", f"buffer_store_dwordx4 v[{q0+4*q}:{q0+4*q+3}], v{VL}, s[{SP}:{SP+3}], s62 offen offset:{q*1024} sc1", None, lo))
        return o
    def recv_ld(d):
        q0 = quarter(d >> 1, d & 1) + 16
        pre = f"s_xor_b32 s62, s2, {d << 1}\ns_mul_i32 s62, s62, 49152\ns_add_u32 s62, s62, s{S_PS}\ns_add_u32 s62, s62, {(d-1)*4096}"
        return [("s", pre, None)] + [("vmX", f"buffer_load_dwordx4 v[{q0+4*q}:{q0+4*q+3}], v{VL}, s[{SP}:{SP+3}], s62 offen offset:{q*1024} sc1", None) for q in range(4)]
    for s in range(NS):
        b, e = first[s] + 2, first[s + 1] + (1 if s + 1 < NS else 0)
        items = []
        for wh, f, n in k2slow:
            if wh == str(s): items += slowpf(int(f), int(n))
        budget = min(budget, 7) + (RATE1 if s < N1 else RATE2)
        if s == N1 - 1: budget = par("k2rateL", 8)
        while True:
            canD = nd_ < NS and cum(nd_ + 1) - NH <= cum(s)
            canA = na_ < NS and cum(na_ + 1) - NU <= cum(s)
            cd, ca = (4 if nd_ < N1 else 2), (8 if na_ < N1 else 4)
            if canD and (nd_ <= na_ or not canA) and cd <= budget: items += dmas(nd_); nd_ += 1; budget -= cd
            elif canA and ca <= budget: items += aloads(na_); na_ += 1; budget -= ca
            elif canD and cd <= budget: items += dmas(nd_); nd_ += 1; budget -= cd
            else: break
        if "verbose" in OPT: print("k2 step", s, "next D", nd_, "next A", na_, file=sys.stderr)
        if stamp and s in (7, N1, N1 + 6, N1 + 13):
            S.gaps[first[s] + 1].append(("s", st.text(), None, []))
        if s == N1 - 1:
            spread(b, first[(s, 0)], items); items = send(1) + send(3); b = cur
        if s == N1: items = send(2) + items
        if s == par("k2bld", 4):
            items.append(("vmX", f"buffer_load_dwordx4 v[{XT+16}:{XT+19}], v{VB}, s[{SB}:{SB+3}], 0 offen", None))
            items.append(("s", f"s_lshl_b32 s60, s{S_MT}, 7\ns_add_u32 s60, s60, {SD_RS:#x}\nv_lshlrev_b32 v{T+6}, 2, v{l16}", None))
            for t in range(2):
                items.append(("vmX", f"buffer_load_dword v{VRS+t}, v{T+6}, s[{SF}:{SF+3}], s60 offen offset:{64*t}", None))
        if s == XLD:
            for q in range(4):
                items.append(("s", f"s_mov_b32 s60, {q*8*2048:#x}", None))
                items.append(("vmX", f"buffer_load_dwordx4 v[{XT+4*q}:{XT+4*q+3}], v{VX}, s[{SX}:{SX+3}], s60 offen", None))
        for d, ds_ in ((1, 0), (3, 1), (2, 2)):
            if s == RCV + ds_: items += recv_ld(d)
        if items:
            cur = max(cur, b)
            spread(b, e, items)
    assert nd_ == NS and na_ == NS
    for x in S.emit("k2"): A(x)
    st.mark(A)
    eh = (half(NS - 1, 0) + 1) % NH
    while eh + 4 > NH: eh = 0
    assert all((eh + w) % NH not in (half(NS - 1, 0), half(NS - 2, 0)) for w in range(4))
    A(f"s_lshl_b32 s60, s{S_WV}, 13")
    A(f"s_add_u32 s60, s60, {eh*8192}")
    A(f"v_and_b32 v{T}, 7, v{l16}")
    A(f"v_xor_b32 v{T}, v{T}, v{g}")
    A(f"v_lshlrev_b32 v{T+1}, 8, v{l16}")
    A(f"v_add_u32 v{T+1}, s60, v{T+1}")
    A(f"v_lshl_add_u32 v{T+2}, v{T}, 4, v{T+1}")
    A(f"v_xor_b32 v{T}, 4, v{T}")
    A(f"v_lshl_add_u32 v{T+3}, v{T}, 4, v{T+1}")
    A(f"v_lshrrev_b32 v{T}, 3, v{lane}")
    A(f"v_and_b32 v{T+1}, 7, v{lane}")
    A(f"v_lshlrev_b32 v{T+1}, 1, v{T+1}")
    A(f"v_xor_b32 v{T+1}, v{T+1}, v{T}")
    A(f"v_lshlrev_b32 v{T}, 8, v{T}")
    A(f"v_add_u32 v{T}, s60, v{T}")
    A(f"v_lshl_add_u32 v{T+4}, v{T+1}, 4, v{T}")
    A(f"v_xor_b32 v{T+5}, 16, v{T+4}")
    A("s_mov_b32 s63, 0xffff0000")
    A("s_mov_b32 s61, 0")
    A.label("L_k2_back")
    A("s_waitcnt vmcnt(0)")
    rr = [quarter(d >> 1, d & 1) + 16 + k for d in (1, 2, 3) for k in range(16)]
    for h_ in range(2):
        A(f"v_max_u32 v{32+h_}, v{rr[24*h_]}, v{rr[24*h_+1]}")
    for k in range(2, 24, 2):
        for h_ in range(2): A(f"v_max3_u32 v{32+h_}, v{32+h_}, v{rr[24*h_+k]}, v{rr[24*h_+k+1]}")
    A("v_max_u32 v32, v32, v33")
    A("v_cmp_eq_u32 vcc, -1, v32")
    A("s_cbranch_vccnz L_k2_spin")
    A.label("L_k2_go")
    A(f"v_pk_mul_f32 v[{VRS}:{VRS+1}], v[{VRS}:{VRS+1}], v[{VRS}:{VRS+1}]")
    for i in range(4):
        A(f"v_lshlrev_b32 v{XT+20+2*i}, 16, v{XT+16+i}")
        A(f"v_and_b32 v{XT+21+2*i}, s63, v{XT+16+i}")
    for j in range(4):
        for t in range(2):
            c = acc(t, j)
            for n_, d in enumerate((1, 2, 3)):
                r0 = quarter(d >> 1, d & 1) + 16 + c // 2
                for k in range(2):
                    A(f"v_lshlrev_b32 v{32+4*n_+2*k}, 16, v{r0+k}")
                    A(f"v_and_b32 v{33+4*n_+2*k}, s63, v{r0+k}")
            for n_ in range(3):
                A(f"v_pk_add_f32 v[{c}:{c+1}], v[{c}:{c+1}], v[{32+4*n_}:{33+4*n_}]")
                A(f"v_pk_add_f32 v[{c+2}:{c+3}], v[{c+2}:{c+3}], v[{34+4*n_}:{35+4*n_}]")
            o = "op_sel_hi:[1,0,1]" if t == 0 else "op_sel:[0,1,0]"
            A(f"v_pk_fma_f32 v[{c}:{c+1}], v[{c}:{c+1}], v[{VRS}:{VRS+1}], v[{c+128}:{c+129}] {o}")
            A(f"v_pk_fma_f32 v[{c+2}:{c+3}], v[{c+2}:{c+3}], v[{VRS}:{VRS+1}], v[{c+130}:{c+131}] {o}")
            A(f"ds_write_b128 v{T+2+(j&1)}, v[{c}:{c+3}] offset:{t*4096 + (j>>1)*128}")
    A("s_waitcnt lgkmcnt(0)")
    for q in range(4):
        A(f"ds_read_b128 v[{32+8*q}:{35+8*q}], v{T+4} offset:{q*2048}")
        A(f"ds_read_b128 v[{36+8*q}:{39+8*q}], v{T+5} offset:{q*2048}")
    for q in range(4):
        for i in range(4):
            A(f"v_lshlrev_b32 v{2*i}, 16, v{XT+4*q+i}")
            A(f"v_and_b32 v{2*i+1}, s63, v{XT+4*q+i}")
        for i in range(4): A(f"v_pk_add_f32 v[{2*i}:{2*i+1}], v[{2*i}:{2*i+1}], v[{XT+20+2*i}:{XT+21+2*i}]")
        A(f"s_waitcnt lgkmcnt({6-2*q})")
        for i in range(4): A(f"v_pk_add_f32 v[{2*i}:{2*i+1}], v[{2*i}:{2*i+1}], v[{32+8*q+2*i}:{33+8*q+2*i}]")
        for i in range(4): A(f"v_cvt_pk_bf16_f32 v{8+4*q+i}, v{2*i}, v{2*i+1}")
        A(f"s_mov_b32 s60, {q*8*2048:#x}")
        A(f"buffer_store_dwordx4 v[{8+4*q}:{11+4*q}], v{VX}, s[{SO}:{SO+3}], s60 offen{PAR.get('outmod', ' sc1')}")
    st.flush(A, 54, 55, 100, f"s{S_WV}")
    A.label("L_k2_end")
    A("s_endpgm")
    A.label("L_k2_spin")
    A("s_add_u32 s61, s61, 1")
    A("s_cmp_gt_u32 s61, 0x10000")
    A("s_cbranch_scc1 L_k2_go")
    A("s_sleep 2")
    for d in (1, 2, 3):
        for kind, x, tg in recv_ld(d): A(x)
    A("s_branch L_k2_back")

def main():
    global STMOD
    ap = argparse.ArgumentParser()
    ap.add_argument("--stamp", action="store_true")
    ap.add_argument("-o", default=None)
    ap.add_argument("--opt", default="")
    ap.add_argument("--par", default="")
    ap.add_argument("--stmod", default="sc1")
    a = ap.parse_args()
    OPT.update(x for x in a.opt.split(",") if x)
    PAR.update(dict(x.split("=") for x in a.par.split(",") if x))
    STMOD = (" " + a.stmod.replace("+", " ")) if a.stmod else ""
    A = Asm()
    hdr = open("cdna_kernels/%s.s.ref" % NAME).read().split("\n")
    for line in hdr:
        if line.startswith(";") and "@launch" not in line and "Override" not in line and "grid=ceil" not in line:
            A.raw(line)
    A.raw("; @launch kernel=gemm1_kernel grid=(256,1,1) block=(256,1,1) lds=163840")
    A.raw("; @launch kernel=gemm2_kernel grid=(256,1,1) block=(256,1,1) lds=%d" % (131072 if "k2old" in OPT else 163840))
    A.raw('.amdgcn_target "amdgcn-amd-amdhsa--gfx950"\n.text')
    gen_k1(A, "gemm1_kernel", a.stamp)
    (gen_k2 if "k2old" in OPT else gen_k2b)(A, "gemm2_kernel", a.stamp)
    if not any(o.startswith(('k1no', 'k2no')) for o in OPT): check_hazards(A.L)
    A.raw('.section .rodata,"a"')
    kernel_desc(A, "gemm1_kernel", 512, 256)
    if "k2old" in OPT: kernel_desc(A, "gemm2_kernel", 160 + 176, 160)
    else: kernel_desc(A, "gemm2_kernel", 224 + 256, 224)
    out = a.o or "cdna_kernels/%s.s" % NAME
    open(out, "w").write(A.text())

if __name__ == "__main__":
    main()
```

```python
import sys, argparse

NAME = "parallel_sum__sliding_local_dilated__dense_activation_squared_relu__prompt"

WS_A2 = 4 << 20
A2_BYTES = 2048 * 4608 * 2
WS_PART = 32 << 20
WS_SIDE = 48 << 20
SD_FLAG, SD_Q, SD_RS, SD_P = 0, 0x10000, 0x20000, 0x40000
SD_BYTES = SD_P + 416 * 1024
WS_STAMP = 64 << 20

OPT = set()
PAR = {}
def par(k, d): return int(PAR.get(k, d))

class Asm:
    def __init__(self): self.L = []
    def __call__(self, s):
        for line in s.split("\n"):
            t = line.strip()
            self.L.append(t if t.endswith(":") else "  " + t)
    def label(self, s): self.L.append(s + ":")
    def raw(self, s): self.L.append(s)
    def text(self): return "\n".join(self.L) + "\n"

def vr(b, n=1, f="v"): return f"{f}{b}" if n == 1 else f"{f}[{b}:{b+n-1}]"
def ar(b, n=1): return vr(b, n, "a")
def sq(b): return f"s[{b}:{b+3}]"

def kernel_head(A, name):
    A.raw(f".globl {name}\n.p2align 8\n.type {name},@function\n{name}:")

def kernel_desc(A, name, nvgpr, accum, nsgpr=102):
    A.raw(f".p2align 6\n.amdhsa_kernel {name}\n  .amdhsa_next_free_vgpr {nvgpr}\n  .amdhsa_next_free_sgpr {nsgpr}\n"
          f"  .amdhsa_accum_offset {accum}\n  .amdhsa_group_segment_fixed_size 0\n  .amdhsa_kernarg_size 88\n"
          f"  .amdhsa_user_sgpr_count 2\n  .amdhsa_user_sgpr_kernarg_segment_ptr 1\n  .amdhsa_system_sgpr_workgroup_id_x 1\n"
          f"  .amdhsa_float_denorm_mode_32 3\n.end_amdhsa_kernel")

def srd(A, d, lo, hi, nbytes, add=0):
    if add:
        A(f"s_add_u32 s{d}, s{lo}, {add:#x}")
        A(f"s_addc_u32 s{d+1}, s{hi}, 0")
    else:
        A(f"s_mov_b32 s{d}, s{lo}")
        A(f"s_mov_b32 s{d+1}, s{hi}")
    if nbytes is not None: A(f"s_mov_b32 s{d+2}, {nbytes:#x}")
    A(f"s_mov_b32 s{d+3}, 0x20000")

class Stamp:
    def __init__(self, on, kidx): self.on, self.kidx, self.n = on, kidx, 0
    def text(self):
        if not self.on: return None
        t = f"s_memrealtime s[{68+2*self.n}:{69+2*self.n}]\ns_memtime s[{84+2*self.n}:{85+2*self.n}]"
        self.n += 1
        assert self.n <= 8
        return t
    def mark(self, A):
        t = self.text()
        if t: A(t)
    def flush(self, A, ws_lo, ws_hi, vtmp, s_wave):
        if not self.on: return
        self.mark(A)
        A("s_waitcnt lgkmcnt(0)")
        A(f"s_lshl_b32 s100, s2, 3")
        A(f"s_add_u32 s100, s100, {s_wave}")
        A(f"s_lshl_b32 s100, s100, 6")
        srd(A, 8, ws_lo, ws_hi, 0x100000, WS_STAMP + self.kidx * 0x40000)
        for i in range(16):
            A(f"v_mov_b32 v{vtmp+i}, s{68+2*i}" if i % 8 < self.n else f"v_mov_b32 v{vtmp+i}, 0")
        A(f"v_mov_b32 v{vtmp+16}, s100")
        A("s_mov_b64 exec, 1")
        for q in range(4):
            A(f"buffer_store_dwordx4 v[{vtmp+4*q}:{vtmp+4*q+3}], v{vtmp+16}, s[8:11], 0 offen offset:{16*q}")

class Score:
    def __init__(self, maxn):
        self.n = 0; self.idx = {}; self.done = 0; self.maxn = maxn
    def issue(self, tag=None):
        self.n += 1
        if tag is not None: self.idx[tag] = self.n
        assert self.n - self.done <= 63 or self.maxn == 15, "too many outstanding"
    def need(self, tags, slack=None):
        y = max(self.idx[t] for t in tags)
        if y <= self.done: return None
        N = self.n - y
        if slack is not None: N = min(N, slack)
        N = min(N, self.maxn)
        self.done = self.n - N
        return N
    def drain(self): self.done = self.n
    def skip(self, tag=None):
        if tag is not None: self.idx[tag] = 0

LG_SLACK = 8
class Stream:
    def __init__(self, vm, lg):
        self.mf = []; self.gaps = []; self.used = []; self.vm, self.lg = vm, lg
    def add_mfma(self, text, needs=()):
        self.mf.append((text, list(needs))); self.gaps.append([]); self.used.append(0)
        return len(self.mf) - 1
    def place(self, i0, kind, text, gives=None, needs=(), cap=1, spill=False):
        i = i0
        while i < len(self.mf) and self.used[i] >= cap: i += 1
        if i >= len(self.mf):
            assert spill, "no free gap"
            i = len(self.mf) - 1
        self.used[i] += 1
        self.gaps[i].append((kind, text, gives, list(needs)))
        return i
    def waits(self, needs, out, lgz=False):
        w = []
        lt = [t for c, t in needs if c == "lg"]; vt = [t for c, t in needs if c == "vm"]
        if lgz:
            if self.lg.done < self.lg.n: w.append("lgkmcnt(0)")
            self.lg.drain()
        elif lt:
            n = self.lg.need(lt, slack=LG_SLACK)
            if n is not None: w.append(f"lgkmcnt({n})")
        if vt:
            n = self.vm.need(vt)
            if n is not None: w.append(f"vmcnt({n})")
        if w: out.append("s_waitcnt " + " ".join(w))
    def emit(self, pfx):
        out = []
        for (text, needs), gap in zip(self.mf, self.gaps):
            self.waits(needs, out)
            if pfx + "nomfma" not in OPT: out.append(text)
            for kind, t, gives, nd in gap:
                if kind == "ds" and pfx + "nords" in OPT: self.lg.skip(gives); continue
                if kind == "vmA" and pfx + "noA" in OPT: self.vm.skip(gives); continue
                if kind == "vmD" and pfx + "noD" in OPT: self.vm.skip(gives); continue
                if kind in ("bar", "barv"):
                    self.waits(nd, out, lgz=(kind == "bar"))
                    out.append("s_barrier")
                    continue
                self.waits(nd, out)
                if kind == "ds": self.lg.issue(gives)
                if kind.startswith("vm"):
                    if self.vm.n - self.vm.done >= 60:
                        out.append("s_waitcnt vmcnt(44)"); self.vm.done = self.vm.n - 44
                    self.vm.issue(gives)
                out.append(t)
        return out

def check_hazards(lines):
    import re
    def regs(tok):
        tok = tok.strip().strip("|").lstrip("-")
        m = re.fullmatch(r"([va])(\d+)", tok)
        if m: return {(m.group(1), int(m.group(2)))}
        m = re.fullmatch(r"([va])\[(\d+):(\d+)\]", tok)
        if m: return {(m.group(1), i) for i in range(int(m.group(2)), int(m.group(3)) + 1)}
        return set()
    hist = []
    pos = 0
    for ln in lines:
        t = ln.strip()
        if not t or t.endswith(":") or t.startswith(";") or t.startswith("."): continue
        mn = t.split()[0]
        ops = [o.split()[0] if o.split() else o for o in t[len(mn):].split(",")]
        R = [regs(o) for o in ops]
        if mn == "s_nop":
            pos += int(ops[0]) + 1; continue
        is_mfma = mn.startswith("v_mfma"); is_valu = mn.startswith("v_") and not is_mfma
        is_mem = mn.startswith("buffer_") or mn.startswith("ds_")
        if is_mfma or is_valu or is_mem:
            allr = set().union(*R) if R else set()
            for kind, wr, sc, p in hist[-24:]:
                d = pos - p - 1
                if kind == "mfma":
                    if is_mfma:
                        if (R[1] | R[2]) & wr and d < 8: raise Exception(f"hazard MFMA->MFMA AB: {t}")
                        if R[3] & wr and R[3] != wr and d < 6: raise Exception(f"hazard MFMA->MFMA C overlap: {t}")
                    else:
                        if allr & wr and d < 8: raise Exception(f"hazard MFMA->{mn} d={d}: {t}")
                        if is_valu and R[0] & sc and d < 3: raise Exception(f"hazard MFMA srcC WAR: {t}")
                elif kind == "valu":
                    if is_mfma and (R[1] | R[2] | R[3]) & wr and d < 2: raise Exception(f"hazard VALU->MFMA: {t}")
                    if is_valu and ("dpp" in mn or "permlane" in mn) and allr & wr and d < 2: raise Exception(f"hazard VALU->DPP: {t}")
                    if mn.startswith("v_readfirstlane") and R[1] & wr and d < 1: raise Exception(f"hazard VALU->readlane: {t}")
                elif kind == "trans":
                    if is_mfma and (R[1] | R[2] | R[3]) & wr and d < 2: raise Exception(f"hazard VALU->MFMA: {t}")
                    if is_valu and set().union(*R[1:]) & wr and d < 1: raise Exception(f"hazard trans->VALU: {t}")
                elif kind == "store":
                    if is_valu and R[0] & wr and d < 2: raise Exception(f"hazard store data WAR: {t}")
            if is_mfma: hist.append(("mfma", R[0], R[3], pos))
            elif is_valu:
                wr = set(R[0])
                if "swap" in mn: wr |= R[1]
                tr = any(mn.startswith(x) for x in ("v_exp", "v_rcp", "v_rsq", "v_sqrt", "v_log"))
                hist.append(("trans" if tr else "valu", wr, set(), pos))
            elif mn.startswith("buffer_store_dwordx4"): hist.append(("store", R[0], set(), pos))
        pos += 1

RING0 = 2048
S_SRDA, S_SRDW, S_SRDO, S_SRDS, S_SRDB, S_SRDC, S_SRDP, S_SRDT = 4, 8, 12, 16, 28, 32, 36, 40
S_C, S_SOFW, S_SOFW2, S_M0B, S_M0A, S_W, S_MB, S_NT = 20, 21, 22, 23, 24, 25, 26, 27
S_CF, S_CHF = 44, 45
S_X0 = 46
S_CODE = 48
S_AROW = 62
V_AD, V_AR, V_L16, V_D, V_R, V_RH, V_T = 224, 226, 228, 229, 232, 240, 244
A_CS, A_P, A_Q, A_SEL, A_DUM, A_RAW, A_ONE = 136, 136, 200, 220, 224, 228, 244
A_TAG, A_NEG = 226, 248

RSQ, RSK = 212, 216

class K1Var:
    def __init__(self, kind):
        self.kind = kind
        if kind == "w1": self.NJ, self.NT, self.CH, self.pitch = 14, 4, 7168, 7168
        else: self.NJ, self.NT, self.CH, self.pitch = 12, 5, 6144, 6144
        self.SL = 4 * self.CH
        self.ASL = self.NT * 2048
        self.ABASE = RING0 + 3 * self.SL
        self.AA = 56
    def wfrag(self, j, ks): return (j % (self.NJ // 2)) * 8 + ks * 4
    def afrag(self, st, ks, t): return self.AA + ((st * 2 + ks) * self.NT + t) * 4
    def acc(self, t, j):
        if t < 4: return (j * 4 + t) * 4
        return 192 + (0 if j == 4 else 4)
    def groups(self):
        return [(j, [0, 1, 2, 3] + ([4] if self.kind == "qkv" and j in (4, 8) else [])) for j in range(self.NJ)]
    def mm(self, t, j, w, x, zero=False):
        c = vr(self.acc(t, j), 4)
        cin = "0" if zero else c
        if self.kind == "qkv" and j >= 8: w, x = x, w
        return f"v_mfma_f32_16x16x32_bf16 {c}, {w}, {x}, {cin}"
    def mfma(self, s, ks, t, j, zero=False):
        return self.mm(t, j, ar(self.wfrag(j, ks), 4), ar(self.afrag(s % 2, ks, t), 4), zero)
    def corr(self, t, j): return self.mm(t, j, ar(A_P + 4 * j, 4), ar(A_Q + 4 * t, 4))
    def read(self, s, ks, j, p):
        st, so = divmod(s % 3, 2)
        base = RING0 + so * self.SL + ks * 2 * self.CH
        d = ar(self.wfrag(j, ks) + 2 * p, 2)
        if j < 12:
            b, jj = divmod(j, 4)
            return f"ds_read_b64_tr_b16 {d}, v{V_R + st*4 + jj} offset:{base + b*1024 + p*512}"
        return f"ds_read_b64_tr_b16 {d}, v{V_RH + st*2 + (j-12)} offset:{base + p*256}"
    def aread(self, s, ks, t):
        return f"ds_read_b128 {ar(self.afrag(s % 2, ks, t), 4)}, v{V_AR+ks} offset:{(s % 2)*self.ASL + t*2048}"
    def admas(self, s, t):
        out = []
        for u in range(2):
            tgt = (s % 2) * self.ASL + t * 2048 + u * 1024
            out.append((f"s_add_u32 m0, s{S_M0A}, {tgt + 2048 - s*128:#x}",
                        f"buffer_load_dwordx4 v{V_AD+u}, {sq(S_SRDA)}, s{S_AROW+t} offen offset:{s*128} lds"))
        return out
    def dmas(self, s):
        out = []
        base = RING0 + (s % 3) * self.SL
        W = sq(S_SRDW)
        for rg in range(2):
            for b in range(3):
                tgt = base + rg * 3072 + b * 1024
                if self.kind == "w1": imm, so = b * 128, S_SOFW
                else: imm, so = (b * 2048, S_SOFW) if b < 2 else (0, S_SOFW2)
                out.append((f"s_add_u32 m0, s{S_M0B}, {tgt - imm:#x}",
                            f"buffer_load_dwordx4 v{V_D+rg}, {W}, s{so} offen offset:{imm} lds"))
        if self.kind == "w1":
            out.append((f"s_add_u32 m0, s{S_M0B}, {base + 6144:#x}",
                        f"buffer_load_dwordx4 v{V_D+2}, {W}, s{S_SOFW} offen lds"))
        return out
    def sof_adv(self):
        r = [f"s_add_u32 s{S_SOFW}, s{S_SOFW}, {64*self.pitch:#x}"]
        if self.kind == "qkv": r.append(f"s_add_u32 s{S_SOFW2}, s{S_SOFW2}, {64*self.pitch:#x}")
        return r

def xlane_sum2(A, a, b):
    for r in (8, 4, 2, 1):
        A("s_nop 0")
        for v in (a, b): A(f"v_add_f32_dpp v{v}, v{v}, v{v} row_ror:{r} row_mask:0xf bank_mask:0xf")
    for sw in ("v_permlane16_swap_b32", "v_permlane32_swap_b32"):
        for v in (a, b): A(f"v_mov_b32 v{v+1}, v{v}")
        A("s_nop 0")
        for v in (a, b): A(f"{sw} v{v}, v{v+1}")
        for v in (a, b): A(f"v_add_f32 v{v}, v{v}, v{v+1}")

def k1_variant(A1, A2_, V, stamp):
    A = A1
    kind = V.kind
    st = Stamp(stamp, 1); st.n = 1
    NS, H, CH = 16, V.NJ // 2, V.CH
    lane, l16, g = 100, 101, 102
    T = 104
    X = S_X0
    if kind == "w1":
        A(f"s_mul_i32 s{X}, s{S_NT}, 448")
        A(f"s_and_b32 s{X+1}, s{S_NT}, 1")
        A(f"s_lshl_b32 s{X+2}, s{X+1}, 6")
        A(f"s_add_u32 s{S_CF}, s{X}, s{X+2}")
        A(f"s_xor_b32 s{X+2}, s{X+1}, 1")
        A(f"s_mul_i32 s{X+2}, s{X+2}, 384")
        A(f"s_add_u32 s{S_CHF}, s{X}, s{X+2}")
    else:
        A(f"s_lshl_b32 s{S_CF}, s{S_NT}, 7")
    r, pc, x, y = T, T + 1, T + 2, T + 3
    A(f"v_lshrrev_b32 v{r}, 3, v{lane}")
    A(f"v_bfe_u32 v{x}, v{lane}, 1, 2")
    A(f"v_bfe_u32 v{y}, v{lane}, 4, 1")
    A(f"v_xor_b32 v{x}, v{x}, v{y}")
    A(f"v_and_b32 v{pc}, 1, v{lane}")
    A(f"v_mul_u32_u24 v{r}, {V.pitch}, v{r}")
    A(f"v_lshl_add_u32 v{y}, v{pc}, 4, v{r}")
    A(f"s_mul_i32 s{X+3}, s{S_W}, {16*V.pitch}")
    A(f"s_add_u32 s{X+4}, s{X+3}, s{S_CF}")
    A(f"v_lshl_add_u32 v{V_D}, v{x}, 5, v{y}")
    A(f"v_add_u32 v{V_D}, s{X+4}, v{V_D}")
    A(f"v_xor_b32 v{x}, 2, v{x}")
    A(f"v_lshl_add_u32 v{V_D+1}, v{x}, 5, v{y}")
    A(f"s_add_u32 s{X+4}, s{X+4}, {8*V.pitch}")
    A(f"v_add_u32 v{V_D+1}, s{X+4}, v{V_D+1}")
    if kind == "w1":
        A(f"v_lshrrev_b32 v{T+4}, 2, v{lane}")
        A(f"v_mul_u32_u24 v{T+4}, {V.pitch}, v{T+4}")
        A(f"v_bfe_u32 v{T+5}, v{lane}, 1, 1")
        A(f"v_bfe_u32 v{T+6}, v{lane}, 5, 1")
        A(f"v_xor_b32 v{T+5}, v{T+5}, v{T+6}")
        A(f"v_lshl_add_u32 v{T+4}, v{T+5}, 5, v{T+4}")
        A(f"v_lshl_add_u32 v{T+4}, v{pc}, 4, v{T+4}")
        A(f"s_add_u32 s{X+4}, s{X+3}, s{S_CHF}")
        A(f"v_add_u32 v{V_D+2}, s{X+4}, v{T+4}")
    A(f"s_mul_i32 s{S_M0B}, s{S_W}, {CH}")
    A(f"s_mul_i32 s{S_M0A}, s{S_W}, {2*V.ASL}")
    A(f"s_add_u32 s{S_M0A}, s{S_M0A}, {V.ABASE - 2048}")
    VPW, VPX = V_T + 4, V_T + 5
    rounds = [x.split(":") for x in PAR.get("k1r", "p:0:4").split("+") if x]
    if rounds:
        A(f"v_lshlrev_b32 v{VPW}, 7, v{lane}")
        A(f"v_lshrrev_b32 v{VPX}, 1, v{lane}")
        A(f"v_lshlrev_b32 v{VPX}, 7, v{VPX}")
        A(f"v_lshl_add_u32 v{VPX}, v{pc}, 11, v{VPX}")
        A(f"s_and_b32 s{S_C}, s2, 127")
        A(f"s_lshl_b32 s{S_C}, s{S_C}, 2")
        A(f"s_add_u32 s{S_C}, s{S_C}, s{S_W}")
    def pfr(s0, n):
        nl = V.pitch // 128 * n // 8
        def ex(k):
            v = (1 << k) - 1
            return f"s_mov_b32 exec_lo, {v & 0xffffffff:#x}\ns_mov_b32 exec_hi, {v >> 32:#x}\n"
        w_ = (f"s_mul_i32 s3, s{S_C}, {nl*128}\ns_add_u32 s3, s3, {64*s0*V.pitch:#x}\n" + ex(nl) +
              f"buffer_load_dword a{A_DUM}, v{VPW}, {sq(S_SRDW)}, s3 offen\ns_mov_b64 exec, -1")
        x_ = ex(2 * n) + f"buffer_load_dword a{A_DUM}, v{VPX}, {sq(S_SRDA)}, s67 offen offset:{s0*128}\ns_mov_b64 exec, -1"
        return [w_, x_]
    VSL, VSX = 200, 201
    slow = [x.split(":") for x in PAR.get("k1slow" if kind == "qkv" else "k1sloww", "p:0:4+r:4:12+6:10:6" if kind == "qkv" else "").split("+") if x]
    slowx = PAR.get("k1slowx", "")
    S_SLOT = 55
    LPR = 4 if kind == "qkv" else 2
    if slow:
        A(f"v_lshrrev_b32 v{VSL}, {2 if kind == 'qkv' else 1}, v{lane}")
        A(f"v_mul_u32_u24 v{VSL}, {V.pitch}, v{VSL}")
        A(f"s_bfe_u32 s{X+5}, s2, 0x20001")
        if kind == "qkv":
            A(f"v_and_b32 v{T+4}, 3, v{lane}")
            A(f"v_min_u32 v{T+4}, 2, v{T+4}")
            A(f"v_lshl_add_u32 v{VSL}, v{T+4}, 11, v{VSL}")
            A(f"s_lshl_b32 s{X+5}, s{X+5}, 9")
            A(f"s_add_u32 s{X+5}, s{X+5}, 384")
            A(f"s_bitcmp1_b32 s2, 1")
            A(f"s_cselect_b32 s{X+5}, 0x7000000, s{X+5}")
        else:
            A(f"v_lshl_add_u32 v{VSL}, v{pc}, 10, v{VSL}")
            A(f"s_lshl_b32 s{X+5}, s{X+5}, 11")
            A(f"s_min_u32 s{X+5}, s{X+5}, 5120")
            A(f"s_add_u32 s{X+5}, s{X+5}, 384")
        A(f"v_add_u32 v{VSL}, s{X+5}, v{VSL}")
        A(f"s_bfe_u32 s{S_SLOT}, s2, 0x40003")
        A(f"s_lshl_b32 s{S_SLOT}, s{S_SLOT}, 2")
        A(f"s_add_u32 s{S_SLOT}, s{S_SLOT}, s{S_W}")
    if slowx:
        A(f"v_lshlrev_b32 v{VSX}, 10, v{lane}")
        A(f"s_lshr_b32 s{X+5}, s2, 3")
        A(f"s_lshl_b32 s{X+5}, s{X+5}, 2")
        A(f"s_add_u32 s{X+5}, s{X+5}, s{S_W}")
        A(f"s_lshl_b32 s{X+5}, s{X+5}, 14")
        A(f"s_and_b32 s{X+6}, s2, 1")
        A(f"s_lshl_b32 s{X+6}, s{X+6}, 21")
        A(f"s_add_u32 s{X+5}, s{X+5}, s{X+6}")
        A(f"v_add_u32 v{VSX}, s{X+5}, v{VSX}")
    def slowpf(s0, n):
        v = (1 << (LPR * n)) - 1
        return (f"s_mul_i32 s3, s{S_SLOT}, {n*V.pitch}\ns_add_u32 s3, s3, {64*s0*V.pitch:#x}\n"
                f"s_mov_b32 exec_lo, {v & 0xffffffff:#x}\ns_mov_b32 exec_hi, {v >> 32:#x}\n"
                f"buffer_load_dword a{A_DUM}, v{VSL}, {sq(S_SRDW)}, s3 offen\ns_mov_b64 exec, -1")
    def pro_R(where):
        for wh, s0, n in slow:
            if wh == where: A1(slowpf(int(s0), int(n))); vm.issue()
        if slowx == where:
            A1(f"s_mov_b64 exec, 0xffff\nbuffer_load_dword a{A_DUM}, v{VSX}, {sq(S_SRDA)}, 0 offen offset:384\ns_mov_b64 exec, -1"); vm.issue()
        for wh, s0, n in rounds:
            if wh == where:
                for b_ in pfr(int(s0), int(n)): A1(b_); vm.issue()
    A("s_waitcnt lgkmcnt(0)")
    if "promarks" in OPT: st.mark(A)
    A(f"s_mov_b32 s{S_SRDA+2}, {4 << 20:#x}"); A(f"s_mov_b32 s{S_SRDA+3}, 0x20000")
    if kind == "w1": srd(A, S_SRDW, 56, 57, 1024 * 7168)
    else: srd(A, S_SRDW, 60, 61, 1024 * 6144)
    vm, lg = Score(63), Score(15)
    def pro_A(s):
        for t in range(V.NT):
            for u, (m0, d) in enumerate(V.admas(s, t)):
                A1(m0); A1("s_nop 0"); A1(d); vm.issue(("A", s, t) if u == 1 else None)
    def pro_W(s):
        dm = V.dmas(s)
        for n, (m0, d) in enumerate(dm):
            A1(m0); A1("s_nop 0"); A1(d); vm.issue(("D", s) if n == len(dm) - 1 else None)
        for x_ in V.sof_adv(): A1(x_)
    if kind == "w1":
        A(f"s_or_b32 s3, s2, s{S_W}")
        A("s_cmp_lg_u32 s3, 0")
        A("s_cbranch_scc1 L_k1_notag")
        srd(A, S_SRDC, 12, 13, 8)
        A("s_or_b32 s18, s18, 1")
        A(f"v_mov_b32 v{T+4}, s18"); A(f"v_mov_b32 v{T+5}, s19")
        A(f"buffer_store_dwordx2 v[{T+4}:{T+5}], v{V_L16}, {sq(S_SRDC)}, 0 offen sc1")
        A.label("L_k1_notag")
    pro_R("p")
    pro_W(0); pro_A(0)
    pro_R("q")
    if "promarks" in OPT: st.mark(A)
    if "late1" not in OPT: pro_W(1); pro_A(1)
    else: pro_W(1)
    pro_R("r")
    if "promarks" in OPT: st.mark(A)
    A(f"s_branch L_k1_main_{kind}")
    A = A2_
    A.label(f"L_k1_main_{kind}")
    WSL, WSH = 14, 15
    A(f"s_mov_b32 s100, s{WSL}"); A(f"s_mov_b32 s101, s{WSH}")
    srd(A, S_SRDC, 12, 13, 8)
    srd(A, S_SRDT, 100, 101, None, WS_SIDE + SD_FLAG)
    A(f"s_cmp_eq_u32 s{S_W}, 0")
    A(f"s_cselect_b32 s{S_SRDT+2}, 0x8000, 0")
    srd(A, S_SRDS, 100, 101, SD_BYTES, WS_SIDE)
    srd(A, S_SRDO, 100, 101, A2_BYTES, WS_A2)
    if kind == "w1":
        srd(A, S_SRDB, 58, 59, None)
        A(f"s_cmp_eq_u32 s{S_MB}, 0")
        A(f"s_cselect_b32 s{S_SRDB+2}, 7168, 0")
    A("s_mov_b32 s58, s100"); A("s_mov_b32 s59, s101")
    A(f"s_mov_b32 s101, s36"); A(f"s_mov_b32 s{S_C}, s37")
    A(f"s_mov_b32 s{S_SRDP}, s38"); A(f"s_mov_b32 s{S_SRDP+1}, s39")
    A(f"s_mov_b32 s{S_SRDP+2}, {1024*2048:#x}")
    A(f"s_mov_b32 s{S_SRDP+3}, 0x20000")
    A(f"s_lshl_b32 s100, s2, 2")
    A(f"s_add_u32 s100, s100, s{S_W}")
    VCA, VCS, VB1, VDC, VW = V_T, V_T + 1, V_T + 2, V_T + 4, V_T + 8
    A(f"v_and_b32 v{T+4}, 7, v{lane}")
    A(f"v_lshl_add_u32 v{VCA}, v{T+4}, 4, v{r}")
    if kind == "w1":
        A(f"s_lshl_b32 s{X+5}, s{S_W}, 7")
        A(f"s_add_u32 s{X+5}, s{X+5}, s{X}")
        A(f"v_lshlrev_b32 v{VB1}, 4, v{T+4}")
        A(f"v_lshl_add_u32 v{VB1}, v{g}, 3, v{VB1}")
        A(f"v_add_u32 v{VB1}, s{X+5}, v{VB1}")
        A(f"s_lshr_b32 s{X+6}, s{X+5}, 5")
        A(f"s_add_u32 s{X+6}, s{X+6}, 192")
    else:
        A(f"s_min_u32 s{X+5}, s{S_W}, 2")
        A(f"s_lshl_b32 s{X+5}, s{X+5}, 11")
        A(f"s_add_u32 s{X+5}, s{X+5}, s{S_CF}")
        A(f"v_mov_b32 v{VB1}, 0"); A(f"v_mov_b32 v{VB1+1}, 0"); vm.skip("B1")
        A(f"s_lshr_b32 s{X+6}, s{X+5}, 5")
    A(f"s_and_b32 s{X+7}, s{S_MB}, 3")
    A(f"s_lshl_b32 s{X+7}, s{X+7}, 1")
    A(f"s_lshr_b32 s3, s{S_MB}, 2")
    A(f"s_add_u32 s{X+7}, s{X+7}, s3")
    A(f"s_mul_i32 s{X+7}, s{X+7}, {128*V.pitch:#x}")
    A(f"s_add_u32 s{X+7}, s{X+7}, s{X+5}")
    S_CSL, S_CSS = X + 7, X + 6
    A(f"s_lshl_b32 s{S_CSS}, s{S_CSS}, 10")
    A(f"s_lshr_b32 s{X+5}, s{S_MB}, 1")
    A(f"s_lshl_b32 s{X+5}, s{X+5}, 8")
    A(f"s_add_u32 s{S_CSS}, s{S_CSS}, s{X+5}")
    A(f"s_and_b32 s{X+5}, s{S_MB}, 1")
    A(f"s_lshl_b32 s{X+5}, s{X+5}, 3")
    A(f"s_add_u32 s{S_CSS}, s{S_CSS}, s{X+5}")
    A(f"s_add_u32 s{S_CSS}, s{S_CSS}, {SD_P:#x}")
    A(f"v_lshrrev_b32 v{T+5}, 1, v{T+4}")
    A(f"v_lshlrev_b32 v{VCS}, 10, v{T+5}")
    A(f"v_lshl_add_u32 v{VCS}, v{pc}, 7, v{VCS}")
    A(f"v_lshl_add_u32 v{VCS}, v{g}, 6, v{VCS}")
    if kind == "w1":
        A(f"s_cmp_eq_u32 s{S_W}, 3")
        A(f"s_cselect_b32 s{X+5}, 0x2c, 0x28")
    else:
        A(f"s_mov_b32 s{X+5}, 0x28")
    A(f"v_and_b32 v{T+5}, s{X+5}, v{lane}")
    A(f"v_lshl_add_u32 v{VCS}, v{T+5}, 24, v{VCS}")
    A(f"v_lshlrev_b32 v{T+5}, 4, v{pc}")
    A(f"v_mov_b32 v{T+6}, 0x3f80")
    A(f"v_lshlrev_b32 v{T+6}, v{T+5}, v{T+6}")
    A(f"v_lshrrev_b32 v{T+5}, 1, v{l16}")
    for q in range(4):
        A(f"v_cmp_eq_u32 vcc, {q}, v{T+5}")
        A("s_nop 1")
        A(f"v_cndmask_b32 v{T+7}, 0, v{T+6}, vcc")
        A(f"v_accvgpr_write_b32 a{A_SEL+q}, v{T+7}")
    A(f"v_xor_b32 v{T+4}, v{T+5}, v{g}")
    A(f"v_lshlrev_b32 v{T+5}, 7, v{l16}")
    A(f"v_add_u32 v{T+5}, s{S_M0A}, v{T+5}")
    A(f"v_add_u32 v{T+5}, 2048, v{T+5}")
    A(f"v_lshl_add_u32 v{V_AR}, v{T+4}, 4, v{T+5}")
    A(f"v_xor_b32 v{T+4}, 4, v{T+4}")
    A(f"v_lshl_add_u32 v{V_AR+1}, v{T+4}, 4, v{T+5}")
    rp, c, sw, b = T + 4, T + 5, T + 6, T + 7
    A(f"v_bfe_u32 v{rp}, v{lane}, 2, 2")
    A(f"v_and_b32 v{c}, 3, v{lane}")
    A(f"v_bfe_u32 v{sw}, v{lane}, 3, 2")
    if kind == "qkv": A(f"v_xor_b32 v{sw}, s{S_W}, v{sw}")
    A(f"v_lshrrev_b32 v{b}, 5, v{lane}")
    A(f"v_mul_u32_u24 v{b}, {CH}, v{b}")
    A(f"v_lshl_add_u32 v{b}, v{c}, 3, v{b}")
    A(f"v_bfe_u32 v{T+8}, v{lane}, 4, 1")
    A(f"v_mul_u32_u24 v{T+9}, 3072, v{T+8}")
    A(f"v_lshl_add_u32 v{T+9}, v{rp}, 7, v{T+9}")
    A(f"v_add_u32 v{T+9}, v{T+9}, v{b}")
    for jj in range(4):
        A(f"v_xor_b32 v{T+10}, {jj}, v{sw}")
        A(f"v_lshl_add_u32 v{V_R+jj}, v{T+10}, 5, v{T+9}")
        A(f"v_add_u32 v{V_R+4+jj}, {2*V.SL}, v{V_R+jj}")
    if kind == "w1":
        A(f"v_lshl_add_u32 v{T+9}, v{T+8}, 3, v{rp}")
        A(f"v_lshl_add_u32 v{T+9}, v{T+9}, 6, v{b}")
        A(f"v_add_u32 v{T+9}, 6144, v{T+9}")
        for jj in range(2):
            A(f"v_xor_b32 v{T+10}, {jj}, v{T+8}")
            A(f"v_lshl_add_u32 v{V_RH+jj}, v{T+10}, 5, v{T+9}")
            A(f"v_add_u32 v{V_RH+2+jj}, {2*V.SL}, v{V_RH+jj}")
    S_HI = X + 8
    A(f"s_mov_b32 s{S_HI}, 0xffff0000")
    for q in range(4): A(f"v_accvgpr_write_b32 a{A_NEG+q}, -1")
    A(f"v_mov_b32 v{T+4}, 0x3f803f80")
    for q in range(4): A(f"v_accvgpr_write_b32 a{A_ONE+q}, v{T+4}")
    A(f"v_cmp_eq_u32 vcc, 1, v{pc}")
    if "promarks" in OPT: st.mark(A)
    n = vm.need([("D", 0), ("A", 0, V.NT - 1)])
    A(f"s_waitcnt vmcnt({n})")
    if "promarks" in OPT: st.mark(A)
    A("s_barrier")
    st.mark(A)
    for ks in range(2): A(V.aread(0, ks, 0)); lg.issue(("AF", 0, 0))
    for q in range(4): A(V.read(0, q >> 1, 0, q & 1)); lg.issue(("W", 0, 0))
    for t in range(1, V.NT):
        for ks in range(2): A(V.aread(0, ks, t)); lg.issue(("AF", 0, t))
    S = Stream(vm, lg)
    groups = V.groups()
    first, last, fin = {}, {}, {}
    for s in range(NS):
        n = 0
        for j, ts in groups:
            ts = list(ts) if j % 2 == 0 else list(reversed(ts))
            if 4 in ts: ts = [4, 0, 1, 2, 3]
            for t in ts:
                kk = (0, 1) if n % 2 == 0 else (1, 0)
                for ks in kk:
                    needs = [("lg", ("W", s, j)), ("lg", ("AF", s, t))]
                    idx = S.add_mfma(V.mfma(s, ks, t, j, zero=(s == 0 and ks == kk[0])), needs)
                    first.setdefault((s, j), idx); last[(s, j)] = idx
                    if s == NS - 1 and ks == kk[0]:
                        S.add_mfma(V.corr(t, j), [("vm", ("P", j)), ("vm", ("Q", t))])
                fin[(t, j)] = idx
                n += 1
    i = 0
    for j in range(1, H):
        for q in range(4):
            i = S.place(i, "ds", V.read(0, q >> 1, j, q & 1), gives=("W", 0, j) if q == 3 else None) + 1
    bar = {}
    SIG0, SIG, POLL, CHK = par("k1sig0", 5), par("k1sig", 8), par("k1poll", 12), par("k1chk", 13)
    for s in range(NS):
        if s + 1 < NS:
            bar[s] = last[(s, H)]
            S.gaps[bar[s]].append(("bar", None, None, [("vm", ("D", s + 1))] + ([("vm", "CS")] if s == SIG else []) + ([("vm", "ST")] if s == SIG0 else [])))
        elif kind == "qkv" and "fuse" in OPT:
            S.gaps[last[(s, H)]].append(("bar", None, None, []))
        for j, _ in groups:
            s2, j2 = (s, j + H) if j < H else (s + 1, j - H)
            if s2 >= NS: continue
            i = last[(s, j)]
            step = 1 if (j == H - 1 or (s == 0 and j < H)) else 2
            for q in range(4):
                i = S.place(i, "ds", V.read(s2, q >> 1, j2, q & 1), gives=("W", s2, j2) if q == 3 else None) + step
    cur = 0
    def dma_seq(i0, i1, lst, vcap=1):
        nonlocal cur
        i0 = max(i0, cur)
        n = len(lst)
        for k, (pre, d, kd, gives, needs) in enumerate(lst):
            tgt = max(cur, i0 + (k * (i1 - i0)) // n)
            i = S.place(tgt, "s", pre, cap=vcap + 1)
            cur = S.place(i + 1, kd, d, gives=gives, needs=needs, cap=vcap)
    def merge(a, b):
        if not b: return a
        out, k = [], 0
        for i, x in enumerate(a):
            out.append(x)
            while k < len(b) and (k + 1) * len(a) <= (i + 1) * len(b): out.append(b[k]); k += 1
        return out + b[k:]
    def wlist(s):
        dm = V.dmas(s)
        return [(m0, d, "vmD", ("D", s) if n == len(dm) - 1 else None, []) for n, (m0, d) in enumerate(dm)]
    def alist(s, dep=True):
        return [(m0, d, "vmA", ("A", s, t) if u == 1 else None, [("lg", ("AF", s - 2, t))] if dep else [])
                for t in range(V.NT) for u, (m0, d) in enumerate(V.admas(s, t))]
    def areads(s, i0, i1):
        for t in range(V.NT):
            i = i0 + (t * (i1 - i0)) // V.NT
            i = S.place(i, "ds", V.aread(s, 0, t), needs=[("vm", ("A", s, t))])
            S.place(i + 1, "ds", V.aread(s, 1, t), gives=("AF", s, t))
    extra = {}
    cs = [(f"s_add_u32 s60, s{S_CSL}, {i*8*V.pitch:#x}",
           f"buffer_load_dwordx4 {ar(A_CS+4*i, 4)}, v{VCA}, {sq(S_SRDW)}, s60 offen", "vmX", ("CL", i), []) for i in range(16)]
    cs0, csn = par("cs0", 1), par("csn", 4)
    slots = [(s_, h_) for s_ in range(cs0, cs0 + csn) for h_ in range(2)]
    for i_, it in enumerate(cs): extra.setdefault(slots[i_ * len(slots) // 16], []).append(it)
    if kind == "w1":
        extra.setdefault((cs0 + 1, 0), []).append(("s_nop 0", f"buffer_load_dwordx2 v[{VB1}:{VB1+1}], v{VB1}, {sq(S_SRDB)}, 0 offen", "vmX", "B1", []))
    rows = [("s_nop 0", f"buffer_load_dwordx4 {ar(A_RAW+4*q, 4)}, v{V_L16}, {sq(S_SRDA)}, s67 offen offset:{q*1024}", "vmX", "ROWS" if q == 3 else None, []) for q in range(4)]
    cpf = []
    if "nocpf" not in OPT:
        cpf = [(f"s_getpc_b64 s[{S_CODE}:{S_CODE+1}]\nL_k1_pc_{kind}:\ns_mov_b32 s{S_CODE+2}, L_k1_spin_{kind}-L_k1_pc_{kind}\ns_mov_b32 s{S_CODE+3}, 0x20000\n"
                f"s_bfe_u32 s60, s2, 0x20003\ns_lshl_b32 s60, s60, 2\ns_add_u32 s60, s60, s{S_W}\ns_mul_i32 s60, s60, {par('cpfb', 2560)}\n"
                f"v_lshlrev_b32 v{VW}, 3, v{V_L16}\ns_mov_b64 exec, {hex((1 << (par('cpfb', 2560) // 128)) - 1)}\n"
                f"buffer_load_dword a{A_DUM}, v{VW}, {sq(S_CODE)}, s60 offen\ns_mov_b64 exec, -1")]
    def addx(key, lst): extra.setdefault(key, []).extend(lst)
    pf = []
    for i in range(9):
        pre = f"s_lshl_b32 s60, s100, 10\ns_add_u32 s60, s60, {(i if i < 2 else i - 2) << 20:#x}"
        if i == 0: pre = f"v_lshlrev_b32 v{VCA}, 3, v{V_L16}\n" + pre
        if i == 2: pre = f"s_mov_b32 s{S_SRDP}, s101\ns_mov_b32 s{S_SRDP+1}, s{S_C}\ns_mov_b32 s{S_SRDP+2}, {3584*2048:#x}\n" + pre
        pf.append((pre, f"s_mov_b64 exec, 0xff\nbuffer_load_dword a{A_DUM}, v{VCA}, {sq(S_SRDP)}, s60 offen\ns_mov_b64 exec, -1", "vmX", None, []))
    if "nopf" not in OPT:
        p0 = 2 * par('pf0', cs0 + csn); p1 = 2 * CHK + 1
        for i_, it in enumerate(pf):
            h_ = p0 + i_ * (p1 - p0) // len(pf)
            addx((h_ // 2, h_ % 2), [it])
    cl = []
    NCL = 4 if "k2old" in OPT else 12
    for q in range(NCL):
        pre = f"s_mul_i32 s60, s100, {NCL*1024}" + (f"\ns_add_u32 s60, s60, {(q >> 2)*4096}" if q >= 4 else "")
        if q == 0:
            pre = (f"s_add_u32 s{S_SRDB}, s58, {WS_PART:#x}\ns_addc_u32 s{S_SRDB+1}, s59, 0\ns_mov_b32 s{S_SRDB+2}, {NCL << 20:#x}\n"
                   f"s_mov_b32 s{S_SRDB+3}, 0x20000\n" + pre)
        cl.append((pre, f"buffer_store_dwordx4 {ar(A_NEG,4)}, v{V_L16}, {sq(S_SRDB)}, s60 offen offset:{(q & 3)*1024} sc1", "vmS", None, []))
    if "noclr" not in OPT:
        c0, c1 = 2 * par("k1clr", 9 if NCL == 4 else 6), 2 * 13
        for i_, it in enumerate(cl):
            h_ = c0 + i_ * (c1 - c0) // len(cl)
            addx((h_ // 2, h_ % 2), [it])
    for wh, s0, n in slow:
        if wh.isdigit(): addx((int(wh), 0), [("s_nop 0", slowpf(int(s0), int(n)), "vmX", None, [])])
    if "k2cpf_self" not in OPT and "nocpf" not in OPT:
        addx((par("k2cpf_at", 11), 1), [(f"s_getpc_b64 s[{S_SRDC}:{S_SRDC+1}]\nL_k1_pc2_{kind}:\ns_add_u32 s{S_SRDC}, s{S_SRDC}, L_k2_start-L_k1_pc2_{kind}\n"
               f"s_addc_u32 s{S_SRDC+1}, s{S_SRDC+1}, 0\ns_mov_b32 s{S_SRDC+2}, L_k2_spin-L_k2_start\n"
               f"s_lshr_b32 s60, s2, 3\ns_lshl_b32 s60, s60, 2\ns_add_u32 s60, s60, s{S_W}\ns_lshl_b32 s60, s60, 8",
               f"s_mov_b64 exec, 3\nbuffer_load_dword a{A_DUM}, v{VCA}, {sq(S_SRDC)}, s60 offen\ns_mov_b64 exec, -1", "vmX", None, [])])
    for n_, at in enumerate(x for x in PAR.get("cpf2", "").split(":") if x):
        addx((int(at), 0), [(f"s_getpc_b64 s[{S_SRDC}:{S_SRDC+1}]\nL_k1_pc3_{kind}_{n_}:\ns_mov_b32 s{S_SRDC+2}, L_k1_spin_{kind}-L_k1_pc3_{kind}_{n_}\n"
               f"s_bfe_u32 s60, s2, 0x40003\ns_lshl_b32 s60, s60, 2\ns_add_u32 s60, s60, s{S_W}\ns_lshl_b32 s60, s60, 9",
               f"s_mov_b64 exec, 15\nbuffer_load_dword a{A_DUM}, v{VCA}, {sq(S_SRDC)}, s60 offen\ns_mov_b64 exec, -1", "vmX", None, [])])
    tagld = f"buffer_load_dwordx2 {ar(A_TAG,2)}, off, {sq(S_SRDC)}, 0 sc1"
    tagchk = (f"v_accvgpr_read_b32 v{VW}, a{A_TAG}\nv_accvgpr_read_b32 v{VW+1}, a{A_TAG+1}\ns_nop 0\n"
              f"v_readfirstlane_b32 s56, v{VW}\nv_readfirstlane_b32 s57, v{VW+1}\ns_nop 3\ns_cmp_lg_u32 s56, 0")
    addx((2, 1), [("s_nop 0", tagld, "vmX", "TAG", [])])
    def flagst(off): return f"s_mov_b64 exec, 1\nbuffer_store_dwordx2 {ar(A_TAG,2)}, off, {sq(S_SRDT)}, s60 offset:{off} sc1\ns_mov_b64 exec, -1"
    addx((SIG0, 1), [("s_lshl_b32 s60, s2, 7", flagst(0), "vmS", None, [])])
    addx((SIG, 1), [("s_lshl_b32 s60, s2, 7", flagst(64), "vmS", None, [])])
    VFA = VW + 2
    fa = [f"v_and_b32 v{VFA}, 0x30, v{V_L16}", f"v_lshlrev_b32 v{VFA}, 4, v{VFA}", f"v_and_b32 v{VFA+1}, 0x1c0, v{V_L16}",
          f"v_lshl_add_u32 v{VFA}, v{VFA+1}, 6, v{VFA}", "s_and_b32 s60, s2, 0x19", "s_lshl_b32 s60, s60, 7", f"v_add_u32 v{VFA}, s60, v{VFA}",
          "s_mov_b32 exec_lo, 0",
          f"v_and_b32 v{VFA}, 0x10, v{V_L16}", f"v_lshlrev_b32 v{VFA}, 3, v{VFA}", f"v_and_b32 v{VFA+1}, 0x60, v{V_L16}",
          f"v_lshl_add_u32 v{VFA}, v{VFA+1}, 5, v{VFA}", "s_and_b32 s60, s2, 0xe6", "s_lshl_b32 s60, s60, 7", "s_add_u32 s60, s60, 64",
          f"v_add_u32 v{VFA}, s60, v{VFA}"]
    if kind == "qkv":
        fa += ["s_mov_b32 exec_hi, 0xffffff00", f"s_max_u32 s60, s{S_MB}, 1", "s_sub_u32 s60, s60, 1", "s_lshr_b32 s3, s60, 2",
               "s_and_b32 s60, s60, 3", "s_lshl_b32 s60, s60, 3", "s_or_b32 s60, s60, s3", "s_or_b32 s60, s60, 0xc6", "s_lshl_b32 s60, s60, 7",
               f"v_and_b32 v{VFA}, 0x10, v{V_L16}", f"v_lshlrev_b32 v{VFA}, 8, v{VFA}", f"v_add_u32 v{VFA}, s60, v{VFA}"]
    fa += ["s_mov_b64 exec, -1"]
    pollld = f"buffer_load_dwordx2 v[{VW}:{VW+1}], v{VFA}, {sq(S_SRDS)}, 0 offen sc1"
    addx((POLL, 1), [("\n".join(fa), pollld, "vmX", "POLL", [])])
    chk = f"v_cmp_ne_u64 vcc, s[56:57], v[{VW}:{VW+1}]"
    pl = []
    for t in range(V.NT):
        pre = f"s_lshr_b32 s60, s{S_AROW+t}, 7\ns_add_u32 s60, s60, {SD_Q:#x}"
        if t == 0: pre = f"v_and_b32 v{VCA}, 0xff, v{V_L16}\n" + pre
        pl.append((pre, f"buffer_load_dwordx4 {ar(A_Q+4*t, 4)}, v{VCA}, {sq(S_SRDS)}, s60 offen sc1", "vmX", ("Q", t), []))
    for j in range(V.NJ):
        if kind == "w1":
            pre = f"s_lshl_b32 s60, s{S_CF if j < 12 else S_CHF}, 5\ns_add_u32 s60, s60, {SD_P + (192 + (j if j < 12 else j - 12))*1024:#x}"
        else:
            pre = (f"s_xor_b32 s60, s{S_W}, {j & 3}\ns_lshl_b32 s60, s60, 5\ns_add_u32 s60, s60, s{S_CF}\ns_lshl_b32 s60, s60, 5\n"
                   f"s_add_u32 s60, s60, {SD_P + (j >> 2)*65536:#x}")
        pl.append((pre, f"buffer_load_dwordx4 {ar(A_P+4*j, 4)}, v{V_L16}, {sq(S_SRDS)}, s60 offen sc1", "vmX", ("P", j), []))
    if kind == "qkv":
        for t in range(4):
            pre = f"s_lshr_b32 s60, s{S_AROW+t}, 9\ns_add_u32 s60, s60, {SD_RS - 64:#x}"
            if t == 0:
                pre = (f"v_lshrrev_b32 v{VCS}, 2, v{VCA}\n"
                       f"v_lshrrev_b32 v{VB1}, 4, v{V_L16}\nv_and_b32 v{VB1}, 0x30, v{VB1}\n"
                       f"v_and_b32 v{VB1+1}, 4, v{VCS}\nv_add_u32 v{VB1}, v{VB1}, v{VB1+1}\n"
                       f"v_add_u32 v{VB1+1}, 8, v{VB1}\n"
                       f"v_cmp_le_u32 s[48:49], v{VB1}, v{VCS}\nv_cmp_le_u32 s[50:51], v{VB1+1}, v{VCS}\n"
                       f"v_add_u32 v{VDC}, 64, v{VB1}\nv_add_u32 v{VDC+1}, 64, v{VB1+1}\n"
                       f"v_cndmask_b32 v{VB1}, v{VB1}, v{VDC}, s[48:49]\nv_cndmask_b32 v{VB1+1}, v{VB1+1}, v{VDC+1}, s[50:51]\n" + pre)
            pl.append((pre, f"buffer_load_dword v{RSQ+t}, v{VCS}, {sq(S_SRDS)}, s60 offen offset:64 sc1", "vmX", None, []))
            pl.append(("s_nop 0", f"buffer_load_dword v{RSK+2*t}, v{VB1}, {sq(S_SRDS)}, s60 offen sc1", "vmX", None, []))
            pl.append(("s_nop 0", f"buffer_load_dword v{RSK+2*t+1}, v{VB1+1}, {sq(S_SRDS)}, s60 offen sc1", "vmX", "RS" if t == 3 else None, []))
    h = len(pl) // 2
    addx((CHK, 1), pl[:h]); addx((CHK + 1, 0), pl[h:])
    for s in range(NS):
        b0 = first[(s, 0)]
        b1 = first[(s + 1, 0)] if s + 1 < NS else len(S.mf)
        if s == 0:
            for wh, s0, n in rounds:
                if wh == "s":
                    for b_ in pfr(int(s0), int(n)): cur = S.place(cur + 1, "vmX", b_, cap=3)
            for c_ in cpf: cur = S.place(cur + 1, "vmX", c_, cap=3)
            dma_seq(b0, bar[0], ([] if "late1" not in OPT else alist(1, dep=False)) + wlist(2) + alist(2), vcap=2)
            for x_ in V.sof_adv(): cur = S.place(cur, "s", x_, cap=4)
            areads(1, b1 - 28, b1 - 8)
            dma_seq(bar[0] + 1, b1, rows + wlist(3))
            for x_ in V.sof_adv(): cur = S.place(cur, "s", x_, cap=3)
            continue
        if s == 1:
            for wh, s0, n in rounds:
                if wh == "t":
                    for b_ in pfr(int(s0), int(n)): cur = S.place(max(cur + 1, b0), "vmX", b_, cap=3)
            areads(2, bar[1] - 8, bar[1] + 20)
            dma_seq(b0, bar[1], merge(alist(3), extra.get((1, 0), [])))
            dma_seq(bar[1] + 1, b1 + 4, merge(wlist(4) + alist(4), extra.get((1, 1), [])))
            for x_ in V.sof_adv(): cur = S.place(cur, "s", x_, cap=3)
            continue
        if s + 1 < NS:
            lo = b0 + (24 if s == 2 else 0)
            areads(s + 1, lo, bar[s] - 8)
            l0 = merge(alist(s + 3) if s + 3 < NS else [], extra.get((s, 0), []))
            if l0: dma_seq(lo + 8, bar[s], l0)
            if s == CHK:
                cur = S.place(max(cur, bar[s] + 1), "s", chk + "\n"
                              f"s_cbranch_vccnz L_k1_spin_{kind}\nL_k1_back_{kind}:", needs=[("vm", "POLL")], cap=3)
            if s == SIG0:
                cur = S.place(max(cur, bar[s] + 1), "s", tagchk + f"\ns_cbranch_scc0 L_k1_tspin_{kind}\nL_k1_tback_{kind}:", needs=[("vm", "TAG")], cap=3)
            l1 = merge(wlist(s + 3) if s + 3 < NS else [], extra.get((s, 1), []))
            if l1: dma_seq(bar[s] + 1, b1 + 4, l1)
            if s + 3 < NS:
                for x_ in V.sof_adv(): cur = S.place(cur, "s", x_, cap=3)
    i = first[(2, 0)]
    def fill(o, gapstep=1, needs=(), kd="s", gives=None):
        nonlocal i
        i = S.place(i, kd, o, needs=needs, cap=2, gives=gives) + gapstep
    mA, mB = VDC, VW
    for rr, d in ((0, mA), (1, mB)):
        for q in range(2):
            fill(f"v_mfma_f32_16x16x32_bf16 {vr(d,4)}, {ar(A_ONE,4)}, {ar(A_RAW+8*rr+4*q,4)}, {'0' if q == 0 else vr(d,4)}", needs=[("vm", "ROWS")])
    i += 8
    for r_ in (8, 4, 2, 1):
        for d in (mA, mB): fill(f"v_add_f32_dpp v{d}, v{d}, v{d} row_ror:{r_} row_mask:0xf bank_mask:0xf")
    for d in (mA, mB): fill(f"v_mul_f32 v{d}, 0x3a800000, v{d}", 0)
    for d in (mA, mB): fill(f"v_mov_b32 v{d+1}, 0", 0)
    for q in range(8):
        for rr, d in ((0, mA), (1, mB)):
            for o in (f"v_accvgpr_read_b32 v{d+2}, a{A_RAW+8*rr+q}", f"v_and_b32 v{d+3}, s{S_HI}, v{d+2}", f"v_lshlrev_b32 v{d+2}, 16, v{d+2}",
                      f"v_sub_f32 v{d+3}, v{d+3}, v{d}", f"v_sub_f32 v{d+2}, v{d+2}, v{d}",
                      f"v_fmac_f32 v{d+1}, v{d+3}, v{d+3}", f"v_fmac_f32 v{d+1}, v{d+2}, v{d+2}"):
                fill(o, 0)
    i += 2
    qA, qB = mA + 1, mB + 1
    for r_ in (8, 4, 2, 1):
        for d in (qA, qB): fill(f"v_add_f32_dpp v{d}, v{d}, v{d} row_ror:{r_} row_mask:0xf bank_mask:0xf")
    for sw_ in ("v_permlane16_swap_b32", "v_permlane32_swap_b32"):
        for d in (qA, qB): fill(f"v_mov_b32 v{d+1}, v{d}")
        i += 1
        for d in (qA, qB): fill(f"{sw_} v{d}, v{d+1}")
        for d in (qA, qB): fill(f"v_add_f32 v{d}, v{d}, v{d+1}")
    for o in (f"v_cndmask_b32 v{mA}, v{mA}, v{mB}, vcc", f"v_cndmask_b32 v{qA}, v{qA}, v{qB}, vcc",
              f"v_mul_f32 v{qA}, 0x3a800000, v{qA}", f"v_cvt_pk_bf16_f32 v{VW}, -v{mA}, -v{mA}",
              f"v_cvt_pk_bf16_f32 v{qA}, v{qA}, v{qA}", f"v_and_b32 v{qA}, s{S_HI}, v{qA}", f"v_add_f32 v{qA}, 0x3727c5ac, v{qA}",
              f"v_cvt_pk_bf16_f32 v{qA}, v{qA}, v{qA}", f"v_and_b32 v{qA}, s{S_HI}, v{qA}", f"v_sqrt_f32 v{qA}, v{qA}",
              f"v_mov_b32 v{VW+2}, v{VW}", f"v_cvt_pk_bf16_f32 v{VW+1}, -v{mA}, v{qA}", f"v_and_b32 v{qA}, s{S_HI}, v{VW+1}",
              f"v_rcp_f32 v{qA}, v{qA}", f"v_mov_b32 v{VW+3}, v{VW+1}", f"v_lshrrev_b32 v{mA+2}, 2, v{V_L16}"):
        fill(o)
    fill(f"s_lshr_b32 s61, s67, 7\ns_add_u32 s61, s61, {SD_Q:#x}\ns_mov_b64 exec, 3\n"
         f"buffer_store_dwordx4 {vr(VW,4)}, v{V_L16}, {sq(S_SRDS)}, s61 offen sc1\ns_mov_b64 exec, -1", kd="vmS")
    fill(f"s_lshr_b32 s61, s67, 9\ns_add_u32 s61, s61, {SD_RS:#x}\ns_mov_b64 exec, 3\n"
         f"buffer_store_dword v{qA}, v{mA+2}, {sq(S_SRDS)}, s61 offen sc1\ns_mov_b64 exec, -1", kd="vmS", gives="ST")
    if "verbose" in OPT: print(kind, "stats done at step", [s_ for s_ in range(NS) if first[(s_, 0)] <= i][-1], i, bar, file=sys.stderr)
    assert i < bar[SIG0 - 1] + 40
    i = i + 2
    for q in range(16):
        cin = "0" if q == 0 else vr(VDC, 4)
        sl_ = slots[q * len(slots) // 16]
        i = max(i, first[(sl_[0] + 2, 0 if sl_[1] == 0 else H)])
        i = S.place(i, "s", f"v_mfma_f32_16x16x32_bf16 {vr(VDC,4)}, {ar(A_SEL,4)}, {ar(A_CS+4*q,4)}, {cin}", needs=[("vm", ("CL", q))], cap=2) + 4
    i += 8
    for r_ in range(4):
        i = S.place(i, "s", f"v_add_f32_dpp v{VDC+r_}, v{VDC+r_}, v{VDC+r_} row_ror:8 row_mask:0xf bank_mask:0xf", cap=2) + 1
    for r_ in range(4):
        d = VDC + r_
        sel = "0x05040302" if r_ % 2 == 0 else "0x07060302"
        ops = [f"v_and_b32 v{VW+2}, s{S_HI}, v{d}", f"v_sub_f32 v{VW+2}, v{d}, v{VW+2}",
               f"v_and_b32 v{VW+3}, s{S_HI}, v{VW+2}", f"v_sub_f32 v{VW+3}, v{VW+2}, v{VW+3}",
               f"s_mov_b32 s61, 0x07060302\nv_perm_b32 v{VW}, v{VW+2}, v{d}, s61",
               f"s_mov_b32 s61, {sel}\nv_perm_b32 v{VW+1}, v{VB1 + (r_ >> 1)}, v{VW+3}, s61"]
        for k, o in enumerate(ops):
            i = S.place(i, "s", o, cap=2, needs=[("vm", "B1")] if k == 5 else []) + 1
        i = S.place(i, "vmS", f"buffer_store_dwordx2 v[{VW}:{VW+1}], v{VCS}, {sq(S_SRDS)}, s{S_CSS} offen offset:{16*r_} sc1",
                    gives="CS" if r_ == 3 else None, cap=2) + 2
    assert i < bar[SIG - 1]
    tail = []
    if kind == "w1":
        pre = [f"s_lshl_b32 s{X}, s{S_MB}, 3", f"s_lshl_b32 s{X+1}, s{S_W}, 1", f"s_add_u32 s{X}, s{X}, s{X+1}",
               f"s_mul_i32 s{X}, s{X}, 144", f"s_add_u32 s{X}, s{X}, 32", f"s_lshr_b32 s{X+1}, s{S_CF}, 6", f"s_lshr_b32 s{X+2}, s{S_CHF}, 6",
               f"s_add_u32 s{X+1}, s{X+1}, s{X}", f"s_add_u32 s{X+2}, s{X+2}, s{X}", f"s_lshl_b32 s{X+1}, s{X+1}, 11", f"s_lshl_b32 s{X+2}, s{X+2}, 11"]
        i = first[(14, 0)]
        for o in pre: i = S.place(i, "s", o, cap=2) + 1
        for j in range(14):
            for t in (range(4) if j % 2 == 0 else range(3, -1, -1)):
                a = V.acc(t, j); e = fin[(t, j)] + 8
                dst = a if j % 2 == 0 else V.acc(t, j - 1) + 2
                for r_ in range(4): tail.append((e, "s", f"v_mul_f32 v{a+r_}, v{a+r_}, |v{a+r_}|", []))
                tail.append((e, "s", f"v_cvt_pk_bf16_f32 v{dst}, v{a}, v{a+1}", []))
                tail.append((e, "s", f"v_cvt_pk_bf16_f32 v{dst+1}, v{a+2}, v{a+3}", []))
                for r_ in range(2): tail.append((e, "s", f"v_pk_max_i16 v{dst+r_}, v{dst+r_}, 0", []))
                if j % 2 == 1:
                    p = j // 2; a0 = V.acc(t, j - 1)
                    off = (t >> 1) * 144 * 2048 + (p * 2048 if p < 6 else 0)
                    tail.append((e, "vmS", f"s_add_u32 s60, s{X+1 if p < 6 else X+2}, {off:#x}\n"
                                 f"buffer_store_dwordx4 v[{a0}:{a0+3}], v{V_L16}, {sq(S_SRDO)}, s60 offen offset:{(t&1)*1024}{STMOD}", []))
    else:
        for j, ts in groups:
            ts = list(ts) if j % 2 == 0 else list(reversed(ts))
            if 4 in ts: ts = [4, 0, 1, 2, 3]
            if j >= 8: ts = [t for t in ts if t == 4] + [0, 1, 2, 3]
            for t in ts:
                a = V.acc(t, j); e = (fin[(t, j)] if j < 8 else last[(NS - 1, j)]) + 8
                if t == 4: d0 = a
                elif j < 8: d0 = a if j % 2 == 0 else V.acc(t, j - 1) + 2
                else: d0 = V.acc(0, j) + 2 + 2 * t
                cv = [f"v_cvt_pk_bf16_f32 v{d0}, v{a}, v{a+1}", f"v_cvt_pk_bf16_f32 v{d0+1}, v{a+2}, v{a+3}"]
                if j >= 8 and t == 0: cv.reverse()
                for o in cv: tail.append((e, "s", o, []))
    i = 0
    rest = []
    for e, kd, text, nd in tail:
        if rest or max(i, e) >= len(S.mf) - 1:
            rest.append((kd, text, nd)); continue
        k = max(i, e)
        while k < len(S.mf) - 1 and S.used[k] >= par("tailcap", 3): k += 1
        if k >= len(S.mf) - 1:
            rest.append((kd, text, nd)); continue
        i = S.place(k, kd, text, needs=nd, cap=par("tailcap", 3))
    if stamp:
        for m in PAR.get("k1marks", "15").split(":"):
            if "promarks" in OPT: break
            S.gaps[first[(int(m), 0)]].append(("s", st.text(), None, []))
    for x_ in S.emit("k1"): A(x_)
    if st.n < 7: st.mark(A)
    A("s_nop 7")
    for kd, text, nd in rest:
        o = []
        S.waits(nd, o)
        for x_ in o: A(x_)
        A(text)
    if kind == "qkv":
        o = []; S.waits([("vm", "RS")], o)
        for x_ in o: A(x_)
        qkv_attention(A, V)
    st.flush(A, 58, 59, 0, f"s{S_W}")
    if "fuse" in OPT:
        if stamp: A("s_mov_b64 exec, -1")
        A("s_branch L_k2_start")
    else: A("s_endpgm")
    for nm, ld, ck, br in (("", pollld, chk, "s_cbranch_vccnz"), ("t", tagld, tagchk, "s_cbranch_scc0")):
        A.label(f"L_k1_{nm}spin_{kind}")
        A("s_mov_b32 s61, 0")
        A.label(f"L_k1_{nm}spin1_{kind}")
        A("s_sleep 8")
        A(ld)
        A("s_waitcnt vmcnt(0)")
        A("s_add_u32 s61, s61, 1")
        A("s_cmp_gt_u32 s61, 0x10000")
        A(f"s_cbranch_scc1 L_k1_{nm}back_{kind}")
        A(ck)
        A(f"{br} L_k1_{nm}spin1_{kind}")
        A(f"s_branch L_k1_{nm}back_{kind}")

STMOD = ""
def gen_k1(A, name, stamp):
    kernel_head(A, name)
    st0 = Stamp(stamp, 1)
    st0.mark(A)
    A("s_cmp_ge_u32 s2, 256")
    A("s_cbranch_scc1 L_k1_end")
    A("s_load_dwordx2 s[4:5], s[0:1], 0")
    A("s_load_dwordx2 s[60:61], s[0:1], 8")
    A("s_load_dwordx4 s[56:59], s[0:1], 32")
    A("s_load_dwordx4 s[12:15], s[0:1], 72")
    A("s_load_dwordx2 s[36:37], s[0:1], 48")
    A("s_load_dwordx2 s[38:39], s[0:1], 16")
    A("s_memrealtime s[18:19]")
    lane, l16, g, T, X = 100, 101, 102, 104, S_X0
    A(f"v_lshrrev_b32 v{T}, 6, v0")
    A(f"v_and_b32 v{lane}, 63, v0")
    A(f"v_readfirstlane_b32 s{S_W}, v{T}")
    A(f"s_and_b32 s{X}, s2, 1")
    A(f"s_lshl_b32 s{X}, s{X}, 2")
    A(f"s_bfe_u32 s{X+1}, s2, 0x20003")
    A(f"s_add_u32 s{S_MB}, s{X}, s{X+1}")
    A(f"s_bfe_u32 s{X}, s2, 0x20001")
    A(f"s_lshl_b32 s{X}, s{X}, 2")
    A(f"s_bfe_u32 s{X+1}, s2, 0x20005")
    A(f"s_add_u32 s{S_NT}, s{X}, s{X+1}")
    A(f"v_and_b32 v{l16}, 15, v{lane}")
    A(f"v_lshrrev_b32 v{g}, 4, v{lane}")
    A(f"v_lshlrev_b32 v{V_L16}, 4, v{lane}")
    A(f"s_lshl_b32 s{X}, s{S_MB}, 8")
    A(f"s_lshl_b32 s{X+1}, s{S_W}, 6")
    A(f"s_add_u32 s{X+1}, s{X}, s{X+1}")
    A(f"s_lshl_b32 s{X+1}, s{X+1}, 11")
    for t in range(4): A(f"s_add_u32 s{S_AROW+t}, s{X+1}, {t*16*2048:#x}")
    A(f"s_max_u32 s{X+1}, s{X}, 16")
    A(f"s_sub_u32 s{X+1}, s{X+1}, 16")
    A(f"s_lshl_b32 s{S_AROW+4}, s{X+1}, 11")
    A(f"s_lshr_b32 s{X+1}, s2, 7")
    A(f"s_lshl_b32 s{X+1}, s{X+1}, 4")
    A(f"s_add_u32 s{X+1}, s{X+1}, s{S_NT}")
    A(f"s_lshl_b32 s{X+1}, s{X+1}, 2")
    A(f"s_add_u32 s{X+1}, s{X+1}, s{S_W}")
    A(f"s_lshl_b32 s{X+1}, s{X+1}, 1")
    A(f"s_add_u32 s{X+1}, s{X+1}, s{X}")
    A(f"s_lshl_b32 s67, s{X+1}, 11")
    A(f"v_lshrrev_b32 v{T+4}, 3, v{lane}")
    A(f"v_and_b32 v{T+5}, 7, v{lane}")
    A(f"v_xor_b32 v{T+5}, v{T+5}, v{g}")
    A(f"v_lshlrev_b32 v{T+4}, 11, v{T+4}")
    A(f"v_lshl_add_u32 v{V_AD}, v{T+5}, 4, v{T+4}")
    A(f"v_xor_b32 v{T+5}, 4, v{T+5}")
    A(f"v_lshl_add_u32 v{V_AD+1}, v{T+5}, 4, v{T+4}")
    A(f"v_add_u32 v{V_AD+1}, 0x4000, v{V_AD+1}")
    A(f"s_mov_b32 s{S_SOFW}, 0")
    A(f"s_mov_b32 s{S_SOFW2}, 4096")
    A("s_cmp_ge_u32 s2, 128")
    A("s_cbranch_scc1 L_k1_qkv")
    P1, M1, P2, M2 = Asm(), Asm(), Asm(), Asm()
    k1_variant(P1, M1, K1Var("w1"), stamp)
    k1_variant(P2, M2, K1Var("qkv"), stamp)
    A.L += P1.L
    A.label("L_k1_qkv")
    A.L += P2.L + M1.L + M2.L
    A.label("L_k1_end")
    A("s_endpgm")

def qkv_attention(A, V):
    T = V_T
    XCH = RING0 if "fuse" in OPT else RING0 + V.SL
    lane8, l16, g = T + 8, T + 1, T + 2
    def Q(t, sp): return V.acc(t, 2 * sp)
    KP = 200
    def K(t, sp): return V.acc(t, 4 + 2 * sp) if t >= 0 else KP + 4 * sp
    def VT(jj): return 128 + 16 * jj
    X = T + 4
    A(f"v_lshrrev_b32 v{lane8}, 1, v{V_L16}")
    A(f"v_bfe_u32 v{l16}, v{V_L16}, 4, 4")
    A(f"v_lshrrev_b32 v{g}, 8, v{V_L16}")
    for jj in range(4):
        A(f"s_xor_b32 s46, s{S_W}, {jj}")
        A("s_lshl_b32 s46, s46, 9")
        A(f"s_lshl_b32 s47, s{S_W}, 12")
        A("s_add_u32 s46, s46, s47")
        A(f"v_add_u32 v{X+jj}, s46, v{lane8}")
    A(f"s_lshl_b32 s46, s{S_W}, 9")
    A(f"v_add_u32 v{lane8}, s46, v{lane8}")
    for jj in range(4):
        k = K(3, jj >> 1) + 2 * (jj & 1)
        A(f"ds_write_b64 v{X+jj}, v[{k}:{k+1}] offset:{XCH + 4096}")
        v = VT(jj) + 8
        A(f"ds_write_b64 v{X+jj}, v[{v}:{v+1}] offset:{XCH + 4096 + 2048}")
    A(f"ds_write_b64 v{lane8}, v[192:193] offset:{XCH}")
    A(f"ds_write_b64 v{lane8}, v[196:197] offset:{XCH + 2048}")
    par_ = T + 9
    MP, MA, MB_, VA_, VB_ = "s[46:47]", "s[48:49]", "s[50:51]", "s[52:53]", "s[54:55]"
    A(f"v_and_b32 v{par_}, 1, v{l16}")
    A(f"v_cmp_eq_u32 {MP}, 1, v{par_}")
    A(f"s_or_b32 s60, s{S_MB}, s{S_W}")
    A("s_cmp_eq_u32 s60, 0")
    A(f"s_cselect_b64 {VA_}, {MA}, -1")
    A(f"s_cselect_b64 {VB_}, {MB_}, -1")
    FQ = 232
    A("s_mov_b32 s61, 0x3e8293ee")
    for t in range(4): A(f"v_mul_f32 v{RSQ+t}, s61, v{RSQ+t}")
    A(f"v_cndmask_b32 v{RSK}, 0, v{RSK}, {VA_}")
    A(f"v_cndmask_b32 v{RSK+1}, 0, v{RSK+1}, {VB_}")
    for t in range(4):
        for e in range(2): A(f"v_mul_f32 v{FQ+2*t+e}, v{RSQ+t}, v{RSK+2*t+e}")
    SEL = 208
    A(f"v_mov_b32 v{T+10}, 0x0c0c0100")
    A(f"v_mov_b32 v{T+11}, 0x01000c0c")
    A(f"v_cndmask_b32 v{SEL+2}, v{T+10}, v{T+11}, {MP}")
    A(f"v_mov_b32 v{T+10}, 0x0c0c0302")
    A(f"v_mov_b32 v{T+11}, 0x03020c0c")
    A(f"v_cndmask_b32 v{SEL+3}, v{T+10}, v{T+11}, {MP}")
    A(f"v_mov_b32 v{T+10}, 0x0c0c0c0c")
    A(f"v_cndmask_b32 v{SEL}, v{SEL+2}, v{T+10}, {MA}")
    A(f"v_cndmask_b32 v{SEL+1}, v{SEL+3}, v{T+10}, {MB_}")
    A(f"v_cndmask_b32 v{SEL+2}, v{T+10}, v{SEL+2}, {MA}")
    A(f"v_cndmask_b32 v{SEL+3}, v{T+10}, v{SEL+3}, {MB_}")
    A("s_waitcnt lgkmcnt(0)")
    A("s_barrier")
    for jj in range(4):
        k = KP + 4 * (jj >> 1) + 2 * (jj & 1)
        A(f"ds_read_b64 v[{k}:{k+1}], v{X+jj} offset:{XCH}")
        v = VT(jj)
        A(f"ds_read_b64 v[{v}:{v+1}], v{X+jj} offset:{XCH + 2048}")
    A(f"v_mov_b32 v{T+11}, 0xce6e6b28")
    units = [(t, sp) for t in (1, 2, 3, 0) for sp in range(2)]
    def Sc(t, sp): return V.acc(t, 2 * sp + 1)
    def Sp(t, sp): return V.acc(t, 4 + 2 * sp + 1)
    for n, (t, sp) in enumerate(units):
        if t == 0 and sp == 0: A("s_waitcnt lgkmcnt(0)")
        A(f"v_mfma_f32_16x16x32_bf16 {vr(Sc(t,sp),4)}, {vr(K(t,sp),4)}, {vr(Q(t,sp),4)}, 0")
        A(f"v_mfma_f32_16x16x32_bf16 {vr(Sp(t,sp),4)}, {vr(K(t-1,sp),4)}, {vr(Q(t,sp),4)}, 0")
    A("s_nop 1")
    def stage(fn):
        for (t, sp) in units: fn(t, sp, Sc(t, sp), Sp(t, sp))
    stage(lambda t, sp, c, p: A(f"v_cndmask_b32 v{c}, v{c}, v{c+1}, {MP}"))
    stage(lambda t, sp, c, p: A(f"v_cndmask_b32 v{c+1}, v{c+2}, v{c+3}, {MP}"))
    stage(lambda t, sp, c, p: A(f"v_cndmask_b32 v{p}, v{p}, v{p+1}, {MP}"))
    stage(lambda t, sp, c, p: A(f"v_cndmask_b32 v{p+1}, v{p+2}, v{p+3}, {MP}"))
    stage(lambda t, sp, c, p: A(f"v_cndmask_b32 v{c}, v{p}, v{c}, {MA}"))
    stage(lambda t, sp, c, p: A(f"v_cndmask_b32 v{c+1}, v{p+1}, v{c+1}, {MB_}"))
    stage(lambda t, sp, c, p: A(f"v_mul_f32 v{c}, v{c}, v{FQ+2*t}"))
    stage(lambda t, sp, c, p: A(f"v_mul_f32 v{c+1}, v{c+1}, v{FQ+2*t+1}"))
    for sp in range(2):
        c = Sc(0, sp)
        A(f"v_cndmask_b32 v{c}, v{T+11}, v{c}, {VA_}")
        A(f"v_cndmask_b32 v{c+1}, v{T+11}, v{c+1}, {VB_}")
    P = [Sp(t, sp) for (t, sp) in units]
    quads = [P[0:4], P[4:8]]
    def xreduce(op, mid=None, filler=()):
        fl = list(filler)
        def pad(n):
            for _ in range(n): A(fl.pop(0) if fl else "s_nop 0")
        for q in quads:
            A(f"v_permlane16_swap_b32 v{q[0]}, v{q[1]}"); A(f"v_permlane16_swap_b32 v{q[2]}, v{q[3]}")
        for q in quads:
            A(f"{op} v{q[0]}, v{q[0]}, v{q[1]}"); A(f"{op} v{q[2]}, v{q[2]}, v{q[3]}")
        pad(1)
        for q in quads: A(f"v_permlane32_swap_b32 v{q[0]}, v{q[2]}")
        for q in quads: A(f"{op} v{q[0]}, v{q[0]}, v{q[2]}")
        if mid:
            for q in quads: A(f"{mid} v{q[0]}, v{q[0]}")
            pad(1)
        for q in quads: A(f"v_mov_b32 v{q[2]}, v{q[0]}")
        pad(1)
        for q in quads: A(f"v_permlane32_swap_b32 v{q[0]}, v{q[2]}")
        for q in quads:
            A(f"v_mov_b32 v{q[1]}, v{q[0]}"); A(f"v_mov_b32 v{q[3]}, v{q[2]}")
        pad(0)
        for q in quads:
            A(f"v_permlane16_swap_b32 v{q[0]}, v{q[1]}"); A(f"v_permlane16_swap_b32 v{q[2]}, v{q[3]}")
        for x in fl: A(x)
    stage(lambda t, sp, c, p: A(f"v_max_f32 v{p}, v{c}, v{c+1}"))
    xreduce("v_max_f32")
    stage(lambda t, sp, c, p: A(f"v_sub_f32 v{c}, v{c}, v{p}"))
    stage(lambda t, sp, c, p: A(f"v_sub_f32 v{c+1}, v{c+1}, v{p}"))
    stage(lambda t, sp, c, p: A(f"v_exp_f32 v{c}, v{c}"))
    stage(lambda t, sp, c, p: A(f"v_exp_f32 v{c+1}, v{c+1}"))
    stage(lambda t, sp, c, p: A(f"v_add_f32 v{p}, v{c}, v{c+1}"))
    fl = []
    for (t, sp) in units:
        c = Sc(t, sp)
        fl += [f"v_mul_f32 v{c}, v{c}, v{RSK+2*t}", f"v_mul_f32 v{c+1}, v{c+1}, v{RSK+2*t+1}"]
    xreduce("v_add_f32", mid="v_rcp_f32", filler=fl)
    stage(lambda t, sp, c, p: A(f"v_mul_f32 v{c}, v{c}, v{p}"))
    stage(lambda t, sp, c, p: A(f"v_mul_f32 v{c+1}, v{c+1}, v{p}"))
    stage(lambda t, sp, c, p: A(f"v_cvt_pk_bf16_f32 v{c}, v{c}, v{c+1}"))
    for i in range(4):
        stage(lambda t, sp, c, p: A(f"v_perm_b32 v{p+i}, v{c}, v{c}, v{SEL+i}"))
    for (t, sp) in units:
        for e in range(2):
            d = Q(t, sp) if e == 0 else Sc(t, sp)
            v = VT(2 * sp + e) + 2 * t
            A(f"v_mfma_f32_16x16x32_bf16 {vr(d,4)}, {vr(v,4)}, {vr(Sp(t,sp),4)}, 0")
    A(f"s_lshl_b32 s60, s{S_MB}, 3")
    A(f"s_lshl_b32 s61, s{S_W}, 1")
    A("s_add_u32 s60, s60, s61")
    A("s_mul_i32 s60, s60, 144")
    A(f"s_lshl_b32 s61, s{S_NT}, 1")
    A("s_add_u32 s60, s60, s61")
    A(f"s_lshr_b32 s61, s{S_W}, 1")
    A("s_add_u32 s62, s60, s61")
    A("s_xor_b32 s61, s61, 1")
    A("s_add_u32 s63, s60, s61")
    A("s_lshl_b32 s62, s62, 11")
    A("s_lshl_b32 s63, s63, 11")
    for (t, sp) in units:
        a, b = Q(t, sp), Sc(t, sp)
        A(f"v_cvt_pk_bf16_f32 v{a}, v{a}, v{a+1}")
        A(f"v_cvt_pk_bf16_f32 v{a+1}, v{a+2}, v{a+3}")
        A(f"v_cvt_pk_bf16_f32 v{a+2}, v{b}, v{b+1}")
        A(f"v_cvt_pk_bf16_f32 v{a+3}, v{b+2}, v{b+3}")
    A(f"s_bitcmp1_b32 s{S_W}, 0")
    A("s_cbranch_scc0 L_k1_noswap")
    for (t, sp) in units:
        a = Q(t, sp)
        A(f"v_swap_b32 v{a}, v{a+2}")
        A(f"v_swap_b32 v{a+1}, v{a+3}")
    A.label("L_k1_noswap")
    for (t, sp) in units:
        a = Q(t, sp)
        A(f"s_add_u32 s64, s{62+sp}, {(t>>1)*144*2048:#x}")
        A(f"buffer_store_dwordx4 v[{a}:{a+3}], v{V_L16}, {sq(S_SRDO)}, s64 offen offset:{(t&1)*1024}{STMOD}")

def gen_k2(A, name, stamp):
    st = Stamp(stamp, 2)
    kernel_head(A, name)
    A.label("L_k2_start")
    st.mark(A)
    SA, SW2, SWO, SX, SB, SO, SP, SF = 4, 8, 12, 16, 20, 24, 28, 32
    S_M0, S_WV, S_SA, S_SW, S_PS, S_PR, S_FS, S_FR = 36, 37, 38, 39, 40, 41, 42, 43
    A("s_cmp_ge_u32 s2, 256")
    A("s_cbranch_scc1 L_k2_end")
    A("s_load_dwordx2 s[44:45], s[0:1], 0")
    A("s_load_dwordx2 s[46:47], s[0:1], 16")
    A("s_load_dwordx4 s[48:51], s[0:1], 48")
    A("s_load_dwordx2 s[52:53], s[0:1], 64")
    A("s_load_dwordx2 s[54:55], s[0:1], 80")
    lane, l16, g = 65, 66, 67
    VA, VD, VR, VX, VB, VL, VF, T = 68, 70, 76, 84, 85, 86, 88, 92
    XT = 100
    A("v_lshrrev_b32 v64, 6, v0")
    A(f"v_and_b32 v{lane}, 63, v0")
    A(f"v_readfirstlane_b32 s{S_WV}, v64")
    A("s_and_b32 s56, s2, 1")
    A("s_bfe_u32 s57, s2, 0x20001")
    A("s_lshl_b32 s57, s57, 2")
    A("s_bfe_u32 s58, s2, 0x20003")
    A("s_add_u32 s57, s57, s58")
    A("s_lshr_b32 s58, s2, 5")
    A(f"v_and_b32 v{l16}, 15, v{lane}")
    A(f"v_lshrrev_b32 v{g}, 4, v{lane}")
    A("s_lshl_b32 s59, s57, 2")
    A(f"s_add_u32 s59, s59, s{S_WV}")
    A(f"s_mul_i32 s60, s59, {144*2048}")
    A(f"v_lshlrev_b32 v{VL}, 4, v{lane}")
    A(f"v_add_u32 v{VA}, s60, v{VL}")
    A(f"s_mul_i32 s{S_SA}, s56, {56*2048}")
    A(f"s_add_u32 s{S_SA}, s{S_SA}, {32*2048}")
    A(f"s_mul_i32 s{S_SW}, s56, {1792*2048}")
    A(f"v_lshrrev_b32 v{T}, 3, v{lane}")
    A(f"v_bfe_u32 v{T+1}, v{lane}, 1, 2")
    A(f"v_xor_b32 v{T+1}, v{T+1}, v{g}")
    A(f"v_lshlrev_b32 v{T}, 11, v{T}")
    A(f"v_lshl_add_u32 v{T+2}, v{T+1}, 5, v{T}")
    A(f"v_and_b32 v{T+1}, 1, v{lane}")
    A(f"v_lshl_add_u32 v{T+2}, v{T+1}, 4, v{T+2}")
    A(f"s_lshl_b32 s60, s{S_WV}, 15")
    A("s_lshl_b32 s61, s58, 8")
    A("s_lshl_b32 s62, s56, 7")
    A("s_add_u32 s61, s61, s62")
    A("s_add_u32 s60, s60, s61")
    A(f"v_add_u32 v{VD}, s60, v{T+2}")
    A(f"v_add_u32 v{VD+1}, 0x4000, v{VD}")
    A(f"v_xor_b32 v{VD+2}, 0x80, v{VD}")
    A(f"v_xor_b32 v{VD+3}, 0x80, v{VD+1}")
    A(f"s_lshl_b32 s{S_M0}, s{S_WV}, 11")
    A("s_lshl_b32 s60, s59, 16")
    A("s_add_u32 s60, s60, s61")
    A(f"v_and_b32 v{T+1}, 7, v{lane}")
    A(f"v_lshl_add_u32 v{VX}, v{T+1}, 4, v{T}")
    A(f"v_add_u32 v{VX}, s60, v{VX}")
    A(f"v_lshlrev_b32 v{VB}, 4, v{T+1}")
    A(f"v_add_u32 v{VB}, s61, v{VB}")
    A(f"v_bfe_u32 v{T}, v{lane}, 2, 4")
    A(f"v_lshlrev_b32 v{T}, 7, v{T}")
    A(f"v_and_b32 v{T+1}, 3, v{lane}")
    A(f"v_lshl_add_u32 v{T}, v{T+1}, 3, v{T}")
    A(f"v_bfe_u32 v{T+1}, v{lane}, 3, 2")
    for jj in range(4):
        A(f"v_xor_b32 v{T+2}, {jj}, v{T+1}")
        A(f"v_lshl_add_u32 v{VR+jj}, v{T+2}, 5, v{T}")
        A(f"v_add_u32 v{VR+4+jj}, 0x10000, v{VR+jj}")
    VPW1, VPW2, VPA = 74, 75, 69
    A("s_lshr_b32 s60, s2, 3")
    A("s_lshl_b32 s60, s60, 2")
    A(f"s_add_u32 s60, s60, s{S_WV}")
    A("s_lshl_b32 s60, s60, 11")
    A(f"v_lshrrev_b32 v{T}, 2, v{lane}")
    A(f"v_lshlrev_b32 v{T}, 7, v{T}")
    A(f"v_add_u32 v{VPW1}, s60, v{T}")
    A("s_add_u32 s60, s60, s62")
    A(f"v_lshrrev_b32 v{T}, 3, v{lane}")
    A(f"v_lshlrev_b32 v{T+1}, 8, v{T}")
    A(f"v_add_u32 v{VPW2}, s60, v{T+1}")
    A(f"s_mul_i32 s60, s59, {144*2048}")
    A("s_lshl_b32 s63, s58, 10")
    A("s_add_u32 s60, s60, s63")
    A(f"v_lshlrev_b32 v{T}, 7, v{T}")
    A(f"v_add_u32 v{VPA}, s60, v{T}")
    VSL = 87
    A(f"v_lshlrev_b32 v{VSL}, 10, v{lane}")
    A("s_lshr_b32 s64, s2, 3")
    A("s_lshl_b32 s64, s64, 2")
    A(f"s_add_u32 s64, s64, s{S_WV}")
    A(f"s_mov_b32 s{S_FS}, s{S_SW}")
    A(f"s_mov_b32 s{S_FR}, s{S_SA}")
    A("s_xor_b32 s63, s2, 1")
    A(f"s_lshl_b32 s60, s{S_WV}, 12")
    A(f"s_lshl_b32 s{S_PS}, s2, 14")
    A(f"s_add_u32 s{S_PS}, s{S_PS}, s60")
    A(f"s_lshl_b32 s{S_PR}, s63, 14")
    A(f"s_add_u32 s{S_PR}, s{S_PR}, s60")
    A("s_waitcnt lgkmcnt(0)")
    srd(A, SA, 54, 55, A2_BYTES, WS_A2)
    srd(A, SW2, 48, 49, 3584 * 2048)
    srd(A, SWO, 46, 47, 1024 * 2048)
    srd(A, SX, 44, 45, 4 << 20)
    srd(A, SB, 50, 51, 2048)
    srd(A, SO, 52, 53, 4 << 20)
    srd(A, SP, 54, 55, 4 << 20, WS_PART)
    srd(A, SF, 54, 55, SD_BYTES, WS_SIDE)
    vm, lg = Score(63), Score(15)
    N1, N2 = 28, 16
    RCV, XLD, PRO = N1 + par('k2rcv', 10), N1 + par('k2xld', 11), par('k2pro', 3)
    NS = N1 + N2
    RW, RA = 8, par('k2ra', 7)
    DW = par('k2dw', RW - 1)
    def acc(t, j): return (j * 2 + t) * 4
    def acc2(t, j): return 128 + (j * 2 + t) * 4
    def wf(j, ks): return (j * 2 + ks) * 4
    def af(s, ks, t): return 64 + ((s % RA) * 4 + ks * 2 + t) * 4
    def nj(s): return 8 if s < N1 else 4
    def aloads(s):
        o = []
        if s == N1: o.append(("s", f"s_mov_b32 s{S_SA}, 0", None))
        for ks in range(2):
            for t in range(2):
                o.append(("vmA", f"buffer_load_dwordx4 {ar(af(s, ks, t), 4)}, v{VA}, s[{SA}:{SA+3}], s{S_SA} offen offset:{ks*2048 + t*1024}", ("A", s) if (ks, t) == (1, 1) else None))
        o.append(("s", f"s_add_u32 s{S_SA}, s{S_SA}, 4096", None))
        return o
    def dmas(s):
        o = []
        if s == N1: o.append(("s", f"s_mov_b32 s{S_SW}, 0", None))
        W = SW2 if s < N1 else SWO
        n = 4 if s < N1 else 2
        for q in range(n):
            c, u = divmod(q, 2)
            o.append(("m0", f"s_add_u32 m0, s{S_M0}, {(s % RW)*16384 + c*8192 + u*1024:#x}", None))
            o.append(("vmD", f"buffer_load_dwordx4 v{VD+q}, s[{W}:{W+3}], s{S_SW} offen lds", ("D", s) if q == n - 1 else None))
        o.append(("s", f"s_add_u32 s{S_SW}, s{S_SW}, 0x20000", None))
        return o
    def pfw(f):
        if f < N1: return [("s", f"s_add_u32 s61, s{S_FS}, {f*0x20000:#x}", None), ("vmP", f"buffer_load_dword v{VF}, v{VPW1}, s[{SW2}:{SW2+3}], s61 offen", None)]
        return [("s", f"s_mov_b32 s61, {(f-N1)*0x20000:#x}", None), ("vmP", f"buffer_load_dword v{VF}, v{VPW2}, s[{SWO}:{SWO+3}], s61 offen", None)]
    def pfa(f):
        pre = f"s_add_u32 s61, s{S_FR}, {f*4096:#x}" if f < N1 else f"s_mov_b32 s61, {(f-N1)*4096:#x}"
        return [("s", pre, None), ("vmP", f"buffer_load_dword v{VF}, v{VPA}, s[{SA}:{SA+3}], s61 offen", None)]
    def slowpf(f, n):
        v = (1 << n) - 1
        base = f"s_add_u32 s61, s61, s{S_FS}\n" if f < N1 else ""
        W = SW2 if f < N1 else SWO
        return [("vmP", f"s_mul_i32 s61, s64, {n*1024}\n{base}s_add_u32 s61, s61, {(f if f < N1 else f - N1)*0x20000:#x}\n"
                 f"s_mov_b64 exec, {v:#x}\nbuffer_load_dword v{VF}, v{VSL}, s[{W}:{W+3}], s61 offen offset:384\ns_mov_b64 exec, -1", None)]
    k2slow = [tuple(x.split(":")) for x in PAR.get("k2slow", "0:4:10+4:14:14+14:28:16").split("+") if x]
    for wh, f, n in k2slow:
        if wh == "p":
            for kind, x, tg in slowpf(int(f), int(n)): A(x); vm.issue()
    PD, PB = par("k2pd", 0), par("k2pb", 4)
    fw = fa = 0
    if PD:
        for f in range(0, PB, 2):
            for kind, x, tg in pfa(f) + pfw(f):
                A(x)
                if kind.startswith("vm"): vm.issue(tg)
        fw = fa = PB
    def read(s, j, ks, p):
        hi, so = divmod(s % RW, 4)
        c, jj = divmod(j, 4)
        return f"ds_read_b64_tr_b16 {ar(wf(j, ks) + 2*p, 2)}, v{VR + hi*4 + jj} offset:{so*16384 + c*8192 + ks*4096 + p*2048}"
    for s in range(PRO):
        if s == 1 and "k2cpf_self" in OPT:
            A("s_getpc_b64 s[64:65]")
            A.label("L_k2_pc")
            A("s_mov_b32 s66, L_k2_spin-L_k2_pc")
            A("s_mov_b32 s67, 0x20000")
            A(f"s_lshl_b32 s60, s{S_WV}, 13")
            A(f"v_lshlrev_b32 v{T}, 3, v{VL}")
            A(f"buffer_load_dword v{T+1}, v{T}, s[64:67], s60 offen"); vm.issue()
        for kind, x, tg in dmas(s) + aloads(s):
            A(x)
            if kind == "m0": A("s_nop 0")
            if kind.startswith("vm"): vm.issue(tg)
    n = vm.need([("D", 0)]); A(f"s_waitcnt vmcnt({n})")
    A("s_barrier")
    st.mark(A)
    for j in range(3):
        for q in range(4): A(read(0, j, q >> 1, q & 1)); lg.issue(("W", 0, j))
    S = Stream(vm, lg)
    first, last = {}, {}
    for s in range(NS):
        n = 0
        for j in range(nj(s)):
            for t in ((0, 1) if j % 2 == 0 else (1, 0)):
                for ks in ((0, 1) if n % 2 == 0 else (1, 0)):
                    c = vr(acc(t, j) if s < N1 else acc2(t, j), 4)
                    cin = "0" if (s in (0, N1) and ks == (0 if n % 2 == 0 else 1)) else c
                    idx = S.add_mfma(f"v_mfma_f32_16x16x32_bf16 {c}, {ar(wf(j, ks), 4)}, {ar(af(s, ks, t), 4)}, {cin}",
                                     [("lg", ("W", s, j)), ("vm", ("A", s))])
                    first.setdefault((s, j), idx); last[(s, j)] = idx
                n += 1
    i = 0
    for j in range(3, 8):
        for q in range(4): i = S.place(i, "ds", read(0, j, q >> 1, q & 1), gives=("W", 0, j) if q == 3 else None) + 1
    BK, BK0 = par("k2bar", 1), par("k2bar0", 4)
    def isbar(s): return s < BK0 or (s - BK0) % BK == 0
    def lastbar(s):
        while not isbar(s): s -= 1
        return s
    resv = set()
    if "k2mix" not in OPT:
        for s in range(1, N1):
            for k in range(8): resv.add(first[(s, 0)] + 4 * k + 3)
    for i in resv: S.used[i] = 50
    for s in range(NS - 1):
        b = first[(s, 0)] + 1
        if isbar(s):
            k_ = s + 1
            while k_ + 1 < NS and not isbar(k_): k_ += 1
            S.gaps[b].append(("barv", None, None, [("vm", ("D", k_))]))
        for j in range(nj(s + 1)):
            i = last[(s, j)]
            if i in resv:
                for n_, q in enumerate((2, 3, 0, 1)):
                    S.place(i + (1, 1, 2, 3)[n_], "ds", read(s + 1, j, q >> 1, q & 1), gives=("W", s + 1, j) if q == 1 else None, cap=2)
                continue
            for q in (2, 3, 0, 1):
                i = S.place(i, "ds", read(s + 1, j, q >> 1, q & 1), gives=("W", s + 1, j) if q == 1 else None, cap=(2 if s == 0 else 1)) + 1
    cur = 0
    def spread(i0, i1, items):
        nonlocal cur
        i0 = max(i0, cur)
        nv = sum(1 for it in items if it[0].startswith("vm"))
        k = 0
        for kind, x, tg, *nd in items:
            nd = nd[0] if nd else []
            tgt = max(cur, i0 + (k * max(i1 - i0, 0)) // nv)
            if kind == "m0":
                fr = [r_ for r_ in sorted(resv) if r_ > cur and r_ < i1 + 2]
                if fr and len(fr) >= nv - k: tgt = fr[0]
                cur = S.place(max(cur, tgt - 1), "s", x, cap=9) + 1
            elif kind == "s":
                cur = S.place(cur, "s", x, cap=9, needs=nd)
            else:
                free = [r_ for r_ in sorted(resv) if r_ >= cur and r_ < i1 + 2]
                if free and len(free) >= nv - k:
                    cur = free[0]; resv.discard(cur)
                    S.gaps[cur].append((kind, x, tg, list(nd)))
                else:
                    cur = S.place(tgt, kind, x, gives=tg, needs=nd, cap=9)
                k += 1
    nd_, na_ = PRO, PRO
    for s in range(NS):
        b = first[(s, 0)] + 2
        e = first[(s + 1, 0)] + 1 if s + 1 < NS else len(S.mf)
        items = []
        if s == N1:
            for q in range(4):
                r0 = 32 + 8 * q
                cv = "\n".join(f"v_cvt_pk_bf16_f32 v{32+4*q+k}, v{r0+2*k}, v{r0+2*k+1}" for k in range(4))
                items.append(("s", ("s_nop 4\n" if q == 0 else "") + cv, None))
                items.append(("vmS", f"buffer_store_dwordx4 v[{32+4*q}:{35+4*q}], v{VL}, s[{SP}:{SP+3}], s{S_PS} offen offset:{q*1024} sc1", None))
        if PD:
            fw = max(fw, (nd_ + 1) & ~1); fa = max(fa, (na_ + 1) & ~1)
            for _ in range(2 if s < 6 else 1):
                if fw <= fa and fw < NS and fw < nd_ + PD + 2: items += pfw(fw); fw += 2
                elif fa < NS and fa < na_ + PD + 2: items += pfa(fa); fa += 2
        for wh, f, n in k2slow:
            if wh == str(s): items += slowpf(int(f), int(n))
        ramp = 2 if (s % par("k2ramp", 2) == 0) else 1
        for _ in range(ramp):
            if nd_ < NS and nd_ <= min(s + DW, lastbar(s) + RW - 1): items += dmas(nd_); nd_ += 1
            if na_ < NS and na_ <= s + RA - 1: items += aloads(na_); na_ += 1
        if stamp and s in (14, N1, N1 + 6, N1 + 13):
            S.gaps[first[(s, 0)] + 1].append(("s", st.text(), None, []))
        if s == par("k2bld", 9):
            items.append(("vmX", f"buffer_load_dwordx4 v[{XT+16}:{XT+19}], v{VB}, s[{SB}:{SB+3}], 0 offen", None))
            items.append(("s", f"s_lshl_b32 s60, s59, 7\ns_add_u32 s60, s60, {SD_RS:#x}\nv_lshlrev_b32 v{VF+3}, 2, v{l16}", None))
            for t in range(2):
                items.append(("vmX", f"buffer_load_dword v{98+t}, v{VF+3}, s[{SF}:{SF+3}], s60 offen offset:{64*t}", None))
        if s == XLD:
            for q in range(4):
                items.append(("s", f"s_mov_b32 s60, {q*8*2048:#x}", None))
                items.append(("vmX", f"buffer_load_dwordx4 v[{XT+4*q}:{XT+4*q+3}], v{VX}, s[{SX}:{SX+3}], s60 offen", None))
        if s == RCV:
            for q in range(4):
                items.append(("vmX", f"buffer_load_dwordx4 v[{48+4*q}:{51+4*q}], v{VL}, s[{SP}:{SP+3}], s{S_PR} offen offset:{q*1024} sc1", None))
        if items:
            cur = max(cur, b)
            spread(b, e, items)
    for x in S.emit("k2"): A(x)
    st.mark(A)
    A(f"s_lshl_b32 s60, s{S_WV}, 14")
    A("s_add_u32 s60, s60, 8192")
    A(f"v_and_b32 v{T}, 7, v{l16}")
    A(f"v_xor_b32 v{T}, v{T}, v{g}")
    A(f"v_lshlrev_b32 v{T+1}, 8, v{l16}")
    A(f"v_add_u32 v{T+1}, s60, v{T+1}")
    A(f"v_lshl_add_u32 v{T+2}, v{T}, 4, v{T+1}")
    A(f"v_xor_b32 v{T}, 4, v{T}")
    A(f"v_lshl_add_u32 v{T+3}, v{T}, 4, v{T+1}")
    A(f"v_lshrrev_b32 v{T}, 3, v{lane}")
    A(f"v_and_b32 v{T+1}, 7, v{lane}")
    A(f"v_lshlrev_b32 v{T+1}, 1, v{T+1}")
    A(f"v_xor_b32 v{T+1}, v{T+1}, v{T}")
    A(f"v_lshlrev_b32 v{T}, 8, v{T}")
    A(f"v_add_u32 v{T}, s60, v{T}")
    A(f"v_lshl_add_u32 v{T+4}, v{T+1}, 4, v{T}")
    A(f"v_xor_b32 v{T+5}, 16, v{T+4}")
    A("s_mov_b32 s62, 0xffff0000")
    A("s_mov_b32 s61, 0")
    A.label("L_k2_back")
    A("s_waitcnt vmcnt(0)")
    A("v_max3_u32 v32, v48, v49, v50")
    A("v_max3_u32 v33, v51, v52, v53")
    for k in range(54, 64, 4):
        A(f"v_max3_u32 v32, v32, v{k}, v{k+1}")
        if k + 3 < 64: A(f"v_max3_u32 v33, v33, v{k+2}, v{k+3}")
    A("v_max_u32 v32, v32, v33")
    A("v_cmp_eq_u32 vcc, -1, v32")
    A("s_cbranch_vccnz L_k2_spin")
    A.label("L_k2_go")
    A("v_pk_mul_f32 v[98:99], v[98:99], v[98:99]")
    for i in range(4):
        A(f"v_lshlrev_b32 v{XT+20+2*i}, 16, v{XT+16+i}")
        A(f"v_and_b32 v{XT+21+2*i}, s62, v{XT+16+i}")
    for j in range(4):
        for t in range(2):
            c = acc(t, j)
            for k in range(2):
                A(f"v_lshlrev_b32 v{32+2*k}, 16, v{48 + c//2 + k}")
                A(f"v_and_b32 v{33+2*k}, s62, v{48 + c//2 + k}")
            A(f"v_pk_add_f32 v[{c}:{c+1}], v[{c}:{c+1}], v[32:33]")
            A(f"v_pk_add_f32 v[{c+2}:{c+3}], v[{c+2}:{c+3}], v[34:35]")
            o = "op_sel_hi:[1,0,1]" if t == 0 else "op_sel:[0,1,0]"
            A(f"v_pk_fma_f32 v[{c}:{c+1}], v[{c}:{c+1}], v[98:99], v[{c+128}:{c+129}] {o}")
            A(f"v_pk_fma_f32 v[{c+2}:{c+3}], v[{c+2}:{c+3}], v[98:99], v[{c+130}:{c+131}] {o}")
            A(f"ds_write_b128 v{T+2+(j&1)}, v[{c}:{c+3}] offset:{t*4096 + (j>>1)*128}")
    A("s_waitcnt lgkmcnt(0)")
    for q in range(4):
        A(f"ds_read_b128 v[{32+8*q}:{35+8*q}], v{T+4} offset:{q*2048}")
        A(f"ds_read_b128 v[{36+8*q}:{39+8*q}], v{T+5} offset:{q*2048}")
    for q in range(4):
        for i in range(4):
            A(f"v_lshlrev_b32 v{2*i}, 16, v{XT+4*q+i}")
            A(f"v_and_b32 v{2*i+1}, s62, v{XT+4*q+i}")
        for i in range(4): A(f"v_pk_add_f32 v[{2*i}:{2*i+1}], v[{2*i}:{2*i+1}], v[{XT+20+2*i}:{XT+21+2*i}]")
        A(f"s_waitcnt lgkmcnt({6-2*q})")
        for i in range(4): A(f"v_pk_add_f32 v[{2*i}:{2*i+1}], v[{2*i}:{2*i+1}], v[{32+8*q+2*i}:{33+8*q+2*i}]")
        for i in range(4): A(f"v_cvt_pk_bf16_f32 v{8+4*q+i}, v{2*i}, v{2*i+1}")
        A(f"s_mov_b32 s60, {q*8*2048:#x}")
        A(f"buffer_store_dwordx4 v[{8+4*q}:{11+4*q}], v{VX}, s[{SO}:{SO+3}], s60 offen{PAR.get('outmod', ' sc1')}")
    if "dbgtime" in OPT:
        A("s_memrealtime s[82:83]")
        A("s_load_dwordx2 s[64:65], s[0:1], 72")
        A("s_waitcnt lgkmcnt(0)")
        srd(A, 8, 54, 55, 0x100000, WS_STAMP + 0x40000)
        srd(A, 12, 64, 65, 64)
        A(f"s_lshl_b32 s60, s2, 3"); A(f"s_add_u32 s60, s60, s{S_WV}"); A("s_lshl_b32 s60, s60, 6")
        A("s_mov_b64 exec, 1")
        A("buffer_load_dwordx4 v[100:103], off, s[8:11], s60")
        A("buffer_load_dword v104, off, s[8:11], s60 offset:16")
        A("s_waitcnt vmcnt(0)")
        A("v_not_b32 v105, v100"); A("v_not_b32 v106, v104")
        A("v_mov_b32 v107, s68"); A("v_not_b32 v107, v107")
        A("v_mov_b32 v108, s70"); A("v_mov_b32 v109, s74"); A("v_mov_b32 v110, s82")
        for i, r in enumerate((105, 101, 104, 107, 108, 109, 110, 106, 100)):
            A(f"buffer_atomic_umax v{r}, off, s[12:15], 0 offset:{4*i}")
        A("s_endpgm")
    if "dbgptr" in OPT:
        A("s_load_dwordx16 s[64:79], s[0:1], 0")
        A("s_load_dwordx4 s[80:83], s[0:1], 64")
        A("s_load_dwordx2 s[84:85], s[0:1], 80")
        A("s_waitcnt lgkmcnt(0)")
        srd(A, 8, 82, 83, 64)
        for i in range(11): A(f"v_mov_b32 v{100+i}, s{64+2*i}")
        A("v_mov_b32 v111, s0")
        A("s_mov_b64 exec, 1")
        for q in range(3): A(f"buffer_store_dwordx4 v[{100+4*q}:{103+4*q}], off, s[8:11], 0 offset:{16*q}")
    st.flush(A, 54, 55, 100, f"s{S_WV}")
    A.label("L_k2_end")
    A("s_endpgm")
    A.label("L_k2_spin")
    A("s_add_u32 s61, s61, 1")
    A("s_cmp_gt_u32 s61, 0x10000")
    A("s_cbranch_scc1 L_k2_go")
    A("s_sleep 2")
    for q in range(4):
        A(f"buffer_load_dwordx4 v[{48+4*q}:{51+4*q}], v{VL}, s[{SP}:{SP+3}], s{S_PR} offen offset:{q*1024} sc1")
    A("s_branch L_k2_back")

def gen_k2b(A, name, stamp):
    F = "fuse" in OPT
    st = Stamp(stamp, 2)
    if not F: kernel_head(A, name)
    A.label("L_k2_start")
    st.mark(A)
    if F:
        SA, SW2, SWO, SX, SB, SO, SP, SF = S_SRDO, S_SRDP, 8, S_SRDA, 32, 44, S_SRDB, S_SRDS
        S_M0, S_WV, S_SA, S_SW, S_PS, S_W0, S_MT, S_SLOT = 23, S_W, 21, 22, 24, 20, 27, 67
        KQ, MB, NTL, X59, WSL = 64, 65, 66, 3, 58
        A("s_load_dwordx2 s[48:49], s[0:1], 16")
        A("s_load_dwordx4 s[52:55], s[0:1], 56")
    else:
        SA, SW2, SWO, SX, SB, SO, SP, SF = 4, 8, 12, 16, 20, 24, 28, 32
        S_M0, S_WV, S_SA, S_SW, S_PS, S_W0, S_MT, S_SLOT = 36, 37, 38, 39, 40, 41, 42, 43
        KQ, MB, NTL, X59, WSL = 56, 57, 58, 59, 54
        A("s_cmp_ge_u32 s2, 256")
        A("s_cbranch_scc1 L_k2_end")
        A("s_load_dwordx2 s[54:55], s[0:1], 80")
        A("s_load_dwordx4 s[48:51], s[0:1], 48")
        A("s_load_dwordx2 s[44:45], s[0:1], 0")
        A("s_load_dwordx2 s[46:47], s[0:1], 16")
        A("s_load_dwordx2 s[52:53], s[0:1], 64")
    COH = " sc1" if F else ""
    lane, l16, g = 161, 162, 163
    VA, VD, VR, VX, VB, VL, VSL, VRS, T = 164, 166, 170, 182, 183, 184, 185, 186, 188
    XT = 196
    if F: A(f"v_lshrrev_b32 v{lane}, 4, v{V_L16}")
    else:
        A("v_lshrrev_b32 v160, 6, v0")
        A(f"v_and_b32 v{lane}, 63, v0")
        A(f"v_readfirstlane_b32 s{S_WV}, v160")
    A(f"s_bfe_u32 s{KQ}, s2, 0x20001")
    A(f"s_and_b32 s{MB}, s2, 1")
    A(f"s_lshl_b32 s{MB}, s{MB}, 2")
    A(f"s_bfe_u32 s{NTL}, s2, 0x20003")
    A(f"s_add_u32 s{MB}, s{MB}, s{NTL}")
    A(f"s_lshr_b32 s{NTL}, s2, 5")
    A(f"v_and_b32 v{l16}, 15, v{lane}")
    A(f"v_lshrrev_b32 v{g}, 4, v{lane}")
    A(f"v_lshlrev_b32 v{VL}, 4, v{lane}")
    A(f"s_lshl_b32 s{X59}, s{MB}, 2")
    A(f"s_add_u32 s{X59}, s{X59}, s{S_WV}")
    A(f"s_lshl_b32 s{X59}, s{X59}, 1")
    A(f"s_lshr_b32 s60, s{KQ}, 1")
    A(f"s_add_u32 s{S_MT}, s{X59}, s60")
    A(f"s_mul_i32 s60, s{S_MT}, {144*2048}")
    A(f"v_add_u32 v{VA}, s60, v{VL}")
    A(f"s_xor_b32 s60, s{S_MT}, 1")
    A(f"s_mul_i32 s60, s60, {144*2048}")
    A(f"v_add_u32 v{VA+1}, s60, v{VL}")
    A(f"s_mul_i32 s{S_SA}, s{KQ}, {28*2048}")
    A(f"s_add_u32 s{S_SA}, s{S_SA}, {32*2048}")
    A(f"s_mul_i32 s{S_SW}, s{KQ}, {896*2048}")
    A(f"s_mov_b32 s{S_W0}, s{S_SW}")
    A(f"v_lshrrev_b32 v{T}, 3, v{lane}")
    A(f"v_bfe_u32 v{T+1}, v{lane}, 1, 2")
    A(f"v_xor_b32 v{T+1}, v{T+1}, v{g}")
    A(f"v_lshlrev_b32 v{T}, 11, v{T}")
    A(f"v_lshl_add_u32 v{T+2}, v{T+1}, 5, v{T}")
    A(f"v_and_b32 v{T+1}, 1, v{lane}")
    A(f"v_lshl_add_u32 v{T+2}, v{T+1}, 4, v{T+2}")
    A(f"s_lshl_b32 s60, s{S_WV}, 15")
    A(f"s_lshl_b32 s61, s{NTL}, 8")
    A(f"s_and_b32 s62, s{KQ}, 1")
    A("s_lshl_b32 s62, s62, 7")
    A("s_add_u32 s61, s61, s62")
    A("s_add_u32 s60, s60, s61")
    A(f"v_add_u32 v{VD}, s60, v{T+2}")
    A(f"v_add_u32 v{VD+1}, 0x4000, v{VD}")
    A(f"v_xor_b32 v{VD+2}, 0x80, v{VD}")
    A(f"v_xor_b32 v{VD+3}, 0x80, v{VD+1}")
    A(f"s_lshl_b32 s{S_M0}, s{S_WV}, 11")
    if not F:
        A("s_waitcnt lgkmcnt(0)")
        srd(A, SA, 54, 55, A2_BYTES, WS_A2)
        srd(A, SW2, 48, 49, 3584 * 2048)
    vm, lg = Score(63), Score(15)
    N1, N2 = 14, 16
    NS = N1 + N2
    NH, NU = par("k2nh", 20), 12
    PRO = par("k2pro", 2)
    def nj(s): return 8 if s < N1 else 4
    def nt(s): return 4 if s < N1 else 2
    def cum(s): return 2 * s if s <= N1 else 2 * N1 + (s - N1)
    def half(s, c): return (cum(s) + c + (4 if F else 0)) % NH
    def unit(s, a): return (cum(s) + a) % NU
    def quarter(a, b): return (2 * a + b) * 32
    def acc(t, j): return quarter(t >> 1, j >> 2) + ((j & 3) * 2 + (t & 1)) * 4
    def acc2(t, j): return 128 + (j * 2 + t) * 4
    def wf(j, ks): return (j * 2 + ks) * 4
    def af(s, ks, t): return 64 + unit(s, t >> 1) * 16 + (ks * 2 + (t & 1)) * 4
    def aloads(s):
        o = []
        if s == N1: o.append(("s", f"s_mov_b32 s{S_SA}, {0x10000 if 'k2wrapA' in OPT else 0}", None))
        na = nt(s) // 2
        for a in range(na):
            for ks in range(2):
                for t in range(2):
                    o.append(("vmA", f"buffer_load_dwordx4 {ar(af(s, ks, 2*a+t), 4)}, v{VA+a}, s[{SA}:{SA+3}], s{S_SA} offen offset:{ks*2048 + t*1024}{COH}",
                              ("A", s) if (a, ks, t) == (na - 1, 1, 1) else None))
        o.append(("s", f"s_add_u32 s{S_SA}, s{S_SA}, 4096" if not ("k2wrapA" in OPT and s % 3 == 2) else f"s_sub_u32 s{S_SA}, s{S_SA}, 8192", None))
        return o
    def dmas(s):
        o = []
        if s == N1: o.append(("s", f"s_mov_b32 s{S_SW}, {0x80000 if 'k2wrapW' in OPT else 0}", None))
        W = SW2 if s < N1 else SWO
        n = 4 if s < N1 else 2
        for q in range(n):
            c, u = divmod(q, 2)
            o.append(("m0", f"s_add_u32 m0, s{S_M0}, {half(s, c)*8192 + u*1024:#x}", None))
            o.append(("vmD", f"buffer_load_dwordx4 v{VD+q}, s[{W}:{W+3}], s{S_SW} offen lds", ("D", s) if q == n - 1 else None))
        o.append(("s", f"s_add_u32 s{S_SW}, s{S_SW}, 0x20000" if not ("k2wrapW" in OPT and s % 3 == 2) else f"s_sub_u32 s{S_SW}, s{S_SW}, 0x40000", None))
        return o
    def read(s, j, ks, p):
        c, jj = divmod(j, 4)
        hi, so = divmod(half(s, c), 8)
        return f"ds_read_b64_tr_b16 {ar(wf(j, ks) + 2*p, 2)}, v{VR + hi*4 + jj} offset:{so*8192 + ks*4096 + p*2048}"
    def slowpf(f, n):
        v = (1 << n) - 1
        base = f"s_add_u32 s61, s61, s{S_W0}\n" if f < N1 else ""
        W = SW2 if f < N1 else SWO
        return [("vmP", f"s_mul_i32 s61, s{S_SLOT}, {n*1024}\n{base}s_add_u32 s61, s61, {(f if f < N1 else f - N1)*0x20000:#x}\n"
                 f"s_mov_b64 exec, {v:#x}\nbuffer_load_dword v{T+7}, v{VSL}, s[{W}:{W+3}], s61 offen offset:384\ns_mov_b64 exec, -1", None)]
    k2slow = [tuple(x.split(":")) for x in PAR.get("k2slow", "0:3:11+5:14:16").split("+") if x]
    def emit_items(items):
        for kind, x, tg in items:
            A(x)
            if kind == "m0": A("s_nop 0")
            if kind.startswith("vm"): vm.issue(tg)
    if F:
        P1 = par("p2d1", 3)
        for s in range(P1): emit_items(dmas(s))
        A(f"s_waitcnt vmcnt({vm.n})")
        A("s_barrier")
        A("s_lshl_b32 s60, s2, 7")
        A("s_mov_b64 exec, 1")
        A(f"buffer_store_dwordx2 {ar(A_TAG,2)}, off, {sq(S_SRDT)}, s60 offset:32 sc1"); vm.issue()
        A("s_mov_b64 exec, -1")
        st.mark(A)
        for s in range(P1, par('p2d2', NH // 2)): emit_items(dmas(s))
        A("s_waitcnt lgkmcnt(0)")
        srd(A, SWO, 48, 49, 1024 * 2048)
        srd(A, SB, 52, 53, 2048)
        srd(A, SO, 54, 55, 4 << 20)
    else:
        emit_items(dmas(0) + aloads(0))
        srd(A, SWO, 46, 47, 1024 * 2048)
        srd(A, SX, 44, 45, 4 << 20)
        srd(A, SB, 50, 51, 2048)
        srd(A, SO, 52, 53, 4 << 20)
        srd(A, SP, 54, 55, 12 << 20, WS_PART)
        srd(A, SF, 54, 55, SD_BYTES, WS_SIDE)
    A(f"s_lshl_b32 s60, s{S_MT}, 16")
    A("s_add_u32 s60, s60, s61")
    A(f"v_and_b32 v{T+1}, 7, v{lane}")
    A(f"v_lshl_add_u32 v{VX}, v{T+1}, 4, v{T}")
    A(f"v_add_u32 v{VX}, s60, v{VX}")
    A(f"v_lshlrev_b32 v{VB}, 4, v{T+1}")
    A(f"v_add_u32 v{VB}, s61, v{VB}")
    A(f"v_bfe_u32 v{T}, v{lane}, 2, 4")
    A(f"v_lshlrev_b32 v{T}, 7, v{T}")
    A(f"v_and_b32 v{T+1}, 3, v{lane}")
    A(f"v_lshl_add_u32 v{T}, v{T+1}, 3, v{T}")
    A(f"v_bfe_u32 v{T+1}, v{lane}, 3, 2")
    for jj in range(4):
        A(f"v_xor_b32 v{T+2}, {jj}, v{T+1}")
        A(f"v_lshl_add_u32 v{VR+jj}, v{T+2}, 5, v{T}")
        A(f"v_add_u32 v{VR+4+jj}, 0x10000, v{VR+jj}")
        A(f"v_add_u32 v{VR+8+jj}, 0x20000, v{VR+jj}")
    A(f"v_lshlrev_b32 v{VSL}, 10, v{lane}")
    A(f"s_lshr_b32 s{S_SLOT}, s2, 3")
    A(f"s_lshl_b32 s{S_SLOT}, s{S_SLOT}, 2")
    A(f"s_add_u32 s{S_SLOT}, s{S_SLOT}, s{S_WV}")
    A(f"s_mul_i32 s{S_PS}, s{S_WV}, 12288")
    VFA, VP = 224, 226
    poll = f"buffer_load_dwordx2 v[{VP}:{VP+1}], v{VFA}, s[{SF}:{SF+3}], 0 offen offset:32 sc1"
    pchk = f"v_cmp_ne_u64 vcc, s[56:57], v[{VP}:{VP+1}]"
    if F:
        A(f"v_and_b32 v{VFA}, 3, v{lane}")
        A(f"v_lshlrev_b32 v{VFA}, 12, v{VFA}")
        A("s_and_b32 s60, s2, 0x1f")
        A("s_lshl_b32 s60, s60, 7")
        A(f"v_add_u32 v{VFA}, s60, v{VFA}")
        A(poll)
        A("s_waitcnt vmcnt(0)"); vm.drain()
        A("s_barrier")
        for j in range(8):
            for q in range(4): A(read(0, j, q >> 1, q & 1))
            lg.skip(("W", 0, j))
        A("s_mov_b32 s61, 0")
        A(pchk)
        A("s_cbranch_vccz L_p2_ready")
        A.label("L_p2_wait")
        A("s_sleep 1")
        A(poll)
        A("s_waitcnt vmcnt(0)")
        A("s_add_u32 s61, s61, 1")
        A("s_cmp_gt_u32 s61, 0x20000")
        A("s_cbranch_scc1 L_p2_ready")
        A(pchk)
        A("s_cbranch_vccnz L_p2_wait")
        A.label("L_p2_ready")
        st.mark(A)
        for s in range(PRO): emit_items(aloads(s))
        A(f"v_and_b32 v{VFA}, 3, v{lane}")
        A(f"v_lshlrev_b32 v{VFA}, 8, v{VFA}")
        A("s_lshl_b32 s60, s2, 7")
        A(f"v_xor_b32 v{VFA+1}, s60, v{VFA}")
        A(f"v_bfe_u32 v{T}, v{lane}, 2, 2")
        A(f"v_lshl_add_u32 v{VFA}, v{T}, 12, v{VFA}")
        A("s_and_b32 s60, s2, 0x19")
        A("s_or_b32 s60, s60, 0x80")
        A("s_lshl_b32 s60, s60, 7")
        A(f"v_add_u32 v{VFA}, s60, v{VFA}")
        A(f"v_cmp_gt_u32 vcc, 16, v{lane}")
        A("s_nop 1")
        A(f"v_cndmask_b32 v{VFA}, v{VFA+1}, v{VFA}, vcc")
        A("s_waitcnt lgkmcnt(0)")
    else:
        for s in range(1, PRO): emit_items(dmas(s) + aloads(s))
        n = vm.need([("D", 0)]); A(f"s_waitcnt vmcnt({n})")
        A("s_barrier")
        st.mark(A)
        for j in range(2):
            for q in range(4): A(read(0, j, q >> 1, q & 1)); lg.issue(("W", 0, j))
    S = Stream(vm, lg)
    first, last, fin = {}, {}, {}
    order = {}
    for s in range(NS):
        js = list(range(nj(s)))
        if s == N1 - 1: js = [4, 5, 6, 7, 0, 1, 2, 3]
        order[s] = js
    for s in range(NS):
        n = 0
        for k, j in enumerate(order[s]):
            ts = list(range(nt(s)))
            if k % 2: ts.reverse()
            for t in ts:
                kk = (0, 1) if n % 2 == 0 else (1, 0)
                for ks in kk:
                    c = vr(acc(t, j) if s < N1 else acc2(t, j), 4)
                    cin = "0" if (s in (0, N1) and ks == kk[0]) else c
                    idx = S.add_mfma(f"v_mfma_f32_16x16x32_bf16 {c}, {ar(wf(j, ks), 4)}, {ar(af(s, ks, t), 4)}, {cin}",
                                     [("lg", ("W", s, j)), ("vm", ("A", s))])
                    first.setdefault((s, j), idx); first.setdefault(s, idx); last[(s, j)] = idx
                fin[(s, t, j)] = idx
                n += 1
    first[NS] = len(S.mf)
    i = 0
    for j in range(2, 8):
        if F: break
        for q in range(4): i = S.place(i, "ds", read(0, j, q >> 1, q & 1), gives=("W", 0, j) if q == 3 else None) + 1
    for s in range(NS - 1):
        S.gaps[first[s] + 1].append(("barv", None, None, [("vm", ("D", s + 1))]))
        for j in order[s]:
            if j >= nj(s + 1): continue
            i = max(last[(s, j)], first[s] + 2)
            for q in (2, 3, 0, 1):
                i = S.place(i, "ds", read(s + 1, j, q >> 1, q & 1), gives=("W", s + 1, j) if q == 1 else None) + (2 if 0 < s < N1 - 1 else 1)
    cur = 0
    def spread(i0, i1, items):
        nonlocal cur
        i0 = max(i0, cur)
        nv = sum(1 for it in items if it[0].startswith("vm"))
        k = 0
        for kind, x, tg, *rest in items:
            lo = rest[0] if rest else 0
            tgt = max(cur, lo, i0 + (k * max(i1 - i0, 0)) // max(nv, 1))
            if kind == "m0": cur = S.place(max(cur, tgt - 1), "s", x, cap=9, spill=True) + 1
            elif kind == "s": cur = S.place(max(cur, lo), "s", x, cap=9, spill=True)
            elif kind == "chk": cur = S.place(max(cur, lo), "s", x, cap=9, spill=True, needs=[("vm", "POLL2")])
            else:
                t2 = tgt
                if t2 + 1 < len(S.mf) and S.used[t2] > S.used[t2 + 1] and i1 - i0 >= 3 * nv: t2 += 1
                cur = S.place(t2, kind, x, gives=tg, cap=9, spill=True); k += 1
    nd_, na_ = (par('p2d2', NH // 2) if F else PRO), PRO
    P2P = par('p2poll', 2)
    checked = not F
    RATE1, RATE2 = par("k2rate1", 15), par("k2rate2", 8)
    budget = 0
    RCV, XLD = N1 + par("k2rcv", 9), N1 + par("k2xld", 2)
    def send(d):
        a, b = d >> 1, d & 1
        q0 = quarter(a, b)
        lo = max(fin[(N1 - 1, t, j)] for t in (2 * a, 2 * a + 1) for j in range(4 * b, 4 * b + 4)) + 8
        o = [("s", f"s_mul_i32 s62, s2, 49152\ns_add_u32 s62, s62, s{S_PS}\ns_add_u32 s62, s62, {(d-1)*4096}", None, lo)]
        for q in range(4):
            for k in range(4): o.append(("s", f"v_cvt_pk_bf16_f32 v{q0+4*q+k}, v{q0+8*q+2*k}, v{q0+8*q+2*k+1}", None, lo + q * 3 + k // 2))
            o.append(("vmS", f"buffer_store_dwordx4 v[{q0+4*q}:{q0+4*q+3}], v{VL}, s[{SP}:{SP+3}], s62 offen offset:{q*1024} sc1", None, lo))
        return o
    def recv_ld(d):
        q0 = quarter(d >> 1, d & 1) + 16
        pre = f"s_xor_b32 s62, s2, {d << 1}\ns_mul_i32 s62, s62, 49152\ns_add_u32 s62, s62, s{S_PS}\ns_add_u32 s62, s62, {(d-1)*4096}"
        return [("s", pre, None)] + [("vmX", f"buffer_load_dwordx4 v[{q0+4*q}:{q0+4*q+3}], v{VL}, s[{SP}:{SP+3}], s62 offen offset:{q*1024} sc1", None) for q in range(4)]
    for s in range(NS):
        b, e = first[s] + 2, first[s + 1] + (1 if s + 1 < NS else 0)
        items = []
        for wh, f, n in k2slow:
            if wh == str(s): items += slowpf(int(f), int(n))
        if str(s) in PAR.get("cpf3", "").split(":"):
            CQ = 48 if F else 64
            items.append(("vmP", f"s_getpc_b64 s[{CQ}:{CQ+1}]\nL_k2_pc3_{s}:\ns_mov_b32 s{CQ+2}, L_k2_spin-L_k2_pc3_{s}\ns_mov_b32 s{CQ+3}, 0x20000\n"
                          f"s_lshl_b32 s61, s{S_SLOT}, 8\nv_lshlrev_b32 v{T+6}, 3, v{VL}\ns_mov_b64 exec, 3\n"
                          f"buffer_load_dword v{T+7}, v{T+6}, s[{CQ}:{CQ+3}], s61 offen\ns_mov_b64 exec, -1", None))
        if F and s == P2P: items.append(("vmX", poll, "POLL2"))
        if F and s == P2P + 2:
            items.append(("chk", pchk + "\ns_cbranch_vccnz L_p2_spin\nL_p2_back:", None)); checked = True
        budget = min(budget, 7) + (RATE1 if s < N1 else RATE2)
        if s == N1 - 1: budget = par("k2rateL", 8)
        while True:
            canD = nd_ < NS and cum(nd_ + 1) - NH <= cum(s)
            canA = na_ < NS and cum(na_ + 1) - NU <= cum(s) and (checked or na_ < N1)
            cd, ca = (4 if nd_ < N1 else 2), (8 if na_ < N1 else 4)
            if canD and (nd_ <= na_ or not canA) and cd <= budget: items += dmas(nd_); nd_ += 1; budget -= cd
            elif canA and ca <= budget: items += aloads(na_); na_ += 1; budget -= ca
            elif canD and cd <= budget: items += dmas(nd_); nd_ += 1; budget -= cd
            else: break
        if "verbose" in OPT: print("k2 step", s, "next D", nd_, "next A", na_, file=sys.stderr)
        if stamp and s in ((7, N1, N1 + 6) if F else (7, N1, N1 + 6, N1 + 13)):
            S.gaps[first[s] + 1].append(("s", st.text(), None, []))
        if s == N1 - 1:
            spread(b, first[(s, 0)], items); items = send(1) + send(3); b = cur
        if s == N1: items = send(2) + items
        if s == par("k2bld", 4):
            items.append(("vmX", f"buffer_load_dwordx4 v[{XT+16}:{XT+19}], v{VB}, s[{SB}:{SB+3}], 0 offen", None))
            items.append(("s", f"s_lshl_b32 s60, s{S_MT}, 7\ns_add_u32 s60, s60, {SD_RS:#x}\nv_lshlrev_b32 v{T+6}, 2, v{l16}", None))
            for t in range(2):
                items.append(("vmX", f"buffer_load_dword v{VRS+t}, v{T+6}, s[{SF}:{SF+3}], s60 offen offset:{64*t}{COH}", None))
        if s == XLD:
            for q in range(4):
                items.append(("s", f"s_mov_b32 s60, {q*8*2048:#x}", None))
                items.append(("vmX", f"buffer_load_dwordx4 v[{XT+4*q}:{XT+4*q+3}], v{VX}, s[{SX}:{SX+3}], s60 offen", None))
        for d, ds_ in ((1, 0), (3, 1), (2, 2)):
            if s == RCV + ds_: items += recv_ld(d)
        if items:
            cur = max(cur, b)
            spread(b, e, items)
    assert nd_ == NS and na_ == NS
    for x in S.emit("k2"): A(x)
    st.mark(A)
    eh = (half(NS - 1, 0) + 1) % NH
    while eh + 4 > NH: eh = 0
    assert all((eh + w) % NH not in (half(NS - 1, 0), half(NS - 2, 0)) for w in range(4))
    A(f"s_lshl_b32 s60, s{S_WV}, 13")
    A(f"s_add_u32 s60, s60, {eh*8192}")
    A(f"v_and_b32 v{T}, 7, v{l16}")
    A(f"v_xor_b32 v{T}, v{T}, v{g}")
    A(f"v_lshlrev_b32 v{T+1}, 8, v{l16}")
    A(f"v_add_u32 v{T+1}, s60, v{T+1}")
    A(f"v_lshl_add_u32 v{T+2}, v{T}, 4, v{T+1}")
    A(f"v_xor_b32 v{T}, 4, v{T}")
    A(f"v_lshl_add_u32 v{T+3}, v{T}, 4, v{T+1}")
    A(f"v_lshrrev_b32 v{T}, 3, v{lane}")
    A(f"v_and_b32 v{T+1}, 7, v{lane}")
    A(f"v_lshlrev_b32 v{T+1}, 1, v{T+1}")
    A(f"v_xor_b32 v{T+1}, v{T+1}, v{T}")
    A(f"v_lshlrev_b32 v{T}, 8, v{T}")
    A(f"v_add_u32 v{T}, s60, v{T}")
    A(f"v_lshl_add_u32 v{T+4}, v{T+1}, 4, v{T}")
    A(f"v_xor_b32 v{T+5}, 16, v{T+4}")
    A("s_mov_b32 s63, 0xffff0000")
    A("s_mov_b32 s61, 0")
    A.label("L_k2_back")
    A("s_waitcnt vmcnt(0)")
    rr = [quarter(d >> 1, d & 1) + 16 + k for d in (1, 2, 3) for k in range(16)]
    for h_ in range(2):
        A(f"v_max_u32 v{32+h_}, v{rr[24*h_]}, v{rr[24*h_+1]}")
    for k in range(2, 24, 2):
        for h_ in range(2): A(f"v_max3_u32 v{32+h_}, v{32+h_}, v{rr[24*h_+k]}, v{rr[24*h_+k+1]}")
    A("v_max_u32 v32, v32, v33")
    A("v_cmp_eq_u32 vcc, -1, v32")
    A("s_cbranch_vccnz L_k2_spin")
    A.label("L_k2_go")
    A(f"v_pk_mul_f32 v[{VRS}:{VRS+1}], v[{VRS}:{VRS+1}], v[{VRS}:{VRS+1}]")
    for i in range(4):
        A(f"v_lshlrev_b32 v{XT+20+2*i}, 16, v{XT+16+i}")
        A(f"v_and_b32 v{XT+21+2*i}, s63, v{XT+16+i}")
    for j in range(4):
        for t in range(2):
            c = acc(t, j)
            for n_, d in enumerate((1, 2, 3)):
                r0 = quarter(d >> 1, d & 1) + 16 + c // 2
                for k in range(2):
                    A(f"v_lshlrev_b32 v{32+4*n_+2*k}, 16, v{r0+k}")
                    A(f"v_and_b32 v{33+4*n_+2*k}, s63, v{r0+k}")
            for n_ in range(3):
                A(f"v_pk_add_f32 v[{c}:{c+1}], v[{c}:{c+1}], v[{32+4*n_}:{33+4*n_}]")
                A(f"v_pk_add_f32 v[{c+2}:{c+3}], v[{c+2}:{c+3}], v[{34+4*n_}:{35+4*n_}]")
            o = "op_sel_hi:[1,0,1]" if t == 0 else "op_sel:[0,1,0]"
            A(f"v_pk_fma_f32 v[{c}:{c+1}], v[{c}:{c+1}], v[{VRS}:{VRS+1}], v[{c+128}:{c+129}] {o}")
            A(f"v_pk_fma_f32 v[{c+2}:{c+3}], v[{c+2}:{c+3}], v[{VRS}:{VRS+1}], v[{c+130}:{c+131}] {o}")
            A(f"ds_write_b128 v{T+2+(j&1)}, v[{c}:{c+3}] offset:{t*4096 + (j>>1)*128}")
    A("s_waitcnt lgkmcnt(0)")
    for q in range(4):
        A(f"ds_read_b128 v[{32+8*q}:{35+8*q}], v{T+4} offset:{q*2048}")
        A(f"ds_read_b128 v[{36+8*q}:{39+8*q}], v{T+5} offset:{q*2048}")
    for q in range(4):
        for i in range(4):
            A(f"v_lshlrev_b32 v{2*i}, 16, v{XT+4*q+i}")
            A(f"v_and_b32 v{2*i+1}, s63, v{XT+4*q+i}")
        for i in range(4): A(f"v_pk_add_f32 v[{2*i}:{2*i+1}], v[{2*i}:{2*i+1}], v[{XT+20+2*i}:{XT+21+2*i}]")
        A(f"s_waitcnt lgkmcnt({6-2*q})")
        for i in range(4): A(f"v_pk_add_f32 v[{2*i}:{2*i+1}], v[{2*i}:{2*i+1}], v[{32+8*q+2*i}:{33+8*q+2*i}]")
        for i in range(4): A(f"v_cvt_pk_bf16_f32 v{8+4*q+i}, v{2*i}, v{2*i+1}")
        A(f"s_mov_b32 s60, {q*8*2048:#x}")
        A(f"buffer_store_dwordx4 v[{8+4*q}:{11+4*q}], v{VX}, s[{SO}:{SO+3}], s60 offen{PAR.get('outmod', ' sc1')}")
    st.flush(A, WSL, WSL + 1, 100, f"s{S_WV}")
    A.label("L_k2_end")
    A("s_endpgm")
    A.label("L_k2_spin")
    A("s_add_u32 s61, s61, 1")
    A("s_cmp_gt_u32 s61, 0x10000")
    A("s_cbranch_scc1 L_k2_go")
    A("s_sleep 2")
    for d in (1, 2, 3):
        for kind, x, tg in recv_ld(d): A(x)
    A("s_branch L_k2_back")
    if F:
        A.label("L_p2_spin")
        A("s_mov_b32 s61, 0")
        A.label("L_p2_spin1")
        A("s_sleep 4")
        A(poll)
        A("s_waitcnt vmcnt(0)")
        A("s_add_u32 s61, s61, 1")
        A("s_cmp_gt_u32 s61, 0x10000")
        A("s_cbranch_scc1 L_p2_back")
        A(pchk)
        A("s_cbranch_vccnz L_p2_spin1")
        A("s_branch L_p2_back")

def main():
    global STMOD
    ap = argparse.ArgumentParser()
    ap.add_argument("--stamp", action="store_true")
    ap.add_argument("-o", default=None)
    ap.add_argument("--opt", default="")
    ap.add_argument("--par", default="")
    ap.add_argument("--stmod", default="sc1")
    a = ap.parse_args()
    OPT.update(x for x in a.opt.split(",") if x)
    PAR.update(dict(x.split("=") for x in a.par.split(",") if x))
    STMOD = (" " + a.stmod.replace("+", " ")) if a.stmod else ""
    A = Asm()
    hdr = open("cdna_kernels/%s.s.ref" % NAME).read().split("\n")
    for line in hdr:
        if line.startswith(";") and "@launch" not in line and "Override" not in line and "grid=ceil" not in line:
            A.raw(line)
    F = "fuse" in OPT
    K1N = NAME + "_kernel" if (F and "aslist" not in OPT) else "gemm1_kernel"
    if F and "aslist" not in OPT: A.raw("; @launch grid=(256,1,1) block=(256,1,1) lds=163840")
    else: A.raw("; @launch kernel=gemm1_kernel grid=(256,1,1) block=(256,1,1) lds=163840")
    if not F: A.raw("; @launch kernel=gemm2_kernel grid=(256,1,1) block=(256,1,1) lds=%d" % (131072 if "k2old" in OPT else 163840))
    A.raw('.amdgcn_target "amdgcn-amd-amdhsa--gfx950"\n.text')
    gen_k1(A, K1N, a.stamp)
    (gen_k2 if "k2old" in OPT else gen_k2b)(A, "gemm2_kernel", a.stamp)
    if not any(o.startswith(('k1no', 'k2no')) for o in OPT): check_hazards(A.L)
    A.raw('.section .rodata,"a"')
    kernel_desc(A, K1N, 512, 256)
    if F: pass
    elif "k2old" in OPT: kernel_desc(A, "gemm2_kernel", 160 + 176, 160)
    else: kernel_desc(A, "gemm2_kernel", 224 + 256, 224)
    out = a.o or "cdna_kernels/%s.s" % NAME
    open(out, "w").write(A.text())

if __name__ == "__main__":
    main()
```

```python
import sys, argparse

NAME = "parallel_sum__sliding_local_dilated__dense_activation_squared_relu__prompt"

WS_A2 = 4 << 20
A2_BYTES = 2048 * 4608 * 2
WS_PART = 32 << 20
WS_SIDE = 48 << 20
SD_FLAG, SD_Q, SD_RS, SD_P = 0, 0x10000, 0x20000, 0x40000
SD_WF = SD_P + 416 * 1024
SD_BYTES = SD_WF + 1024 * 128
WS_STAMP = 64 << 20

OPT = set()
PAR = {}
def par(k, d): return int(PAR.get(k, d))

class Asm:
    def __init__(self): self.L = []
    def __call__(self, s):
        for line in s.split("\n"):
            t = line.strip()
            self.L.append(t if t.endswith(":") else "  " + t)
    def label(self, s): self.L.append(s + ":")
    def raw(self, s): self.L.append(s)
    def text(self): return "\n".join(self.L) + "\n"

def vr(b, n=1, f="v"): return f"{f}{b}" if n == 1 else f"{f}[{b}:{b+n-1}]"
def ar(b, n=1): return vr(b, n, "a")
def sq(b): return f"s[{b}:{b+3}]"

def kernel_head(A, name):
    A.raw(f".globl {name}\n.p2align 8\n.type {name},@function\n{name}:")

def kernel_desc(A, name, nvgpr, accum, nsgpr=102):
    A.raw(f".p2align 6\n.amdhsa_kernel {name}\n  .amdhsa_next_free_vgpr {nvgpr}\n  .amdhsa_next_free_sgpr {nsgpr}\n"
          f"  .amdhsa_accum_offset {accum}\n  .amdhsa_group_segment_fixed_size 0\n  .amdhsa_kernarg_size 88\n"
          f"  .amdhsa_user_sgpr_count 2\n  .amdhsa_user_sgpr_kernarg_segment_ptr 1\n  .amdhsa_system_sgpr_workgroup_id_x 1\n"
          f"  .amdhsa_float_denorm_mode_32 3\n.end_amdhsa_kernel")

def srd(A, d, lo, hi, nbytes, add=0):
    if add:
        A(f"s_add_u32 s{d}, s{lo}, {add:#x}")
        A(f"s_addc_u32 s{d+1}, s{hi}, 0")
    else:
        A(f"s_mov_b32 s{d}, s{lo}")
        A(f"s_mov_b32 s{d+1}, s{hi}")
    if nbytes is not None: A(f"s_mov_b32 s{d+2}, {nbytes:#x}")
    A(f"s_mov_b32 s{d+3}, 0x20000")

class Stamp:
    def __init__(self, on, kidx): self.on, self.kidx, self.n = on, kidx, 0
    def text(self):
        if not self.on: return None
        t = f"s_memrealtime s[{68+2*self.n}:{69+2*self.n}]\ns_memtime s[{84+2*self.n}:{85+2*self.n}]"
        self.n += 1
        assert self.n <= 8
        return t
    def mark(self, A):
        t = self.text()
        if t: A(t)
    def flush(self, A, ws_lo, ws_hi, vtmp, s_wave, vaddr=None):
        if not self.on: return
        self.mark(A)
        A("s_waitcnt lgkmcnt(0)")
        A(f"s_lshl_b32 s100, s2, 3")
        A(f"s_add_u32 s100, s100, {s_wave}")
        A(f"s_lshl_b32 s100, s100, 6")
        srd(A, 8, ws_lo, ws_hi, 0x100000, WS_STAMP + self.kidx * 0x40000)
        for i in range(16):
            A(f"v_mov_b32 v{vtmp+i}, s{68+2*i}" if i % 8 < self.n else f"v_mov_b32 v{vtmp+i}, 0")
        if vaddr is None: vaddr = vtmp + 16
        A(f"v_mov_b32 v{vaddr}, s100")
        A("s_mov_b64 exec, 1")
        for q in range(4):
            A(f"buffer_store_dwordx4 v[{vtmp+4*q}:{vtmp+4*q+3}], v{vaddr}, s[8:11], 0 offen offset:{16*q}")

class Score:
    def __init__(self, maxn):
        self.n = 0; self.idx = {}; self.done = 0; self.maxn = maxn
    def issue(self, tag=None):
        self.n += 1
        if tag is not None: self.idx[tag] = self.n
        assert self.n - self.done <= 63 or self.maxn == 15, "too many outstanding"
    def need(self, tags, slack=None):
        y = max(self.idx[t] for t in tags)
        if y <= self.done: return None
        N = self.n - y
        if slack is not None: N = min(N, slack)
        N = min(N, self.maxn)
        self.done = self.n - N
        return N
    def drain(self): self.done = self.n
    def skip(self, tag=None):
        if tag is not None: self.idx[tag] = 0

LG_SLACK = 8
class Stream:
    def __init__(self, vm, lg):
        self.mf = []; self.gaps = []; self.used = []; self.vm, self.lg = vm, lg
    def add_mfma(self, text, needs=()):
        self.mf.append((text, list(needs))); self.gaps.append([]); self.used.append(0)
        return len(self.mf) - 1
    def place(self, i0, kind, text, gives=None, needs=(), cap=1, spill=False):
        i = i0
        while i < len(self.mf) and self.used[i] >= cap: i += 1
        if i >= len(self.mf):
            assert spill, "no free gap"
            i = len(self.mf) - 1
        self.used[i] += 1
        self.gaps[i].append((kind, text, gives, list(needs)))
        return i
    def waits(self, needs, out, lgz=False):
        w = []
        lt = [t for c, t in needs if c == "lg"]; vt = [t for c, t in needs if c == "vm"]
        if lgz:
            if self.lg.done < self.lg.n: w.append("lgkmcnt(0)")
            self.lg.drain()
        elif lt:
            n = self.lg.need(lt, slack=LG_SLACK)
            if n is not None: w.append(f"lgkmcnt({n})")
        if vt:
            n = self.vm.need(vt)
            if n is not None: w.append(f"vmcnt({n})")
        if w: out.append("s_waitcnt " + " ".join(w))
    def emit(self, pfx):
        out = []
        for (text, needs), gap in zip(self.mf, self.gaps):
            self.waits(needs, out)
            if pfx + "nomfma" not in OPT: out.append(text)
            for kind, t, gives, nd in gap:
                if kind == "ds" and pfx + "nords" in OPT: self.lg.skip(gives); continue
                if kind == "vmA" and pfx + "noA" in OPT: self.vm.skip(gives); continue
                if kind == "vmD" and pfx + "noD" in OPT: self.vm.skip(gives); continue
                if kind == "mark":
                    self.waits(nd, out); out.append(t); self.vm.idx[gives] = self.vm.n + 1
                    continue
                if kind in ("bar", "barv"):
                    self.waits(nd, out, lgz=(kind == "bar"))
                    out.append("s_barrier")
                    continue
                self.waits(nd, out)
                if kind == "ds": self.lg.issue(gives)
                if kind.startswith("vm"):
                    if self.vm.n - self.vm.done >= 52:
                        out.append("s_waitcnt vmcnt(40)"); self.vm.done = self.vm.n - 40
                    self.vm.issue(gives)
                out.append(t)
        return out

def check_hazards(lines):
    import re
    def regs(tok):
        tok = tok.strip().strip("|").lstrip("-")
        m = re.fullmatch(r"([va])(\d+)", tok)
        if m: return {(m.group(1), int(m.group(2)))}
        m = re.fullmatch(r"([va])\[(\d+):(\d+)\]", tok)
        if m: return {(m.group(1), i) for i in range(int(m.group(2)), int(m.group(3)) + 1)}
        return set()
    hist = []
    pos = 0
    for ln in lines:
        t = ln.strip()
        if not t or t.endswith(":") or t.startswith(";") or t.startswith("."): continue
        mn = t.split()[0]
        ops = [o.split()[0] if o.split() else o for o in t[len(mn):].split(",")]
        R = [regs(o) for o in ops]
        if mn == "s_nop":
            pos += int(ops[0]) + 1; continue
        is_mfma = mn.startswith("v_mfma"); is_valu = mn.startswith("v_") and not is_mfma
        is_mem = mn.startswith("buffer_") or mn.startswith("ds_")
        if is_mfma or is_valu or is_mem:
            allr = set().union(*R) if R else set()
            for kind, wr, sc, p in hist[-24:]:
                d = pos - p - 1
                if kind == "mfma":
                    if is_mfma:
                        if (R[1] | R[2]) & wr and d < 8: raise Exception(f"hazard MFMA->MFMA AB: {t}")
                        if R[3] & wr and R[3] != wr and d < 6: raise Exception(f"hazard MFMA->MFMA C overlap: {t}")
                    else:
                        if allr & wr and d < 8: raise Exception(f"hazard MFMA->{mn} d={d}: {t}")
                        if is_valu and R[0] & sc and d < 3: raise Exception(f"hazard MFMA srcC WAR: {t}")
                elif kind == "valu":
                    if is_mfma and (R[1] | R[2] | R[3]) & wr and d < 2: raise Exception(f"hazard VALU->MFMA: {t}")
                    if is_valu and ("dpp" in mn or "permlane" in mn) and allr & wr and d < 2: raise Exception(f"hazard VALU->DPP: {t}")
                    if mn.startswith("v_readfirstlane") and R[1] & wr and d < 1: raise Exception(f"hazard VALU->readlane: {t}")
                elif kind == "trans":
                    if is_mfma and (R[1] | R[2] | R[3]) & wr and d < 2: raise Exception(f"hazard VALU->MFMA: {t}")
                    if is_valu and set().union(*R[1:]) & wr and d < 1: raise Exception(f"hazard trans->VALU: {t}")
                elif kind == "store":
                    if is_valu and R[0] & wr and d < 2: raise Exception(f"hazard store data WAR: {t}")
            if is_mfma: hist.append(("mfma", R[0], R[3], pos))
            elif is_valu:
                wr = set(R[0])
                if "swap" in mn: wr |= R[1]
                tr = any(mn.startswith(x) for x in ("v_exp", "v_rcp", "v_rsq", "v_sqrt", "v_log"))
                hist.append(("trans" if tr else "valu", wr, set(), pos))
            elif mn.startswith("buffer_store_dwordx4"): hist.append(("store", R[0], set(), pos))
        pos += 1

RING0 = 2048
S_SRDA, S_SRDW, S_SRDO, S_SRDS, S_SRDB, S_SRDC, S_SRDP, S_SRDT = 4, 8, 12, 16, 28, 32, 36, 40
S_C, S_SOFW, S_SOFW2, S_M0B, S_M0A, S_W, S_MB, S_NT = 20, 21, 22, 23, 24, 25, 26, 27
S_CF, S_CHF = 44, 45
S_X0 = 46
S_CODE = 48
S_AROW = 62
V_AD, V_AR, V_L16, V_D, V_R, V_RH, V_T = 224, 226, 228, 229, 232, 240, 244
A_CS, A_P, A_Q, A_SEL, A_DUM, A_RAW, A_ONE = 136, 136, 200, 220, 224, 228, 244
A_TAG, A_NEG = 226, 248

RSQ, RSK = 212, 216

class K1Var:
    def __init__(self, kind):
        self.kind = kind
        if kind == "w1": self.NJ, self.NT, self.CH, self.pitch = 14, 4, 7168, 7168
        else: self.NJ, self.NT, self.CH, self.pitch = 12, 5, 6144, 6144
        self.SL = 4 * self.CH
        self.ASL = self.NT * 2048
        self.ABASE = RING0 + 3 * self.SL
        self.AA = 56
        self.TMK = par("tmk", 4) if kind == "w1" else 0
        U = [(s, j) for s in range(14) for j in range(self.NJ)]
        if self.TMK:
            U += [(14, j) for j in range(self.TMK)]
            for j in range(self.NJ):
                U.append((15, j))
                if j + self.TMK < self.NJ: U.append((14, j + self.TMK))
        else: U += [(s, j) for s in (14, 15) for j in range(self.NJ)]
        self.U = U
        self.slot = {u: n % (self.NJ // 2) for n, u in enumerate(U)}
    def wfrag(self, s, j, ks): return self.slot[(s, j)] * 8 + ks * 4
    def afrag(self, st, ks, t): return self.AA + ((st * 2 + ks) * self.NT + t) * 4
    def acc(self, t, j):
        if t < 4: return (j * 4 + t) * 4
        return 192 + (0 if j == 4 else 4)
    def groups(self):
        return [(j, [0, 1, 2, 3] + ([4] if self.kind == "qkv" and j in (4, 8) else [])) for j in range(self.NJ)]
    def mm(self, t, j, w, x, zero=False):
        c = vr(self.acc(t, j), 4)
        cin = "0" if zero else c
        if self.kind == "qkv" and j >= 8: w, x = x, w
        return f"v_mfma_f32_16x16x32_bf16 {c}, {w}, {x}, {cin}"
    def mfma(self, s, ks, t, j, zero=False):
        return self.mm(t, j, ar(self.wfrag(s, j, ks), 4), ar(self.afrag(s % 2, ks, t), 4), zero)
    def corr(self, t, j): return self.mm(t, j, ar(A_P + 4 * j, 4), ar(A_Q + 4 * t, 4))
    def read(self, s, ks, j, p):
        st, so = divmod(s % 3, 2)
        base = RING0 + so * self.SL + ks * 2 * self.CH
        d = ar(self.wfrag(s, j, ks) + 2 * p, 2)
        if j < 12:
            b, jj = divmod(j, 4)
            return f"ds_read_b64_tr_b16 {d}, v{V_R + st*4 + jj} offset:{base + b*1024 + p*512}"
        return f"ds_read_b64_tr_b16 {d}, v{V_RH + st*2 + (j-12)} offset:{base + p*256}"
    def aread(self, s, ks, t):
        return f"ds_read_b128 {ar(self.afrag(s % 2, ks, t), 4)}, v{V_AR+ks} offset:{(s % 2)*self.ASL + t*2048}"
    def admas(self, s, t):
        out = []
        for u in range(2):
            tgt = (s % 2) * self.ASL + t * 2048 + u * 1024
            out.append((f"s_add_u32 m0, s{S_M0A}, {tgt + 2048 - s*128:#x}",
                        f"buffer_load_dwordx4 v{V_AD+u}, {sq(S_SRDA)}, s{S_AROW+t} offen offset:{s*128} lds"))
        return out
    def dmas(self, s):
        out = []
        base = RING0 + (s % 3) * self.SL
        W = sq(S_SRDW)
        for rg in range(2):
            for b in range(3):
                tgt = base + rg * 3072 + b * 1024
                if self.kind == "w1": imm, so = b * 128, S_SOFW
                else: imm, so = (b * 2048, S_SOFW) if b < 2 else (0, S_SOFW2)
                out.append((f"s_add_u32 m0, s{S_M0B}, {tgt - imm:#x}",
                            f"buffer_load_dwordx4 v{V_D+rg}, {W}, s{so} offen offset:{imm} lds"))
        if self.kind == "w1":
            out.append((f"s_add_u32 m0, s{S_M0B}, {base + 6144:#x}",
                        f"buffer_load_dwordx4 v{V_D+2}, {W}, s{S_SOFW} offen lds"))
        return out
    def sof_adv(self):
        r = [f"s_add_u32 s{S_SOFW}, s{S_SOFW}, {64*self.pitch:#x}"]
        if self.kind == "qkv": r.append(f"s_add_u32 s{S_SOFW2}, s{S_SOFW2}, {64*self.pitch:#x}")
        return r

def k1_variant(A1, A2_, V, stamp):
    A = A1
    kind = V.kind
    st = Stamp(stamp, 1); st.n = 1
    NS, H, CH = 16, V.NJ // 2, V.CH
    lane, l16, g = 100, 101, 102
    T = 104
    X = S_X0
    if kind == "w1":
        A(f"s_lshr_b32 s{X}, s{S_NT}, 2")
        A(f"s_mul_i32 s{X}, s{X}, 1792")
        A(f"s_and_b32 s{X+1}, s{S_NT}, 3")
        A(f"s_mul_i32 s{X+2}, s{X+1}, 384")
        A(f"s_add_u32 s{S_CF}, s{X}, s{X+2}")
        A(f"s_lshl_b32 s{X+2}, s{X+1}, 6")
        A(f"s_add_u32 s{S_CHF}, s{X}, s{X+2}")
        A(f"s_add_u32 s{S_CHF}, s{S_CHF}, 1536")
        A(f"s_bfe_u32 s{X+1}, s2, 0x10002")
        A(f"s_lshl_b32 s{X+1}, s{X+1}, 16")
        for t in range(4): A(f"s_xor_b32 s{S_AROW+t}, s{S_AROW+t}, s{X+1}")
    else:
        A(f"s_lshl_b32 s{S_CF}, s{S_NT}, 7")
    r, pc, x, y = T, T + 1, T + 2, T + 3
    A(f"v_lshrrev_b32 v{r}, 3, v{lane}")
    A(f"v_bfe_u32 v{x}, v{lane}, 1, 2")
    A(f"v_bfe_u32 v{y}, v{lane}, 4, 1")
    A(f"v_xor_b32 v{x}, v{x}, v{y}")
    A(f"v_and_b32 v{pc}, 1, v{lane}")
    A(f"v_mul_u32_u24 v{r}, {V.pitch}, v{r}")
    A(f"v_lshl_add_u32 v{y}, v{pc}, 4, v{r}")
    A(f"s_mul_i32 s{X+3}, s{S_W}, {16*V.pitch}")
    A(f"s_add_u32 s{X+4}, s{X+3}, s{S_CF}")
    A(f"v_lshl_add_u32 v{V_D}, v{x}, 5, v{y}")
    A(f"v_add_u32 v{V_D}, s{X+4}, v{V_D}")
    A(f"v_xor_b32 v{x}, 2, v{x}")
    A(f"v_lshl_add_u32 v{V_D+1}, v{x}, 5, v{y}")
    A(f"s_add_u32 s{X+4}, s{X+4}, {8*V.pitch}")
    A(f"v_add_u32 v{V_D+1}, s{X+4}, v{V_D+1}")
    if kind == "w1":
        A(f"v_lshrrev_b32 v{T+4}, 2, v{lane}")
        A(f"v_mul_u32_u24 v{T+4}, {V.pitch}, v{T+4}")
        A(f"v_bfe_u32 v{T+5}, v{lane}, 1, 1")
        A(f"v_bfe_u32 v{T+6}, v{lane}, 5, 1")
        A(f"v_xor_b32 v{T+5}, v{T+5}, v{T+6}")
        A(f"v_lshl_add_u32 v{T+4}, v{T+5}, 5, v{T+4}")
        A(f"v_lshl_add_u32 v{T+4}, v{pc}, 4, v{T+4}")
        A(f"s_add_u32 s{X+4}, s{X+3}, s{S_CHF}")
        A(f"v_add_u32 v{V_D+2}, s{X+4}, v{T+4}")
    A(f"s_mul_i32 s{S_M0B}, s{S_W}, {CH}")
    A(f"s_mul_i32 s{S_M0A}, s{S_W}, {2*V.ASL}")
    A(f"s_add_u32 s{S_M0A}, s{S_M0A}, {V.ABASE - 2048}")
    VPW, VPX = V_T + 4, V_T + 5
    rounds = [x.split(":") for x in PAR.get("k1r", "p:0:4").split("+") if x]
    if rounds:
        A(f"v_lshlrev_b32 v{VPW}, 7, v{lane}")
        A(f"v_lshrrev_b32 v{VPX}, 1, v{lane}")
        A(f"v_lshlrev_b32 v{VPX}, 7, v{VPX}")
        A(f"v_lshl_add_u32 v{VPX}, v{pc}, 11, v{VPX}")
        A(f"s_and_b32 s{S_C}, s2, 127")
        A(f"s_lshl_b32 s{S_C}, s{S_C}, 2")
        A(f"s_add_u32 s{S_C}, s{S_C}, s{S_W}")
    def pfr(s0, n):
        nl = V.pitch // 128 * n // 8
        def ex(k):
            v = (1 << k) - 1
            return f"s_mov_b32 exec_lo, {v & 0xffffffff:#x}\ns_mov_b32 exec_hi, {v >> 32:#x}\n"
        w_ = (f"s_mul_i32 s3, s{S_C}, {nl*128}\ns_add_u32 s3, s3, {64*s0*V.pitch:#x}\n" + ex(nl) +
              f"buffer_load_dword a{A_DUM}, v{VPW}, {sq(S_SRDW)}, s3 offen\ns_mov_b64 exec, -1")
        x_ = ex(2 * n) + f"buffer_load_dword a{A_DUM}, v{VPX}, {sq(S_SRDA)}, s67 offen offset:{s0*128}\ns_mov_b64 exec, -1"
        return [w_, x_]
    VSL, VSX = 200, 201
    slow = [x.split(":") for x in PAR.get("k1slow" if kind == "qkv" else "k1sloww", "p:0:4+r:4:12+6:10:6" if kind == "qkv" else "").split("+") if x]
    slowx = PAR.get("k1slowx", "")
    S_SLOT = 55
    LPR = 4 if kind == "qkv" else 2
    if slow:
        A(f"v_lshrrev_b32 v{VSL}, {2 if kind == 'qkv' else 1}, v{lane}")
        A(f"v_mul_u32_u24 v{VSL}, {V.pitch}, v{VSL}")
        A(f"s_bfe_u32 s{X+5}, s2, 0x20001")
        if kind == "qkv":
            A(f"v_and_b32 v{T+4}, 3, v{lane}")
            A(f"v_min_u32 v{T+4}, 2, v{T+4}")
            A(f"v_lshl_add_u32 v{VSL}, v{T+4}, 11, v{VSL}")
            A(f"s_lshl_b32 s{X+5}, s{X+5}, 9")
            A(f"s_add_u32 s{X+5}, s{X+5}, 384")
            A(f"s_bitcmp1_b32 s2, 1")
            A(f"s_cselect_b32 s{X+5}, 0x7000000, s{X+5}")
        else:
            A(f"v_lshl_add_u32 v{VSL}, v{pc}, 10, v{VSL}")
            A(f"s_lshl_b32 s{X+5}, s{X+5}, 11")
            A(f"s_min_u32 s{X+5}, s{X+5}, 5120")
            A(f"s_add_u32 s{X+5}, s{X+5}, 384")
        A(f"v_add_u32 v{VSL}, s{X+5}, v{VSL}")
        A(f"s_bfe_u32 s{S_SLOT}, s2, 0x40003")
        A(f"s_lshl_b32 s{S_SLOT}, s{S_SLOT}, 2")
        A(f"s_add_u32 s{S_SLOT}, s{S_SLOT}, s{S_W}")
    if slowx:
        A(f"v_lshlrev_b32 v{VSX}, 10, v{lane}")
        A(f"s_lshr_b32 s{X+5}, s2, 3")
        A(f"s_lshl_b32 s{X+5}, s{X+5}, 2")
        A(f"s_add_u32 s{X+5}, s{X+5}, s{S_W}")
        A(f"s_lshl_b32 s{X+5}, s{X+5}, 14")
        A(f"s_and_b32 s{X+6}, s2, 1")
        A(f"s_lshl_b32 s{X+6}, s{X+6}, 21")
        A(f"s_add_u32 s{X+5}, s{X+5}, s{X+6}")
        A(f"v_add_u32 v{VSX}, s{X+5}, v{VSX}")
    def slowpf(s0, n):
        v = (1 << (LPR * n)) - 1
        return (f"s_mul_i32 s3, s{S_SLOT}, {n*V.pitch}\ns_add_u32 s3, s3, {64*s0*V.pitch:#x}\n"
                f"s_mov_b32 exec_lo, {v & 0xffffffff:#x}\ns_mov_b32 exec_hi, {v >> 32:#x}\n"
                f"buffer_load_dword a{A_DUM}, v{VSL}, {sq(S_SRDW)}, s3 offen\ns_mov_b64 exec, -1")
    def pro_R(where):
        for wh, s0, n in slow:
            if wh == where: A1(slowpf(int(s0), int(n))); vm.issue()
        if slowx == where:
            A1(f"s_mov_b64 exec, 0xffff\nbuffer_load_dword a{A_DUM}, v{VSX}, {sq(S_SRDA)}, 0 offen offset:384\ns_mov_b64 exec, -1"); vm.issue()
        for wh, s0, n in rounds:
            if wh == where:
                for b_ in pfr(int(s0), int(n)): A1(b_); vm.issue()
    A("s_waitcnt lgkmcnt(0)")
    if "promarks" in OPT: st.mark(A)
    A(f"s_mov_b32 s{S_SRDA+2}, {4 << 20:#x}"); A(f"s_mov_b32 s{S_SRDA+3}, 0x20000")
    if kind == "w1": srd(A, S_SRDW, 56, 57, 1024 * 7168)
    else: srd(A, S_SRDW, 60, 61, 1024 * 6144)
    vm, lg = Score(63), Score(15)
    def pro_A(s):
        for t in range(V.NT):
            for u, (m0, d) in enumerate(V.admas(s, t)):
                A1(m0); A1("s_nop 0"); A1(d); vm.issue(("A", s, t) if u == 1 else None)
    def pro_W(s):
        dm = V.dmas(s)
        for n, (m0, d) in enumerate(dm):
            A1(m0); A1("s_nop 0"); A1(d); vm.issue(("D", s) if n == len(dm) - 1 else None)
        for x_ in V.sof_adv(): A1(x_)
    if kind == "w1":
        A(f"s_or_b32 s3, s2, s{S_W}")
        A("s_cmp_lg_u32 s3, 0")
        A("s_cbranch_scc1 L_k1_notag")
        srd(A, S_SRDC, 12, 13, 8)
        A("s_or_b32 s18, s18, 1")
        A(f"v_mov_b32 v{T+4}, s18"); A(f"v_mov_b32 v{T+5}, s19")
        A(f"buffer_store_dwordx2 v[{T+4}:{T+5}], v{V_L16}, {sq(S_SRDC)}, 0 offen sc1")
        A.label("L_k1_notag")
    pro_R("p")
    pro_W(0); pro_A(0)
    pro_R("q")
    if "promarks" in OPT: st.mark(A)
    if "late1" not in OPT: pro_W(1); pro_A(1)
    else: pro_W(1)
    pro_R("r")
    if "promarks" in OPT: st.mark(A)
    A(f"s_branch L_k1_main_{kind}")
    A = A2_
    A.label(f"L_k1_main_{kind}")
    WSL, WSH = 14, 15
    A(f"s_mov_b32 s100, s{WSL}"); A(f"s_mov_b32 s101, s{WSH}")
    srd(A, S_SRDC, 12, 13, 8)
    srd(A, S_SRDT, 100, 101, None, WS_SIDE + SD_FLAG)
    A(f"s_cmp_eq_u32 s{S_W}, 0")
    A(f"s_cselect_b32 s{S_SRDT+2}, 0x8000, 0")
    srd(A, S_SRDS, 100, 101, SD_BYTES, WS_SIDE)
    srd(A, S_SRDO, 100, 101, A2_BYTES, WS_A2)
    if kind == "w1":
        srd(A, S_SRDB, 58, 59, None)
        A(f"s_cmp_eq_u32 s{S_MB}, 0")
        A(f"s_cselect_b32 s{S_SRDB+2}, 7168, 0")
    A("s_mov_b32 s58, s100"); A("s_mov_b32 s59, s101")
    A(f"s_mov_b32 s101, s36"); A(f"s_mov_b32 s{S_C}, s37")
    A(f"s_mov_b32 s{S_SRDP}, s38"); A(f"s_mov_b32 s{S_SRDP+1}, s39")
    A(f"s_mov_b32 s{S_SRDP+2}, {1024*2048:#x}")
    A(f"s_mov_b32 s{S_SRDP+3}, 0x20000")
    A(f"s_lshl_b32 s100, s2, 2")
    A(f"s_add_u32 s100, s100, s{S_W}")
    VCA, VCS, VB1, VDC, VW = V_T, V_T + 1, V_T + 2, V_T + 4, V_T + 8
    A(f"v_and_b32 v{T+4}, 7, v{lane}")
    A(f"v_lshl_add_u32 v{VCA}, v{T+4}, 4, v{r}")
    if kind == "w1":
        A(f"s_lshl_b32 s{X+5}, s{S_W}, 7")
        A(f"s_add_u32 s{X+5}, s{X+5}, s{S_CF}")
        A(f"s_cmp_eq_u32 s{S_W}, 3")
        A(f"s_cselect_b32 s{X+5}, s{S_CHF}, s{X+5}")
        A(f"v_lshlrev_b32 v{VB1}, 4, v{T+4}")
        A(f"v_lshl_add_u32 v{VB1}, v{g}, 3, v{VB1}")
        A(f"v_add_u32 v{VB1}, s{X+5}, v{VB1}")
        A(f"s_lshr_b32 s{X+6}, s{X+5}, 5")
        A(f"s_add_u32 s{X+6}, s{X+6}, 192")
    else:
        A(f"s_min_u32 s{X+5}, s{S_W}, 2")
        A(f"s_lshl_b32 s{X+5}, s{X+5}, 11")
        A(f"s_add_u32 s{X+5}, s{X+5}, s{S_CF}")
        A(f"v_mov_b32 v{VB1}, 0"); A(f"v_mov_b32 v{VB1+1}, 0"); vm.skip("B1")
        A(f"s_lshr_b32 s{X+6}, s{X+5}, 5")
    A(f"s_and_b32 s{X+7}, s{S_MB}, 3")
    A(f"s_lshl_b32 s{X+7}, s{X+7}, 1")
    A(f"s_lshr_b32 s3, s{S_MB}, 2")
    A(f"s_add_u32 s{X+7}, s{X+7}, s3")
    A(f"s_mul_i32 s{X+7}, s{X+7}, {128*V.pitch:#x}")
    A(f"s_add_u32 s{X+7}, s{X+7}, s{X+5}")
    S_CSL, S_CSS = X + 7, X + 6
    A(f"s_lshl_b32 s{S_CSS}, s{S_CSS}, 10")
    A(f"s_lshr_b32 s{X+5}, s{S_MB}, 1")
    A(f"s_lshl_b32 s{X+5}, s{X+5}, 8")
    A(f"s_add_u32 s{S_CSS}, s{S_CSS}, s{X+5}")
    A(f"s_and_b32 s{X+5}, s{S_MB}, 1")
    A(f"s_lshl_b32 s{X+5}, s{X+5}, 3")
    A(f"s_add_u32 s{S_CSS}, s{S_CSS}, s{X+5}")
    A(f"s_add_u32 s{S_CSS}, s{S_CSS}, {SD_P:#x}")
    A(f"v_lshrrev_b32 v{T+5}, 1, v{T+4}")
    A(f"v_lshlrev_b32 v{VCS}, 10, v{T+5}")
    A(f"v_lshl_add_u32 v{VCS}, v{pc}, 7, v{VCS}")
    A(f"v_lshl_add_u32 v{VCS}, v{g}, 6, v{VCS}")
    if kind == "w1":
        A(f"s_cmp_eq_u32 s{S_W}, 3")
        A(f"s_cselect_b32 s{X+5}, 0x2c, 0x28")
    else:
        A(f"s_mov_b32 s{X+5}, 0x28")
    A(f"v_and_b32 v{T+5}, s{X+5}, v{lane}")
    A(f"v_lshl_add_u32 v{VCS}, v{T+5}, 24, v{VCS}")
    A(f"v_lshlrev_b32 v{T+5}, 4, v{pc}")
    A(f"v_mov_b32 v{T+6}, 0x3f80")
    A(f"v_lshlrev_b32 v{T+6}, v{T+5}, v{T+6}")
    A(f"v_lshrrev_b32 v{T+5}, 1, v{l16}")
    for q in range(4):
        A(f"v_cmp_eq_u32 vcc, {q}, v{T+5}")
        A("s_nop 1")
        A(f"v_cndmask_b32 v{T+7}, 0, v{T+6}, vcc")
        A(f"v_accvgpr_write_b32 a{A_SEL+q}, v{T+7}")
    A(f"v_xor_b32 v{T+4}, v{T+5}, v{g}")
    A(f"v_lshlrev_b32 v{T+5}, 7, v{l16}")
    A(f"v_add_u32 v{T+5}, s{S_M0A}, v{T+5}")
    A(f"v_add_u32 v{T+5}, 2048, v{T+5}")
    A(f"v_lshl_add_u32 v{V_AR}, v{T+4}, 4, v{T+5}")
    A(f"v_xor_b32 v{T+4}, 4, v{T+4}")
    A(f"v_lshl_add_u32 v{V_AR+1}, v{T+4}, 4, v{T+5}")
    rp, c, sw, b = T + 4, T + 5, T + 6, T + 7
    A(f"v_bfe_u32 v{rp}, v{lane}, 2, 2")
    A(f"v_and_b32 v{c}, 3, v{lane}")
    A(f"v_bfe_u32 v{sw}, v{lane}, 3, 2")
    if kind == "qkv": A(f"v_xor_b32 v{sw}, s{S_W}, v{sw}")
    A(f"v_lshrrev_b32 v{b}, 5, v{lane}")
    A(f"v_mul_u32_u24 v{b}, {CH}, v{b}")
    A(f"v_lshl_add_u32 v{b}, v{c}, 3, v{b}")
    A(f"v_bfe_u32 v{T+8}, v{lane}, 4, 1")
    A(f"v_mul_u32_u24 v{T+9}, 3072, v{T+8}")
    A(f"v_lshl_add_u32 v{T+9}, v{rp}, 7, v{T+9}")
    A(f"v_add_u32 v{T+9}, v{T+9}, v{b}")
    for jj in range(4):
        A(f"v_xor_b32 v{T+10}, {jj}, v{sw}")
        A(f"v_lshl_add_u32 v{V_R+jj}, v{T+10}, 5, v{T+9}")
        A(f"v_add_u32 v{V_R+4+jj}, {2*V.SL}, v{V_R+jj}")
    if kind == "w1":
        A(f"v_lshl_add_u32 v{T+9}, v{T+8}, 3, v{rp}")
        A(f"v_lshl_add_u32 v{T+9}, v{T+9}, 6, v{b}")
        A(f"v_add_u32 v{T+9}, 6144, v{T+9}")
        for jj in range(2):
            A(f"v_xor_b32 v{T+10}, {jj}, v{T+8}")
            A(f"v_lshl_add_u32 v{V_RH+jj}, v{T+10}, 5, v{T+9}")
            A(f"v_add_u32 v{V_RH+2+jj}, {2*V.SL}, v{V_RH+jj}")
    S_HI = X + 8
    A(f"s_mov_b32 s{S_HI}, 0xffff0000")
    A(f"v_mov_b32 v{T+4}, 0x3f803f80")
    for q in range(4): A(f"v_accvgpr_write_b32 a{A_ONE+q}, v{T+4}")
    A(f"v_cmp_eq_u32 vcc, 1, v{pc}")
    if "promarks" in OPT: st.mark(A)
    n = vm.need([("D", 0), ("A", 0, V.NT - 1)])
    A(f"s_waitcnt vmcnt({n})")
    if "promarks" in OPT: st.mark(A)
    A("s_barrier")
    st.mark(A)
    for ks in range(2): A(V.aread(0, ks, 0)); lg.issue(("AF", 0, 0))
    for q in range(4): A(V.read(0, q >> 1, 0, q & 1)); lg.issue(("W", 0, 0))
    for t in range(1, V.NT):
        for ks in range(2): A(V.aread(0, ks, t)); lg.issue(("AF", 0, t))
    S = Stream(vm, lg)
    groups = V.groups()
    first, last, fin = {}, {}, {}
    tsof = dict(groups)
    n = 0
    for un, (s, j) in enumerate(V.U):
        ts = list(tsof[j]) if un % 2 == 0 else list(reversed(tsof[j]))
        if 4 in ts: ts = [4, 0, 1, 2, 3]
        if j == 0 and s < 15: n = 0
        for t in ts:
            kk = (0, 1) if n % 2 == 0 else (1, 0)
            for ks in kk:
                needs = [("lg", ("W", s, j)), ("lg", ("AF", s, t))]
                idx = S.add_mfma(V.mfma(s, ks, t, j, zero=(s == 0 and ks == kk[0])), needs)
                first.setdefault((s, j), idx); last[(s, j)] = idx
                if s == NS - 1 and ks == kk[0]:
                    S.add_mfma(V.corr(t, j), [("vm", ("P", j)), ("vm", ("Q", t))])
            if s == NS - 1: fin[(t, j)] = idx
            n += 1
    i = 0
    for j in range(1, H):
        for q in range(4):
            i = S.place(i, "ds", V.read(0, q >> 1, j, q & 1), gives=("W", 0, j) if q == 3 else None) + 1
    bar = {}
    TM = V.TMK > 0
    SIG0, SIG = par("k1sig0", 5), par("k1sig", 8)
    POLL, CHK = (par("k1pollm", 11), par("k1chkm", 12)) if TM else (par("k1poll", 12), par("k1chk", 13))
    for s in range(NS - 1):
        u0 = V.U.index((s + 1, 0))
        bar[s] = last[V.U[u0 - H]]
        S.gaps[bar[s]].append(("bar" if not (TM and s == 14) else "barv", None, None,
                               [("vm", ("D", s + 1))] + ([("vm", "CS")] if s == SIG else []) + ([("vm", "ST")] if s == SIG0 else [])))
    if kind == "qkv": S.gaps[last[(15, H)]].append(("bar", None, None, []))
    for un in range(len(V.U) - H):
        s, j = V.U[un]; s2, j2 = V.U[un + H]
        i = last[(s, j)]
        step = 1 if (j == H - 1 or (s == 0 and j < H)) else 2
        for q in range(4):
            i = S.place(i, "ds", V.read(s2, q >> 1, j2, q & 1), gives=("W", s2, j2) if q == 3 else None) + step
    cur = 0
    def dma_seq(i0, i1, lst, vcap=1):
        nonlocal cur
        i0 = max(i0, cur)
        n = len(lst)
        for k, (pre, d, kd, gives, needs) in enumerate(lst):
            tgt = max(cur, i0 + (k * (i1 - i0)) // n)
            i = S.place(tgt, "s", pre, cap=vcap + 1)
            cur = S.place(i + 1, kd, d, gives=gives, needs=needs, cap=vcap)
    def merge(a, b):
        if not b: return a
        out, k = [], 0
        for i, x in enumerate(a):
            out.append(x)
            while k < len(b) and (k + 1) * len(a) <= (i + 1) * len(b): out.append(b[k]); k += 1
        return out + b[k:]
    def wlist(s):
        dm = V.dmas(s)
        return [(m0, d, "vmD", ("D", s) if n == len(dm) - 1 else None, []) for n, (m0, d) in enumerate(dm)]
    def alist(s, dep=True):
        return [(m0, d, "vmA", ("A", s, t) if u == 1 else None, [("lg", ("AF", s - 2, t))] if dep else [])
                for t in range(V.NT) for u, (m0, d) in enumerate(V.admas(s, t))]
    def areads(s, i0, i1):
        for t in range(V.NT):
            i = i0 + (t * (i1 - i0)) // V.NT
            i = S.place(i, "ds", V.aread(s, 0, t), needs=[("vm", ("A", s, t))])
            S.place(i + 1, "ds", V.aread(s, 1, t), gives=("AF", s, t))
    extra = {}
    cs = [(f"s_add_u32 s60, s{S_CSL}, {i*8*V.pitch:#x}",
           f"buffer_load_dwordx4 {ar(A_CS+4*i, 4)}, v{VCA}, {sq(S_SRDW)}, s60 offen", "vmX", ("CL", i), []) for i in range(16)]
    cs0, csn = par("cs0", 1), par("csn", 4)
    slots = [(s_, h_) for s_ in range(cs0, cs0 + csn) for h_ in range(2)]
    for i_, it in enumerate(cs): extra.setdefault(slots[i_ * len(slots) // 16], []).append(it)
    if kind == "w1":
        extra.setdefault((cs0 + 1, 0), []).append(("s_nop 0", f"buffer_load_dwordx2 v[{VB1}:{VB1+1}], v{VB1}, {sq(S_SRDB)}, 0 offen", "vmX", "B1", []))
    rows = [("s_nop 0", f"buffer_load_dwordx4 {ar(A_RAW+4*q, 4)}, v{V_L16}, {sq(S_SRDA)}, s67 offen offset:{q*1024}", "vmX", "ROWS" if q == 3 else None, []) for q in range(4)]
    cpf = []
    if "nocpf" not in OPT:
        cpf = [(f"s_getpc_b64 s[{S_CODE}:{S_CODE+1}]\nL_k1_pc_{kind}:\ns_mov_b32 s{S_CODE+2}, L_k1_spin_{kind}-L_k1_pc_{kind}\ns_mov_b32 s{S_CODE+3}, 0x20000\n"
                f"s_bfe_u32 s60, s2, 0x20003\ns_lshl_b32 s60, s60, 2\ns_add_u32 s60, s60, s{S_W}\ns_mul_i32 s60, s60, {par('cpfb', 2560)}\n"
                f"v_lshlrev_b32 v{VW}, 3, v{V_L16}\ns_mov_b64 exec, {hex((1 << (par('cpfb', 2560) // 128)) - 1)}\n"
                f"buffer_load_dword a{A_DUM}, v{VW}, {sq(S_CODE)}, s60 offen\ns_mov_b64 exec, -1")]
    def addx(key, lst): extra.setdefault(key, []).extend(lst)
    shift = "noshift" not in OPT
    pf = []
    nl = 16 if shift else 8
    for i in range(9):
        pre = (f"s_and_b32 s60, s100, 511\ns_lshl_b32 s60, s60, 11" if shift else "s_lshl_b32 s60, s100, 10") + f"\ns_add_u32 s60, s60, {(i if i < 2 else i - 2) << 20:#x}"
        if i == 2: pre = f"s_mov_b32 s{S_SRDP}, s101\ns_mov_b32 s{S_SRDP+1}, s{S_C}\ns_mov_b32 s{S_SRDP+2}, {3584*2048:#x}\n" + pre
        pf.append((pre, f"s_mov_b64 exec, {(1 << nl) - 1:#x}\nbuffer_load_dword a{A_DUM}, v{VCA}, {sq(S_SRDP)}, s60 offen\ns_mov_b64 exec, -1", "vmX", None, []))
    misc = {}
    misc[cs0 + csn] = [f"v_lshlrev_b32 v{VCA}, 3, v{V_L16}",
                       f"s_add_u32 s{S_SRDB}, s58, {WS_PART:#x}\ns_addc_u32 s{S_SRDB+1}, s59, 0\ns_mov_b32 s{S_SRDB+2}, {12 << 20:#x}\ns_mov_b32 s{S_SRDB+3}, 0x20000"]
    if shift and kind == "w1":
        misc[cs0 + csn].append(f"s_mov_b32 s{S_SRDP}, s101\ns_mov_b32 s{S_SRDP+1}, s{S_C}\ns_mov_b32 s{S_SRDP+2}, {3584*2048:#x}")
    else:
        p0 = 2 * par('pf0', cs0 + csn); p1 = 2 * CHK + 1
        for i_, it in enumerate(pf):
            h_ = p0 + i_ * (p1 - p0) // len(pf)
            addx((h_ // 2, h_ % 2), [it])
    for wh, s0, n in slow:
        if wh.isdigit(): addx((int(wh), 0), [("s_nop 0", slowpf(int(s0), int(n)), "vmX", None, [])])
    if "nocpf" not in OPT:
        addx((CHK, 0), [(f"s_getpc_b64 s[{S_SRDC}:{S_SRDC+1}]\nL_k1_pc2_{kind}:\ns_add_u32 s{S_SRDC}, s{S_SRDC}, L_k2_start-L_k1_pc2_{kind}\n"
               f"s_addc_u32 s{S_SRDC+1}, s{S_SRDC+1}, 0\ns_mov_b32 s{S_SRDC+2}, L_k2_spin-L_k2_start\n"
               f"s_lshr_b32 s60, s2, 3\ns_lshl_b32 s60, s60, 2\ns_add_u32 s60, s60, s{S_W}\ns_lshl_b32 s60, s60, 8",
               f"s_mov_b64 exec, 3\nbuffer_load_dword a{A_DUM}, v{VCA}, {sq(S_SRDC)}, s60 offen\ns_mov_b64 exec, -1", "vmX", None, [])])
    for n_, at in enumerate(x for x in PAR.get("cpf2", "7:11").split(":") if x):
        addx((int(at), 0), [(f"s_getpc_b64 s[{S_SRDC}:{S_SRDC+1}]\nL_k1_pc3_{kind}_{n_}:\ns_mov_b32 s{S_SRDC+2}, L_k1_spin_{kind}-L_k1_pc3_{kind}_{n_}\n"
               f"s_bfe_u32 s60, s2, 0x40003\ns_lshl_b32 s60, s60, 2\ns_add_u32 s60, s60, s{S_W}\ns_lshl_b32 s60, s60, 9",
               f"s_mov_b64 exec, 15\nbuffer_load_dword a{A_DUM}, v{VCA}, {sq(S_SRDC)}, s60 offen\ns_mov_b64 exec, -1", "vmX", None, [])])
    tagld = f"buffer_load_dwordx2 {ar(A_TAG,2)}, off, {sq(S_SRDC)}, 0 sc1"
    tagchk = (f"v_accvgpr_read_b32 v{VW}, a{A_TAG}\nv_accvgpr_read_b32 v{VW+1}, a{A_TAG+1}\ns_nop 0\n"
              f"v_readfirstlane_b32 s56, v{VW}\nv_readfirstlane_b32 s57, v{VW+1}\ns_nop 3\ns_cmp_lg_u32 s56, 0")
    addx((2, 1), [("s_nop 0", tagld, "vmX", "TAG", [])])
    if "nowarmflag" not in OPT:
        addx((par("wfat", 6), 1), [(f"s_lshl_b32 s60, s100, 7\ns_add_u32 s60, s60, {SD_WF:#x}", f"buffer_load_dword a{A_DUM}, off, {sq(S_SRDS)}, s60", "vmX", None, [])])
    def flagst(off): return f"s_mov_b64 exec, 1\nbuffer_store_dwordx2 {ar(A_TAG,2)}, off, {sq(S_SRDT)}, s60 offset:{off} sc1\ns_mov_b64 exec, -1"
    addx((SIG0, 1), [("s_lshl_b32 s60, s2, 7", flagst(0), "vmS", None, [])])
    addx((SIG, 1), [("s_lshl_b32 s60, s2, 7", flagst(64), "vmS", None, [])])
    VFA = VW + 2
    fa = [f"v_and_b32 v{VFA}, 0x30, v{V_L16}", f"v_lshlrev_b32 v{VFA}, 4, v{VFA}", f"v_and_b32 v{VFA+1}, 0x1c0, v{V_L16}",
          f"v_lshl_add_u32 v{VFA}, v{VFA+1}, 6, v{VFA}", "s_and_b32 s60, s2, 0x19", "s_lshl_b32 s60, s60, 7", f"v_add_u32 v{VFA}, s60, v{VFA}",
          "s_mov_b32 exec_lo, 0",
          f"v_and_b32 v{VFA}, 0x10, v{V_L16}", f"v_lshlrev_b32 v{VFA}, 3, v{VFA}", f"v_and_b32 v{VFA+1}, 0x60, v{V_L16}",
          f"v_lshl_add_u32 v{VFA}, v{VFA+1}, 5, v{VFA}", "s_and_b32 s60, s2, 0xe6", "s_lshl_b32 s60, s60, 7", "s_add_u32 s60, s60, 64",
          f"v_add_u32 v{VFA}, s60, v{VFA}"]
    if kind == "qkv":
        fa += ["s_mov_b32 exec_hi, 0xffffff00", f"s_max_u32 s60, s{S_MB}, 1", "s_sub_u32 s60, s60, 1", "s_lshr_b32 s3, s60, 2",
               "s_and_b32 s60, s60, 3", "s_lshl_b32 s60, s60, 3", "s_or_b32 s60, s60, s3", "s_or_b32 s60, s60, 0xc6", "s_lshl_b32 s60, s60, 7",
               f"v_and_b32 v{VFA}, 0x10, v{V_L16}", f"v_lshlrev_b32 v{VFA}, 8, v{VFA}", f"v_add_u32 v{VFA}, s60, v{VFA}"]
    fa += ["s_mov_b64 exec, -1"]
    pollld = f"buffer_load_dwordx2 v[{VW}:{VW+1}], v{VFA}, {sq(S_SRDS)}, 0 offen sc1"
    addx((POLL, 1), [("\n".join(fa), pollld, "vmX", "POLL", [])])
    chk = f"v_cmp_ne_u64 vcc, s[56:57], v[{VW}:{VW+1}]"
    pl = []
    for t in range(V.NT):
        pre = f"s_lshr_b32 s60, s{S_AROW+t}, 7\ns_add_u32 s60, s60, {SD_Q:#x}"
        if t == 0: pre = f"v_and_b32 v{VCA}, 0xff, v{V_L16}\n" + pre
        pl.append((pre, f"buffer_load_dwordx4 {ar(A_Q+4*t, 4)}, v{VCA}, {sq(S_SRDS)}, s60 offen sc1", "vmX", ("Q", t), []))
    for j in range(V.NJ):
        if kind == "w1":
            pre = f"s_lshl_b32 s60, s{S_CF if j < 12 else S_CHF}, 5\ns_add_u32 s60, s60, {SD_P + (192 + (j if j < 12 else j - 12))*1024:#x}"
        else:
            pre = (f"s_xor_b32 s60, s{S_W}, {j & 3}\ns_lshl_b32 s60, s60, 5\ns_add_u32 s60, s60, s{S_CF}\ns_lshl_b32 s60, s60, 5\n"
                   f"s_add_u32 s60, s60, {SD_P + (j >> 2)*65536:#x}")
        pl.append((pre, f"buffer_load_dwordx4 {ar(A_P+4*j, 4)}, v{V_L16}, {sq(S_SRDS)}, s60 offen sc1", "vmX", ("P", j), []))
    if kind == "qkv":
        for t in range(4):
            pre = f"s_lshr_b32 s60, s{S_AROW+t}, 9\ns_add_u32 s60, s60, {SD_RS - 64:#x}"
            if t == 0:
                pre = (f"v_lshrrev_b32 v{VCS}, 2, v{VCA}\n"
                       f"v_lshrrev_b32 v{VB1}, 4, v{V_L16}\nv_and_b32 v{VB1}, 0x30, v{VB1}\n"
                       f"v_and_b32 v{VB1+1}, 4, v{VCS}\nv_add_u32 v{VB1}, v{VB1}, v{VB1+1}\n"
                       f"v_add_u32 v{VB1+1}, 8, v{VB1}\n"
                       f"v_cmp_le_u32 s[48:49], v{VB1}, v{VCS}\nv_cmp_le_u32 s[50:51], v{VB1+1}, v{VCS}\n"
                       f"v_add_u32 v{VDC}, 64, v{VB1}\nv_add_u32 v{VDC+1}, 64, v{VB1+1}\n"
                       f"v_cndmask_b32 v{VB1}, v{VB1}, v{VDC}, s[48:49]\nv_cndmask_b32 v{VB1+1}, v{VB1+1}, v{VDC+1}, s[50:51]\n" + pre)
            pl.append((pre, f"buffer_load_dword v{RSQ+t}, v{VCS}, {sq(S_SRDS)}, s60 offen offset:64 sc1", "vmX", None, []))
            pl.append(("s_nop 0", f"buffer_load_dword v{RSK+2*t}, v{VB1}, {sq(S_SRDS)}, s60 offen sc1", "vmX", None, []))
            pl.append(("s_nop 0", f"buffer_load_dword v{RSK+2*t+1}, v{VB1+1}, {sq(S_SRDS)}, s60 offen sc1", "vmX", "RS" if t == 3 else None, []))
    h = len(pl) // 2
    addx((CHK, 1), pl[:h]); addx((CHK + 1, 0), pl[h:])
    for s in range(NS):
        b0 = first[(s, 0)]
        b1 = first[(s + 1, 0)] if s + 1 < NS else len(S.mf)
        if s == 0:
            for wh, s0, n in rounds:
                if wh == "s":
                    for b_ in pfr(int(s0), int(n)): cur = S.place(cur + 1, "vmX", b_, cap=3)
            for c_ in cpf: cur = S.place(cur + 1, "vmX", c_, cap=3)
            dma_seq(b0, bar[0], ([] if "late1" not in OPT else alist(1, dep=False)) + wlist(2) + alist(2), vcap=2)
            for x_ in V.sof_adv(): cur = S.place(cur, "s", x_, cap=4)
            areads(1, b1 - 28, b1 - 8)
            dma_seq(bar[0] + 1, b1, rows + wlist(3))
            for x_ in V.sof_adv(): cur = S.place(cur, "s", x_, cap=3)
            continue
        if s == 1:
            for wh, s0, n in rounds:
                if wh == "t":
                    for b_ in pfr(int(s0), int(n)): cur = S.place(max(cur + 1, b0), "vmX", b_, cap=3)
            areads(2, bar[1] - 8, bar[1] + 20)
            dma_seq(b0, bar[1], merge(alist(3), extra.get((1, 0), [])))
            dma_seq(bar[1] + 1, b1 + 4, merge(wlist(4) + alist(4), extra.get((1, 1), [])))
            for x_ in V.sof_adv(): cur = S.place(cur, "s", x_, cap=3)
            continue
        if TM and s == 14:
            areads(15, b0, b0 + 12)
            prebar = b0 + 24
            S.gaps[prebar].append(("bar", None, None, []))
            continue
        if s + 1 < NS:
            lo = b0 + (24 if s == 2 else 0)
            for x_ in misc.get(s, []): cur = S.place(max(cur, b0), "s", x_, cap=3)
            areads(s + 1, lo, bar[s] - 8)
            l0 = merge(alist(s + 3) if s + 3 < NS else [], extra.get((s, 0), []))
            if l0: dma_seq(lo + 8, bar[s], l0)
            if s == CHK:
                cur = S.place(max(cur, bar[s] + 1), "s", chk + "\n"
                              f"s_cbranch_vccnz L_k1_spin_{kind}\nL_k1_back_{kind}:", needs=[("vm", "POLL")], cap=3)
                chkpos = cur
            if s == SIG0:
                cur = S.place(max(cur, bar[s] + 1), "s", tagchk + f"\ns_cbranch_scc0 L_k1_tspin_{kind}\nL_k1_tback_{kind}:", needs=[("vm", "TAG")], cap=3)
            l1 = merge(wlist(s + 3) if s + 3 < NS else [], extra.get((s, 1), []))
            if l1: dma_seq(bar[s] + 1, b1 + 4, l1)
            if s + 3 < NS:
                for x_ in V.sof_adv(): cur = S.place(cur, "s", x_, cap=3)
    i = max(chkpos + 1, first[(13, H)])
    for o in p2_pre_setup(VW, kind): i = S.place(i, "s", o, cap=2) + 1
    if not TM: prebar = bar[14]
    assert i < prebar
    lst = []
    for s_ in range(P2.PD):
        dm = P2.dmas(s_)
        for n_, (m0, d, post) in enumerate(dm):
            lst.append((m0, d + ("\n" + post if post else ""), "vmD", "PRE" if (s_ == P2.PD - 1 and n_ == len(dm) - 1) else None, []))
    dma_seq(prebar + 1, prebar + par("pre_len", 110), lst, vcap=2)
    i = prebar + 1
    for o in p2_pre_setup2(VW): i = S.place(i, "s", o, cap=2) + 1
    i = first[(2, 0)]
    def fill(o, gapstep=1, needs=(), kd="s", gives=None):
        nonlocal i
        i = S.place(i, kd, o, needs=needs, cap=2, gives=gives) + gapstep
    mA, mB = VDC, VW
    for rr, d in ((0, mA), (1, mB)):
        for q in range(2):
            fill(f"v_mfma_f32_16x16x32_bf16 {vr(d,4)}, {ar(A_ONE,4)}, {ar(A_RAW+8*rr+4*q,4)}, {'0' if q == 0 else vr(d,4)}", needs=[("vm", "ROWS")])
    i += 8
    for r_ in (8, 4, 2, 1):
        for d in (mA, mB): fill(f"v_add_f32_dpp v{d}, v{d}, v{d} row_ror:{r_} row_mask:0xf bank_mask:0xf")
    for d in (mA, mB): fill(f"v_mul_f32 v{d}, 0x3a800000, v{d}", 0)
    for d in (mA, mB): fill(f"v_mov_b32 v{d+1}, 0", 0)
    for q in range(8):
        for rr, d in ((0, mA), (1, mB)):
            for o in (f"v_accvgpr_read_b32 v{d+2}, a{A_RAW+8*rr+q}", f"v_and_b32 v{d+3}, s{S_HI}, v{d+2}", f"v_lshlrev_b32 v{d+2}, 16, v{d+2}",
                      f"v_sub_f32 v{d+3}, v{d+3}, v{d}", f"v_sub_f32 v{d+2}, v{d+2}, v{d}",
                      f"v_fmac_f32 v{d+1}, v{d+3}, v{d+3}", f"v_fmac_f32 v{d+1}, v{d+2}, v{d+2}"):
                fill(o, 0)
    i += 2
    qA, qB = mA + 1, mB + 1
    for r_ in (8, 4, 2, 1):
        for d in (qA, qB): fill(f"v_add_f32_dpp v{d}, v{d}, v{d} row_ror:{r_} row_mask:0xf bank_mask:0xf")
    for sw_ in ("v_permlane16_swap_b32", "v_permlane32_swap_b32"):
        for d in (qA, qB): fill(f"v_mov_b32 v{d+1}, v{d}")
        i += 1
        for d in (qA, qB): fill(f"{sw_} v{d}, v{d+1}")
        for d in (qA, qB): fill(f"v_add_f32 v{d}, v{d}, v{d+1}")
    for o in (f"v_cndmask_b32 v{mA}, v{mA}, v{mB}, vcc", f"v_cndmask_b32 v{qA}, v{qA}, v{qB}, vcc",
              f"v_mul_f32 v{qA}, 0x3a800000, v{qA}", f"v_cvt_pk_bf16_f32 v{VW}, -v{mA}, -v{mA}",
              f"v_cvt_pk_bf16_f32 v{qA}, v{qA}, v{qA}", f"v_and_b32 v{qA}, s{S_HI}, v{qA}", f"v_add_f32 v{qA}, 0x3727c5ac, v{qA}",
              f"v_cvt_pk_bf16_f32 v{qA}, v{qA}, v{qA}", f"v_and_b32 v{qA}, s{S_HI}, v{qA}", f"v_sqrt_f32 v{qA}, v{qA}",
              f"v_mov_b32 v{VW+2}, v{VW}", f"v_cvt_pk_bf16_f32 v{VW+1}, -v{mA}, v{qA}", f"v_and_b32 v{qA}, s{S_HI}, v{VW+1}",
              f"v_rcp_f32 v{qA}, v{qA}", f"v_mov_b32 v{VW+3}, v{VW+1}", f"v_lshrrev_b32 v{mA+2}, 2, v{V_L16}"):
        fill(o)
    fill(f"s_lshr_b32 s61, s67, 7\ns_add_u32 s61, s61, {SD_Q:#x}\ns_mov_b64 exec, 3\n"
         f"buffer_store_dwordx4 {vr(VW,4)}, v{V_L16}, {sq(S_SRDS)}, s61 offen sc1\ns_mov_b64 exec, -1", kd="vmS")
    fill(f"s_lshr_b32 s61, s67, 9\ns_add_u32 s61, s61, {SD_RS:#x}\ns_mov_b64 exec, 3\n"
         f"buffer_store_dword v{qA}, v{mA+2}, {sq(S_SRDS)}, s61 offen sc1\ns_mov_b64 exec, -1", kd="vmS", gives="ST")
    if "verbose" in OPT: print(kind, "stats done at step", [s_ for s_ in range(NS) if first[(s_, 0)] <= i][-1], i, bar, file=sys.stderr)
    assert i < bar[SIG0 - 1] + 40
    i = i + 2
    for q in range(16):
        cin = "0" if q == 0 else vr(VDC, 4)
        sl_ = slots[q * len(slots) // 16]
        i = max(i, first[(sl_[0] + 2, 0 if sl_[1] == 0 else H)])
        i = S.place(i, "s", f"v_mfma_f32_16x16x32_bf16 {vr(VDC,4)}, {ar(A_SEL,4)}, {ar(A_CS+4*q,4)}, {cin}", needs=[("vm", ("CL", q))], cap=2) + 4
    i += 8
    for r_ in range(4):
        i = S.place(i, "s", f"v_add_f32_dpp v{VDC+r_}, v{VDC+r_}, v{VDC+r_} row_ror:8 row_mask:0xf bank_mask:0xf", cap=2) + 1
    for r_ in range(4):
        d = VDC + r_
        sel = "0x05040302" if r_ % 2 == 0 else "0x07060302"
        ops = [f"v_and_b32 v{VW+2}, s{S_HI}, v{d}", f"v_sub_f32 v{VW+2}, v{d}, v{VW+2}",
               f"v_and_b32 v{VW+3}, s{S_HI}, v{VW+2}", f"v_sub_f32 v{VW+3}, v{VW+2}, v{VW+3}",
               f"s_mov_b32 s61, 0x07060302\nv_perm_b32 v{VW}, v{VW+2}, v{d}, s61",
               f"s_mov_b32 s61, {sel}\nv_perm_b32 v{VW+1}, v{VB1 + (r_ >> 1)}, v{VW+3}, s61"]
        for k, o in enumerate(ops):
            i = S.place(i, "s", o, cap=2, needs=[("vm", "B1")] if k == 5 else []) + 1
        i = S.place(i, "vmS", f"buffer_store_dwordx2 v[{VW}:{VW+1}], v{VCS}, {sq(S_SRDS)}, s{S_CSS} offen offset:{16*r_} sc1",
                    gives="CS" if r_ == 3 else None, cap=2) + 2
    assert i < bar[SIG - 1]
    tail = []
    if kind == "w1":
        pre = []
        for a_ in range(2):
            pre += [f"s_lshr_b32 s{X}, s{S_AROW+2*a_}, 16", f"s_mul_i32 s{X}, s{X}, 144", f"s_lshr_b32 s{X+1+a_}, s{S_CF}, 6",
                    f"s_add_u32 s{X+1+a_}, s{X+1+a_}, s{X}", f"s_add_u32 s{X+1+a_}, s{X+1+a_}, 32", f"s_lshl_b32 s{X+1+a_}, s{X+1+a_}, 11"]
        pre += [f"s_sub_u32 s{X+3}, s{S_CHF}, s{S_CF}", f"s_lshl_b32 s{X+3}, s{X+3}, 5"]
        i = first[(13, H)]
        for o in pre: i = S.place(i, "s", o, cap=2) + 1
        assert i < first[(15, 1)]
        for j in range(14):
            for t in sorted(range(4), key=lambda t: fin[(t, j)]):
                a = V.acc(t, j); e = fin[(t, j)] + 8
                dst = a if j % 2 == 0 else V.acc(t, j - 1) + 2
                for r_ in range(4): tail.append((e, "s", f"v_mul_f32 v{a+r_}, v{a+r_}, |v{a+r_}|", []))
                tail.append((e, "s", f"v_cvt_pk_bf16_f32 v{dst}, v{a}, v{a+1}", []))
                tail.append((e, "s", f"v_cvt_pk_bf16_f32 v{dst+1}, v{a+2}, v{a+3}", []))
                for r_ in range(2): tail.append((e, "s", f"v_pk_max_i16 v{dst+r_}, v{dst+r_}, 0", []))
                if j % 2 == 1:
                    p = j // 2; a0 = V.acc(t, j - 1)
                    off = f"{p*2048:#x}" if p < 6 else f"s{X+3}"
                    tail.append((e, "vmS", f"s_add_u32 s60, s{X+1+(t>>1)}, {off}\n"
                                 f"buffer_store_dwordx4 v[{a0}:{a0+3}], v{V_L16}, {sq(S_SRDO)}, s60 offen offset:{(t&1)*1024} sc1", [], ("HS", p)))
            if j == par("flagA0", 5): tail.append((e, "vmS", wflag(0), [("vm", ("HS", 1))]))
            if j == par("flagA", 9): tail.append((e, "vmS", wflag(8), [("vm", ("HS", 3))]))
    else:
        for j, ts in groups:
            ts = list(ts) if j % 2 == 0 else list(reversed(ts))
            if 4 in ts: ts = [4, 0, 1, 2, 3]
            if j >= 8: ts = [t for t in ts if t == 4] + [0, 1, 2, 3]
            for t in ts:
                a = V.acc(t, j); e = (fin[(t, j)] if j < 8 else last[(NS - 1, j)]) + 8
                if t == 4: d0 = a
                elif j < 8: d0 = a if j % 2 == 0 else V.acc(t, j - 1) + 2
                else: d0 = V.acc(0, j) + 2 + 2 * t
                cv = [f"v_cvt_pk_bf16_f32 v{d0}, v{a}, v{a+1}", f"v_cvt_pk_bf16_f32 v{d0+1}, v{a+2}, v{a+3}"]
                if j >= 8 and t == 0: cv.reverse()
                for o in cv: tail.append((e, "s", o, []))
    i = 0
    rest = []
    for e, kd, text, nd, *gv in tail:
        gv = gv[0] if gv else None
        if rest or max(i, e) >= len(S.mf) - 1:
            rest.append((kd, text, nd, gv)); continue
        k = max(i, e)
        while k < len(S.mf) - 1 and S.used[k] >= par("tailcap", 2 if TM else 3): k += 1
        if k >= len(S.mf) - 1:
            rest.append((kd, text, nd, gv)); continue
        i = S.place(k, kd, text, needs=nd, cap=par("tailcap", 2 if TM else 3), gives=gv)
    if stamp:
        for m in PAR.get("k1marks", "15").split(":"):
            if "promarks" in OPT: break
            S.gaps[first[(int(m), 0)]].append(("s", st.text(), None, []))
    for x_ in S.emit("k1"): A(x_)
    if st.n < 7: st.mark(A)
    A("s_nop 7")
    for kd, text, nd, gv in rest:
        o = []
        S.waits(nd, o)
        for x_ in o: A(x_)
        A(text)
        if kd.startswith("vm"): vm.issue(gv)
    if kind == "qkv":
        o = []; S.waits([("vm", "RS")], o)
        for x_ in o: A(x_)
        qkv_attention(A, V)
        vm.drain()
    o = []; S.waits([("vm", "PRE")], o)
    for x_ in o: A(x_)
    if stamp:
        st.flush(A, 58, 59, 208, f"s{S_W}", 255)
        A("s_mov_b64 exec, -1")
    A("s_branch L_k2_start")
    for nm, ld, ck, br in (("", pollld, chk, "s_cbranch_vccnz"), ("t", tagld, tagchk, "s_cbranch_scc0")):
        A.label(f"L_k1_{nm}spin_{kind}")
        A("s_mov_b32 s61, 0")
        A.label(f"L_k1_{nm}spin1_{kind}")
        A("s_sleep 8")
        A(ld)
        A("s_waitcnt vmcnt(0)")
        A("s_add_u32 s61, s61, 1")
        A("s_cmp_gt_u32 s61, 0x10000")
        A(f"s_cbranch_scc1 L_k1_{nm}back_{kind}")
        A(ck)
        A(f"{br} L_k1_{nm}spin1_{kind}")
        A(f"s_branch L_k1_{nm}back_{kind}")

def gen_k1(A, name, stamp):
    kernel_head(A, name)
    st0 = Stamp(stamp, 1)
    st0.mark(A)
    A("s_cmp_ge_u32 s2, 256")
    A("s_cbranch_scc1 L_k1_end")
    A("s_load_dwordx2 s[4:5], s[0:1], 0")
    A("s_load_dwordx2 s[60:61], s[0:1], 8")
    A("s_load_dwordx4 s[56:59], s[0:1], 32")
    A("s_load_dwordx4 s[12:15], s[0:1], 72")
    A("s_load_dwordx2 s[36:37], s[0:1], 48")
    A("s_load_dwordx2 s[38:39], s[0:1], 16")
    A("s_memrealtime s[18:19]")
    lane, l16, g, T, X = 100, 101, 102, 104, S_X0
    A(f"v_lshrrev_b32 v{T}, 6, v0")
    A(f"v_and_b32 v{lane}, 63, v0")
    A(f"v_readfirstlane_b32 s{S_W}, v{T}")
    A(f"s_and_b32 s{X}, s2, 1")
    A(f"s_lshl_b32 s{X}, s{X}, 2")
    A(f"s_bfe_u32 s{X+1}, s2, 0x20003")
    A(f"s_add_u32 s{S_MB}, s{X}, s{X+1}")
    A(f"s_bfe_u32 s{X}, s2, 0x20001")
    A(f"s_lshl_b32 s{X}, s{X}, 2")
    A(f"s_bfe_u32 s{X+1}, s2, 0x20005")
    A(f"s_add_u32 s{S_NT}, s{X}, s{X+1}")
    A(f"v_and_b32 v{l16}, 15, v{lane}")
    A(f"v_lshrrev_b32 v{g}, 4, v{lane}")
    A(f"v_lshlrev_b32 v{V_L16}, 4, v{lane}")
    A(f"s_lshl_b32 s{X}, s{S_MB}, 8")
    A(f"s_lshl_b32 s{X+1}, s{S_W}, 6")
    A(f"s_add_u32 s{X+1}, s{X}, s{X+1}")
    A(f"s_lshl_b32 s{X+1}, s{X+1}, 11")
    for t in range(4): A(f"s_add_u32 s{S_AROW+t}, s{X+1}, {t*16*2048:#x}")
    A(f"s_max_u32 s{X+1}, s{X}, 16")
    A(f"s_sub_u32 s{X+1}, s{X+1}, 16")
    A(f"s_lshl_b32 s{S_AROW+4}, s{X+1}, 11")
    A(f"s_lshr_b32 s{X+1}, s2, 7")
    A(f"s_lshl_b32 s{X+1}, s{X+1}, 4")
    A(f"s_add_u32 s{X+1}, s{X+1}, s{S_NT}")
    A(f"s_lshl_b32 s{X+1}, s{X+1}, 2")
    A(f"s_add_u32 s{X+1}, s{X+1}, s{S_W}")
    A(f"s_lshl_b32 s{X+1}, s{X+1}, 1")
    A(f"s_add_u32 s{X+1}, s{X+1}, s{X}")
    A(f"s_lshl_b32 s67, s{X+1}, 11")
    A(f"v_lshrrev_b32 v{T+4}, 3, v{lane}")
    A(f"v_and_b32 v{T+5}, 7, v{lane}")
    A(f"v_xor_b32 v{T+5}, v{T+5}, v{g}")
    A(f"v_lshlrev_b32 v{T+4}, 11, v{T+4}")
    A(f"v_lshl_add_u32 v{V_AD}, v{T+5}, 4, v{T+4}")
    A(f"v_xor_b32 v{T+5}, 4, v{T+5}")
    A(f"v_lshl_add_u32 v{V_AD+1}, v{T+5}, 4, v{T+4}")
    A(f"v_add_u32 v{V_AD+1}, 0x4000, v{V_AD+1}")
    A(f"s_mov_b32 s{S_SOFW}, 0")
    A(f"s_mov_b32 s{S_SOFW2}, 4096")
    A("s_cmp_ge_u32 s2, 128")
    A("s_cbranch_scc1 L_k1_qkv")
    Q1, M1, Q2, M2 = Asm(), Asm(), Asm(), Asm()
    k1_variant(Q1, M1, K1Var("w1"), stamp)
    k1_variant(Q2, M2, K1Var("qkv"), stamp)
    A.L += Q1.L
    A.label("L_k1_qkv")
    A.L += Q2.L + M1.L + M2.L
    A.label("L_k1_end")
    A("s_endpgm")

def qkv_attention(A, V):
    T = V_T
    XCH = RING0
    lane8, l16, g = T + 8, T + 1, T + 2
    def Q(t, sp): return V.acc(t, 2 * sp)
    KP = 200
    def K(t, sp): return V.acc(t, 4 + 2 * sp) if t >= 0 else KP + 4 * sp
    def VT(jj): return 128 + 16 * jj
    X = T + 4
    def mkq(d): return f"s_mov_b64 exec, 3\nbuffer_load_dwordx2 v[{d}:{d+1}], v{P2.VFA}, {sq(S_SRDS)}, 0 offen sc1\ns_mov_b64 exec, -1"
    nf = [0]
    def fblock():
        if nf[0] >= 4: return
        A(f"s_cmp_eq_u32 s{P2.S_GOT}, 0")
        A(f"s_cbranch_scc1 L_k1_nf{nf[0]}")
        A(floads([nf[0]]))
        A.label(f"L_k1_nf{nf[0]}")
        nf[0] += 1
    A(mkq(198))
    A(f"v_lshrrev_b32 v{lane8}, 1, v{V_L16}")
    A(f"v_bfe_u32 v{l16}, v{V_L16}, 4, 4")
    A(f"v_lshrrev_b32 v{g}, 8, v{V_L16}")
    for jj in range(4):
        A(f"s_xor_b32 s46, s{S_W}, {jj}")
        A("s_lshl_b32 s46, s46, 9")
        A(f"s_lshl_b32 s47, s{S_W}, 12")
        A("s_add_u32 s46, s46, s47")
        A(f"v_add_u32 v{X+jj}, s46, v{lane8}")
    A(f"s_lshl_b32 s46, s{S_W}, 9")
    A(f"v_add_u32 v{lane8}, s46, v{lane8}")
    for jj in range(4):
        k = K(3, jj >> 1) + 2 * (jj & 1)
        A(f"ds_write_b64 v{X+jj}, v[{k}:{k+1}] offset:{XCH + 4096}")
        v = VT(jj) + 8
        A(f"ds_write_b64 v{X+jj}, v[{v}:{v+1}] offset:{XCH + 4096 + 2048}")
    A(f"ds_write_b64 v{lane8}, v[192:193] offset:{XCH}")
    A(f"ds_write_b64 v{lane8}, v[196:197] offset:{XCH + 2048}")
    par_ = T + 9
    MP, MA, MB_, VA_, VB_ = "s[46:47]", "s[48:49]", "s[50:51]", "s[52:53]", "s[54:55]"
    A(f"v_and_b32 v{par_}, 1, v{l16}")
    A(f"v_cmp_eq_u32 {MP}, 1, v{par_}")
    A(f"s_or_b32 s60, s{S_MB}, s{S_W}")
    A("s_cmp_eq_u32 s60, 0")
    A(f"s_cselect_b64 {VA_}, {MA}, -1")
    A(f"s_cselect_b64 {VB_}, {MB_}, -1")
    FQ = 232
    A("s_mov_b32 s61, 0x3e8293ee")
    for t in range(4): A(f"v_mul_f32 v{RSQ+t}, s61, v{RSQ+t}")
    A(f"v_cndmask_b32 v{RSK}, 0, v{RSK}, {VA_}")
    A(f"v_cndmask_b32 v{RSK+1}, 0, v{RSK+1}, {VB_}")
    for t in range(4):
        for e in range(2): A(f"v_mul_f32 v{FQ+2*t+e}, v{RSQ+t}, v{RSK+2*t+e}")
    SEL = 208
    A(f"v_mov_b32 v{T+10}, 0x0c0c0100")
    A(f"v_mov_b32 v{T+11}, 0x01000c0c")
    A(f"v_cndmask_b32 v{SEL+2}, v{T+10}, v{T+11}, {MP}")
    A(f"v_mov_b32 v{T+10}, 0x0c0c0302")
    A(f"v_mov_b32 v{T+11}, 0x03020c0c")
    A(f"v_cndmask_b32 v{SEL+3}, v{T+10}, v{T+11}, {MP}")
    A(f"v_mov_b32 v{T+10}, 0x0c0c0c0c")
    A(f"v_cndmask_b32 v{SEL}, v{SEL+2}, v{T+10}, {MA}")
    A(f"v_cndmask_b32 v{SEL+1}, v{SEL+3}, v{T+10}, {MB_}")
    A(f"v_cndmask_b32 v{SEL+2}, v{T+10}, v{SEL+2}, {MA}")
    A(f"v_cndmask_b32 v{SEL+3}, v{T+10}, v{SEL+3}, {MB_}")
    A("s_waitcnt lgkmcnt(0)")
    A("s_barrier")
    for jj in range(4):
        k = KP + 4 * (jj >> 1) + 2 * (jj & 1)
        A(f"ds_read_b64 v[{k}:{k+1}], v{X+jj} offset:{XCH}")
        v = VT(jj)
        A(f"ds_read_b64 v[{v}:{v+1}], v{X+jj} offset:{XCH + 2048}")
    A(f"v_mov_b32 v{T+11}, 0xce6e6b28")
    units = [(t, sp) for t in (1, 2, 3, 0) for sp in range(2)]
    OQ = dict(zip(units, [192, 196, 200, 204] + [VT(jj) + 12 for jj in range(4)]))
    def Sc(t, sp): return V.acc(t, 2 * sp + 1)
    def Sp(t, sp): return V.acc(t, 4 + 2 * sp + 1)
    for n, (t, sp) in enumerate(units):
        if t == 0 and sp == 0: A("s_waitcnt lgkmcnt(0)")
        A(f"v_mfma_f32_16x16x32_bf16 {vr(Sc(t,sp),4)}, {vr(K(t,sp),4)}, {vr(Q(t,sp),4)}, 0")
        A(f"v_mfma_f32_16x16x32_bf16 {vr(Sp(t,sp),4)}, {vr(K(t-1,sp),4)}, {vr(Q(t,sp),4)}, 0")
    A("s_nop 1")
    def stage(fn):
        for (t, sp) in units: fn(t, sp, Sc(t, sp), Sp(t, sp))
    stage(lambda t, sp, c, p: A(f"v_cndmask_b32 v{c}, v{c}, v{c+1}, {MP}"))
    stage(lambda t, sp, c, p: A(f"v_cndmask_b32 v{c+1}, v{c+2}, v{c+3}, {MP}"))
    A("s_waitcnt vmcnt(0)")
    A("v_cmp_ne_u64 vcc, s[56:57], v[198:199]")
    A("s_nop 1")
    A("s_and_b32 s3, vcc_lo, 3")
    A(f"s_cselect_b32 s{P2.S_GOT}, 0, 1")
    fblock()
    stage(lambda t, sp, c, p: A(f"v_cndmask_b32 v{p}, v{p}, v{p+1}, {MP}"))
    stage(lambda t, sp, c, p: A(f"v_cndmask_b32 v{p+1}, v{p+2}, v{p+3}, {MP}"))
    stage(lambda t, sp, c, p: A(f"v_cndmask_b32 v{c}, v{p}, v{c}, {MA}"))
    stage(lambda t, sp, c, p: A(f"v_cndmask_b32 v{c+1}, v{p+1}, v{c+1}, {MB_}"))
    stage(lambda t, sp, c, p: A(f"v_mul_f32 v{c}, v{c}, v{FQ+2*t}"))
    stage(lambda t, sp, c, p: A(f"v_mul_f32 v{c+1}, v{c+1}, v{FQ+2*t+1}"))
    for sp in range(2):
        c = Sc(0, sp)
        A(f"v_cndmask_b32 v{c}, v{T+11}, v{c}, {VA_}")
        A(f"v_cndmask_b32 v{c+1}, v{T+11}, v{c+1}, {VB_}")
    P = [Sp(t, sp) for (t, sp) in units]
    quads = [P[0:4], P[4:8]]
    def xreduce(op, mid=None, filler=()):
        fl = list(filler)
        def pad(n):
            for _ in range(n): A(fl.pop(0) if fl else "s_nop 0")
        for q in quads:
            A(f"v_permlane16_swap_b32 v{q[0]}, v{q[1]}"); A(f"v_permlane16_swap_b32 v{q[2]}, v{q[3]}")
        for q in quads:
            A(f"{op} v{q[0]}, v{q[0]}, v{q[1]}"); A(f"{op} v{q[2]}, v{q[2]}, v{q[3]}")
        pad(1)
        for q in quads: A(f"v_permlane32_swap_b32 v{q[0]}, v{q[2]}")
        for q in quads: A(f"{op} v{q[0]}, v{q[0]}, v{q[2]}")
        if mid:
            for q in quads: A(f"{mid} v{q[0]}, v{q[0]}")
            pad(1)
        for q in quads: A(f"v_mov_b32 v{q[2]}, v{q[0]}")
        pad(1)
        for q in quads: A(f"v_permlane32_swap_b32 v{q[0]}, v{q[2]}")
        for q in quads:
            A(f"v_mov_b32 v{q[1]}, v{q[0]}"); A(f"v_mov_b32 v{q[3]}, v{q[2]}")
        pad(0)
        for q in quads:
            A(f"v_permlane16_swap_b32 v{q[0]}, v{q[1]}"); A(f"v_permlane16_swap_b32 v{q[2]}, v{q[3]}")
        for x in fl: A(x)
    fblock()
    stage(lambda t, sp, c, p: A(f"v_max_f32 v{p}, v{c}, v{c+1}"))
    xreduce("v_max_f32")
    fblock()
    stage(lambda t, sp, c, p: A(f"v_sub_f32 v{c}, v{c}, v{p}"))
    stage(lambda t, sp, c, p: A(f"v_sub_f32 v{c+1}, v{c+1}, v{p}"))
    stage(lambda t, sp, c, p: A(f"v_exp_f32 v{c}, v{c}"))
    stage(lambda t, sp, c, p: A(f"v_exp_f32 v{c+1}, v{c+1}"))
    fblock()
    A(f"s_cmp_lg_u32 s{P2.S_GOT}, 0")
    A("s_cbranch_scc1 L_k1_np2")
    A(mkq(VT(0) + 10))
    A.label("L_k1_np2")
    stage(lambda t, sp, c, p: A(f"v_add_f32 v{p}, v{c}, v{c+1}"))
    fl = []
    for (t, sp) in units:
        c = Sc(t, sp)
        fl += [f"v_mul_f32 v{c}, v{c}, v{RSK+2*t}", f"v_mul_f32 v{c+1}, v{c+1}, v{RSK+2*t+1}"]
    xreduce("v_add_f32", mid="v_rcp_f32", filler=fl)
    stage(lambda t, sp, c, p: A(f"v_mul_f32 v{c}, v{c}, v{p}"))
    stage(lambda t, sp, c, p: A(f"v_mul_f32 v{c+1}, v{c+1}, v{p}"))
    stage(lambda t, sp, c, p: A(f"v_cvt_pk_bf16_f32 v{c}, v{c}, v{c+1}"))
    for i in range(4):
        stage(lambda t, sp, c, p: A(f"v_perm_b32 v{p+i}, v{c}, v{c}, v{SEL+i}"))
    for (t, sp) in units:
        for e in range(2):
            d = OQ[(t, sp)] if e == 0 else Sc(t, sp)
            v = VT(2 * sp + e) + 2 * t
            A(f"v_mfma_f32_16x16x32_bf16 {vr(d,4)}, {vr(v,4)}, {vr(Sp(t,sp),4)}, 0")
    A(f"s_lshl_b32 s60, s{S_MB}, 3")
    A(f"s_lshl_b32 s61, s{S_W}, 1")
    A("s_add_u32 s60, s60, s61")
    A("s_mul_i32 s60, s60, 144")
    A(f"s_lshl_b32 s61, s{S_NT}, 1")
    A("s_add_u32 s60, s60, s61")
    A(f"s_lshr_b32 s61, s{S_W}, 1")
    A("s_add_u32 s62, s60, s61")
    A("s_xor_b32 s61, s61, 1")
    A("s_add_u32 s63, s60, s61")
    A("s_lshl_b32 s62, s62, 11")
    A("s_lshl_b32 s63, s63, 11")
    for (t, sp) in units:
        a, b = OQ[(t, sp)], Sc(t, sp)
        A(f"v_cvt_pk_bf16_f32 v{b+3}, v{b+2}, v{b+3}")
        A(f"v_cvt_pk_bf16_f32 v{b+2}, v{b}, v{b+1}")
        A(f"v_cvt_pk_bf16_f32 v{b}, v{a}, v{a+1}")
        A(f"v_cvt_pk_bf16_f32 v{b+1}, v{a+2}, v{a+3}")
    A(f"s_cmp_lg_u32 s{P2.S_GOT}, 0")
    A("s_cbranch_scc1 L_k1_noearly")
    A("s_waitcnt vmcnt(0)")
    A(f"v_cmp_ne_u64 vcc, s[56:57], v[{VT(0)+10}:{VT(0)+11}]")
    A("s_nop 1")
    A("s_and_b32 s3, vcc_lo, 3")
    A("s_cbranch_scc1 L_k1_noearly")
    A(floads(range(4)))
    A(f"s_mov_b32 s{P2.S_GOT}, 1")
    A.label("L_k1_noearly")
    A(f"s_bitcmp1_b32 s{S_W}, 0")
    A("s_cbranch_scc0 L_k1_noswap")
    for (t, sp) in units:
        a = Sc(t, sp)
        A(f"v_swap_b32 v{a}, v{a+2}")
        A(f"v_swap_b32 v{a+1}, v{a+3}")
    A.label("L_k1_noswap")
    for (t, sp) in units:
        a = Sc(t, sp)
        A(f"s_add_u32 s64, s{62+sp}, {(t>>1)*144*2048:#x}")
        A(f"buffer_store_dwordx4 v[{a}:{a+3}], v{V_L16}, {sq(S_SRDO)}, s64 offen offset:{(t&1)*1024} sc1")

def wflag(off, src=None):
    return (f"s_lshl_b32 s60, s2, 2\ns_add_u32 s60, s60, s{S_W}\ns_lshl_b32 s60, s60, 7\ns_add_u32 s60, s60, {SD_WF:#x}\ns_mov_b64 exec, 1\n"
            f"buffer_store_dwordx2 {src or ar(A_TAG,2)}, off, {sq(S_SRDS)}, s60 offset:{off} sc1\ns_mov_b64 exec, -1")

class P2:
    N1, N2, NH, NU = 14, 16, 20, 12
    NS = N1 + N2
    SA, SW2, SWO, SX, SB, SO, SP, SF = S_SRDO, S_SRDP, 8, S_SRDA, 32, 44, S_SRDB, S_SRDS
    S_SW, S_SA, S_M0, S_PS, S_MT, S_W0, S_A0, S_SLOT, S_COL, S_GOT = 21, 22, 23, 24, 43, 20, 42, 100, 101, 67
    VD = [224, 225, 229, 230]
    VL, VA, VFA, VR, VP, T = V_L16, 226, 231, 232, 244, 248
    AB = [16, 48, 80, 112, 144, 176, 192, 208]
    FB = [0, 32, 64, 96, 128, 160]
    PD = 4
    @staticmethod
    def cum(s): return 2 * s if s <= P2.N1 else 2 * P2.N1 + (s - P2.N1)
    @staticmethod
    def half(s, c): return (P2.cum(s) + c + 11) % P2.NH
    S_TB = 40
    @staticmethod
    def setoff(reg, base, s, sh):
        if s >= P2.N1: return f"s_mov_b32 s{reg}, {(s - P2.N1) << sh:#x}"
        if s >= 12: return f"s_add_u32 s{reg}, s{base}, {s << sh:#x}"
        return f"s_bfe_u32 s{reg}, s{P2.S_TB + s // 8}, {(4 << 16) | (4 * (s % 8)):#x}\ns_lshl_b32 s{reg}, s{reg}, {sh}\ns_add_u32 s{reg}, s{reg}, s{base}"
    @staticmethod
    def adv(reg, base, s, unit): return P2.setoff(reg, base, s + 1, unit.bit_length() - 1)
    @staticmethod
    def table(kind, i0):
        rel = [(0, 0), (0, 1), (0, 2)] + [(k, r) for r in range(3) for k in (1, 2, 3)] if kind == "w1" else \
              [(k, r) for r in range(3) for k in range(4)]
        v = 0
        for n, (k, r) in enumerate(rel): v |= (3 * ((i0 + k) & 3) + r) << (4 * n)
        return v
    @staticmethod
    def dmas(s):
        W = P2.SW2 if s < P2.N1 else P2.SWO
        n = 4 if s < P2.N1 else 2
        return [(f"s_add_u32 m0, s{P2.S_M0}, {P2.half(s, q >> 1)*8192 + (q & 1)*1024:#x}",
                 f"buffer_load_dwordx4 v{P2.VD[q]}, {sq(W)}, s{P2.S_SW} offen lds",
                 P2.adv(P2.S_SW, P2.S_W0, s, 0x20000) if q == n - 1 else None) for q in range(n)]

def p2_pre_setup(T, kind):
    VD = P2.VD
    return [f"v_lshrrev_b32 v{T}, 7, v{V_L16}", f"v_lshlrev_b32 v{T}, 11, v{T}",
            f"v_bfe_u32 v{T+1}, v{V_L16}, 5, 2", f"v_lshrrev_b32 v{T+2}, 8, v{V_L16}", f"v_xor_b32 v{T+1}, v{T+1}, v{T+2}",
            f"v_lshl_add_u32 v{T}, v{T+1}, 5, v{T}", f"v_and_b32 v{T+1}, 16, v{V_L16}", f"v_add_u32 v{T}, v{T}, v{T+1}",
            f"s_lshr_b32 s3, s2, 5\ns_lshl_b32 s3, s3, 1\ns_bfe_u32 s{P2.S_M0}, s2, 0x10001\ns_add_u32 s3, s3, s{P2.S_M0}\ns_lshl_b32 s{P2.S_PS}, s3, 7",
            f"s_lshl_b32 s3, s{S_W}, 15\ns_add_u32 s3, s3, s{P2.S_PS}\nv_add_u32 v{VD[0]}, s3, v{T}",
            f"v_add_u32 v{VD[1]}, 0x4000, v{VD[0]}", f"v_xor_b32 v{VD[2]}, 0x80, v{VD[0]}", f"v_xor_b32 v{VD[3]}, 0x80, v{VD[1]}",
            f"s_lshl_b32 s{P2.S_M0}, s{S_W}, 11",
            f"s_bfe_u32 s3, s2, 0x20001\ns_mul_i32 s{P2.S_W0}, s3, {896*2048}",
            ] + [f"s_bfe_u32 s3, s2, 0x20005\ns_cmp_eq_u32 s3, {i0}\n" +
                 "\n".join((f"s_mov_b32 s{P2.S_TB+h}, {w:#x}" if i0 == 0 else f"s_cselect_b32 s{P2.S_TB+h}, {w:#x}, s{P2.S_TB+h}")
                           for h, w in enumerate((P2.table(kind, i0) & 0xffffffff, P2.table(kind, i0) >> 32))) for i0 in range(4)] + \
           [P2.setoff(P2.S_SW, P2.S_W0, 0, 17)]

def p2_pre_setup2(T):
    VL, VA, VFA, S_MT, S_A0 = V_L16, P2.VA, P2.VFA, P2.S_MT, P2.S_A0
    return [f"s_mov_b32 s{P2.S_COL}, s{P2.S_PS}\ns_mov_b32 s{P2.S_GOT}, 0",
            f"s_lshl_b32 s3, s{S_MB}, 2\ns_add_u32 s3, s3, s{S_W}\ns_lshl_b32 s3, s3, 1\ns_bfe_u32 s{S_MT}, s2, 0x10002\ns_add_u32 s{S_MT}, s{S_MT}, s3",
            f"s_mul_i32 s3, s{S_MT}, {144*2048}\nv_add_u32 v{VA}, s3, v{VL}",
            f"s_xor_b32 s3, s{S_MT}, 1\ns_mul_i32 s3, s3, {144*2048}\nv_add_u32 v{VA+1}, s3, v{VL}",
            f"s_bfe_u32 s3, s2, 0x20001\ns_mul_i32 s{S_A0}, s3, {28*2048}\ns_add_u32 s{S_A0}, s{S_A0}, {32*2048}",
            P2.setoff(P2.S_SA, S_A0, 3, 12),
            f"v_bfe_u32 v{T}, v{VL}, 4, 2", f"v_lshlrev_b32 v{T+1}, 1, v{T}", f"v_xor_b32 v{VFA}, s2, v{T+1}", f"v_bfe_u32 v{T+2}, v{VL}, 6, 2",
            f"v_lshl_add_u32 v{T+1}, v{T+2}, 5, v{T+1}",
            f"s_and_b32 s3, s2, 0x19\ns_or_b32 s3, s3, 0x80\ns_mov_b32 exec_hi, 0\nv_add_u32 v{VFA}, s3, v{T+1}\ns_mov_b32 exec_hi, -1",
            f"s_bfe_u32 s3, s2, 0x20005\nv_add_u32 v{T}, s3, v{T}", f"v_and_b32 v{T}, 3, v{T}", f"v_lshlrev_b32 v{T}, 5, v{T}",
            f"s_and_b32 s3, s2, 0x1f\ns_mov_b64 exec, 0xffff\nv_add_u32 v{VFA}, s3, v{T}\ns_mov_b64 exec, -1",
            f"v_lshlrev_b32 v{VFA}, 9, v{VFA}",
            f"s_lshl_b32 s3, s{S_W}, 7\ns_add_u32 s3, s3, {SD_WF:#x}\nv_add_u32 v{VFA}, s3, v{VFA}"]

def floads(ps):
    o = []
    for p in ps:
        o.append(P2.setoff(60, P2.S_A0, p >> 1, 12))
        for t in range(4):
            o.append(f"buffer_load_dwordx4 {vr(P2.FB[p]+4*t, 4)}, v{P2.VA + (t >> 1)}, {sq(P2.SA)}, s60 offen offset:{(p & 1)*2048 + (t & 1)*1024} sc1")
    return "\n".join(o)

def gen_p2(A, stamp):
    st = Stamp(stamp, 2)
    N1, NS, NH, NU = P2.N1, P2.NS, P2.NH, P2.NU
    SA, SW2, SWO, SX, SB, SO, SP, SF = P2.SA, P2.SW2, P2.SWO, P2.SX, P2.SB, P2.SO, P2.SP, P2.SF
    S_SA, S_PS, S_MT, S_W0, S_A0, S_SLOT, S_COL = P2.S_SA, P2.S_PS, P2.S_MT, P2.S_W0, P2.S_A0, P2.S_SLOT, P2.S_COL
    VL, VA, VFA, VR, VP, T, AB, FB = P2.VL, P2.VA, P2.VFA, P2.VR, P2.VP, P2.T, P2.AB, P2.FB
    cum, half = P2.cum, P2.half
    A.label("L_k2_start")
    st.mark(A)
    A("s_load_dwordx2 s[48:49], s[0:1], 16")
    A("s_load_dwordx4 s[52:55], s[0:1], 56")
    A(f"v_bfe_u32 v{T}, v{VL}, 6, 4")
    A(f"v_lshlrev_b32 v{T}, 7, v{T}")
    A(f"v_bfe_u32 v{T+1}, v{VL}, 4, 2")
    A(f"v_lshl_add_u32 v{T}, v{T+1}, 3, v{T}")
    A(f"v_bfe_u32 v{T+1}, v{VL}, 7, 2")
    for jj in range(4):
        A(f"v_xor_b32 v{T+2}, {jj}, v{T+1}")
        A(f"v_lshl_add_u32 v{VR+jj}, v{T+2}, 5, v{T}")
        A(f"v_add_u32 v{VR+4+jj}, 0x10000, v{VR+jj}")
    A("s_barrier")
    def quad(q, m): return AB[2 * q + (m >> 2)] + (m & 3) * 4
    def acc(t, j): return quad(2 * (t >> 1) + (j >> 2), (j & 3) * 2 + (t & 1))
    def acc2(t, j):
        m = j * 2 + t
        return FB[m >> 2] + (m & 3) * 4
    def ua(s): return cum(s) - 6
    def af(s, ks, t):
        if s < 3: return vr(FB[2 * s + ks] + 4 * t, 4)
        return ar(64 + ((ua(s) + (t >> 1)) % NU) * 16 + (ks * 2 + (t & 1)) * 4, 4)
    SK = par("p2sk", 1)
    units = []
    for s in range(N1 - SK): units += [(s, j, (0, 1, 2, 3)) for j in range(8)]
    for s in range(N1 - SK, N1): units += [(s, j, (0, 1, 2, 3)) for j in range(4, 8)]
    if par("p2split", 1):
        for ts in ((2, 3), (0, 1)):
            for s in range(N1 - SK, N1): units += [(s, j, ts) for j in range(4)]
    else:
        for s in range(N1 - SK, N1): units += [(s, j, (0, 1, 2, 3)) for j in range(4)]
    for s in range(N1, NS): units += [(s, j, (0, 1)) for j in range(4)]
    def wf(u, ks): return ((u % 8) * 2 + ks) * 4
    def read(u, ks, p):
        s, j, _ = units[u]
        hi, so = divmod(half(s, j >> 2), 8)
        return f"ds_read_b64_tr_b16 {ar(wf(u, ks) + 2*p, 2)}, v{VR + hi*4 + (j & 3)} offset:{so*8192 + ks*4096 + p*2048}"
    vm, lg = Score(63), Score(15)
    for u in range(3):
        for q in range(4): A(read(u, q >> 1, q & 1)); lg.issue(("W", u))
    for jj in range(4):
        A(f"v_add_u32 v{VR+8+jj}, 0x20000, v{VR+jj}")
    A(f"s_mul_i32 s{S_PS}, s{S_W}, 12288")
    A(f"s_lshr_b32 s{S_SLOT}, s2, 3")
    A(f"s_lshl_b32 s{S_SLOT}, s{S_SLOT}, 2")
    A(f"s_add_u32 s{S_SLOT}, s{S_SLOT}, s{S_W}")
    def mkpoll(lo, hi, off):
        return (f"s_mov_b32 exec_lo, {lo:#x}\ns_mov_b32 exec_hi, {hi:#x}\n"
                f"buffer_load_dwordx2 v[{VP}:{VP+1}], v{VFA}, {sq(SF)}, 0 offen offset:{off} sc1\ns_mov_b64 exec, -1")
    poll = mkpoll(15, 0, 0)
    def pchk(which, mask):
        m = f"s_and_b32 s3, vcc_lo, {mask:#x}" if mask >= 0 else "s_cmp_lg_u64 vcc, 0"
        return f"v_cmp_ne_u64 vcc, s[56:57], v[{VP}:{VP+1}]\ns_nop 1\n{m}"
    spins = []
    def spin_code(name, chk, poll=poll):
        return (f"L_sp_{name}:\ns_mov_b32 s61, 0\nL_sp1_{name}:\ns_sleep 1\n{poll}\ns_waitcnt vmcnt(0)\ns_add_u32 s61, s61, 1\n"
                f"s_cmp_gt_u32 s61, 0x20000\ns_cbranch_scc1 L_bk_{name}\n{chk}\ns_cbranch_scc1 L_sp1_{name}\ns_branch L_bk_{name}")
    def check(name, which, mask):
        spins.append(spin_code(name, pchk(which, mask), mkpoll(mask, 0, 8 * which)))
        return pchk(which, mask) + f"\ns_cbranch_scc1 L_sp_{name}\nL_bk_{name}:"
    A("s_cmp_lt_u32 s2, 128")
    A("s_cbranch_scc1 L_p2_go")
    A(f"s_cmp_lg_u32 s{P2.S_GOT}, 0")
    A("s_cbranch_scc1 L_p2_go")
    spins.append(spin_code("qa", pchk(0, 3), mkpoll(3, 0, 0)))
    A("s_branch L_sp_qa")
    A.label("L_bk_qa")
    A(floads(range(4)))
    A.label("L_p2_go")
    for p in range(4):
        for t in range(4): vm.issue(("F", p))

    st.mark(A)
    S = Stream(vm, lg)
    ufirst, ulast, fin, sfirst = [], [], {}, {}
    seen = set(); n = 0
    for u, (s, j, ts) in enumerate(units):
        ts = list(ts) if u % 2 == 0 else list(reversed(ts))
        for t in ts:
            kk = (0, 1) if n % 2 == 0 else (1, 0)
            for ks in kk:
                c = acc(t, j) if s < N1 else acc2(t, j)
                cin = vr(c, 4) if c in seen else "0"
                seen.add(c)
                need = [("lg", ("W", u)), ("vm", ("F", min(2 * s + ks, 4)) if s < 3 else ("A", s, t >> 1))]
                idx = S.add_mfma(f"v_mfma_f32_16x16x32_bf16 {vr(c,4)}, {ar(wf(u, ks), 4)}, {af(s, ks, t)}, {cin}", need)
                if len(ufirst) == u: ufirst.append(idx)
                sfirst.setdefault(s, idx)
            fin[(s, t, j)] = idx
            n += 1
        ulast.append(idx)
    NM = len(S.mf)
    bars = []
    for s in range(1, NS):
        u0 = min(u for u, x in enumerate(units) if x[0] == s)
        pos = (ulast[u0 - 8] if u0 >= 8 else 0) - 2
        if bars and pos - bars[-1][0] < par("p2barmin", 12): bars[-1][1].append(s)
        else: bars.append([max(pos, 1), [s]])
    k = 0
    while k + 1 < len(bars):
        if bars[k + 1][0] - bars[k][0] > 96: bars.insert(k + 1, [bars[k][0] + 64, []])
        k += 1
    FLAGB = par("p2flagb", 1)
    barpos = {}
    for k, (pos, steps) in enumerate(bars):
        nd = [("vm", ("D", s)) for s in steps if s >= P2.PD]
        S.gaps[pos].append(("barv", None, None, nd))
        for s in steps: barpos[s] = pos
    i = 0
    for u in range(3, 8):
        for q in range(4): i = S.place(i, "ds", read(u, q >> 1, q & 1), gives=("W", u) if q == 3 else None) + 1
    for u in range(8, len(units)):
        i = ulast[u - 8]
        wide = len(units[u - 7][2]) == 4 and u > 12
        for q in (2, 3, 0, 1):
            i = S.place(i, "ds", read(u, q >> 1, q & 1), gives=("W", u) if q == 1 else None, spill=True) + (2 if wide else 1)
    def half_free(s, c):
        ul = max(u for u, x in enumerate(units) if x[0] == s and (x[1] >> 2) == c)
        return min([pos for pos, _ in bars if pos > ufirst[ul]] + [NM]) + 1
    owner_h = {}; owner_u = {}
    Dq, Aq, Tq = [], [], []
    for s in range(NS):
        nh = 2 if s < N1 else 1
        for q, (m0, d, post) in enumerate(P2.dmas(s)):
            h = half(s, q >> 1)
            e = half_free(*owner_h[h]) if (h in owner_h and owner_h[h] != (s, q >> 1)) else 0
            if q & 1: owner_h[h] = (s, q >> 1)
            elif h not in owner_h: owner_h[h] = (s, q >> 1)
            if s >= P2.PD: Dq.append((e, barpos[s], m0, d + ("\n" + post if post else ""), ("D", s) if post else None))
    CK = {3: sfirst[1] + par("p2c1", -12), 4: sfirst[1] + par("p2c2", 50), 8: sfirst[5], N1: sfirst[7]}
    for s in range(3, NS):
        na = 2 if s < N1 else 1
        gate = max(v for k_, v in CK.items() if k_ <= s) + 1
        for a in range(na):
            un = (ua(s) + a) % NU
            e = gate
            if un in owner_u:
                s0, a0 = owner_u[un]
                e = max(e, max(v for (s_, t_, j_), v in fin.items() if s_ == s0 and (t_ >> 1) == a0) + 1)
            owner_u[un] = (s, a)
            for q in range(4):
                ks, t = q >> 1, q & 1
                txt = f"buffer_load_dwordx4 {af(s, ks, 2*a+t)}, v{VA+a}, {sq(SA)}, s{S_SA} offen offset:{ks*2048 + t*1024} sc1"
                if a == na - 1 and q == 3: txt += "\n" + P2.adv(S_SA, S_A0, s, 4096)
                Aq.append((e, sfirst[s], None, txt, ("A", s, a) if q == 3 else None))
    def T_(pos, txt, gives=None, needs=()): Tq.append((pos, txt, gives, list(needs)))
    T_(par("p2flagb", 90), wflag(16), needs=[("vm", ("F", 3))])
    S.gaps[CK[3] + 1].append(("mark", "s_cmp_lt_u32 s2, 128\ns_cbranch_scc1 L_p2_nof\n" + floads((4, 5)) + "\nL_p2_nof:", ("F", 4), []))
    LAT = par("p2plat", 48)
    for nm, s_, which, mask in (("c1", 3, 0, 14), ("c2", 4, 1, 15), ("c4", 8, 2, 15), ("c5", N1, 2, 0xffff0000)):
        T_(CK[s_] - LAT, mkpoll(mask, 0, 8 * which), ("PL", nm))
        S.gaps[CK[s_]].append(("s", check(nm, which, mask), None, [("vm", ("PL", nm))]))
    S.gaps[sfirst[1]].append(("s", "s_waitcnt lgkmcnt(0)\n" + "\n".join(
        f"s_mov_b32 s{d}, s{lo}\ns_mov_b32 s{d+1}, s{lo+1}\ns_mov_b32 s{d+2}, {nb:#x}\ns_mov_b32 s{d+3}, 0x20000"
        for d, lo, nb in ((SWO, 48, 1024 * 2048), (SB, 52, 2048), (SO, 54, 4 << 20))), None, []))
    for at in PAR.get("cpf3", "2:9").split(":"):
        T_(sfirst[int(at)] + 8, f"s_getpc_b64 s[48:49]\nL_k2_pc3_{at}:\ns_mov_b32 s50, L_k2_spin-L_k2_pc3_{at}\ns_mov_b32 s51, 0x20000\n"
           f"s_lshl_b32 s61, s{S_SLOT}, 8\nv_lshlrev_b32 v{T+6}, 3, v{VL}\ns_mov_b64 exec, 3\n"
           f"buffer_load_dword v{T+7}, v{T+6}, s[48:51], s61 offen\ns_mov_b64 exec, -1")
    for x in PAR.get("k2slow", "0:0:14+3:14:16").split("+"):
        if not x: continue
        wh, f, n_ = map(int, x.split(":"))
        base = f"s_add_u32 s61, s61, s{S_W0}\n" if f < N1 else ""
        T_(sfirst[wh] + 4, f"s_mul_i32 s61, s{S_SLOT}, {n_*1024}\n{base}s_add_u32 s61, s61, {(f if f < N1 else f - N1)*0x20000:#x}\n"
           f"v_lshlrev_b32 v{T+6}, 6, v{VL}\ns_mov_b64 exec, {(1 << n_) - 1:#x}\n"
           f"buffer_load_dword v{T+7}, v{T+6}, {sq(SW2 if f < N1 else SWO)}, s61 offen offset:384\ns_mov_b64 exec, -1")
    XT, MISC, SCR = FB[2], FB[3], FB[4]
    B2R, B2U, VRS, VX = MISC, MISC + 4, MISC + 12, MISC + 14
    T_(sfirst[5] + 8, f"v_and_b32 v{T+6}, 0x70, v{VL}\nbuffer_load_dwordx4 {vr(B2R,4)}, v{T+6}, {sq(SB)}, s{S_COL} offen")
    for t in range(2):
        T_(sfirst[8] + 8, f"s_lshl_b32 s60, s{S_MT}, 7\ns_add_u32 s60, s60, {SD_RS:#x}\nv_bfe_u32 v{T+6}, v{VL}, 4, 4\nv_lshlrev_b32 v{T+6}, 2, v{T+6}\n"
           f"buffer_load_dword v{VRS+t}, v{T+6}, {sq(SF)}, s60 offen offset:{64*t} sc1")
    xl = sfirst[par("k2xld", 10)] + 8
    S.gaps[xl - 2].append(("s", f"v_lshrrev_b32 v{VX}, 7, v{VL}\nv_lshlrev_b32 v{VX}, 11, v{VX}\nv_and_b32 v{VX+1}, 0x70, v{VL}\nv_add_u32 v{VX}, v{VX}, v{VX+1}\n"
                           f"s_lshl_b32 s60, s{S_MT}, 16\ns_add_u32 s60, s60, s{S_COL}\nv_add_u32 v{VX}, s60, v{VX}", None, []))
    for q in range(4):
        T_(xl, f"s_mov_b32 s60, {q*8*2048:#x}\nbuffer_load_dwordx4 {vr(XT+4*q,4)}, v{VX}, {sq(SX)}, s60 offen")
    sent = {}
    for d in (1, 3, 2):
        a, b = d >> 1, d & 1
        for q in range(4):
            j = 4 * b + q
            lo = max(fin[(N1 - 1, t, j)] for t in (2 * a, 2 * a + 1)) + 8
            r0, r1 = quad(d, 2 * q), quad(d, 2 * q + 1)
            i = lo
            for o in (f"v_cvt_pk_bf16_f32 v{r0}, v{r0}, v{r0+1}", f"v_cvt_pk_bf16_f32 v{r0+1}, v{r0+2}, v{r0+3}",
                      f"v_cvt_pk_bf16_f32 v{r0+2}, v{r1}, v{r1+1}", f"v_cvt_pk_bf16_f32 v{r0+3}, v{r1+2}, v{r1+3}"):
                i = S.place(i, "s", o, cap=2)
            T_(i + 1, f"s_mul_i32 s60, s2, 49152\ns_add_u32 s60, s60, s{S_PS}\ns_add_u32 s60, s60, {(d-1)*4096}\n"
               f"buffer_store_dwordx4 {vr(r0,4)}, v{VL}, {sq(SP)}, s60 offen offset:{q*1024} sc1", ("SN", d, q))
            sent[d] = i + 1
    def recv(d, q):
        return (f"s_xor_b32 s60, s2, {d << 1}\ns_mul_i32 s60, s60, 49152\ns_add_u32 s60, s60, s{S_PS}\ns_add_u32 s60, s60, {(d-1)*4096}\n"
                f"buffer_load_dwordx4 {vr(quad(d, 2*q+1),4)}, v{VL}, {sq(SP)}, s60 offen offset:{q*1024} sc1")
    tagv = f"v_mov_b32 v{T+4}, s56\nv_mov_b32 v{T+5}, s57\n"
    SL, FL, PL2 = par("p2sl", 70), par("p2fl", 40), par("p2pl", 50)
    for nm, ds_, which, mask in (("x1", (1, 3), 0, 0xa), ("x2", (2,), 1, 0x4)):
        fpos = max(sent[d] for d in ds_) + SL
        T_(fpos, tagv + wflag(32 + 8 * which, vr(T + 4, 2)), needs=[("vm", ("SN", d, q)) for d in ds_ for q in range(4)])
        ppos = min(fpos + FL, NM - 12)
        cpos = min(ppos + PL2, NM - 6)
        T_(ppos, mkpoll(0, mask, 32 + 8 * which), ("PL", nm))
        chk_ = f"v_cmp_ne_u64 vcc, s[56:57], v[{VP}:{VP+1}]\ns_nop 1\ns_and_b32 s3, vcc_hi, {mask:#x}"
        spins.append(spin_code(nm, chk_, mkpoll(0, mask, 32 + 8 * which)))
        first_ = True
        for d in ds_:
            for q in range(4):
                if first_: T_(cpos, chk_ + f"\ns_cbranch_scc1 L_sp_{nm}\nL_bk_{nm}:\n" + recv(d, q), needs=[("vm", ("PL", nm))])
                else: T_(cpos, recv(d, q))
                first_ = False
        if "verbose" in OPT: print(nm, "sent", [sent[d] for d in ds_], "flag", fpos, "poll", ppos, "check", cpos, "NM", NM, "N1 at", sfirst[N1], file=sys.stderr)
    Tq.sort(key=lambda x: x[0])
    G1, G2 = par("p2g1", 4), par("p2g2", 2)
    p = 1
    while Tq or Dq or Aq:
        assert p < NM + 400
        pp = min(p, NM - 2)
        cand = None
        if Tq and Tq[0][0] <= p:
            _, txt, gv, nd = Tq.pop(0); S.place(pp + 1, "vmX", txt, gives=gv, cap=99, needs=nd); cand = 1
        else:
            hs = [q for q in (Dq, Aq) if q and q[0][0] <= p]
            if hs:
                q = min(hs, key=lambda q: q[0][1])
                e, dl, m0, txt, gv = q.pop(0)
                assert p < dl, f"load misses its deadline {p} {dl} {txt}"
                if m0: S.place(pp, "s", m0, cap=99)
                S.place(pp + 1, "vmD" if m0 else "vmA", txt, gives=gv, cap=99); cand = 1
        urgent = Aq and Aq[0][0] <= p and Aq[0][1] - p < par("p2urg", 110)
        if cand: p += (G1 if p < sfirst[N1] and not urgent else G2)
        else: p += 1
    if stamp:
        for s in map(int, PAR.get("k2marks", "3:7:14:22").split(":")): S.gaps[sfirst[s]].append(("s", st.text(), None, []))
    for x in S.emit("k2"): A(x)
    st.mark(A)
    eh = (half(NS - 1, 0) + 1) % NH
    if eh + 4 > NH: eh = 0
    assert all((eh + w) % NH not in (half(NS - 1, 0), half(NS - 2, 0), half(NS - 3, 0)) for w in range(4))
    A(f"s_lshl_b32 s60, s{S_W}, 13")
    A(f"s_add_u32 s60, s60, {eh*8192}")
    A(f"v_bfe_u32 v{T}, v{VL}, 4, 3")
    A(f"v_lshrrev_b32 v{T+1}, 8, v{VL}")
    A(f"v_xor_b32 v{T}, v{T}, v{T+1}")
    A(f"v_and_b32 v{T+1}, 0xf0, v{VL}")
    A(f"v_lshlrev_b32 v{T+1}, 4, v{T+1}")
    A(f"v_add_u32 v{T+1}, s60, v{T+1}")
    A(f"v_lshl_add_u32 v{T+2}, v{T}, 4, v{T+1}")
    A(f"v_xor_b32 v{T}, 4, v{T}")
    A(f"v_lshl_add_u32 v{T+3}, v{T}, 4, v{T+1}")
    A(f"v_lshrrev_b32 v{T}, 7, v{VL}")
    A(f"v_bfe_u32 v{T+1}, v{VL}, 4, 3")
    A(f"v_lshlrev_b32 v{T+1}, 1, v{T+1}")
    A(f"v_xor_b32 v{T+1}, v{T+1}, v{T}")
    A(f"v_lshlrev_b32 v{T}, 8, v{T}")
    A(f"v_add_u32 v{T}, s60, v{T}")
    A(f"v_lshl_add_u32 v{T+4}, v{T+1}, 4, v{T}")
    A(f"v_xor_b32 v{T+5}, 16, v{T+4}")
    A("s_mov_b32 s63, 0xffff0000")
    A("s_waitcnt vmcnt(0)")
    A(f"v_pk_mul_f32 v[{VRS}:{VRS+1}], v[{VRS}:{VRS+1}], v[{VRS}:{VRS+1}]")
    for i in range(4):
        A(f"v_lshlrev_b32 v{B2U+2*i}, 16, v{B2R+i}")
        A(f"v_and_b32 v{B2U+2*i+1}, s63, v{B2R+i}")
    for j in range(4):
        for t in range(2):
            c, c2 = acc(t, j), acc2(t, j)
            for n_, d in enumerate((1, 2, 3)):
                r0 = quad(d, 2 * j + 1) + 2 * t
                for k in range(2):
                    A(f"v_lshlrev_b32 v{SCR+4*n_+2*k}, 16, v{r0+k}")
                    A(f"v_and_b32 v{SCR+4*n_+2*k+1}, s63, v{r0+k}")
            for n_ in range(3):
                A(f"v_pk_add_f32 v[{c}:{c+1}], v[{c}:{c+1}], v[{SCR+4*n_}:{SCR+4*n_+1}]")
                A(f"v_pk_add_f32 v[{c+2}:{c+3}], v[{c+2}:{c+3}], v[{SCR+4*n_+2}:{SCR+4*n_+3}]")
            o = "op_sel_hi:[1,0,1]" if t == 0 else "op_sel:[0,1,0]"
            A(f"v_pk_fma_f32 v[{c}:{c+1}], v[{c}:{c+1}], v[{VRS}:{VRS+1}], v[{c2}:{c2+1}] {o}")
            A(f"v_pk_fma_f32 v[{c+2}:{c+3}], v[{c+2}:{c+3}], v[{VRS}:{VRS+1}], v[{c2+2}:{c2+3}] {o}")
            A(f"ds_write_b128 v{T+2+(j&1)}, v[{c}:{c+3}] offset:{t*4096 + (j>>1)*128}")
    A("s_waitcnt lgkmcnt(0)")
    RB = 192
    for q in range(4):
        A(f"ds_read_b128 v[{RB+8*q}:{RB+8*q+3}], v{T+4} offset:{q*2048}")
        A(f"ds_read_b128 v[{RB+8*q+4}:{RB+8*q+7}], v{T+5} offset:{q*2048}")
    for q in range(4):
        for i in range(4):
            A(f"v_lshlrev_b32 v{2*i}, 16, v{XT+4*q+i}")
            A(f"v_and_b32 v{2*i+1}, s63, v{XT+4*q+i}")
        for i in range(4): A(f"v_pk_add_f32 v[{2*i}:{2*i+1}], v[{2*i}:{2*i+1}], v[{B2U+2*i}:{B2U+2*i+1}]")
        A(f"s_waitcnt lgkmcnt({6-2*q})")
        for i in range(4): A(f"v_pk_add_f32 v[{2*i}:{2*i+1}], v[{2*i}:{2*i+1}], v[{RB+8*q+2*i}:{RB+8*q+2*i+1}]")
        for i in range(4): A(f"v_cvt_pk_bf16_f32 v{8+4*q+i}, v{2*i}, v{2*i+1}")
        A(f"s_mov_b32 s60, {q*8*2048:#x}")
        A(f"buffer_store_dwordx4 v[{8+4*q}:{11+4*q}], v{VX}, {sq(SO)}, s60 offen sc1")
    st.flush(A, 58, 59, 112, f"s{S_W}")
    A("s_endpgm")
    A.label("L_k2_spin")
    for x in spins: A(x)

def main():
    ap = argparse.ArgumentParser()
    ap.add_argument("--stamp", action="store_true")
    ap.add_argument("-o", default=None)
    ap.add_argument("--opt", default="")
    ap.add_argument("--par", default="")
    a = ap.parse_args()
    OPT.update(x for x in a.opt.split(",") if x)
    PAR.update(dict(x.split("=") for x in a.par.split(",") if x))
    P2.PD = par("p2pd", 4)
    A = Asm()
    hdr = open("cdna_kernels/%s.s.ref" % NAME).read().split("\n")
    for line in hdr:
        if line.startswith(";") and "@launch" not in line and "Override" not in line and "grid=ceil" not in line:
            A.raw(line)
    aslist = a.stamp or "aslist" in OPT
    KN = "gemm1_kernel" if aslist else NAME + "_kernel"
    A.raw("; @launch %sgrid=(256,1,1) block=(256,1,1) lds=163840" % ("kernel=gemm1_kernel " if aslist else ""))
    A.raw('.amdgcn_target "amdgcn-amd-amdhsa--gfx950"\n.text')
    gen_k1(A, KN, a.stamp)
    gen_p2(A, a.stamp)
    if not any(o.startswith(('k1no', 'k2no')) for o in OPT): check_hazards(A.L)
    A.raw('.section .rodata,"a"')
    kernel_desc(A, KN, 512, 256)
    out = a.o or "cdna_kernels/%s.s" % NAME
    open(out, "w").write(A.text())

if __name__ == "__main__":
    main()
```

```python
import sys, argparse

NAME = "parallel_sum__sliding_local_dilated__dense_activation_squared_relu__prompt"

WS_A2 = 4 << 20
A2_BYTES = 2048 * 4608 * 2
WS_PART = 32 << 20
WS_SIDE = 48 << 20
SD_FLAG, SD_Q, SD_RS, SD_P = 0, 0x10000, 0x20000, 0x40000
SD_WF = SD_P + 416 * 1024
SD_BYTES = SD_WF + 1024 * 128
WS_STAMP = 64 << 20

OPT = set()
PAR = {}
def par(k, d): return int(PAR.get(k, d))

class Asm:
    def __init__(self): self.L = []
    def __call__(self, s):
        for line in s.split("\n"):
            t = line.strip()
            self.L.append(t if t.endswith(":") else "  " + t)
    def label(self, s): self.L.append(s + ":")
    def raw(self, s): self.L.append(s)
    def text(self): return "\n".join(self.L) + "\n"

def vr(b, n=1, f="v"): return f"{f}{b}" if n == 1 else f"{f}[{b}:{b+n-1}]"
def ar(b, n=1): return vr(b, n, "a")
def sq(b): return f"s[{b}:{b+3}]"

def kernel_head(A, name):
    A.raw(f".globl {name}\n.p2align 8\n.type {name},@function\n{name}:")

def kernel_desc(A, name, nvgpr, accum, nsgpr=102):
    A.raw(f".p2align 6\n.amdhsa_kernel {name}\n  .amdhsa_next_free_vgpr {nvgpr}\n  .amdhsa_next_free_sgpr {nsgpr}\n"
          f"  .amdhsa_accum_offset {accum}\n  .amdhsa_group_segment_fixed_size 0\n  .amdhsa_kernarg_size 88\n"
          f"  .amdhsa_user_sgpr_count 2\n  .amdhsa_user_sgpr_kernarg_segment_ptr 1\n  .amdhsa_system_sgpr_workgroup_id_x 1\n"
          f"  .amdhsa_float_denorm_mode_32 3\n.end_amdhsa_kernel")

def srd(A, d, lo, hi, nbytes, add=0):
    if add:
        A(f"s_add_u32 s{d}, s{lo}, {add:#x}")
        A(f"s_addc_u32 s{d+1}, s{hi}, 0")
    else:
        A(f"s_mov_b32 s{d}, s{lo}")
        A(f"s_mov_b32 s{d+1}, s{hi}")
    if nbytes is not None: A(f"s_mov_b32 s{d+2}, {nbytes:#x}")
    A(f"s_mov_b32 s{d+3}, 0x20000")

class Stamp:
    def __init__(self, on, kidx): self.on, self.kidx, self.n = on, kidx, 0
    def text(self):
        if not self.on: return None
        t = f"s_memrealtime s[{68+2*self.n}:{69+2*self.n}]\ns_memtime s[{84+2*self.n}:{85+2*self.n}]"
        self.n += 1
        assert self.n <= 8
        return t
    def mark(self, A):
        t = self.text()
        if t: A(t)
    def flush(self, A, ws_lo, ws_hi, vtmp, s_wave, vaddr=None):
        if not self.on: return
        self.mark(A)
        A("s_waitcnt lgkmcnt(0)")
        A(f"s_lshl_b32 s100, s2, 3")
        A(f"s_add_u32 s100, s100, {s_wave}")
        A(f"s_lshl_b32 s100, s100, 6")
        srd(A, 8, ws_lo, ws_hi, 0x100000, WS_STAMP + self.kidx * 0x40000)
        for i in range(16):
            A(f"v_mov_b32 v{vtmp+i}, s{68+2*i}" if i % 8 < self.n else f"v_mov_b32 v{vtmp+i}, 0")
        if vaddr is None: vaddr = vtmp + 16
        A(f"v_mov_b32 v{vaddr}, s100")
        A("s_mov_b64 exec, 1")
        for q in range(4):
            A(f"buffer_store_dwordx4 v[{vtmp+4*q}:{vtmp+4*q+3}], v{vaddr}, s[8:11], 0 offen offset:{16*q}")

class Score:
    def __init__(self, maxn):
        self.n = 0; self.idx = {}; self.done = 0; self.maxn = maxn
    def issue(self, tag=None):
        self.n += 1
        if tag is not None: self.idx[tag] = self.n
        assert self.n - self.done <= 63 or self.maxn == 15, "too many outstanding"
    def need(self, tags, slack=None):
        y = max(self.idx[t] for t in tags)
        if y <= self.done: return None
        N = self.n - y
        if slack is not None: N = min(N, slack)
        N = min(N, self.maxn)
        self.done = self.n - N
        return N
    def drain(self): self.done = self.n
    def skip(self, tag=None):
        if tag is not None: self.idx[tag] = 0

LG_SLACK = 8
class Stream:
    def __init__(self, vm, lg):
        self.mf = []; self.gaps = []; self.used = []; self.vm, self.lg = vm, lg
    def add_mfma(self, text, needs=()):
        self.mf.append((text, list(needs))); self.gaps.append([]); self.used.append(0)
        return len(self.mf) - 1
    def place(self, i0, kind, text, gives=None, needs=(), cap=1, spill=False):
        i = i0
        while i < len(self.mf) and self.used[i] >= cap: i += 1
        if i >= len(self.mf):
            assert spill, "no free gap"
            i = len(self.mf) - 1
        self.used[i] += 1
        self.gaps[i].append((kind, text, gives, list(needs)))
        return i
    def waits(self, needs, out, lgz=False):
        w = []
        lt = [t for c, t in needs if c == "lg"]; vt = [t for c, t in needs if c == "vm"]
        if lgz:
            if self.lg.done < self.lg.n: w.append("lgkmcnt(0)")
            self.lg.drain()
        elif lt:
            n = self.lg.need(lt, slack=LG_SLACK)
            if n is not None: w.append(f"lgkmcnt({n})")
        if vt:
            n = self.vm.need(vt)
            if n is not None: w.append(f"vmcnt({n})")
        if w: out.append("s_waitcnt " + " ".join(w))
    def emit(self, pfx):
        out = []
        for (text, needs), gap in zip(self.mf, self.gaps):
            self.waits(needs, out)
            if pfx + "nomfma" not in OPT: out.append(text)
            for kind, t, gives, nd in gap:
                if kind == "ds" and pfx + "nords" in OPT: self.lg.skip(gives); continue
                if kind == "vmA" and pfx + "noA" in OPT: self.vm.skip(gives); continue
                if kind == "vmD" and pfx + "noD" in OPT: self.vm.skip(gives); continue
                if kind == "mark":
                    self.waits(nd, out); out.append(t); self.vm.idx[gives] = self.vm.n + 1
                    continue
                if kind in ("bar", "barv"):
                    self.waits(nd, out, lgz=(kind == "bar"))
                    out.append("s_barrier")
                    continue
                self.waits(nd, out)
                if kind == "ds": self.lg.issue(gives)
                if kind.startswith("vm"):
                    if self.vm.n - self.vm.done >= 52:
                        out.append("s_waitcnt vmcnt(40)"); self.vm.done = self.vm.n - 40
                    self.vm.issue(gives)
                out.append(t)
        return out

def check_hazards(lines):
    import re
    def regs(tok):
        tok = tok.strip().strip("|").lstrip("-")
        m = re.fullmatch(r"([va])(\d+)", tok)
        if m: return {(m.group(1), int(m.group(2)))}
        m = re.fullmatch(r"([va])\[(\d+):(\d+)\]", tok)
        if m: return {(m.group(1), i) for i in range(int(m.group(2)), int(m.group(3)) + 1)}
        return set()
    hist = []
    pos = 0
    for ln in lines:
        t = ln.strip()
        if not t or t.endswith(":") or t.startswith(";") or t.startswith("."): continue
        mn = t.split()[0]
        ops = [o.split()[0] if o.split() else o for o in t[len(mn):].split(",")]
        R = [regs(o) for o in ops]
        if mn == "s_nop":
            pos += int(ops[0]) + 1; continue
        is_mfma = mn.startswith("v_mfma"); is_valu = mn.startswith("v_") and not is_mfma
        is_mem = mn.startswith("buffer_") or mn.startswith("ds_")
        if is_mfma or is_valu or is_mem:
            allr = set().union(*R) if R else set()
            for kind, wr, sc, p in hist[-24:]:
                d = pos - p - 1
                if kind == "mfma":
                    if is_mfma:
                        if (R[1] | R[2]) & wr and d < 8: raise Exception(f"hazard MFMA->MFMA AB: {t}")
                        if R[3] & wr and R[3] != wr and d < 6: raise Exception(f"hazard MFMA->MFMA C overlap: {t}")
                    else:
                        if allr & wr and d < 8: raise Exception(f"hazard MFMA->{mn} d={d}: {t}")
                        if is_valu and R[0] & sc and d < 3: raise Exception(f"hazard MFMA srcC WAR: {t}")
                elif kind == "valu":
                    if is_mfma and (R[1] | R[2] | R[3]) & wr and d < 2: raise Exception(f"hazard VALU->MFMA: {t}")
                    if is_valu and ("dpp" in mn or "permlane" in mn) and allr & wr and d < 2: raise Exception(f"hazard VALU->DPP: {t}")
                    if mn.startswith("v_readfirstlane") and R[1] & wr and d < 1: raise Exception(f"hazard VALU->readlane: {t}")
                elif kind == "trans":
                    if is_mfma and (R[1] | R[2] | R[3]) & wr and d < 2: raise Exception(f"hazard VALU->MFMA: {t}")
                    if is_valu and set().union(*R[1:]) & wr and d < 1: raise Exception(f"hazard trans->VALU: {t}")
                elif kind == "store":
                    if is_valu and R[0] & wr and d < 2: raise Exception(f"hazard store data WAR: {t}")
            if is_mfma: hist.append(("mfma", R[0], R[3], pos))
            elif is_valu:
                wr = set(R[0])
                if "swap" in mn: wr |= R[1]
                tr = any(mn.startswith(x) for x in ("v_exp", "v_rcp", "v_rsq", "v_sqrt", "v_log"))
                hist.append(("trans" if tr else "valu", wr, set(), pos))
            elif mn.startswith("buffer_store_dwordx4"): hist.append(("store", R[0], set(), pos))
        pos += 1

RING0 = 2048
S_SRDA, S_SRDW, S_SRDO, S_SRDS, S_SRDB, S_SRDC, S_SRDP, S_SRDT = 4, 8, 12, 16, 28, 32, 36, 40
S_C, S_SOFW, S_SOFW2, S_M0B, S_M0A, S_W, S_MB, S_NT = 20, 21, 22, 23, 24, 25, 26, 27
S_CF, S_CHF = 44, 45
S_X0 = 46
S_CODE = 48
S_AROW = 62
V_AD, V_AR, V_L16, V_D, V_R, V_RH, V_T = 224, 226, 228, 229, 232, 240, 244
A_CS, A_P, A_Q, A_SEL, A_DUM, A_RAW, A_ONE = 136, 136, 200, 220, 224, 228, 244
A_TAG, A_NEG = 226, 248

RSQ, RSK = 212, 216

class K1Var:
    def __init__(self, kind):
        self.kind = kind
        if kind == "w1": self.NJ, self.NT, self.CH, self.pitch = 14, 4, 7168, 7168
        else: self.NJ, self.NT, self.CH, self.pitch = 12, 5, 6144, 6144
        self.SL = 4 * self.CH
        self.ASL = self.NT * 2048
        self.ABASE = RING0 + 3 * self.SL
        self.AA = 56
        self.TMK = par("tmk", 3) if kind == "w1" else 0
        U = [(s, j) for s in range(14) for j in range(self.NJ)]
        if self.TMK:
            U += [(14, j) for j in range(self.TMK)]
            for j in range(self.NJ):
                U.append((15, j))
                if j + self.TMK < self.NJ: U.append((14, j + self.TMK))
        else: U += [(s, j) for s in (14, 15) for j in range(self.NJ)]
        self.U = U
        self.slot = {u: n % (self.NJ // 2) for n, u in enumerate(U)}
    def wfrag(self, s, j, ks): return self.slot[(s, j)] * 8 + ks * 4
    def afrag(self, st, ks, t): return self.AA + ((st * 2 + ks) * self.NT + t) * 4
    def acc(self, t, j):
        if t < 4: return (j * 4 + t) * 4
        return 192 + (0 if j == 4 else 4)
    def groups(self):
        return [(j, [0, 1, 2, 3] + ([4] if self.kind == "qkv" and j in (4, 8) else [])) for j in range(self.NJ)]
    def mm(self, t, j, w, x, zero=False):
        c = vr(self.acc(t, j), 4)
        cin = "0" if zero else c
        if self.kind == "qkv" and j >= 8: w, x = x, w
        return f"v_mfma_f32_16x16x32_bf16 {c}, {w}, {x}, {cin}"
    def mfma(self, s, ks, t, j, zero=False):
        return self.mm(t, j, ar(self.wfrag(s, j, ks), 4), ar(self.afrag(s % 2, ks, t), 4), zero)
    def corr(self, t, j): return self.mm(t, j, ar(A_P + 4 * j, 4), ar(A_Q + 4 * t, 4))
    def read(self, s, ks, j, p):
        st, so = divmod(s % 3, 2)
        base = RING0 + so * self.SL + ks * 2 * self.CH
        d = ar(self.wfrag(s, j, ks) + 2 * p, 2)
        if j < 12:
            b, jj = divmod(j, 4)
            return f"ds_read_b64_tr_b16 {d}, v{V_R + st*4 + jj} offset:{base + b*1024 + p*512}"
        return f"ds_read_b64_tr_b16 {d}, v{V_RH + st*2 + (j-12)} offset:{base + p*256}"
    def aread(self, s, ks, t):
        return f"ds_read_b128 {ar(self.afrag(s % 2, ks, t), 4)}, v{V_AR+ks} offset:{(s % 2)*self.ASL + t*2048}"
    def admas(self, s, t):
        out = []
        for u in range(2):
            tgt = (s % 2) * self.ASL + t * 2048 + u * 1024
            out.append((f"s_add_u32 m0, s{S_M0A}, {tgt + 2048 - s*128:#x}",
                        f"buffer_load_dwordx4 v{V_AD+u}, {sq(S_SRDA)}, s{S_AROW+t} offen offset:{s*128} lds"))
        return out
    def dmas(self, s):
        out = []
        base = RING0 + (s % 3) * self.SL
        W = sq(S_SRDW)
        for rg in range(2):
            for b in range(3):
                tgt = base + rg * 3072 + b * 1024
                if self.kind == "w1": imm, so = b * 128, S_SOFW
                else: imm, so = (b * 2048, S_SOFW) if b < 2 else (0, S_SOFW2)
                out.append((f"s_add_u32 m0, s{S_M0B}, {tgt - imm:#x}",
                            f"buffer_load_dwordx4 v{V_D+rg}, {W}, s{so} offen offset:{imm} lds"))
        if self.kind == "w1":
            out.append((f"s_add_u32 m0, s{S_M0B}, {base + 6144:#x}",
                        f"buffer_load_dwordx4 v{V_D+2}, {W}, s{S_SOFW} offen lds"))
        return out
    def sof_adv(self):
        r = [f"s_add_u32 s{S_SOFW}, s{S_SOFW}, {64*self.pitch:#x}"]
        if self.kind == "qkv": r.append(f"s_add_u32 s{S_SOFW2}, s{S_SOFW2}, {64*self.pitch:#x}")
        return r

def k1_variant(A, V, stamp):
    A1 = A
    kind = V.kind
    st = Stamp(stamp, 1); st.n = 1
    NS, H, CH = 16, V.NJ // 2, V.CH
    lane, l16, g = 100, 101, 102
    T = 104
    X = S_X0
    if kind == "w1":
        A(f"s_lshr_b32 s{X}, s{S_NT}, 2")
        A(f"s_mul_i32 s{X}, s{X}, 1792")
        A(f"s_and_b32 s{X+1}, s{S_NT}, 3")
        A(f"s_mul_i32 s{X+2}, s{X+1}, 384")
        A(f"s_add_u32 s{S_CF}, s{X}, s{X+2}")
        A(f"s_lshl_b32 s{X+2}, s{X+1}, 6")
        A(f"s_add_u32 s{S_CHF}, s{X}, s{X+2}")
        A(f"s_add_u32 s{S_CHF}, s{S_CHF}, 1536")
    else:
        A(f"s_lshl_b32 s{S_CF}, s{S_NT}, 7")
    r, pc, x, y = T, T + 1, T + 2, T + 3
    A(f"v_lshrrev_b32 v{r}, 3, v{lane}")
    A(f"v_bfe_u32 v{x}, v{lane}, 1, 2")
    A(f"v_bfe_u32 v{y}, v{lane}, 4, 1")
    A(f"v_xor_b32 v{x}, v{x}, v{y}")
    A(f"v_and_b32 v{pc}, 1, v{lane}")
    A(f"v_mul_u32_u24 v{r}, {V.pitch}, v{r}")
    A(f"v_lshl_add_u32 v{y}, v{pc}, 4, v{r}")
    A(f"s_mul_i32 s{X+3}, s{S_W}, {16*V.pitch}")
    A(f"s_add_u32 s{X+4}, s{X+3}, s{S_CF}")
    A(f"v_lshl_add_u32 v{V_D}, v{x}, 5, v{y}")
    A(f"v_add_u32 v{V_D}, s{X+4}, v{V_D}")
    A(f"v_xor_b32 v{x}, 2, v{x}")
    A(f"v_lshl_add_u32 v{V_D+1}, v{x}, 5, v{y}")
    A(f"s_add_u32 s{X+4}, s{X+4}, {8*V.pitch}")
    A(f"v_add_u32 v{V_D+1}, s{X+4}, v{V_D+1}")
    if kind == "w1":
        A(f"v_lshrrev_b32 v{T+4}, 2, v{lane}")
        A(f"v_mul_u32_u24 v{T+4}, {V.pitch}, v{T+4}")
        A(f"v_bfe_u32 v{T+5}, v{lane}, 1, 1")
        A(f"v_bfe_u32 v{T+6}, v{lane}, 5, 1")
        A(f"v_xor_b32 v{T+5}, v{T+5}, v{T+6}")
        A(f"v_lshl_add_u32 v{T+4}, v{T+5}, 5, v{T+4}")
        A(f"v_lshl_add_u32 v{T+4}, v{pc}, 4, v{T+4}")
        A(f"s_add_u32 s{X+4}, s{X+3}, s{S_CHF}")
        A(f"v_add_u32 v{V_D+2}, s{X+4}, v{T+4}")
    A(f"s_mul_i32 s{S_M0B}, s{S_W}, {CH}")
    rounds = []
    VSL, VSX = 200, 201
    slow = [x.split(":") for x in PAR.get("k1slow" if kind == "qkv" else "k1sloww", "p:0:4+r:4:12+6:10:6" if kind == "qkv" else "").split("+") if x]
    slowx = PAR.get("k1slowx", "")
    S_SLOT = 55
    LPR = 4 if kind == "qkv" else 2
    if slow:
        A(f"v_lshrrev_b32 v{VSL}, {2 if kind == 'qkv' else 1}, v{lane}")
        A(f"v_mul_u32_u24 v{VSL}, {V.pitch}, v{VSL}")
        A(f"s_bfe_u32 s{X+5}, s2, 0x20001")
        if kind == "qkv":
            A(f"v_and_b32 v{T+4}, 3, v{lane}")
            A(f"v_min_u32 v{T+4}, 2, v{T+4}")
            A(f"v_lshl_add_u32 v{VSL}, v{T+4}, 11, v{VSL}")
            A(f"s_lshl_b32 s{X+5}, s{X+5}, 9")
            A(f"s_add_u32 s{X+5}, s{X+5}, 384")
            A(f"s_bitcmp1_b32 s2, 1")
            A(f"s_cselect_b32 s{X+5}, 0x7000000, s{X+5}")
        else:
            A(f"v_lshl_add_u32 v{VSL}, v{pc}, 10, v{VSL}")
            A(f"s_lshl_b32 s{X+5}, s{X+5}, 11")
            A(f"s_min_u32 s{X+5}, s{X+5}, 5120")
            A(f"s_add_u32 s{X+5}, s{X+5}, 384")
        A(f"v_add_u32 v{VSL}, s{X+5}, v{VSL}")
        A(f"s_bfe_u32 s{S_SLOT}, s2, 0x40003")
        A(f"s_lshl_b32 s{S_SLOT}, s{S_SLOT}, 2")
        A(f"s_add_u32 s{S_SLOT}, s{S_SLOT}, s{S_W}")
    def slowpf(s0, n):
        v = (1 << (LPR * n)) - 1
        return (f"s_mul_i32 s3, s{S_SLOT}, {n*V.pitch}\ns_add_u32 s3, s3, {64*s0*V.pitch:#x}\n"
                f"s_mov_b32 exec_lo, {v & 0xffffffff:#x}\ns_mov_b32 exec_hi, {v >> 32:#x}\n"
                f"buffer_load_dword a{A_DUM}, v{VSL}, {sq(S_SRDW)}, s3 offen\ns_mov_b64 exec, -1")
    def pro_R(where):
        for wh, s0, n in slow:
            if wh == where: A1(slowpf(int(s0), int(n))); vm.issue()
    vm, lg = Score(63), Score(15)
    for t in range(4):
        vm.issue(); vm.issue(("A", 0, t))
    def pro_A(s, ts=None):
        for t in (ts if ts is not None else range(V.NT)):
            for u, (m0, d) in enumerate(V.admas(s, t)):
                A1(m0); A1("s_nop 0"); A1(d); vm.issue(("A", s, t) if u == 1 else None)
    def pro_W(s):
        dm = V.dmas(s)
        for n, (m0, d) in enumerate(dm):
            A1(m0); A1("s_nop 0"); A1(d); vm.issue(("D", s) if n == len(dm) - 1 else None)
        for x_ in V.sof_adv(): A1(x_)
    EW = par("earlyW", 1)
    if EW:
        pro_R("p"); pro_W(0); pro_A(0, range(4, V.NT))
    if "promarks" in OPT: st.mark(A)
    WSL, WSH = 14, 15
    A(f"s_mov_b32 s100, s{WSL}"); A(f"s_mov_b32 s101, s{WSH}")
    srd(A, S_SRDC, 12, 13, 8)
    srd(A, S_SRDT, 100, 101, None, WS_SIDE + SD_FLAG)
    A(f"s_cmp_eq_u32 s{S_W}, 0")
    A(f"s_cselect_b32 s{S_SRDT+2}, 0x8000, 0")
    srd(A, S_SRDS, 100, 101, SD_BYTES, WS_SIDE)
    srd(A, S_SRDO, 100, 101, A2_BYTES, WS_A2)
    if kind == "w1":
        srd(A, S_SRDB, 58, 59, None)
        A(f"s_cmp_eq_u32 s{S_MB}, 0")
        A(f"s_cselect_b32 s{S_SRDB+2}, 7168, 0")
    A("s_mov_b32 s58, s100"); A("s_mov_b32 s59, s101")
    A(f"s_mov_b32 s101, s36"); A(f"s_mov_b32 s{S_C}, s37")
    A(f"s_mov_b32 s{S_SRDP}, s38"); A(f"s_mov_b32 s{S_SRDP+1}, s39")
    A(f"s_mov_b32 s{S_SRDP+2}, {1024*2048:#x}")
    A(f"s_mov_b32 s{S_SRDP+3}, 0x20000")
    A(f"s_lshl_b32 s100, s2, 2")
    A(f"s_add_u32 s100, s100, s{S_W}")
    VCA, VCS, VB1, VDC, VW = V_T, V_T + 1, V_T + 2, V_T + 4, V_T + 8
    A(f"v_and_b32 v{T+4}, 7, v{lane}")
    A(f"v_lshl_add_u32 v{VCA}, v{T+4}, 4, v{r}")
    if kind == "w1":
        A(f"s_lshl_b32 s{X+5}, s{S_W}, 7")
        A(f"s_add_u32 s{X+5}, s{X+5}, s{S_CF}")
        A(f"s_cmp_eq_u32 s{S_W}, 3")
        A(f"s_cselect_b32 s{X+5}, s{S_CHF}, s{X+5}")
        A(f"v_lshlrev_b32 v{VB1}, 4, v{T+4}")
        A(f"v_lshl_add_u32 v{VB1}, v{g}, 3, v{VB1}")
        A(f"v_add_u32 v{VB1}, s{X+5}, v{VB1}")
        A(f"s_lshr_b32 s{X+6}, s{X+5}, 5")
        A(f"s_add_u32 s{X+6}, s{X+6}, 192")
    else:
        A(f"s_min_u32 s{X+5}, s{S_W}, 2")
        A(f"s_lshl_b32 s{X+5}, s{X+5}, 11")
        A(f"s_add_u32 s{X+5}, s{X+5}, s{S_CF}")
        A(f"v_mov_b32 v{VB1}, 0"); A(f"v_mov_b32 v{VB1+1}, 0"); vm.skip("B1")
        A(f"s_lshr_b32 s{X+6}, s{X+5}, 5")
    A(f"s_and_b32 s{X+7}, s{S_MB}, 3")
    A(f"s_lshl_b32 s{X+7}, s{X+7}, 1")
    A(f"s_lshr_b32 s3, s{S_MB}, 2")
    A(f"s_add_u32 s{X+7}, s{X+7}, s3")
    A(f"s_mul_i32 s{X+7}, s{X+7}, {128*V.pitch:#x}")
    A(f"s_add_u32 s{X+7}, s{X+7}, s{X+5}")
    S_CSL, S_CSS = X + 7, X + 6
    A(f"s_lshl_b32 s{S_CSS}, s{S_CSS}, 10")
    A(f"s_lshr_b32 s{X+5}, s{S_MB}, 1")
    A(f"s_lshl_b32 s{X+5}, s{X+5}, 8")
    A(f"s_add_u32 s{S_CSS}, s{S_CSS}, s{X+5}")
    A(f"s_and_b32 s{X+5}, s{S_MB}, 1")
    A(f"s_lshl_b32 s{X+5}, s{X+5}, 3")
    A(f"s_add_u32 s{S_CSS}, s{S_CSS}, s{X+5}")
    A(f"s_add_u32 s{S_CSS}, s{S_CSS}, {SD_P:#x}")
    A(f"v_lshrrev_b32 v{T+5}, 1, v{T+4}")
    A(f"v_lshlrev_b32 v{VCS}, 10, v{T+5}")
    A(f"v_lshl_add_u32 v{VCS}, v{pc}, 7, v{VCS}")
    A(f"v_lshl_add_u32 v{VCS}, v{g}, 6, v{VCS}")
    if kind == "w1":
        A(f"s_cmp_eq_u32 s{S_W}, 3")
        A(f"s_cselect_b32 s{X+5}, 0x2c, 0x28")
    else:
        A(f"s_mov_b32 s{X+5}, 0x28")
    A(f"v_and_b32 v{T+5}, s{X+5}, v{lane}")
    A(f"v_lshl_add_u32 v{VCS}, v{T+5}, 24, v{VCS}")
    A(f"v_lshlrev_b32 v{T+5}, 4, v{pc}")
    A(f"v_mov_b32 v{T+6}, 0x3f80")
    A(f"v_lshlrev_b32 v{T+6}, v{T+5}, v{T+6}")
    A(f"v_lshrrev_b32 v{T+5}, 1, v{l16}")
    for q in range(4):
        A(f"v_cmp_eq_u32 vcc, {q}, v{T+5}")
        A("s_nop 1")
        A(f"v_cndmask_b32 v{T+7}, 0, v{T+6}, vcc")
        A(f"v_accvgpr_write_b32 a{A_SEL+q}, v{T+7}")
    A(f"v_xor_b32 v{T+4}, v{T+5}, v{g}")
    A(f"v_lshlrev_b32 v{T+5}, 7, v{l16}")
    A(f"v_add_u32 v{T+5}, s{S_M0A}, v{T+5}")
    A(f"v_add_u32 v{T+5}, 2048, v{T+5}")
    A(f"v_lshl_add_u32 v{V_AR}, v{T+4}, 4, v{T+5}")
    A(f"v_xor_b32 v{T+4}, 4, v{T+4}")
    A(f"v_lshl_add_u32 v{V_AR+1}, v{T+4}, 4, v{T+5}")
    rp, c, sw, b = T + 4, T + 5, T + 6, T + 7
    A(f"v_bfe_u32 v{rp}, v{lane}, 2, 2")
    A(f"v_and_b32 v{c}, 3, v{lane}")
    A(f"v_bfe_u32 v{sw}, v{lane}, 3, 2")
    if kind == "qkv": A(f"v_xor_b32 v{sw}, s{S_W}, v{sw}")
    A(f"v_lshrrev_b32 v{b}, 5, v{lane}")
    A(f"v_mul_u32_u24 v{b}, {CH}, v{b}")
    A(f"v_lshl_add_u32 v{b}, v{c}, 3, v{b}")
    A(f"v_bfe_u32 v{T+8}, v{lane}, 4, 1")
    A(f"v_mul_u32_u24 v{T+9}, 3072, v{T+8}")
    A(f"v_lshl_add_u32 v{T+9}, v{rp}, 7, v{T+9}")
    A(f"v_add_u32 v{T+9}, v{T+9}, v{b}")
    for jj in range(4):
        A(f"v_xor_b32 v{T+10}, {jj}, v{sw}")
        A(f"v_lshl_add_u32 v{V_R+jj}, v{T+10}, 5, v{T+9}")
        A(f"v_add_u32 v{V_R+4+jj}, {2*V.SL}, v{V_R+jj}")
    if kind == "w1":
        A(f"v_lshl_add_u32 v{T+9}, v{T+8}, 3, v{rp}")
        A(f"v_lshl_add_u32 v{T+9}, v{T+9}, 6, v{b}")
        A(f"v_add_u32 v{T+9}, 6144, v{T+9}")
        for jj in range(2):
            A(f"v_xor_b32 v{T+10}, {jj}, v{T+8}")
            A(f"v_lshl_add_u32 v{V_RH+jj}, v{T+10}, 5, v{T+9}")
            A(f"v_add_u32 v{V_RH+2+jj}, {2*V.SL}, v{V_RH+jj}")
    S_HI = X + 8
    A(f"s_mov_b32 s{S_HI}, 0xffff0000")
    A(f"v_mov_b32 v{T+4}, 0x3f803f80")
    for q in range(4): A(f"v_accvgpr_write_b32 a{A_ONE+q}, v{T+4}")
    A(f"v_cmp_eq_u32 vcc, 1, v{pc}")
    if "promarks" in OPT: st.mark(A)
    if not EW:
        pro_R("p"); pro_W(0); pro_A(0, range(4, V.NT))
    pro_W(1); pro_A(1); pro_R("r")
    if "promarks" in OPT: st.mark(A)
    n = vm.need([("D", 0), ("A", 0, V.NT - 1)])
    A(f"s_waitcnt vmcnt({n})")
    if "promarks" in OPT: st.mark(A)
    A("s_barrier")
    st.mark(A)
    for ks in range(2): A(V.aread(0, ks, 0)); lg.issue(("AF", 0, 0))
    for q in range(4): A(V.read(0, q >> 1, 0, q & 1)); lg.issue(("W", 0, 0))
    for t in range(1, V.NT):
        for ks in range(2): A(V.aread(0, ks, t)); lg.issue(("AF", 0, t))
    S = Stream(vm, lg)
    groups = V.groups()
    first, last, fin = {}, {}, {}
    tsof = dict(groups)
    n = 0
    for un, (s, j) in enumerate(V.U):
        ts = list(tsof[j]) if un % 2 == 0 else list(reversed(tsof[j]))
        if 4 in ts: ts = [4, 0, 1, 2, 3]
        if j == 0 and s < 15: n = 0
        for t in ts:
            kk = (0, 1) if n % 2 == 0 else (1, 0)
            for ks in kk:
                needs = [("lg", ("W", s, j)), ("lg", ("AF", s, t))]
                idx = S.add_mfma(V.mfma(s, ks, t, j, zero=(s == 0 and ks == kk[0])), needs)
                first.setdefault((s, j), idx); last[(s, j)] = idx
                if s == NS - 1 and ks == kk[0]:
                    S.add_mfma(V.corr(t, j), [("vm", ("P", j)), ("vm", ("Q", t))])
            if s == NS - 1: fin[(t, j)] = idx
            n += 1
    i = 0
    for j in range(1, H):
        for q in range(4):
            i = S.place(i, "ds", V.read(0, q >> 1, j, q & 1), gives=("W", 0, j) if q == 3 else None) + 1
    bar = {}
    TM = V.TMK > 0
    SIG0, SIG = par("k1sig0", 5), par("k1sig", 8)
    POLL, CHK = (par("k1pollm", 11), par("k1chkm", 12)) if TM else (par("k1poll", 12), par("k1chk", 13))
    for s in range(NS - 1):
        u0 = V.U.index((s + 1, 0))
        bar[s] = last[V.U[u0 - H]]
        S.gaps[bar[s]].append(("bar" if not (TM and s == 14) else "barv", None, None,
                               [("vm", ("D", s + 1))] + ([("vm", "CS")] if s == SIG else []) + ([("vm", "ST")] if s == SIG0 else [])))
    if kind == "qkv": S.gaps[last[(15, H)]].append(("bar", None, None, []))
    for un in range(len(V.U) - H):
        s, j = V.U[un]; s2, j2 = V.U[un + H]
        i = last[(s, j)]
        step = 1 if (j == H - 1 or (s == 0 and j < H)) else 2
        for q in range(4):
            i = S.place(i, "ds", V.read(s2, q >> 1, j2, q & 1), gives=("W", s2, j2) if q == 3 else None) + step
    cur = 0
    def dma_seq(i0, i1, lst, vcap=1):
        nonlocal cur
        i0 = max(i0, cur)
        n = len(lst)
        for k, (pre, d, kd, gives, needs) in enumerate(lst):
            tgt = max(cur, i0 + (k * (i1 - i0)) // n)
            i = S.place(tgt, "s", pre, cap=vcap + 1)
            cur = S.place(i + 1, kd, d, gives=gives, needs=needs, cap=vcap)
    def merge(a, b):
        if not b: return a
        out, k = [], 0
        for i, x in enumerate(a):
            out.append(x)
            while k < len(b) and (k + 1) * len(a) <= (i + 1) * len(b): out.append(b[k]); k += 1
        return out + b[k:]
    def wlist(s):
        dm = V.dmas(s)
        return [(m0, d, "vmD", ("D", s) if n == len(dm) - 1 else None, []) for n, (m0, d) in enumerate(dm)]
    def alist(s, dep=True):
        return [(m0, d, "vmA", ("A", s, t) if u == 1 else None, [("lg", ("AF", s - 2, t))] if dep else [])
                for t in range(V.NT) for u, (m0, d) in enumerate(V.admas(s, t))]
    def areads(s, i0, i1):
        for t in range(V.NT):
            i = i0 + (t * (i1 - i0)) // V.NT
            i = S.place(i, "ds", V.aread(s, 0, t), needs=[("vm", ("A", s, t))])
            S.place(i + 1, "ds", V.aread(s, 1, t), gives=("AF", s, t))
    extra = {}
    cs = [(f"s_add_u32 s60, s{S_CSL}, {i*8*V.pitch:#x}",
           f"buffer_load_dwordx4 {ar(A_CS+4*i, 4)}, v{VCA}, {sq(S_SRDW)}, s60 offen", "vmX", ("CL", i), []) for i in range(16)]
    cs0, csn = par("cs0", 1), par("csn", 4)
    slots = [(s_, h_) for s_ in range(cs0, cs0 + csn) for h_ in range(2)]
    for i_, it in enumerate(cs):
        if "k1nocs" in OPT: vm.skip(("CL", i_)); continue
        extra.setdefault(slots[i_ * len(slots) // 16], []).append(it)
    if kind == "w1":
        extra.setdefault((cs0 + 1, 0), []).append(("s_nop 0", f"buffer_load_dwordx2 v[{VB1}:{VB1+1}], v{VB1}, {sq(S_SRDB)}, 0 offen", "vmX", "B1", []))
    rows = [("s_nop 0", f"buffer_load_dwordx4 {ar(A_RAW+4*q, 4)}, v{V_L16}, {sq(S_SRDA)}, s67 offen offset:{q*1024}", "vmX", "ROWS" if q == 3 else None, []) for q in range(4)]
    cpf = []
    if "nocpf" not in OPT:
        cpf = [(f"s_getpc_b64 s[{S_CODE}:{S_CODE+1}]\nL_k1_pc_{kind}:\ns_mov_b32 s{S_CODE+2}, L_k1_spin_{kind}-L_k1_pc_{kind}\ns_mov_b32 s{S_CODE+3}, 0x20000\n"
                f"s_bfe_u32 s60, s2, 0x20003\ns_lshl_b32 s60, s60, 2\ns_add_u32 s60, s60, s{S_W}\ns_mul_i32 s60, s60, {par('cpfb', 2560)}\n"
                f"v_lshlrev_b32 v{VW}, 3, v{V_L16}\ns_mov_b64 exec, {hex((1 << (par('cpfb', 2560) // 128)) - 1)}\n"
                f"buffer_load_dword a{A_DUM}, v{VW}, {sq(S_CODE)}, s60 offen\ns_mov_b64 exec, -1")]
    def addx(key, lst): extra.setdefault(key, []).extend(lst)
    shift = "noshift" not in OPT
    pf = []
    nl = 16 if shift else 8
    for i in range(9):
        pre = (f"s_and_b32 s60, s100, 511\ns_lshl_b32 s60, s60, 11" if shift else "s_lshl_b32 s60, s100, 10") + f"\ns_add_u32 s60, s60, {(i if i < 2 else i - 2) << 20:#x}"
        if i == 2: pre = f"s_mov_b32 s{S_SRDP}, s101\ns_mov_b32 s{S_SRDP+1}, s{S_C}\ns_mov_b32 s{S_SRDP+2}, {3584*2048:#x}\n" + pre
        pf.append((pre, f"s_mov_b64 exec, {(1 << nl) - 1:#x}\nbuffer_load_dword a{A_DUM}, v{VCA}, {sq(S_SRDP)}, s60 offen\ns_mov_b64 exec, -1", "vmX", None, []))
    late_pf = []
    misc = {}
    misc[cs0 + csn] = [f"v_lshlrev_b32 v{VCA}, 3, v{V_L16}",
                       f"s_add_u32 s{S_SRDB}, s58, {WS_PART:#x}\ns_addc_u32 s{S_SRDB+1}, s59, 0\ns_mov_b32 s{S_SRDB+2}, {12 << 20:#x}\ns_mov_b32 s{S_SRDB+3}, 0x20000"]
    if shift and kind == "w1":
        misc[cs0 + csn].append(f"s_mov_b32 s{S_SRDP}, s101\ns_mov_b32 s{S_SRDP+1}, s{S_C}\ns_mov_b32 s{S_SRDP+2}, {3584*2048:#x}")
    else:
        nlate = par("pflate", 0)
        early, late_pf = pf[:len(pf) - nlate], pf[len(pf) - nlate:]
        p0 = 2 * par('pf0', cs0 + csn); p1 = 2 * par('pf1', CHK) + 1
        for i_, it in enumerate(early):
            h_ = p0 + i_ * (p1 - p0) // len(early)
            addx((h_ // 2, h_ % 2), [it])
    for wh, s0, n in slow:
        if wh.isdigit(): addx((int(wh), 0), [("s_nop 0", slowpf(int(s0), int(n)), "vmX", None, [])])
    if "nocpf" not in OPT:
        addx((CHK, 0), [(f"s_getpc_b64 s[{S_SRDC}:{S_SRDC+1}]\nL_k1_pc2_{kind}:\ns_add_u32 s{S_SRDC}, s{S_SRDC}, L_k2_start-L_k1_pc2_{kind}\n"
               f"s_addc_u32 s{S_SRDC+1}, s{S_SRDC+1}, 0\ns_mov_b32 s{S_SRDC+2}, L_k2_spin-L_k2_start\n"
               f"s_lshr_b32 s60, s2, 3\ns_lshl_b32 s60, s60, 2\ns_add_u32 s60, s60, s{S_W}\ns_lshl_b32 s60, s60, 8",
               f"s_mov_b64 exec, 3\nbuffer_load_dword a{A_DUM}, v{VCA}, {sq(S_SRDC)}, s60 offen\ns_mov_b64 exec, -1", "vmX", None, [])])
    for n_, at in enumerate(x for x in PAR.get("cpf2", "7:11").split(":") if x):
        addx((int(at), 0), [(f"s_getpc_b64 s[{S_SRDC}:{S_SRDC+1}]\nL_k1_pc3_{kind}_{n_}:\ns_mov_b32 s{S_SRDC+2}, L_k1_spin_{kind}-L_k1_pc3_{kind}_{n_}\n"
               f"s_bfe_u32 s60, s2, 0x40003\ns_lshl_b32 s60, s60, 2\ns_add_u32 s60, s60, s{S_W}\ns_lshl_b32 s60, s60, 9",
               f"s_mov_b64 exec, 15\nbuffer_load_dword a{A_DUM}, v{VCA}, {sq(S_SRDC)}, s60 offen\ns_mov_b64 exec, -1", "vmX", None, [])])
    if "tlb" in OPT:
        addx((9, 0), [(f"s_lshr_b32 s60, s{S_AROW}, 17\ns_mul_i32 s60, s60, {2*144*2048}", f"v_lshlrev_b32 v{VW}, 14, v{V_L16}\ns_mov_b64 exec, 7\n"
                       f"buffer_load_dword a{A_DUM}, v{VW}, {sq(S_SRDO)}, s60 offen\ns_mov_b64 exec, -1", "vmX", None, [])])
        addx((10, 0), [("s_mul_i32 s60, s100, 12288", f"buffer_load_dword a{A_DUM}, off, {sq(S_SRDB)}, s60", "vmX", None, [])])
    if par("slow2", 0):
        addx((par("slow2", 0), 1), [(f"s_lshr_b32 s60, s2, 3\ns_lshl_b32 s60, s60, 2\ns_add_u32 s60, s60, s{S_W}\ns_mul_i32 s60, s60, {14*1024}\n"
                        f"s_bfe_u32 s3, s2, 0x20001\ns_mul_i32 s3, s3, {896*2048}\ns_add_u32 s60, s60, s3",
                        f"v_lshlrev_b32 v{VW}, 6, v{V_L16}\ns_mov_b64 exec, 0x3fff\n"
                        f"buffer_load_dword a{A_DUM}, v{VW}, {sq(S_SRDP)}, s60 offen offset:384\ns_mov_b64 exec, -1", "vmX", None, [])])
    tagld = f"buffer_load_dwordx2 {ar(A_TAG,2)}, off, {sq(S_SRDC)}, 0 sc1"
    tagchk = (f"v_accvgpr_read_b32 v{VW}, a{A_TAG}\nv_accvgpr_read_b32 v{VW+1}, a{A_TAG+1}\ns_nop 0\n"
              f"v_readfirstlane_b32 s56, v{VW}\nv_readfirstlane_b32 s57, v{VW+1}\ns_nop 3\ns_cmp_lg_u32 s56, 0")
    addx((2, 1), [("s_nop 0", tagld, "vmX", "TAG", [])])
    sidew = (f"s_mul_i32 s60, s100, 896\nv_lshlrev_b32 v{VW}, 3, v{V_L16}\ns_mov_b64 exec, 0x7f\n"
             f"buffer_load_dword a{A_DUM}, v{VW}, {sq(S_SRDS)}, s60 offen\ns_mov_b64 exec, -1")
    assert 896 * 1024 >= SD_BYTES
    SW_AT = par("sidew", -1)
    if SW_AT > 0: addx((SW_AT, 0), [("s_nop 0", sidew, "vmX", None, [])])
    elif SW_AT == 0: cpf.append(sidew)
    if "nowarmflag" not in OPT:
        addx((par("wfat", 6), 1), [(f"s_lshl_b32 s60, s100, 7\ns_add_u32 s60, s60, {SD_WF:#x}", f"buffer_load_dword a{A_DUM}, off, {sq(S_SRDS)}, s60", "vmX", None, [])])
    def flagst(off): return f"s_mov_b64 exec, 1\nbuffer_store_dwordx2 {ar(A_TAG,2)}, off, {sq(S_SRDT)}, s60 offset:{off} sc1\ns_mov_b64 exec, -1"
    addx((SIG0, 1), [("s_lshl_b32 s60, s2, 7", flagst(0), "vmS", None, [])])
    addx((SIG, 1), [("s_lshl_b32 s60, s2, 7", flagst(64), "vmS", None, [])])
    VFA = VW + 2
    fa = [f"v_and_b32 v{VFA}, 0x30, v{V_L16}", f"v_lshlrev_b32 v{VFA}, 4, v{VFA}", f"v_and_b32 v{VFA+1}, 0x1c0, v{V_L16}",
          f"v_lshl_add_u32 v{VFA}, v{VFA+1}, 6, v{VFA}", "s_and_b32 s60, s2, 0x19", "s_lshl_b32 s60, s60, 7", f"v_add_u32 v{VFA}, s60, v{VFA}",
          "s_mov_b32 exec_lo, 0",
          f"v_and_b32 v{VFA}, 0x10, v{V_L16}", f"v_lshlrev_b32 v{VFA}, 3, v{VFA}", f"v_and_b32 v{VFA+1}, 0x60, v{V_L16}",
          f"v_lshl_add_u32 v{VFA}, v{VFA+1}, 5, v{VFA}", "s_and_b32 s60, s2, 0xe6", "s_lshl_b32 s60, s60, 7", "s_add_u32 s60, s60, 64",
          f"v_add_u32 v{VFA}, s60, v{VFA}"]
    if kind == "qkv":
        fa += ["s_mov_b32 exec_hi, 0xffffff00", f"s_max_u32 s60, s{S_MB}, 1", "s_sub_u32 s60, s60, 1", "s_lshr_b32 s3, s60, 2",
               "s_and_b32 s60, s60, 3", "s_lshl_b32 s60, s60, 3", "s_or_b32 s60, s60, s3", "s_or_b32 s60, s60, 0xc6", "s_lshl_b32 s60, s60, 7",
               f"v_and_b32 v{VFA}, 0x10, v{V_L16}", f"v_lshlrev_b32 v{VFA}, 8, v{VFA}", f"v_add_u32 v{VFA}, s60, v{VFA}"]
    fa += ["s_mov_b64 exec, -1"]
    pollld = f"buffer_load_dwordx2 v[{VW}:{VW+1}], v{VFA}, {sq(S_SRDS)}, 0 offen sc1"
    addx((POLL, 1), [("\n".join(fa), pollld, "vmX", "POLL", [])])
    chk = f"v_cmp_ne_u64 vcc, s[56:57], v[{VW}:{VW+1}]"
    pl = []
    for t in range(V.NT):
        pre = f"s_lshr_b32 s60, s{S_AROW+t}, 7\ns_add_u32 s60, s60, {SD_Q:#x}"
        if t == 0: pre = f"v_and_b32 v{VCA}, 0xff, v{V_L16}\n" + pre
        pl.append((pre, f"buffer_load_dwordx4 {ar(A_Q+4*t, 4)}, v{VCA}, {sq(S_SRDS)}, s60 offen sc1", "vmX", ("Q", t), []))
    for j in range(V.NJ):
        if kind == "w1":
            pre = f"s_lshl_b32 s60, s{S_CF if j < 12 else S_CHF}, 5\ns_add_u32 s60, s60, {SD_P + (192 + (j if j < 12 else j - 12))*1024:#x}"
        else:
            pre = (f"s_xor_b32 s60, s{S_W}, {j & 3}\ns_lshl_b32 s60, s60, 5\ns_add_u32 s60, s60, s{S_CF}\ns_lshl_b32 s60, s60, 5\n"
                   f"s_add_u32 s60, s60, {SD_P + (j >> 2)*65536:#x}")
        pl.append((pre, f"buffer_load_dwordx4 {ar(A_P+4*j, 4)}, v{V_L16}, {sq(S_SRDS)}, s60 offen sc1", "vmX", ("P", j), []))
    if kind == "qkv":
        for t in range(4):
            pre = f"s_lshr_b32 s60, s{S_AROW+t}, 9\ns_add_u32 s60, s60, {SD_RS - 64:#x}"
            if t == 0:
                pre = (f"v_lshrrev_b32 v{VCS}, 2, v{VCA}\n"
                       f"v_lshrrev_b32 v{VB1}, 4, v{V_L16}\nv_and_b32 v{VB1}, 0x30, v{VB1}\n"
                       f"v_and_b32 v{VB1+1}, 4, v{VCS}\nv_add_u32 v{VB1}, v{VB1}, v{VB1+1}\n"
                       f"v_add_u32 v{VB1+1}, 8, v{VB1}\n"
                       f"v_cmp_le_u32 s[48:49], v{VB1}, v{VCS}\nv_cmp_le_u32 s[50:51], v{VB1+1}, v{VCS}\n"
                       f"v_add_u32 v{VDC}, 64, v{VB1}\nv_add_u32 v{VDC+1}, 64, v{VB1+1}\n"
                       f"v_cndmask_b32 v{VB1}, v{VB1}, v{VDC}, s[48:49]\nv_cndmask_b32 v{VB1+1}, v{VB1+1}, v{VDC+1}, s[50:51]\n" + pre)
            pl.append((pre, f"buffer_load_dword v{RSQ+t}, v{VCS}, {sq(S_SRDS)}, s60 offen offset:64 sc1", "vmX", None, []))
            pl.append(("s_nop 0", f"buffer_load_dword v{RSK+2*t}, v{VB1}, {sq(S_SRDS)}, s60 offen sc1", "vmX", None, []))
            pl.append(("s_nop 0", f"buffer_load_dword v{RSK+2*t+1}, v{VB1+1}, {sq(S_SRDS)}, s60 offen sc1", "vmX", "RS" if t == 3 else None, []))
    h = len(pl) // 2
    addx((CHK, 1), pl[:h]); addx((CHK + 1, 0), pl[h:])
    if late_pf:
        lp = [(pre, d.replace(f"v{VCA},", f"v{VW+3},"), k_, g_, n_) for pre, d, k_, g_, n_ in late_pf]
        lp[0] = (f"v_lshlrev_b32 v{VW+3}, 3, v{V_L16}\n" + lp[0][0],) + lp[0][1:]
        addx((CHK + 1, 0), lp)
    for s in range(NS):
        b0 = first[(s, 0)]
        b1 = first[(s + 1, 0)] if s + 1 < NS else len(S.mf)
        if s == 0:
            for wh, s0, n in rounds:
                if wh == "s":
                    for b_ in pfr(int(s0), int(n), True)[:1]: cur = S.place(cur + 1, "vmX", b_, cap=3)
            for c_ in cpf: cur = S.place(cur + 1, "vmX", c_, cap=3)
            dma_seq(b0, bar[0], wlist(2) + alist(2), vcap=2)
            for x_ in V.sof_adv(): cur = S.place(cur, "s", x_, cap=4)
            areads(1, b1 - 28, b1 - 8)
            dma_seq(bar[0] + 1, b1, rows + wlist(3))
            for x_ in V.sof_adv(): cur = S.place(cur, "s", x_, cap=3)
            continue
        if s == 1:
            for wh, s0, n in rounds:
                if wh == "t":
                    for b_ in pfr(int(s0), int(n), True)[:1]: cur = S.place(max(cur + 1, b0), "vmX", b_, cap=3)
            areads(2, bar[1] - 8, bar[1] + 20)
            dma_seq(b0, bar[1], merge(alist(3), extra.get((1, 0), [])))
            dma_seq(bar[1] + 1, b1 + 4, merge(wlist(4) + alist(4), extra.get((1, 1), [])))
            for x_ in V.sof_adv(): cur = S.place(cur, "s", x_, cap=3)
            continue
        if TM and s == 14:
            areads(15, b0, b0 + 12)
            prebar = b0 + 24
            S.gaps[prebar].append(("bar", None, None, []))
            continue
        if s + 1 < NS:
            lo = b0 + (24 if s == 2 else 0)
            for x_ in misc.get(s, []): cur = S.place(max(cur, b0), "s", x_, cap=3)
            areads(s + 1, lo, bar[s] - 8)
            l0 = merge(alist(s + 3) if s + 3 < NS else [], extra.get((s, 0), []))
            if l0: dma_seq(lo + 8, bar[s], l0)
            if s == CHK:
                cur = S.place(max(cur, bar[s] + 1), "s", chk + "\n"
                              f"s_cbranch_vccnz L_k1_spin_{kind}\nL_k1_back_{kind}:", needs=[("vm", "POLL")], cap=3)
                chkpos = cur
            if s == SIG0:
                cur = S.place(max(cur, bar[s] + 1), "s", tagchk + f"\ns_cbranch_scc0 L_k1_tspin_{kind}\nL_k1_tback_{kind}:", needs=[("vm", "TAG")], cap=3)
            l1 = merge(wlist(s + 3) if s + 3 < NS else [], extra.get((s, 1), []))
            if l1: dma_seq(bar[s] + 1, b1 + 4, l1)
            if s + 3 < NS:
                for x_ in V.sof_adv(): cur = S.place(cur, "s", x_, cap=3)
    i = max(chkpos + 1, first[(13, H)])
    for o in p2_pre_setup(VW, kind): i = S.place(i, "s", o, cap=2) + 1
    if not TM: prebar = bar[14]
    assert i < prebar
    lst = []
    for s_ in range(P2.PD):
        dm = P2.dmas(s_)
        for n_, (m0, d, post) in enumerate(dm):
            lst.append((m0, d + ("\n" + post if post else ""), "vmD", "PRE" if (s_ == P2.PD - 1 and n_ == len(dm) - 1) else None, []))
    dma_seq(prebar + 1, prebar + par("pre_len", 110), lst, vcap=2)
    i = prebar + 1
    for o in p2_pre_setup2(VW): i = S.place(i, "s", o, cap=2) + 1
    i = first[(2, 0)]
    def fill(o, gapstep=1, needs=(), kd="s", gives=None):
        nonlocal i
        i = S.place(i, kd, o, needs=needs, cap=2, gives=gives) + gapstep
    mA, mB = VDC, VW
    for rr, d in ((0, mA), (1, mB)):
        for q in range(2):
            fill(f"v_mfma_f32_16x16x32_bf16 {vr(d,4)}, {ar(A_ONE,4)}, {ar(A_RAW+8*rr+4*q,4)}, {'0' if q == 0 else vr(d,4)}", needs=[("vm", "ROWS")])
    i += 8
    for r_ in (8, 4, 2, 1):
        for d in (mA, mB): fill(f"v_add_f32_dpp v{d}, v{d}, v{d} row_ror:{r_} row_mask:0xf bank_mask:0xf")
    for d in (mA, mB): fill(f"v_mul_f32 v{d}, 0x3a800000, v{d}", 0)
    for d in (mA, mB): fill(f"v_mov_b32 v{d+1}, 0", 0)
    for q in range(8):
        for rr, d in ((0, mA), (1, mB)):
            for o in (f"v_accvgpr_read_b32 v{d+2}, a{A_RAW+8*rr+q}", f"v_and_b32 v{d+3}, s{S_HI}, v{d+2}", f"v_lshlrev_b32 v{d+2}, 16, v{d+2}",
                      f"v_sub_f32 v{d+3}, v{d+3}, v{d}", f"v_sub_f32 v{d+2}, v{d+2}, v{d}",
                      f"v_fmac_f32 v{d+1}, v{d+3}, v{d+3}", f"v_fmac_f32 v{d+1}, v{d+2}, v{d+2}"):
                fill(o, 0)
    i += 2
    qA, qB = mA + 1, mB + 1
    for r_ in (8, 4, 2, 1):
        for d in (qA, qB): fill(f"v_add_f32_dpp v{d}, v{d}, v{d} row_ror:{r_} row_mask:0xf bank_mask:0xf")
    for sw_ in ("v_permlane16_swap_b32", "v_permlane32_swap_b32"):
        for d in (qA, qB): fill(f"v_mov_b32 v{d+1}, v{d}")
        i += 1
        for d in (qA, qB): fill(f"{sw_} v{d}, v{d+1}")
        for d in (qA, qB): fill(f"v_add_f32 v{d}, v{d}, v{d+1}")
    for o in (f"v_cndmask_b32 v{mA}, v{mA}, v{mB}, vcc", f"v_cndmask_b32 v{qA}, v{qA}, v{qB}, vcc",
              f"v_mul_f32 v{qA}, 0x3a800000, v{qA}", f"v_cvt_pk_bf16_f32 v{VW}, -v{mA}, -v{mA}",
              f"v_cvt_pk_bf16_f32 v{qA}, v{qA}, v{qA}", f"v_and_b32 v{qA}, s{S_HI}, v{qA}", f"v_add_f32 v{qA}, 0x3727c5ac, v{qA}",
              f"v_cvt_pk_bf16_f32 v{qA}, v{qA}, v{qA}", f"v_and_b32 v{qA}, s{S_HI}, v{qA}", f"v_sqrt_f32 v{qA}, v{qA}",
              f"v_mov_b32 v{VW+2}, v{VW}", f"v_cvt_pk_bf16_f32 v{VW+1}, -v{mA}, v{qA}", f"v_and_b32 v{qA}, s{S_HI}, v{VW+1}",
              f"v_rcp_f32 v{qA}, v{qA}", f"v_mov_b32 v{VW+3}, v{VW+1}", f"v_lshrrev_b32 v{mA+2}, 2, v{V_L16}"):
        fill(o)
    fill(f"s_lshr_b32 s61, s67, 7\ns_add_u32 s61, s61, {SD_Q:#x}\ns_mov_b64 exec, 3\n"
         f"buffer_store_dwordx4 {vr(VW,4)}, v{V_L16}, {sq(S_SRDS)}, s61 offen sc1\ns_mov_b64 exec, -1", kd="vmS")
    fill(f"s_lshr_b32 s61, s67, 9\ns_add_u32 s61, s61, {SD_RS:#x}\ns_mov_b64 exec, 3\n"
         f"buffer_store_dword v{qA}, v{mA+2}, {sq(S_SRDS)}, s61 offen sc1\ns_mov_b64 exec, -1", kd="vmS", gives="ST")
    if "verbose" in OPT: print(kind, "stats done at step", [s_ for s_ in range(NS) if first[(s_, 0)] <= i][-1], i, bar, file=sys.stderr)
    assert i < bar[SIG0 - 1] + 40
    i = i + 2
    for q in range(16):
        cin = "0" if q == 0 else vr(VDC, 4)
        sl_ = slots[q * len(slots) // 16]
        i = max(i, first[(sl_[0] + 2, 0 if sl_[1] == 0 else H)])
        i = S.place(i, "s", f"v_mfma_f32_16x16x32_bf16 {vr(VDC,4)}, {ar(A_SEL,4)}, {ar(A_CS+4*q,4)}, {cin}", needs=[("vm", ("CL", q))], cap=2) + 4
    i += 8
    for r_ in range(4):
        i = S.place(i, "s", f"v_add_f32_dpp v{VDC+r_}, v{VDC+r_}, v{VDC+r_} row_ror:8 row_mask:0xf bank_mask:0xf", cap=2) + 1
    for r_ in range(4):
        d = VDC + r_
        sel = "0x05040302" if r_ % 2 == 0 else "0x07060302"
        ops = [f"v_and_b32 v{VW+2}, s{S_HI}, v{d}", f"v_sub_f32 v{VW+2}, v{d}, v{VW+2}",
               f"v_and_b32 v{VW+3}, s{S_HI}, v{VW+2}", f"v_sub_f32 v{VW+3}, v{VW+2}, v{VW+3}",
               f"s_mov_b32 s61, 0x07060302\nv_perm_b32 v{VW}, v{VW+2}, v{d}, s61",
               f"s_mov_b32 s61, {sel}\nv_perm_b32 v{VW+1}, v{VB1 + (r_ >> 1)}, v{VW+3}, s61"]
        for k, o in enumerate(ops):
            i = S.place(i, "s", o, cap=2, needs=[("vm", "B1")] if k == 5 else []) + 1
        i = S.place(i, "vmS", f"buffer_store_dwordx2 v[{VW}:{VW+1}], v{VCS}, {sq(S_SRDS)}, s{S_CSS} offen offset:{16*r_} sc1",
                    gives="CS" if r_ == 3 else None, cap=2) + 2
    assert i < bar[SIG - 1]
    tail = []
    if kind == "w1":
        pre = []
        for a_ in range(2):
            pre += [f"s_lshr_b32 s{X}, s{S_AROW+2*a_}, 16", f"s_mul_i32 s{X}, s{X}, 144", f"s_lshr_b32 s{X+1+a_}, s{S_CF}, 6",
                    f"s_add_u32 s{X+1+a_}, s{X+1+a_}, s{X}", f"s_add_u32 s{X+1+a_}, s{X+1+a_}, 32", f"s_lshl_b32 s{X+1+a_}, s{X+1+a_}, 11"]
        pre += [f"s_sub_u32 s{X+3}, s{S_CHF}, s{S_CF}", f"s_lshl_b32 s{X+3}, s{X+3}, 5"]
        i = first[(13, H)]
        for o in pre: i = S.place(i, "s", o, cap=2) + 1
        assert i < first[(15, 1)]
        for j in range(14):
            for t in sorted(range(4), key=lambda t: fin[(t, j)]):
                a = V.acc(t, j); e = fin[(t, j)] + 8
                dst = a if j % 2 == 0 else V.acc(t, j - 1) + 2
                for r_ in range(4): tail.append((e, "s", f"v_mul_f32 v{a+r_}, v{a+r_}, |v{a+r_}|", []))
                tail.append((e, "s", f"v_cvt_pk_bf16_f32 v{dst}, v{a}, v{a+1}", []))
                tail.append((e, "s", f"v_cvt_pk_bf16_f32 v{dst+1}, v{a+2}, v{a+3}", []))
                for r_ in range(2): tail.append((e, "s", f"v_pk_max_i16 v{dst+r_}, v{dst+r_}, 0", []))
                if j % 2 == 1:
                    p = j // 2; a0 = V.acc(t, j - 1)
                    off = f"{p*2048:#x}" if p < 6 else f"s{X+3}"
                    tail.append((e, "vmS", f"s_add_u32 s60, s{X+1+(t>>1)}, {off}\n"
                                 f"buffer_store_dwordx4 v[{a0}:{a0+3}], v{V_L16}, {sq(S_SRDO)}, s60 offen offset:{(t&1)*1024} sc1", [], ("HS", p)))
            if j == par("flagA0", 5): tail.append((e, "vmS", wflag(0), [("vm", ("HS", 1))]))
            if j == par("flagA", 9): tail.append((e, "vmS", wflag(8), [("vm", ("HS", 3))]))
    else:
        for j, ts in groups:
            ts = list(ts) if j % 2 == 0 else list(reversed(ts))
            if 4 in ts: ts = [4, 0, 1, 2, 3]
            if j >= 8: ts = [t for t in ts if t == 4] + [0, 1, 2, 3]
            for t in ts:
                a = V.acc(t, j); e = (fin[(t, j)] if j < 8 else last[(NS - 1, j)]) + 8
                if t == 4: d0 = a
                elif j < 8: d0 = a if j % 2 == 0 else V.acc(t, j - 1) + 2
                else: d0 = V.acc(0, j) + 2 + 2 * t
                cv = [f"v_cvt_pk_bf16_f32 v{d0}, v{a}, v{a+1}", f"v_cvt_pk_bf16_f32 v{d0+1}, v{a+2}, v{a+3}"]
                if j >= 8 and t == 0: cv.reverse()
                for o in cv: tail.append((e, "s", o, []))
    i = 0
    rest = []
    for e, kd, text, nd, *gv in tail:
        gv = gv[0] if gv else None
        if rest or max(i, e) >= len(S.mf) - 1:
            rest.append((kd, text, nd, gv)); continue
        k = max(i, e)
        while k < len(S.mf) - 1 and S.used[k] >= par("tailcap", 3): k += 1
        if k >= len(S.mf) - 1:
            rest.append((kd, text, nd, gv)); continue
        i = S.place(k, kd, text, needs=nd, cap=par("tailcap", 3), gives=gv)
    if stamp:
        for m in PAR.get("k1marks", "15").split(":"):
            if "promarks" in OPT: break
            S.gaps[first[(int(m), 0)]].append(("s", st.text(), None, []))
    for x_ in S.emit("k1"): A(x_)
    if st.n < 7: st.mark(A)
    A("s_nop 7")
    for kd, text, nd, gv in rest:
        o = []
        S.waits(nd, o)
        for x_ in o: A(x_)
        A(text)
        if kd.startswith("vm"): vm.issue(gv)
    if kind == "qkv":
        o = []; S.waits([("vm", "RS")], o)
        for x_ in o: A(x_)
        qkv_attention(A, V)
        vm.drain()
    o = []; S.waits([("vm", "PRE")], o)
    for x_ in o: A(x_)
    if stamp:
        st.flush(A, 58, 59, 208, f"s{S_W}", 255)
        A("s_mov_b64 exec, -1")
    A("s_branch L_k2_start")
    for nm, ld, ck, br in (("", pollld, chk, "s_cbranch_vccnz"), ("t", tagld, tagchk, "s_cbranch_scc0")):
        A.label(f"L_k1_{nm}spin_{kind}")
        A("s_mov_b32 s61, 0")
        A.label(f"L_k1_{nm}spin1_{kind}")
        A("s_sleep 8")
        A(ld)
        A("s_waitcnt vmcnt(0)")
        A("s_add_u32 s61, s61, 1")
        A("s_cmp_gt_u32 s61, 0x10000")
        A(f"s_cbranch_scc1 L_k1_{nm}back_{kind}")
        A(ck)
        A(f"{br} L_k1_{nm}spin1_{kind}")
        A(f"s_branch L_k1_{nm}back_{kind}")

def gen_k1(A, name, stamp):
    kernel_head(A, name)
    st0 = Stamp(stamp, 1)
    st0.mark(A)
    A("s_cmp_ge_u32 s2, 256")
    A("s_cbranch_scc1 L_k1_end")
    A("s_load_dwordx2 s[4:5], s[0:1], 0")
    A("s_load_dwordx2 s[60:61], s[0:1], 8")
    A("s_load_dwordx4 s[56:59], s[0:1], 32")
    A("s_load_dwordx4 s[12:15], s[0:1], 72")
    A("s_load_dwordx2 s[36:37], s[0:1], 48")
    A("s_load_dwordx2 s[38:39], s[0:1], 16")
    A("s_memrealtime s[18:19]")
    lane, l16, g, T, X = 100, 101, 102, 104, S_X0
    A(f"v_lshrrev_b32 v{T}, 6, v0")
    A(f"v_and_b32 v{lane}, 63, v0")
    A(f"v_readfirstlane_b32 s{S_W}, v{T}")
    A(f"s_and_b32 s{X}, s2, 1")
    A(f"s_lshl_b32 s{X}, s{X}, 2")
    A(f"s_bfe_u32 s{X+1}, s2, 0x20003")
    A(f"s_add_u32 s{S_MB}, s{X}, s{X+1}")
    A(f"s_bfe_u32 s{X}, s2, 0x20001")
    A(f"s_lshl_b32 s{X}, s{X}, 2")
    A(f"s_bfe_u32 s{X+1}, s2, 0x20005")
    A(f"s_add_u32 s{S_NT}, s{X}, s{X+1}")
    A(f"v_and_b32 v{l16}, 15, v{lane}")
    A(f"v_lshrrev_b32 v{g}, 4, v{lane}")
    A(f"v_lshlrev_b32 v{V_L16}, 4, v{lane}")
    A(f"s_lshl_b32 s{X}, s{S_MB}, 8")
    A(f"s_lshl_b32 s{X+1}, s{S_W}, 6")
    A(f"s_add_u32 s{X+1}, s{X}, s{X+1}")
    A(f"s_lshl_b32 s{X+1}, s{X+1}, 11")
    for t in range(4): A(f"s_add_u32 s{S_AROW+t}, s{X+1}, {t*16*2048:#x}")
    A(f"s_max_u32 s{X+1}, s{X}, 16")
    A(f"s_sub_u32 s{X+1}, s{X+1}, 16")
    A(f"s_lshl_b32 s{S_AROW+4}, s{X+1}, 11")
    A(f"s_lshr_b32 s{X+1}, s2, 7")
    A(f"s_lshl_b32 s{X+1}, s{X+1}, 4")
    A(f"s_add_u32 s{X+1}, s{X+1}, s{S_NT}")
    A(f"s_lshl_b32 s{X+1}, s{X+1}, 2")
    A(f"s_add_u32 s{X+1}, s{X+1}, s{S_W}")
    A(f"s_lshl_b32 s{X+1}, s{X+1}, 1")
    A(f"s_add_u32 s{X+1}, s{X+1}, s{X}")
    A(f"s_lshl_b32 s67, s{X+1}, 11")
    A(f"v_lshrrev_b32 v{T+4}, 3, v{lane}")
    A(f"v_and_b32 v{T+5}, 7, v{lane}")
    A(f"v_xor_b32 v{T+5}, v{T+5}, v{g}")
    A(f"v_lshlrev_b32 v{T+4}, 11, v{T+4}")
    A(f"v_lshl_add_u32 v{V_AD}, v{T+5}, 4, v{T+4}")
    A(f"v_xor_b32 v{T+5}, 4, v{T+5}")
    A(f"v_lshl_add_u32 v{V_AD+1}, v{T+5}, 4, v{T+4}")
    A(f"v_add_u32 v{V_AD+1}, 0x4000, v{V_AD+1}")
    A(f"s_mov_b32 s{S_SOFW}, 0")
    A(f"s_mov_b32 s{S_SOFW2}, 4096")
    W1V, QKV = K1Var("w1"), K1Var("qkv")
    A(f"v_lshlrev_b32 v{T+6}, 7, v{lane}")
    A(f"v_lshrrev_b32 v{T+7}, 1, v{lane}")
    A(f"v_lshlrev_b32 v{T+7}, 7, v{T+7}")
    A(f"v_and_b32 v{T+8}, 1, v{lane}")
    A(f"v_lshl_add_u32 v{T+7}, v{T+8}, 11, v{T+7}")
    A(f"s_and_b32 s{X+2}, s2, 127")
    A(f"s_lshl_b32 s{X+2}, s{X+2}, 2")
    A(f"s_add_u32 s{X+2}, s{X+2}, s{S_W}")
    A(f"s_bfe_u32 s{X+1}, s2, 0x10002")
    A(f"s_lshl_b32 s{X+1}, s{X+1}, 16")
    A("s_cmp_ge_u32 s2, 128")
    A(f"s_cselect_b32 s{X+1}, 0, s{X+1}")
    for reg, q_, w_ in ((X+3, QKV.pitch // 2, W1V.pitch // 2), (X+4, (1 << 24) - 1, (1 << 28) - 1), (X+5, 2*QKV.ASL, 2*W1V.ASL),
                        (X+6, QKV.ABASE - 2048, W1V.ABASE - 2048), (S_SRDW+2, 1024*QKV.pitch, 1024*W1V.pitch)):
        A(f"s_mov_b32 s{reg}, {w_:#x}")
        A(f"s_cselect_b32 s{reg}, {q_:#x}, s{reg}")
    for t in range(4): A(f"s_xor_b32 s{S_AROW+t}, s{S_AROW+t}, s{X+1}")
    A(f"s_mul_i32 s{X+2}, s{X+2}, s{X+3}")
    A(f"s_mul_i32 s{S_M0A}, s{S_W}, s{X+5}")
    A(f"s_add_u32 s{S_M0A}, s{S_M0A}, s{X+6}")
    A(f"s_mov_b32 s{S_SRDA+2}, {4 << 20:#x}"); A(f"s_mov_b32 s{S_SRDA+3}, 0x20000"); A(f"s_mov_b32 s{S_SRDW+3}, 0x20000")
    A("s_waitcnt lgkmcnt(0)")
    A("s_cmp_ge_u32 s2, 128")
    A(f"s_cselect_b32 s{S_SRDW}, s60, s56")
    A(f"s_cselect_b32 s{S_SRDW+1}, s61, s57")
    A(f"s_mov_b32 exec_lo, s{X+4}")
    A("s_mov_b32 exec_hi, 0")
    A(f"buffer_load_dword a{A_DUM}, v{T+6}, {sq(S_SRDW)}, s{X+2} offen")
    A("s_mov_b32 exec_lo, 0xff")
    A(f"buffer_load_dword a{A_DUM}, v{T+7}, {sq(S_SRDA)}, s67 offen")
    A("s_mov_b64 exec, -1")
    for t in range(4):
        for m0, d in W1V.admas(0, t): A(m0); A("s_nop 0"); A(d)
    A(f"s_or_b32 s3, s2, s{S_W}")
    A("s_cmp_lg_u32 s3, 0")
    A("s_cbranch_scc1 L_k1_notag")
    srd(A, S_SRDC, 12, 13, 8)
    A("s_or_b32 s18, s18, 1")
    A(f"v_mov_b32 v{T+4}, s18"); A(f"v_mov_b32 v{T+5}, s19")
    A(f"buffer_store_dwordx2 v[{T+4}:{T+5}], v{V_L16}, {sq(S_SRDC)}, 0 offen sc1")
    A.label("L_k1_notag")
    A("s_cmp_ge_u32 s2, 128")
    A("s_cbranch_scc0 L_k1_w1")
    k1_variant(A, QKV, stamp)
    A.label("L_k1_w1")
    k1_variant(A, W1V, stamp)
    A.label("L_k1_end")
    A("s_endpgm")

def qkv_attention(A, V):
    T = V_T
    XCH = RING0
    lane8, l16, g = T + 8, T + 1, T + 2
    def Q(t, sp): return V.acc(t, 2 * sp)
    KP = 200
    def K(t, sp): return V.acc(t, 4 + 2 * sp) if t >= 0 else KP + 4 * sp
    def VT(jj): return 128 + 16 * jj
    X = T + 4
    def mkq(d): return f"s_mov_b64 exec, 3\nbuffer_load_dwordx2 v[{d}:{d+1}], v{P2.VFA}, {sq(S_SRDS)}, 0 offen sc1\ns_mov_b64 exec, -1"
    nf = [0]
    PD_ = VT(0) + 10
    def recheck(tag):
        A(f"s_bitcmp1_b32 s{P2.S_GOT}, 4")
        A(f"s_cbranch_scc1 L_k1_rc{tag}")
        A("s_waitcnt vmcnt(0)")
        A(f"v_cmp_ne_u64 vcc, s[56:57], v[{PD_}:{PD_+1}]")
        A("s_nop 1")
        A("s_and_b32 s3, vcc_lo, 3")
        A(f"s_cselect_b32 s{P2.S_GOT}, 0, 16")
        A(f"s_cbranch_scc0 L_k1_rc{tag}")
        A(mkq(PD_))
        A.label(f"L_k1_rc{tag}")
    def fblock():
        k = nf[0]
        recheck(k)
        A(f"s_bitcmp1_b32 s{P2.S_GOT}, 4")
        A(f"s_cbranch_scc0 L_k1_nf{k}")
        A(floads([3 - k]))
        A(f"s_bitset1_b32 s{P2.S_GOT}, {3 - k}")
        A.label(f"L_k1_nf{k}")
        nf[0] += 1
    A("s_waitcnt vmcnt(0)")
    A(mkq(PD_))
    A(f"v_lshrrev_b32 v{lane8}, 1, v{V_L16}")
    A(f"v_bfe_u32 v{l16}, v{V_L16}, 4, 4")
    A(f"v_lshrrev_b32 v{g}, 8, v{V_L16}")
    for jj in range(4):
        A(f"s_xor_b32 s46, s{S_W}, {jj}")
        A("s_lshl_b32 s46, s46, 9")
        A(f"s_lshl_b32 s47, s{S_W}, 12")
        A("s_add_u32 s46, s46, s47")
        A(f"v_add_u32 v{X+jj}, s46, v{lane8}")
    A(f"s_lshl_b32 s46, s{S_W}, 9")
    A(f"v_add_u32 v{lane8}, s46, v{lane8}")
    for jj in range(4):
        k = K(3, jj >> 1) + 2 * (jj & 1)
        A(f"ds_write_b64 v{X+jj}, v[{k}:{k+1}] offset:{XCH + 4096}")
        v = VT(jj) + 8
        A(f"ds_write_b64 v{X+jj}, v[{v}:{v+1}] offset:{XCH + 4096 + 2048}")
    A(f"ds_write_b64 v{lane8}, v[192:193] offset:{XCH}")
    A(f"ds_write_b64 v{lane8}, v[196:197] offset:{XCH + 2048}")
    par_ = T + 9
    MP, MA, MB_, VA_, VB_ = "s[46:47]", "s[48:49]", "s[50:51]", "s[52:53]", "s[54:55]"
    A(f"v_and_b32 v{par_}, 1, v{l16}")
    A(f"v_cmp_eq_u32 {MP}, 1, v{par_}")
    A(f"s_or_b32 s60, s{S_MB}, s{S_W}")
    A("s_cmp_eq_u32 s60, 0")
    A(f"s_cselect_b64 {VA_}, {MA}, -1")
    A(f"s_cselect_b64 {VB_}, {MB_}, -1")
    FQ = 232
    A("s_mov_b32 s61, 0x3e8293ee")
    for t in range(4): A(f"v_mul_f32 v{RSQ+t}, s61, v{RSQ+t}")
    A(f"v_cndmask_b32 v{RSK}, 0, v{RSK}, {VA_}")
    A(f"v_cndmask_b32 v{RSK+1}, 0, v{RSK+1}, {VB_}")
    for t in range(4):
        for e in range(2): A(f"v_mul_f32 v{FQ+2*t+e}, v{RSQ+t}, v{RSK+2*t+e}")
    SEL = 208
    A(f"v_mov_b32 v{T+10}, 0x0c0c0100")
    A(f"v_mov_b32 v{T+11}, 0x01000c0c")
    A(f"v_cndmask_b32 v{SEL+2}, v{T+10}, v{T+11}, {MP}")
    A(f"v_mov_b32 v{T+10}, 0x0c0c0302")
    A(f"v_mov_b32 v{T+11}, 0x03020c0c")
    A(f"v_cndmask_b32 v{SEL+3}, v{T+10}, v{T+11}, {MP}")
    A(f"v_mov_b32 v{T+10}, 0x0c0c0c0c")
    A(f"v_cndmask_b32 v{SEL}, v{SEL+2}, v{T+10}, {MA}")
    A(f"v_cndmask_b32 v{SEL+1}, v{SEL+3}, v{T+10}, {MB_}")
    A(f"v_cndmask_b32 v{SEL+2}, v{T+10}, v{SEL+2}, {MA}")
    A(f"v_cndmask_b32 v{SEL+3}, v{T+10}, v{SEL+3}, {MB_}")
    A("s_waitcnt lgkmcnt(0)")
    A("s_barrier")
    for jj in range(4):
        k = KP + 4 * (jj >> 1) + 2 * (jj & 1)
        A(f"ds_read_b64 v[{k}:{k+1}], v{X+jj} offset:{XCH}")
        v = VT(jj)
        A(f"ds_read_b64 v[{v}:{v+1}], v{X+jj} offset:{XCH + 2048}")
    A(f"v_mov_b32 v{T+11}, 0xce6e6b28")
    units = [(t, sp) for t in (1, 2, 3, 0) for sp in range(2)]
    OQ = dict(zip(units, [192, 196, 200, 204] + [VT(jj) + 12 for jj in range(4)]))
    def Sc(t, sp): return V.acc(t, 2 * sp + 1)
    def Sp(t, sp): return V.acc(t, 4 + 2 * sp + 1)
    for n, (t, sp) in enumerate(units):
        if t == 0 and sp == 0: A("s_waitcnt lgkmcnt(0)")
        A(f"v_mfma_f32_16x16x32_bf16 {vr(Sc(t,sp),4)}, {vr(K(t,sp),4)}, {vr(Q(t,sp),4)}, 0")
        A(f"v_mfma_f32_16x16x32_bf16 {vr(Sp(t,sp),4)}, {vr(K(t-1,sp),4)}, {vr(Q(t,sp),4)}, 0")
    A("s_nop 1")
    def stage(fn):
        for (t, sp) in units: fn(t, sp, Sc(t, sp), Sp(t, sp))
    stage(lambda t, sp, c, p: A(f"v_cndmask_b32 v{c}, v{c}, v{c+1}, {MP}"))
    stage(lambda t, sp, c, p: A(f"v_cndmask_b32 v{c+1}, v{c+2}, v{c+3}, {MP}"))
    stage(lambda t, sp, c, p: A(f"v_cndmask_b32 v{p}, v{p}, v{p+1}, {MP}"))
    stage(lambda t, sp, c, p: A(f"v_cndmask_b32 v{p+1}, v{p+2}, v{p+3}, {MP}"))
    stage(lambda t, sp, c, p: A(f"v_cndmask_b32 v{c}, v{p}, v{c}, {MA}"))
    stage(lambda t, sp, c, p: A(f"v_cndmask_b32 v{c+1}, v{p+1}, v{c+1}, {MB_}"))
    stage(lambda t, sp, c, p: A(f"v_mul_f32 v{c}, v{c}, v{FQ+2*t}"))
    stage(lambda t, sp, c, p: A(f"v_mul_f32 v{c+1}, v{c+1}, v{FQ+2*t+1}"))
    for sp in range(2):
        c = Sc(0, sp)
        A(f"v_cndmask_b32 v{c}, v{T+11}, v{c}, {VA_}")
        A(f"v_cndmask_b32 v{c+1}, v{T+11}, v{c+1}, {VB_}")
    P = [Sp(t, sp) for (t, sp) in units]
    quads = [P[0:4], P[4:8]]
    def xreduce(op, mid=None, filler=()):
        fl = list(filler)
        def pad(n):
            for _ in range(n): A(fl.pop(0) if fl else "s_nop 0")
        for q in quads:
            A(f"v_permlane16_swap_b32 v{q[0]}, v{q[1]}"); A(f"v_permlane16_swap_b32 v{q[2]}, v{q[3]}")
        for q in quads:
            A(f"{op} v{q[0]}, v{q[0]}, v{q[1]}"); A(f"{op} v{q[2]}, v{q[2]}, v{q[3]}")
        pad(1)
        for q in quads: A(f"v_permlane32_swap_b32 v{q[0]}, v{q[2]}")
        for q in quads: A(f"{op} v{q[0]}, v{q[0]}, v{q[2]}")
        if mid:
            for q in quads: A(f"{mid} v{q[0]}, v{q[0]}")
            pad(1)
        for q in quads: A(f"v_mov_b32 v{q[2]}, v{q[0]}")
        pad(1)
        for q in quads: A(f"v_permlane32_swap_b32 v{q[0]}, v{q[2]}")
        for q in quads:
            A(f"v_mov_b32 v{q[1]}, v{q[0]}"); A(f"v_mov_b32 v{q[3]}, v{q[2]}")
        pad(0)
        for q in quads:
            A(f"v_permlane16_swap_b32 v{q[0]}, v{q[1]}"); A(f"v_permlane16_swap_b32 v{q[2]}, v{q[3]}")
        for x in fl: A(x)
    fblock()
    stage(lambda t, sp, c, p: A(f"v_max_f32 v{p}, v{c}, v{c+1}"))
    xreduce("v_max_f32")
    fblock()
    stage(lambda t, sp, c, p: A(f"v_sub_f32 v{c}, v{c}, v{p}"))
    stage(lambda t, sp, c, p: A(f"v_sub_f32 v{c+1}, v{c+1}, v{p}"))
    stage(lambda t, sp, c, p: A(f"v_exp_f32 v{c}, v{c}"))
    stage(lambda t, sp, c, p: A(f"v_exp_f32 v{c+1}, v{c+1}"))
    fblock()
    stage(lambda t, sp, c, p: A(f"v_add_f32 v{p}, v{c}, v{c+1}"))
    fl = []
    for (t, sp) in units:
        c = Sc(t, sp)
        fl += [f"v_mul_f32 v{c}, v{c}, v{RSK+2*t}", f"v_mul_f32 v{c+1}, v{c+1}, v{RSK+2*t+1}"]
    xreduce("v_add_f32", mid="v_rcp_f32", filler=fl)
    stage(lambda t, sp, c, p: A(f"v_mul_f32 v{c}, v{c}, v{p}"))
    stage(lambda t, sp, c, p: A(f"v_mul_f32 v{c+1}, v{c+1}, v{p}"))
    stage(lambda t, sp, c, p: A(f"v_cvt_pk_bf16_f32 v{c}, v{c}, v{c+1}"))
    fblock()
    for i in range(4):
        stage(lambda t, sp, c, p: A(f"v_perm_b32 v{p+i}, v{c}, v{c}, v{SEL+i}"))
    for (t, sp) in units:
        for e in range(2):
            d = OQ[(t, sp)] if e == 0 else Sc(t, sp)
            v = VT(2 * sp + e) + 2 * t
            A(f"v_mfma_f32_16x16x32_bf16 {vr(d,4)}, {vr(v,4)}, {vr(Sp(t,sp),4)}, 0")
    A(f"s_lshl_b32 s60, s{S_MB}, 3")
    A(f"s_lshl_b32 s61, s{S_W}, 1")
    A("s_add_u32 s60, s60, s61")
    A("s_mul_i32 s60, s60, 144")
    A(f"s_lshl_b32 s61, s{S_NT}, 1")
    A("s_add_u32 s60, s60, s61")
    A(f"s_lshr_b32 s61, s{S_W}, 1")
    A("s_add_u32 s62, s60, s61")
    A("s_xor_b32 s61, s61, 1")
    A("s_add_u32 s63, s60, s61")
    A("s_lshl_b32 s62, s62, 11")
    A("s_lshl_b32 s63, s63, 11")
    for (t, sp) in units:
        a, b = OQ[(t, sp)], Sc(t, sp)
        A(f"v_cvt_pk_bf16_f32 v{b+3}, v{b+2}, v{b+3}")
        A(f"v_cvt_pk_bf16_f32 v{b+2}, v{b}, v{b+1}")
        A(f"v_cvt_pk_bf16_f32 v{b}, v{a}, v{a+1}")
        A(f"v_cvt_pk_bf16_f32 v{b+1}, v{a+2}, v{a+3}")
    assert nf[0] == 4
    recheck("e")
    A(f"s_bitcmp1_b32 s{P2.S_GOT}, 4")
    A("s_cbranch_scc0 L_k1_noearly")
    for k in range(4):
        A(f"s_bitcmp1_b32 s{P2.S_GOT}, {k}")
        A(f"s_cbranch_scc1 L_k1_have{k}")
        A(floads([k]))
        A.label(f"L_k1_have{k}")
    A.label("L_k1_noearly")
    A(f"s_bitcmp1_b32 s{S_W}, 0")
    A("s_cbranch_scc0 L_k1_noswap")
    for (t, sp) in units:
        a = Sc(t, sp)
        A(f"v_swap_b32 v{a}, v{a+2}")
        A(f"v_swap_b32 v{a+1}, v{a+3}")
    A.label("L_k1_noswap")
    for (t, sp) in units:
        a = Sc(t, sp)
        A(f"s_add_u32 s64, s{62+sp}, {(t>>1)*144*2048:#x}")
        A(f"buffer_store_dwordx4 v[{a}:{a+3}], v{V_L16}, {sq(S_SRDO)}, s64 offen offset:{(t&1)*1024} sc1")

def wflag(off, src=None):
    return (f"s_lshl_b32 s60, s2, 2\ns_add_u32 s60, s60, s{S_W}\ns_lshl_b32 s60, s60, 7\ns_add_u32 s60, s60, {SD_WF:#x}\ns_mov_b64 exec, 1\n"
            f"buffer_store_dwordx2 {src or ar(A_TAG,2)}, off, {sq(S_SRDS)}, s60 offset:{off} sc1\ns_mov_b64 exec, -1")

class P2:
    N1, N2, NH, NU = 14, 16, 20, 12
    NS = N1 + N2
    SA, SW2, SWO, SX, SB, SO, SP, SF = S_SRDO, S_SRDP, 8, S_SRDA, 32, 44, S_SRDB, S_SRDS
    S_SW, S_SA, S_M0, S_PS, S_MT, S_W0, S_A0, S_SLOT, S_COL, S_GOT = 21, 22, 23, 24, 43, 20, 42, 100, 101, 67
    VD = [224, 225, 229, 230]
    VL, VA, VFA, VR, VP, T = V_L16, 226, 231, 232, 244, 248
    AB = [16, 48, 80, 112, 144, 176, 192, 208]
    FB = [0, 32, 64, 96, 128, 160]
    PD = 4
    @staticmethod
    def cum(s): return 2 * s if s <= P2.N1 else 2 * P2.N1 + (s - P2.N1)
    @staticmethod
    def half(s, c): return (P2.cum(s) + c + 11) % P2.NH
    S_TB = 40
    @staticmethod
    def setoff(reg, base, s, sh):
        if s >= P2.N1: return f"s_mov_b32 s{reg}, {(s - P2.N1) << sh:#x}"
        if s >= 12: return f"s_add_u32 s{reg}, s{base}, {s << sh:#x}"
        return f"s_bfe_u32 s{reg}, s{P2.S_TB + s // 8}, {(4 << 16) | (4 * (s % 8)):#x}\ns_lshl_b32 s{reg}, s{reg}, {sh}\ns_add_u32 s{reg}, s{reg}, s{base}"
    @staticmethod
    def adv(reg, base, s, unit): return P2.setoff(reg, base, s + 1, unit.bit_length() - 1)
    @staticmethod
    def table(kind, i0):
        rel = [(0, 0), (0, 1), (0, 2)] + [(k, r) for r in range(3) for k in (1, 2, 3)] if kind == "w1" else \
              [(k, r) for r in range(3) for k in range(4)]
        v = 0
        for n, (k, r) in enumerate(rel): v |= (3 * ((i0 + k) & 3) + r) << (4 * n)
        return v
    @staticmethod
    def dmas(s):
        W = P2.SW2 if s < P2.N1 else P2.SWO
        n = 4 if s < P2.N1 else 2
        return [(f"s_add_u32 m0, s{P2.S_M0}, {P2.half(s, q >> 1)*8192 + (q & 1)*1024:#x}",
                 f"buffer_load_dwordx4 v{P2.VD[q]}, {sq(W)}, s{P2.S_SW} offen lds",
                 P2.adv(P2.S_SW, P2.S_W0, s, 0x20000) if q == n - 1 else None) for q in range(n)]

def p2_pre_setup(T, kind):
    VD = P2.VD
    return [f"v_lshrrev_b32 v{T}, 7, v{V_L16}", f"v_lshlrev_b32 v{T}, 11, v{T}",
            f"v_bfe_u32 v{T+1}, v{V_L16}, 5, 2", f"v_lshrrev_b32 v{T+2}, 8, v{V_L16}", f"v_xor_b32 v{T+1}, v{T+1}, v{T+2}",
            f"v_lshl_add_u32 v{T}, v{T+1}, 5, v{T}", f"v_and_b32 v{T+1}, 16, v{V_L16}", f"v_add_u32 v{T}, v{T}, v{T+1}",
            f"s_lshr_b32 s3, s2, 5\ns_lshl_b32 s3, s3, 1\ns_bfe_u32 s{P2.S_M0}, s2, 0x10001\ns_add_u32 s3, s3, s{P2.S_M0}\ns_lshl_b32 s{P2.S_PS}, s3, 7",
            f"s_lshl_b32 s3, s{S_W}, 15\ns_add_u32 s3, s3, s{P2.S_PS}\nv_add_u32 v{VD[0]}, s3, v{T}",
            f"v_add_u32 v{VD[1]}, 0x4000, v{VD[0]}", f"v_xor_b32 v{VD[2]}, 0x80, v{VD[0]}", f"v_xor_b32 v{VD[3]}, 0x80, v{VD[1]}",
            f"s_lshl_b32 s{P2.S_M0}, s{S_W}, 11",
            f"s_bfe_u32 s3, s2, 0x20001\ns_mul_i32 s{P2.S_W0}, s3, {896*2048}",
            ] + [f"s_bfe_u32 s3, s2, 0x20005\ns_cmp_eq_u32 s3, {i0}\n" +
                 "\n".join((f"s_mov_b32 s{P2.S_TB+h}, {w:#x}" if i0 == 0 else f"s_cselect_b32 s{P2.S_TB+h}, {w:#x}, s{P2.S_TB+h}")
                           for h, w in enumerate((P2.table(kind, i0) & 0xffffffff, P2.table(kind, i0) >> 32))) for i0 in range(4)] + \
           [P2.setoff(P2.S_SW, P2.S_W0, 0, 17)]

def p2_pre_setup2(T):
    VL, VA, VFA, S_MT, S_A0 = V_L16, P2.VA, P2.VFA, P2.S_MT, P2.S_A0
    return [f"s_mov_b32 s{P2.S_COL}, s{P2.S_PS}\ns_mov_b32 s{P2.S_GOT}, 0",
            f"s_lshl_b32 s3, s{S_MB}, 2\ns_add_u32 s3, s3, s{S_W}\ns_lshl_b32 s3, s3, 1\ns_bfe_u32 s{S_MT}, s2, 0x10002\ns_add_u32 s{S_MT}, s{S_MT}, s3",
            f"s_mul_i32 s3, s{S_MT}, {144*2048}\nv_add_u32 v{VA}, s3, v{VL}",
            f"s_xor_b32 s3, s{S_MT}, 1\ns_mul_i32 s3, s3, {144*2048}\nv_add_u32 v{VA+1}, s3, v{VL}",
            f"s_bfe_u32 s3, s2, 0x20001\ns_mul_i32 s{S_A0}, s3, {28*2048}\ns_add_u32 s{S_A0}, s{S_A0}, {32*2048}",
            P2.setoff(P2.S_SA, S_A0, 3, 12),
            f"v_bfe_u32 v{T}, v{VL}, 4, 2", f"v_lshlrev_b32 v{T+1}, 1, v{T}", f"v_xor_b32 v{VFA}, s2, v{T+1}", f"v_bfe_u32 v{T+2}, v{VL}, 6, 2",
            f"v_lshl_add_u32 v{T+1}, v{T+2}, 5, v{T+1}",
            f"s_and_b32 s3, s2, 0x19\ns_or_b32 s3, s3, 0x80\ns_mov_b32 exec_hi, 0\nv_add_u32 v{VFA}, s3, v{T+1}\ns_mov_b32 exec_hi, -1",
            f"s_bfe_u32 s3, s2, 0x20005\nv_add_u32 v{T}, s3, v{T}", f"v_and_b32 v{T}, 3, v{T}", f"v_lshlrev_b32 v{T}, 5, v{T}",
            f"s_and_b32 s3, s2, 0x1f\ns_mov_b64 exec, 0xffff\nv_add_u32 v{VFA}, s3, v{T}\ns_mov_b64 exec, -1",
            f"v_lshlrev_b32 v{VFA}, 9, v{VFA}",
            f"s_lshl_b32 s3, s{S_W}, 7\ns_add_u32 s3, s3, {SD_WF:#x}\nv_add_u32 v{VFA}, s3, v{VFA}"]

def floads(ps):
    o = []
    for p in ps:
        o.append(P2.setoff(60, P2.S_A0, p >> 1, 12))
        for t in range(4):
            o.append(f"buffer_load_dwordx4 {vr(P2.FB[p]+4*t, 4)}, v{P2.VA + (t >> 1)}, {sq(P2.SA)}, s60 offen offset:{(p & 1)*2048 + (t & 1)*1024} sc1")
    return "\n".join(o)

def gen_p2(A, stamp):
    st = Stamp(stamp, 2)
    N1, NS, NH, NU = P2.N1, P2.NS, P2.NH, P2.NU
    SA, SW2, SWO, SX, SB, SO, SP, SF = P2.SA, P2.SW2, P2.SWO, P2.SX, P2.SB, P2.SO, P2.SP, P2.SF
    S_SA, S_PS, S_MT, S_W0, S_A0, S_SLOT, S_COL = P2.S_SA, P2.S_PS, P2.S_MT, P2.S_W0, P2.S_A0, P2.S_SLOT, P2.S_COL
    VL, VA, VFA, VR, VP, T, AB, FB = P2.VL, P2.VA, P2.VFA, P2.VR, P2.VP, P2.T, P2.AB, P2.FB
    cum, half = P2.cum, P2.half
    A.label("L_k2_start")
    st.mark(A)
    A("s_load_dwordx2 s[48:49], s[0:1], 16")
    A("s_load_dwordx4 s[52:55], s[0:1], 56")
    A(f"v_bfe_u32 v{T}, v{VL}, 6, 4")
    A(f"v_lshlrev_b32 v{T}, 7, v{T}")
    A(f"v_bfe_u32 v{T+1}, v{VL}, 4, 2")
    A(f"v_lshl_add_u32 v{T}, v{T+1}, 3, v{T}")
    A(f"v_bfe_u32 v{T+1}, v{VL}, 7, 2")
    for jj in range(4):
        A(f"v_xor_b32 v{T+2}, {jj}, v{T+1}")
        A(f"v_lshl_add_u32 v{VR+jj}, v{T+2}, 5, v{T}")
        A(f"v_add_u32 v{VR+4+jj}, 0x10000, v{VR+jj}")
    A("s_barrier")
    def quad(q, m): return AB[2 * q + (m >> 2)] + (m & 3) * 4
    def acc(t, j): return quad(2 * (t >> 1) + (j >> 2), (j & 3) * 2 + (t & 1))
    def acc2(t, j):
        m = j * 2 + t
        return FB[m >> 2] + (m & 3) * 4
    def ua(s): return cum(s) - 6
    def af(s, ks, t):
        if s < 3: return vr(FB[2 * s + ks] + 4 * t, 4)
        return ar(64 + ((ua(s) + (t >> 1)) % NU) * 16 + (ks * 2 + (t & 1)) * 4, 4)
    SK = par("p2sk", 1)
    units = []
    for s in range(N1 - SK): units += [(s, j, (0, 1, 2, 3)) for j in range(8)]
    for s in range(N1 - SK, N1): units += [(s, j, (0, 1, 2, 3)) for j in range(4, 8)]
    if par("p2split", 1):
        for ts in ((2, 3), (0, 1)):
            for s in range(N1 - SK, N1): units += [(s, j, ts) for j in range(4)]
    else:
        for s in range(N1 - SK, N1): units += [(s, j, (0, 1, 2, 3)) for j in range(4)]
    for s in range(N1, NS): units += [(s, j, (0, 1)) for j in range(4)]
    def wf(u, ks): return ((u % 8) * 2 + ks) * 4
    def read(u, ks, p):
        s, j, _ = units[u]
        hi, so = divmod(half(s, j >> 2), 8)
        return f"ds_read_b64_tr_b16 {ar(wf(u, ks) + 2*p, 2)}, v{VR + hi*4 + (j & 3)} offset:{so*8192 + ks*4096 + p*2048}"
    vm, lg = Score(63), Score(15)
    for u in range(3):
        for q in range(4): A(read(u, q >> 1, q & 1)); lg.issue(("W", u))
    for jj in range(4):
        A(f"v_add_u32 v{VR+8+jj}, 0x20000, v{VR+jj}")
    A(f"s_mul_i32 s{S_PS}, s{S_W}, 12288")
    A(f"s_lshr_b32 s{S_SLOT}, s2, 3")
    A(f"s_lshl_b32 s{S_SLOT}, s{S_SLOT}, 2")
    A(f"s_add_u32 s{S_SLOT}, s{S_SLOT}, s{S_W}")
    def mkpoll(lo, hi, off):
        return (f"s_mov_b32 exec_lo, {lo:#x}\ns_mov_b32 exec_hi, {hi:#x}\n"
                f"buffer_load_dwordx2 v[{VP}:{VP+1}], v{VFA}, {sq(SF)}, 0 offen offset:{off} sc1\ns_mov_b64 exec, -1")
    poll = mkpoll(15, 0, 0)
    def pchk(which, mask):
        m = f"s_and_b32 s3, vcc_lo, {mask:#x}" if mask >= 0 else "s_cmp_lg_u64 vcc, 0"
        return f"v_cmp_ne_u64 vcc, s[56:57], v[{VP}:{VP+1}]\ns_nop 1\n{m}"
    spins = []
    def spin_code(name, chk, poll=poll):
        return (f"L_sp_{name}:\ns_mov_b32 s61, 0\nL_sp1_{name}:\ns_sleep 1\n{poll}\ns_waitcnt vmcnt(0)\ns_add_u32 s61, s61, 1\n"
                f"s_cmp_gt_u32 s61, 0x20000\ns_cbranch_scc1 L_bk_{name}\n{chk}\ns_cbranch_scc1 L_sp1_{name}\ns_branch L_bk_{name}")
    def check(name, which, mask):
        spins.append(spin_code(name, pchk(which, mask), mkpoll(mask, 0, 8 * which)))
        return pchk(which, mask) + f"\ns_cbranch_scc1 L_sp_{name}\nL_bk_{name}:"
    A("s_cmp_lt_u32 s2, 128")
    A("s_cbranch_scc1 L_p2_go")
    A(f"s_cmp_lg_u32 s{P2.S_GOT}, 0")
    A("s_cbranch_scc1 L_p2_go")
    spins.append(spin_code("qa", pchk(0, 3), mkpoll(3, 0, 0)))
    A("s_branch L_sp_qa")
    A.label("L_bk_qa")
    A(floads(range(4)))
    A.label("L_p2_go")
    for p in range(4):
        for t in range(4): vm.issue(("F", p))
    for p in range(2): vm.idx[("F", p)] = vm.idx[("F", 1)]

    st.mark(A)
    S = Stream(vm, lg)
    ufirst, ulast, fin, sfirst = [], [], {}, {}
    seen = set(); n = 0
    for u, (s, j, ts) in enumerate(units):
        ts = list(ts) if u % 2 == 0 else list(reversed(ts))
        for t in ts:
            kk = (0, 1) if n % 2 == 0 else (1, 0)
            for ks in kk:
                c = acc(t, j) if s < N1 else acc2(t, j)
                cin = vr(c, 4) if c in seen else "0"
                seen.add(c)
                need = [("lg", ("W", u)), ("vm", ("F", min(2 * s + ks, 4)) if s < 3 else ("A", s, t >> 1))]
                idx = S.add_mfma(f"v_mfma_f32_16x16x32_bf16 {vr(c,4)}, {ar(wf(u, ks), 4)}, {af(s, ks, t)}, {cin}", need)
                if len(ufirst) == u: ufirst.append(idx)
                sfirst.setdefault(s, idx)
            fin[(s, t, j)] = idx
            n += 1
        ulast.append(idx)
    NM = len(S.mf)
    bars = []
    for s in range(1, NS):
        u0 = min(u for u, x in enumerate(units) if x[0] == s)
        pos = (ulast[u0 - 8] if u0 >= 8 else 0) - 2
        if bars and pos - bars[-1][0] < par("p2barmin", 12): bars[-1][1].append(s)
        else: bars.append([max(pos, 1), [s]])
    k = 0
    while k + 1 < len(bars):
        if bars[k + 1][0] - bars[k][0] > 96: bars.insert(k + 1, [bars[k][0] + 64, []])
        k += 1
    FLAGB = par("p2flagb", 1)
    barpos = {}
    for k, (pos, steps) in enumerate(bars):
        nd = [("vm", ("D", s)) for s in steps if s >= P2.PD]
        S.gaps[pos].append(("barv", None, None, nd))
        for s in steps: barpos[s] = pos
    i = 0
    for u in range(3, 8):
        for q in range(4): i = S.place(i, "ds", read(u, q >> 1, q & 1), gives=("W", u) if q == 3 else None) + 1
    for u in range(8, len(units)):
        i = ulast[u - 8]
        wide = len(units[u - 7][2]) == 4 and u > 12
        for q in (2, 3, 0, 1):
            i = S.place(i, "ds", read(u, q >> 1, q & 1), gives=("W", u) if q == 1 else None, spill=True) + (2 if wide else 1)
    def half_free(s, c):
        ul = max(u for u, x in enumerate(units) if x[0] == s and (x[1] >> 2) == c)
        return min([pos for pos, _ in bars if pos > ufirst[ul]] + [NM]) + 1
    owner_h = {}; owner_u = {}
    Dq, Aq, Tq = [], [], []
    for s in range(NS):
        nh = 2 if s < N1 else 1
        for q, (m0, d, post) in enumerate(P2.dmas(s)):
            h = half(s, q >> 1)
            e = half_free(*owner_h[h]) if (h in owner_h and owner_h[h] != (s, q >> 1)) else 0
            if q & 1: owner_h[h] = (s, q >> 1)
            elif h not in owner_h: owner_h[h] = (s, q >> 1)
            if s >= P2.PD: Dq.append((e, barpos[s], m0, d + ("\n" + post if post else ""), ("D", s) if post else None))
    CK = {3: sfirst[1] + par("p2c1", -12), 4: sfirst[1] + par("p2c2", 50), 8: sfirst[5], N1: sfirst[7]}
    for s in range(3, NS):
        na = 2 if s < N1 else 1
        gate = max(v for k_, v in CK.items() if k_ <= s) + 1
        for a in range(na):
            un = (ua(s) + a) % NU
            e = gate
            if un in owner_u:
                s0, a0 = owner_u[un]
                e = max(e, max(v for (s_, t_, j_), v in fin.items() if s_ == s0 and (t_ >> 1) == a0) + 1)
            owner_u[un] = (s, a)
            for q in range(4):
                ks, t = q >> 1, q & 1
                txt = f"buffer_load_dwordx4 {af(s, ks, 2*a+t)}, v{VA+a}, {sq(SA)}, s{S_SA} offen offset:{ks*2048 + t*1024} sc1"
                if a == na - 1 and q == 3: txt += "\n" + P2.adv(S_SA, S_A0, s, 4096)
                Aq.append((e, sfirst[s], None, txt, ("A", s, a) if q == 3 else None))
    def T_(pos, txt, gives=None, needs=()): Tq.append((pos, txt, gives, list(needs)))
    T_(par("p2flagb", 90), wflag(16), needs=[("vm", ("F", 3))])
    S.gaps[CK[3] + 1].append(("mark", "s_cmp_lt_u32 s2, 128\ns_cbranch_scc1 L_p2_nof\n" + floads((4, 5)) + "\nL_p2_nof:", ("F", 4), []))
    LAT = par("p2plat", 48)
    for nm, s_, which, mask in (("c1", 3, 0, 14), ("c2", 4, 1, 15), ("c4", 8, 2, 15), ("c5", N1, 2, 0xffff0000)):
        T_(CK[s_] - LAT, mkpoll(mask, 0, 8 * which), ("PL", nm))
        S.gaps[CK[s_]].append(("s", check(nm, which, mask), None, [("vm", ("PL", nm))]))
    S.gaps[sfirst[1]].append(("s", "s_waitcnt lgkmcnt(0)\n" + "\n".join(
        f"s_mov_b32 s{d}, s{lo}\ns_mov_b32 s{d+1}, s{lo+1}\ns_mov_b32 s{d+2}, {nb:#x}\ns_mov_b32 s{d+3}, 0x20000"
        for d, lo, nb in ((SWO, 48, 1024 * 2048), (SB, 52, 2048), (SO, 54, 4 << 20))), None, []))
    for at in PAR.get("cpf3", "2:9").split(":"):
        T_(sfirst[int(at)] + 8, f"s_getpc_b64 s[48:49]\nL_k2_pc3_{at}:\ns_mov_b32 s50, L_k2_spin-L_k2_pc3_{at}\ns_mov_b32 s51, 0x20000\n"
           f"s_lshl_b32 s61, s{S_SLOT}, 8\nv_lshlrev_b32 v{T+6}, 3, v{VL}\ns_mov_b64 exec, 3\n"
           f"buffer_load_dword v{T+7}, v{T+6}, s[48:51], s61 offen\ns_mov_b64 exec, -1")
    for x in PAR.get("k2slow", "0:0:14+3:14:16").split("+"):
        if not x: continue
        wh, f, n_ = map(int, x.split(":"))
        base = f"s_add_u32 s61, s61, s{S_W0}\n" if f < N1 else ""
        T_(sfirst[wh] + 4, f"s_mul_i32 s61, s{S_SLOT}, {n_*1024}\n{base}s_add_u32 s61, s61, {(f if f < N1 else f - N1)*0x20000:#x}\n"
           f"v_lshlrev_b32 v{T+6}, 6, v{VL}\ns_mov_b64 exec, {(1 << n_) - 1:#x}\n"
           f"buffer_load_dword v{T+7}, v{T+6}, {sq(SW2 if f < N1 else SWO)}, s61 offen offset:384\ns_mov_b64 exec, -1")
    XT, MISC, SCR = FB[2], FB[3], FB[4]
    B2R, B2U, VRS, VX = MISC, MISC + 4, MISC + 12, MISC + 14
    T_(sfirst[5] + 8, f"v_and_b32 v{T+6}, 0x70, v{VL}\nbuffer_load_dwordx4 {vr(B2R,4)}, v{T+6}, {sq(SB)}, s{S_COL} offen")
    for t in range(2):
        T_(sfirst[8] + 8, f"s_lshl_b32 s60, s{S_MT}, 7\ns_add_u32 s60, s60, {SD_RS:#x}\nv_bfe_u32 v{T+6}, v{VL}, 4, 4\nv_lshlrev_b32 v{T+6}, 2, v{T+6}\n"
           f"buffer_load_dword v{VRS+t}, v{T+6}, {sq(SF)}, s60 offen offset:{64*t} sc1")
    xl = sfirst[par("k2xld", 9)] + 8
    S.gaps[xl - 2].append(("s", f"v_lshrrev_b32 v{VX}, 7, v{VL}\nv_lshlrev_b32 v{VX}, 11, v{VX}\nv_and_b32 v{VX+1}, 0x70, v{VL}\nv_add_u32 v{VX}, v{VX}, v{VX+1}\n"
                           f"s_lshl_b32 s60, s{S_MT}, 16\ns_add_u32 s60, s60, s{S_COL}\nv_add_u32 v{VX}, s60, v{VX}", None, []))
    for q in range(4):
        T_(xl, f"s_mov_b32 s60, {q*8*2048:#x}\nbuffer_load_dwordx4 {vr(XT+4*q,4)}, v{VX}, {sq(SX)}, s60 offen", "XL" if q == 3 else None)
    sent = {}
    for d in (1, 3, 2):
        a, b = d >> 1, d & 1
        for q in range(4):
            j = 4 * b + q
            lo = max(fin[(N1 - 1, t, j)] for t in (2 * a, 2 * a + 1)) + 8
            r0, r1 = quad(d, 2 * q), quad(d, 2 * q + 1)
            i = lo
            for o in (f"v_cvt_pk_bf16_f32 v{r0}, v{r0}, v{r0+1}", f"v_cvt_pk_bf16_f32 v{r0+1}, v{r0+2}, v{r0+3}",
                      f"v_cvt_pk_bf16_f32 v{r0+2}, v{r1}, v{r1+1}", f"v_cvt_pk_bf16_f32 v{r0+3}, v{r1+2}, v{r1+3}"):
                i = S.place(i, "s", o, cap=2)
            T_(i + 1, f"s_mul_i32 s60, s2, 49152\ns_add_u32 s60, s60, s{S_PS}\ns_add_u32 s60, s60, {(d-1)*4096}\n"
               f"buffer_store_dwordx4 {vr(r0,4)}, v{VL}, {sq(SP)}, s60 offen offset:{q*1024} sc1", ("SN", d, q))
            sent[d] = i + 1
    def recv(d, q):
        return (f"s_xor_b32 s60, s2, {d << 1}\ns_mul_i32 s60, s60, 49152\ns_add_u32 s60, s60, s{S_PS}\ns_add_u32 s60, s60, {(d-1)*4096}\n"
                f"buffer_load_dwordx4 {vr(quad(d, 2*q+1),4)}, v{VL}, {sq(SP)}, s60 offen offset:{q*1024} sc1")
    tagv = f"v_mov_b32 v{T+4}, s56\nv_mov_b32 v{T+5}, s57\n"
    SL, FL, PL2 = par("p2sl", 50), par("p2fl", 30), par("p2pl", 40)
    for nm, ds_, which, mask in (("x1", (1, 3), 0, 0xa), ("x2", (2,), 1, 0x4)):
        fpos = max(sent[d] for d in ds_) + SL
        T_(fpos, tagv + wflag(32 + 8 * which, vr(T + 4, 2)), needs=[("vm", ("SN", d, q)) for d in ds_ for q in range(4)])
        ppos = min(fpos + FL, NM - 12)
        cpos = min(ppos + PL2, NM - 6)
        T_(ppos, mkpoll(0, mask, 32 + 8 * which), ("PL", nm))
        chk_ = f"v_cmp_ne_u64 vcc, s[56:57], v[{VP}:{VP+1}]\ns_nop 1\ns_and_b32 s3, vcc_hi, {mask:#x}"
        spins.append(spin_code(nm, chk_, mkpoll(0, mask, 32 + 8 * which)))
        first_ = True
        for d in ds_:
            for q in range(4):
                if first_: T_(cpos, chk_ + f"\ns_cbranch_scc1 L_sp_{nm}\nL_bk_{nm}:\n" + recv(d, q), needs=[("vm", ("PL", nm))])
                else: T_(cpos, recv(d, q), ("RC", d) if q == 3 else None)
                first_ = False
        if "verbose" in OPT: print(nm, "sent", [sent[d] for d in ds_], "flag", fpos, "poll", ppos, "check", cpos, "NM", NM, "N1 at", sfirst[N1], file=sys.stderr)
    Tq.sort(key=lambda x: x[0])
    G1, G2 = par("p2g1", 4), par("p2g2", 2)
    p = 1
    while Tq or Dq or Aq:
        assert p < NM + 400
        pp = min(p, NM - 2)
        cand = None
        if Tq and Tq[0][0] <= p:
            _, txt, gv, nd = Tq.pop(0); S.place(pp + 1, "vmX", txt, gives=gv, cap=99, needs=nd); cand = 1
        else:
            hs = [q for q in (Dq, Aq) if q and q[0][0] <= p]
            if hs:
                q = min(hs, key=lambda q: q[0][1])
                e, dl, m0, txt, gv = q.pop(0)
                assert p < dl, f"load misses its deadline {p} {dl} {txt}"
                if m0: S.place(pp, "s", m0, cap=99); lastD = pp + 1
                S.place(pp + 1, "vmD" if m0 else "vmA", txt, gives=gv, cap=99); cand = 1
        urgent = Aq and Aq[0][0] <= p and Aq[0][1] - p < par("p2urg", 110)
        if cand: p += (G1 if p < sfirst[N1] and not urgent else G2)
        else: p += 1
    eh = (half(NS - 1, 0) + 1) % NH
    if eh + 4 > NH: eh = 0
    assert all((eh + w) % NH not in (half(NS - 1, 0), half(NS - 2, 0), half(NS - 3, 0)) for w in range(4))
    EA = P2.VD
    XS = [FB[4], FB[4] + 8, FB[5], FB[5] + 8]
    pre = [f"s_lshl_b32 s62, s{S_W}, 13\ns_add_u32 s62, s62, {eh*8192}\ns_mov_b32 s63, 0xffff0000"]
    for i in range(4): pre += [f"v_lshlrev_b32 v{B2U+2*i}, 16, v{B2R+i}", f"v_and_b32 v{B2U+2*i+1}, s63, v{B2R+i}"]
    pre += [f"v_mul_f32 v{VRS}, v{VRS}, v{VRS}", f"v_mul_f32 v{VRS+1}, v{VRS+1}, v{VRS+1}"]
    for q in range(4):
        for i in range(4):
            pre += [f"v_lshlrev_b32 v{XS[q]+2*i}, 16, v{XT+4*q+i}", f"v_and_b32 v{XS[q]+2*i+1}, s63, v{XT+4*q+i}",
                    f"v_add_f32 v{XS[q]+2*i}, v{XS[q]+2*i}, v{B2U+2*i}", f"v_add_f32 v{XS[q]+2*i+1}, v{XS[q]+2*i+1}, v{B2U+2*i+1}"]
    i = sfirst[12]
    for n_, o in enumerate(pre): i = S.place(i, "s", o, cap=2, needs=[("vm", "XL")] if n_ == 1 else [])
    assert i < sfirst[N1] + 60
    adr = [f"v_bfe_u32 v{T}, v{VL}, 4, 3", f"v_lshrrev_b32 v{T+1}, 8, v{VL}", f"v_xor_b32 v{T}, v{T}, v{T+1}", f"v_and_b32 v{T+1}, 0xf0, v{VL}",
           f"v_lshlrev_b32 v{T+1}, 4, v{T+1}", f"v_add_u32 v{T+1}, s62, v{T+1}", f"v_lshl_add_u32 v{EA[0]}, v{T}, 4, v{T+1}", f"v_xor_b32 v{T}, 4, v{T}",
           f"v_lshl_add_u32 v{EA[1]}, v{T}, 4, v{T+1}", f"v_lshrrev_b32 v{T}, 7, v{VL}", f"v_bfe_u32 v{T+1}, v{VL}, 4, 3", f"v_lshlrev_b32 v{T+1}, 1, v{T+1}",
           f"v_xor_b32 v{T+1}, v{T+1}, v{T}", f"v_lshlrev_b32 v{T}, 8, v{T}", f"v_add_u32 v{T}, s62, v{T}", f"v_lshl_add_u32 v{EA[2]}, v{T+1}, 4, v{T}",
           f"v_xor_b32 v{EA[3]}, 16, v{EA[2]}"]
    i = lastD + 2
    for o in adr: i = S.place(i, "s", o, cap=3, spill=True)
    U = XT
    def addops(d, final, packed):
        o = []
        for j in range(4):
            for t in range(2):
                c, c2 = acc(t, j), acc2(t, j)
                r0 = quad(d, 2 * j + 1) + 2 * t
                u = U + 4 * ((2 * j + t) & 3)
                for k in range(2): o += [f"v_lshlrev_b32 v{u+2*k}, 16, v{r0+k}", f"v_and_b32 v{u+2*k+1}, s63, v{r0+k}"]
                if packed: o += [f"v_pk_add_f32 v[{c+k}:{c+k+1}], v[{c+k}:{c+k+1}], v[{u+k}:{u+k+1}]" for k in (0, 2)]
                else: o += [f"v_add_f32 v{c+k}, v{c+k}, v{u+k}" for k in range(4)]
                if final: o += finops(t, j)
        return o
    def finops(t, j):
        c, c2 = acc(t, j), acc2(t, j)
        m = "op_sel_hi:[1,0,1]" if t == 0 else "op_sel:[0,1,0]"
        return [f"v_pk_fma_f32 v[{c+k}:{c+k+1}], v[{c+k}:{c+k+1}], v[{VRS}:{VRS+1}], v[{c2+k}:{c2+k+1}] {m}" for k in (0, 2)] + \
               [f"ds_write_b128 v{EA[j&1]}, v[{c}:{c+3}] offset:{t*4096 + (j>>1)*128}"]
    NIN = par("p2nin", 2)
    i = NM - par("p2acc", 64)
    for d in (1, 3, 2)[:NIN]:
        for n_, o in enumerate(addops(d, False, False)):
            i = S.place(i, "s", o, cap=par("p2acap", 3), spill=True, needs=[("vm", ("RC", d))] if n_ == 0 else [])
    if stamp:
        for s in map(int, PAR.get("k2marks", "3:7:14:22").split(":")): S.gaps[sfirst[s]].append(("s", st.text(), None, []))
    for x in S.emit("k2"): A(x)
    st.mark(A)
    for d in (1, 3, 2)[NIN:]:
        o = []; S.waits([("vm", ("RC", d))], o)
        for x in o + addops(d, d == 2, True): A(x)
    if NIN == 3:
        A("s_nop 7")
        for j in range(4):
            for t in range(2):
                for x in finops(t, j): A(x)
    A("s_waitcnt lgkmcnt(0)")
    RB = 192
    for q in range(4):
        A(f"ds_read_b128 v[{RB+8*q}:{RB+8*q+3}], v{EA[2]} offset:{q*2048}")
        A(f"ds_read_b128 v[{RB+8*q+4}:{RB+8*q+7}], v{EA[3]} offset:{q*2048}")
    for q in range(4):
        A(f"s_waitcnt lgkmcnt({6-2*q})")
        for i in range(4): A(f"v_pk_add_f32 v[{XS[q]+2*i}:{XS[q]+2*i+1}], v[{XS[q]+2*i}:{XS[q]+2*i+1}], v[{RB+8*q+2*i}:{RB+8*q+2*i+1}]")
        for i in range(4): A(f"v_cvt_pk_bf16_f32 v{8+4*q+i}, v{XS[q]+2*i}, v{XS[q]+2*i+1}")
        A(f"s_mov_b32 s60, {q*8*2048:#x}")
        A(f"buffer_store_dwordx4 v[{8+4*q}:{11+4*q}], v{VX}, {sq(SO)}, s60 offen sc1")
    st.flush(A, 58, 59, 112, f"s{S_W}")
    A("s_endpgm")
    A.label("L_k2_spin")
    for x in spins: A(x)

def main():
    ap = argparse.ArgumentParser()
    ap.add_argument("--stamp", action="store_true")
    ap.add_argument("-o", default=None)
    ap.add_argument("--opt", default="")
    ap.add_argument("--par", default="")
    a = ap.parse_args()
    OPT.update(x for x in a.opt.split(",") if x)
    PAR.update(dict(x.split("=") for x in a.par.split(",") if x))
    P2.PD = par("p2pd", 4)
    A = Asm()
    hdr = open("cdna_kernels/%s.s.ref" % NAME).read().split("\n")
    for line in hdr:
        if line.startswith(";") and "@launch" not in line and "Override" not in line and "grid=ceil" not in line:
            A.raw(line)
    aslist = a.stamp or "aslist" in OPT
    KN = "gemm1_kernel" if aslist else NAME + "_kernel"
    A.raw("; @launch %sgrid=(256,1,1) block=(256,1,1) lds=163840" % ("kernel=gemm1_kernel " if aslist else ""))
    A.raw('.amdgcn_target "amdgcn-amd-amdhsa--gfx950"\n.text')
    gen_k1(A, KN, a.stamp)
    gen_p2(A, a.stamp)
    if not any(o.startswith(('k1no', 'k2no')) for o in OPT): check_hazards(A.L)
    A.raw('.section .rodata,"a"')
    kernel_desc(A, KN, 512, 256)
    out = a.o or "cdna_kernels/%s.s" % NAME
    open(out, "w").write(A.text())

if __name__ == "__main__":
    main()
```
